```python
import torch

def _softmax(x, axis=-1):
    return torch.softmax(x, dim=axis)

def _gelu(x):
    return torch.nn.functional.gelu(x, approximate='tanh')

def _silu(x):
    return torch.nn.functional.silu(x)

def _sigmoid(x):
    return torch.sigmoid(x)

def _layernorm(x, axis=-1, eps=1e-05):
    m = x.mean(dim=axis, keepdim=True)
    v = x.var(dim=axis, keepdim=True, unbiased=False)
    return (x - m) / torch.sqrt(v + eps)

def _scatter_add(tgt, idx, src, axis=0):
    return tgt.clone().index_add_(axis, idx, src)

def _segment_sum(src, seg, n):
    out = torch.zeros((n,) + src.shape[1:], dtype=src.dtype)
    return out.index_add_(0, seg, src)

def _pad(x, pw):
    flat = tuple((v for pair in reversed(pw) for v in pair))
    return torch.nn.functional.pad(x, flat)
kernel_name = 'adaLN_cond__sliding_block_cached__dense_activation_silu__decode'

def setup_inputs():

    _w = lambda a: (lambda t: t.to(torch.bfloat16) if t.is_floating_point() else t)(torch.as_tensor(a))

    def _A_setup():
        B, Sq, D = (1, 1, 448)
        Hq, Hkv, Sk, Dh = (16, 8, 65536, 256)
        assert Hq % Hkv == 0, (Hq, Hkv)
        return {'x': _w((lambda *s: torch.randn(*s, dtype=torch.bfloat16) * 0.1)(B, Sq, D)), 'k_cache': _w((lambda *s: torch.randn(*s, dtype=torch.bfloat16) * 0.8)(B, Hkv, Sk, Dh)), 'v_cache': _w((lambda *s: torch.randn(*s, dtype=torch.bfloat16) * 3.2)(B, Hkv, Sk, Dh)), 'wq': _w((lambda *s: torch.randn(*s, dtype=torch.bfloat16) * 0.8)(D, Hq * Dh) * D ** (-0.5)), 'wo': _w((lambda *s: torch.randn(*s, dtype=torch.bfloat16) * 3.2)(Hq * Dh, D) * (Hq * Dh) ** (-0.5))}
    _A_in = _A_setup()

    def _B_setup():
        B, S, D, F = (1, 1, 448, 1792)
        return {'x': _w((lambda *s: torch.randn(*s, dtype=torch.bfloat16) * 0.1)(B, S, D)), 'w1': _w((lambda *s: torch.randn(*s, dtype=torch.bfloat16) * 3.2)(D, F) * D ** (-0.5)), 'w2': _w((lambda *s: torch.randn(*s, dtype=torch.bfloat16) * 3.2)(F, D) * F ** (-0.5))}
    _B_in = _B_setup()
    return {'A_x': _A_in['x'], 'A_k_cache': _A_in['k_cache'], 'A_v_cache': _A_in['v_cache'], 'A_wq': _A_in['wq'], 'A_wo': _A_in['wo'], 'B_x': _B_in['x'], 'B_w1': _B_in['w1'], 'B_w2': _B_in['w2'], 'c': _w((lambda *s: torch.randn(*s, dtype=torch.bfloat16) * 0.4)(1, 448) * 8.0), 'w_mod': _w((lambda *s: torch.randn(*s, dtype=torch.bfloat16) * 0.4)(448, 6 * 448) * 448 ** (-0.5) * 8.0)}

def reference(A_x, A_k_cache, A_v_cache, A_wq, A_wo, B_x, B_w1, B_w2, c, w_mod):

    def _A_ref(x, k_cache, v_cache, wq, wo):
        B, Sq, D = x.shape
        Hq, Dh = (16, 256)
        Hkv, Sk = (k_cache.shape[1], k_cache.shape[2])
        W = min(4096, max(256, Sk // 4))
        rep = Hq // Hkv
        q = (lambda x, *d: x.permute(*d))((x @ wq).reshape(B, Sq, Hq, Dh), 0, 2, 1, 3)
        k = (lambda x, n, axis: torch.repeat_interleave(x, n, dim=axis))(k_cache[:, :, Sk - W:, :], rep, axis=1)
        v = (lambda x, n, axis: torch.repeat_interleave(x, n, dim=axis))(v_cache[:, :, Sk - W:, :], rep, axis=1)
        scores = torch.einsum('bhqd,bhkd->bhqk', q, k) * Dh ** (-0.5)
        p = _softmax(scores, axis=-1)
        o = torch.einsum('bhqk,bhkd->bhqd', p, v)
        return (lambda x, *d: x.permute(*d))(o, 0, 2, 1, 3).reshape(B, Sq, Hq * Dh) @ wo

    def _B_ref(x, w1, w2):
        h = torch.einsum('bsd,df->bsf', x, w1)
        h = _silu(h)
        out = torch.einsum('bsf,fd->bsd', h, w2)
        return out
    x = A_x
    mod = (_silu(c) @ w_mod).reshape(c.shape[0], 6, 1, -1)
    sa, ca, ga, sb, cb, gb = (mod[:, 0].clone(), mod[:, 1].clone(), mod[:, 2].clone(), mod[:, 3].clone(), mod[:, 4].clone(), mod[:, 5].clone())
    h = _layernorm(x, axis=-1) * (1 + ca) + sa
    x = x + ga * _A_ref(h, A_k_cache, A_v_cache, A_wq, A_wo)
    h = _layernorm(x, axis=-1) * (1 + cb) + sb
    x = x + gb * _B_ref(h, B_w1, B_w2)
    return x
```

```python
import re

TRANS = ('v_exp_f32', 'v_log_f32', 'v_rcp_f32', 'v_rsq_f32', 'v_sqrt_f32', 'v_sin_f32', 'v_cos_f32')

def regs_of(op):
    op = op.strip()
    op = re.sub(r'^-|^abs\(|\)$|^\|', '', op).strip('|')
    m = re.fullmatch(r'([vsa])(\d+)', op)
    if m: return {(m.group(1), int(m.group(2)))}
    m = re.fullmatch(r'([vsa])\[(\d+):(\d+)\]', op)
    if m: return {(m.group(1), i) for i in range(int(m.group(2)), int(m.group(3)) + 1)}
    if op in ('vcc', 'vcc_lo', 'vcc_hi'): return {('x', 'vcc')}
    if op in ('exec', 'exec_lo', 'exec_hi'): return {('x', 'exec')}
    if op == 'm0': return {('x', 'm0')}
    return set()

class Ins:
    def __init__(self, text):
        self.text = text
        t = text.split(';')[0].strip()
        self.label = t.endswith(':')
        self.directive = t.startswith('.')
        self.mn = t.split()[0] if t else ''
        rest = t[len(self.mn):].strip()
        ops = [o.strip() for o in rest.split(',')] if rest else []
        self.mods = ''
        if ops:
            joined = rest
            mm = re.search(r'\s(quad_perm|row_|wave_|op_sel|offen|idxen|offset|sc0|sc1|nt\b|lds\b|glc|bitop3|neg_|clamp|mul:|div:|bound_ctrl|bank_mask|dst_sel|src0_sel|src1_sel|cbsz|abid|blgp)', ' ' + joined)
            if mm:
                self.mods = joined[mm.start():]
                joined = joined[:mm.start()]
            ops = [o.strip() for o in joined.split(',') if o.strip()]
        self.ops = ops
        mn = self.mn
        self.valu = mn.startswith('v_') and not mn.startswith('v_mfma')
        self.mfma = mn.startswith('v_mfma')
        self.ds = mn.startswith('ds_')
        self.vmem = mn.startswith(('buffer_', 'global_'))
        self.salu = mn.startswith('s_')
        self.dpp = self.valu and ('_dpp' in mn or 'quad_perm' in self.mods or 'row_' in self.mods)
        self.trans = any(mn.startswith(x) for x in TRANS)
        self.perml = mn.startswith('v_permlane')
        self.rdlane = mn.startswith(('v_readlane', 'v_readfirstlane'))
        self.dot = mn.startswith('v_dot')
        R = [regs_of(o) for o in ops]
        d = set(); u = set()
        if self.mfma:
            d = R[0]; u = R[1] | R[2] | R[3]; self.A = R[1] | R[2]; self.C = R[3]
        elif self.valu:
            if self.perml or mn.startswith('v_swap'):
                d = R[0] | R[1]; u = R[0] | R[1]
            elif mn.startswith(('v_add_co', 'v_sub_co', 'v_addc_co')):
                d = R[0] | R[1]; u = set().union(*R[2:])
            elif mn == 'v_nop':
                pass
            else:
                d = R[0]; u = set().union(*R[1:]) if len(R) > 1 else set()
                if mn.startswith(('v_fmac', 'v_dot2c', 'v_writelane')) or self.dpp: u |= R[0]
                if mn.startswith('v_cndmask') and len(ops) == 3: u |= {('x', 'vcc')}
        elif self.ds:
            if mn.startswith(('ds_read', 'ds_bpermute', 'ds_permute', 'ds_swizzle')) or '_rtn' in mn:
                d = R[0]; u = set().union(*R[1:])
            else: u = set().union(*R)
        elif self.vmem:
            isld = '_load' in mn
            if isld and (' lds' in (' ' + self.mods) or '_lds_' in mn): u = set().union(*R) | {('x', 'm0')}; self.ldsdma = True
            elif isld: d = R[0]; u = set().union(*R[1:])
            elif R: u = set().union(*R)
        elif self.salu:
            if mn.startswith(('s_cmp', 's_cbranch', 's_branch', 's_waitcnt', 's_nop', 's_barrier', 's_endpgm', 's_sleep', 's_setprio', 's_bitcmp')):
                u = set().union(*R) if R else set()
            elif R:
                d = R[0]; u = set().union(*R[1:]) if len(R) > 1 else set()
                if 'saveexec' in mn: d = d | {('x', 'exec')}; u |= {('x', 'exec')}
        self.d = d; self.u = u
        self.widestore = self.vmem and '_store' in mn and ('x4' in mn or 'x3' in mn)
        if self.widestore:
            self.sdata = R[0] if mn.startswith('buffer_') else R[1]
    def states(self):
        if self.label or self.directive or not self.mn: return 0
        if self.mn == 's_nop': return int(self.ops[0]) + 1
        return 1

def isv(s): return {r for r in s if r[0] in 'va'}
def iss(s): return {r for r in s if r[0] == 's' or r == ('x', 'vcc')}

def need(p, c):
    n = 0
    if p.valu:
        wv = isv(p.d); ws = iss(p.d)
        if wv:
            if c.dpp and wv & c.u: n = max(n, 2)
            if c.perml and wv & c.u: n = max(n, 2)
            if c.mfma and wv & c.u: n = max(n, 2)
            if c.rdlane and wv & c.u: n = max(n, 1)
            if p.trans and c.valu and wv & c.u: n = max(n, 1)
            if p.dot and (c.valu or c.mfma or c.ds or c.vmem) and wv & (c.u | c.d):
                if not (c.mn == p.mn and not (wv & (regs_of(c.ops[1]) | regs_of(c.ops[2])))): n = max(n, 3)
        if ws:
            if c.valu and ws & c.u: n = max(n, 4 if c.mn.startswith(('v_readlane', 'v_writelane')) else 2)
            if c.vmem and ws & c.u: n = max(n, 5)
            if c.salu and ws & c.u: n = max(n, 1)
        if ('x', 'exec') in p.d: n = max(n, 5)
    if p.mfma:
        passes = 8 if '32x32' in p.mn else 4
        big = {4: 8, 8: 12}[passes]
        if c.mfma:
            if p.d & c.A: n = max(n, big)
            if p.d & c.C and p.d != c.C: n = max(n, {4: 6, 8: 10}[passes])
            if p.d & c.d and p.d != c.C: n = max(n, big)
        elif (c.valu or c.ds or c.vmem) and p.d & (c.u | c.d): n = max(n, big)
        if c.valu and p.C & c.d: n = max(n, {4: 3, 8: 7}[passes])
    if p.salu and ('x', 'm0') in p.d and getattr(c, 'ldsdma', False): n = max(n, 1)
    if p.widestore and (c.valu or c.mfma or c.ds or c.vmem) and p.sdata & c.d: n = max(n, 2)
    return n

class Asm:
    def __init__(self):
        self.L = []; self.nops = 0; self.src = {}; self.lab = {}
    def _req(self, ins, pos, dist, depth=0):
        req = 0
        k = pos
        first = True
        while k >= 0 and dist < 20:
            p = self.L[k]
            if p.mn in ('s_endpgm', 's_branch') and not (first and depth): break
            first = False
            if p.label and depth < 4:
                for q in self.src.get(p.text.split(':')[0].strip(), []):
                    if q < k: req = max(req, self._req(ins, q, dist, depth + 1))
            if p.states():
                req = max(req, need(p, ins) - dist)
                dist += p.states()
            k -= 1
        return req
    def __call__(self, text):
        for line in text.split('\n'):
            line = line.strip()
            if not line: continue
            ins = Ins(line)
            if ins.label:
                self.lab[line.split(':')[0].strip()] = len(self.L)
            if ins.states():
                req = self._req(ins, len(self.L) - 1, 0)
                if ins.mn.startswith(('s_cbranch', 's_branch')):
                    tgt = ins.ops[0]
                    if tgt in self.lab:
                        d = 1
                        for c in self.L[self.lab[tgt]:self.lab[tgt] + 24]:
                            if c.states():
                                req = max(req, self._req(c, len(self.L) - 1, d))
                                d += c.states()
                if req > 0:
                    self.L.append(Ins(f's_nop {req-1}')); self.nops += req
                if ins.mn.startswith(('s_cbranch', 's_branch')):
                    self.src.setdefault(ins.ops[0], []).append(len(self.L))
            self.L.append(ins)
    def text(self):
        return '\n'.join((i.text if (i.label or i.directive or i.text.startswith(';')) else '    ' + i.text) for i in self.L) + '\n'
```

```python
import sys, struct
sys.path.insert(0, 'work')
from asmlib import Asm

KN = 'adaLN_cond__sliding_block_cached__dense_activation_silu__decode_kernel'
X1, X2, X2F, FL, HINT, X4, X5, X3, X3F, WSEND = 0x1000, 0xC000, 0x10000, 0x14000, 0x18000, 0x20000, 0x30000, 0xA0000, 0x100000, 0x160000
X4C, X5C = 0x7000, 0x18800
STAMP_OFF = 0x180000
L_Q, L_M, L_C, L_L, L_Z, L_O, L_PRIV, L_P, L_END = 0x0, 0x800, 0x810, 0x840, 0x900, 0x1000, 0x5000, 0x5800, 0x6100
FZ, FF, FC, FP, FP2, FST = 0x0, 0x200, 0x240, 0x1000, 0x1800, 0x2000
WINOFF = (65536 - 4096) * 512
def f2u(x): return struct.unpack('<I', struct.pack('<f', x))[0]
LOG2E = 1.4426950408889634
DPPF = 'row_mask:0xf bank_mask:0xf'

def gen(W=4, WH=5, diag=False, sleep=8, nt=' nt', w1nt='', warm=True, rewarm=True, padto=0, gaten=8, lazyn=8,
        hintk=16, hintpos=5, touchpos=2, R5=4, d5=0, spinbits=17, fastbits=6, flags=True, prio=True, probe=None, lazypos=None):
    a = Asm()
    rare = []
    STEP = 1 << (32 - spinbits)
    role = ['all']
    def stamp(i):
        if diag: a(f's_memrealtime s[{64+2*i}:{65+2*i}]')
        if probe and probe[0] == role[0] and probe[1] == i: a('s_memrealtime s[64:65]\ns_mov_b32 s68, 1')
    def fin(): a('s_branch L_dump' if diag else 's_branch L_probe' if probe else 's_endpgm')
    def setprio(n):
        if prio: a(f's_setprio {n}')
    def tags():
        a('''s_add_u32 s30, s30, 1
             s_and_b32 s34, s30, 0x7f
             s_xor_b32 s35, s34, 0x5a
             s_lshl_b32 s3, s35, 8
             s_or_b32 s3, s3, s34''')
    def ws_srd():
        a(f'''s_mov_b32 s44, s28
              s_mov_b32 s45, s29
              s_mov_b32 s46, {WSEND}
              s_mov_b32 s47, 0x20000''')
    def lanetag(d, bit):
        a(f'''v_bfe_u32 v{d}, v0, {bit}, 1
              v_mul_u32_u24 v{d}, 0x5a, v{d}
              v_xor_b32 v{d}, s34, v{d}''')
    def rowtag(m, t):
        lanetag(t, 2)
        a(f'''v_and_b32 v{m}, 3, v0
              v_cmp_eq_u32 vcc, 0, v{m}
              v_mov_b32 v{m}, 0xffffff00
              v_cndmask_b32 v{t}, 0, v{t}, vcc
              v_cndmask_b32 v{m}, -1, v{m}, vcc''')
    def spin(loop, done):
        a(f'''s_cbranch_vccz {done}
              s_add_u32 s62, s62, {STEP}
              s_cbranch_scc0 {loop}
              {done}:''')
    def ldswait(lbl, off, n, sl, z=100):
        if not n: return
        a(f'v_mov_b32 v{z}, 0\ns_mov_b32 s62, 0\n{lbl}:')
        if sl: a(f's_sleep {sl}')
        a(f'''ds_read_b32 v{z+1}, v{z} offset:{off}
              s_waitcnt lgkmcnt(0)
              v_cmp_gt_u32 vcc, {n}, v{z+1}''')
        spin(lbl, lbl + 'ok')
    def gcheck(lbl, loads, raw, masks, vt, switch, nfast, valid=None):
        n = len(loads)
        a(f's_mov_b32 s62, 0\n{lbl}:\ns_waitcnt vmcnt(0)')
        for i in range(n): a(f'v_cmp_ne_u32_sdwa s[{masks+2*i}:{masks+2*i+1}], v{raw+4*i}, v{vt} src0_sel:BYTE_0 src1_sel:DWORD')
        a(f's_or_b64 vcc, s[{masks}:{masks+1}], s[{masks+2}:{masks+3}]')
        for i in range(2, n): a(f's_or_b64 vcc, vcc, s[{masks+2*i}:{masks+2*i+1}]')
        a(f's_cbranch_scc1 {lbl}_r\n{lbl}_ok:')
        def r():
            a(f'{lbl}_r:')
            if switch:
                a(f's_cmp_eq_u32 s62, {nfast * STEP}\ns_cbranch_scc0 {lbl}_n\n{switch}\n{lbl}_n:')
            for i, l in enumerate(loads): a(f's_wqm_b64 exec, s[{masks+2*i}:{masks+2*i+1}]\n{l}')
            a(f'''s_mov_b64 exec, -1
                  s_add_u32 s62, s62, {STEP}
                  s_cbranch_scc0 {lbl}
                  s_waitcnt vmcnt(0)
                  s_branch {lbl}_ok''')
        return r
    def poll4(lbl, loads, raw, t, sl=0):
        a(f's_and_b32 s4, s34, 15\ns_and_b32 s5, s35, 15\ns_mov_b32 s62, 0\n{lbl}:')
        if sl: a(f's_sleep {sl}')
        for l in loads: a(l)
        a('s_waitcnt vmcnt(0)')
        n = 4 * len(loads)
        for k in range(n): a(f'v_xor_b32 v{raw+k}, s{4+(k&1)}, v{raw+k}')
        a(f'v_or_b32 v{t}, v{raw}, v{raw+1}')
        for k in range(2, n, 2): a(f'v_or3_b32 v{t}, v{t}, v{raw+k}, v{raw+k+1}')
        a(f'v_and_b32 v{t}, 15, v{t}\nv_cmp_ne_u32 vcc, 0, v{t}')
        spin(lbl, lbl + '_ok')
    def pk(op, d, x, y): a(f'v_pk_{op}_f32 v[{d}:{d+1}], v[{x}:{x+1}], v[{y}:{y+1}]')
    def rscatter(r):
        a(f'v_permlane32_swap_b32 v{r}, v{r+2}\nv_permlane32_swap_b32 v{r+1}, v{r+3}')
        pk('add', r, r, r + 2)
        a(f'v_permlane16_swap_b32 v{r}, v{r+1}\nv_add_f32 v{r}, v{r}, v{r+1}')
    def rnd(d, s): a(f'v_cvt_pk_bf16_f32 {d}, 0, {s}')
    def allred_rows(op, r, t):
        a(f'''v_mov_b32 v{t}, v{r}
              v_permlane32_swap_b32 v{r}, v{t}
              {op} v{r}, v{r}, v{t}
              v_mov_b32 v{t}, v{r}
              v_permlane16_swap_b32 v{r}, v{t}
              {op} v{r}, v{r}, v{t}''')
    def perm_sel(): a('s_mov_b32 s60, 0x05040100\ns_mov_b32 s61, 0x07060302')
    def perms64(raw, dst):
        for tau in range(4):
            for rho in range(4):
                a(f'v_perm_b32 v{dst+4*tau+rho}, v{raw+2*(2*rho+1)+(tau>>1)}, v{raw+2*(2*rho)+(tau>>1)}, s{60+(tau&1)}')
    def fix4(raw, t):
        for u0 in (0, 2):
            for i in range(2): a(f'v_pk_mov_b32 v[{t+2*i}:{t+2*i+1}], v[{raw+4*(u0+i)+2}:{raw+4*(u0+i)+3}], v[{raw+4*(u0+i)+2}:{raw+4*(u0+i)+3}] op_sel:[0,1]')
            rs = [raw + 4 * u + d for u in (u0, u0 + 1) for d in (0, 1)]
            for i, r in enumerate(rs): a(f'v_mov_b32_dpp v{r+2}, v{r} row_ror:8 row_mask:0xf bank_mask:0x3')
            for i, r in enumerate(rs): a(f'v_mov_b32_dpp v{r}, v{t+i} row_ror:8 row_mask:0xf bank_mask:0xc')
    def voff4(d, gstride, stride, t):
        a(f'''v_lshrrev_b32 v{t}, 4, v0
              v_mul_u32_u24 v{d}, {gstride}, v{t}
              v_bfe_u32 v{t}, v0, 3, 1
              v_mul_u32_u24 v{t}, {stride}, v{t}
              v_add_u32 v{d}, v{d}, v{t}
              v_and_b32 v{t}, 7, v0
              v_lshl_add_u32 v{d}, v{t}, 4, v{d}''')
    def maskaddr(dst, n, base, zero, t):
        a(f'''v_lshrrev_b32 v{t}, 4, v0
              v_lshlrev_b32 v{t}, 4, v{t}
              v_add_u32 v{t}, {base}, v{t}
              v_and_b32 v{t+1}, {n-1}, v0
              v_mov_b32 v{t+2}, {zero}''')
        for tau in range(n):
            a(f'v_cmp_eq_u32 vcc, {tau}, v{t+1}')
            a(f'v_cndmask_b32 v{dst+tau}, v{t+2}, v{t}, vcc')
    def silu(d, x, t):
        a(f'''v_mul_f32 v{t}, {hex(f2u(-LOG2E))}, v{x}
              v_exp_f32 v{t}, v{t}
              v_add_f32 v{t}, 1.0, v{t}
              v_rcp_f32 v{t}, v{t}
              v_mul_f32 v{t}, v{x}, v{t}''')
        rnd(f'v{d}', f'v{t}')
    def ln_apply(s1, s2, x, t):
        a(f'''v_mul_f32 v{t}, v{s1}, v{s1}
              v_fma_f32 v{t+1}, v{s1}, v{s1}, -v{t}
              v_fma_f32 v{t}, v{s2}, s59, -v{t}
              v_sub_f32 v{t}, v{t}, v{t+1}
              v_mul_f32 v{t}, {hex(f2u(1/448/448))}, v{t}
              v_max_f32 v{t}, 0, v{t}''')
        rnd(f'v{t}', f'v{t}')
        a(f'v_add_f32 v{t}, {hex(f2u(1e-5))}, v{t}')
        rnd(f'v{t}', f'v{t}')
        a(f'v_sqrt_f32 v{t}, v{t}\nv_mul_f32 v{t+1}, {hex(f2u(1/448))}, v{s1}')
        rnd(f'v{t}', f'v{t}'); rnd(f'v{t+1}', f'v{t+1}')
        a(f'v_rcp_f32 v{t}, v{t}\nv_sub_f32 v{t+1}, v{x[1]}, v{t+1}')
        rnd(f'v{t+1}', f'v{t+1}')
        a(f'v_mul_f32 v{t+1}, v{t+1}, v{t}')
        rnd(f'v{x[0]}', f'v{t+1}')
    def mma(n, acc, A, B):
        for i in range(n):
            a(f's_waitcnt lgkmcnt({0 if diag else n-1-i})')
            a(f'v_mfma_f32_16x16x32_bf16 v[{acc}:{acc+3}], v[{A+4*i}:{A+4*i+3}], v[{B+4*i}:{B+4*i+3}], ' + ('0' if i == 0 else f'v[{acc}:{acc+3}]'))
    def sumrows(n, ldsoff, va):
        o = ldsoff // 256
        for u in range(n // 2): a(f'ds_read2st64_b32 v[{16+2*u}:{17+2*u}], v{va} offset0:{o+2*u} offset1:{o+2*u+1}')
        if n & 1: a(f'ds_read_b32 v22, v{va} offset:{ldsoff+256*(n-1)}\nv_mov_b32 v23, 0')
        a('s_waitcnt lgkmcnt(0)')
        pk('add', 16, 16, 18); pk('add', 20, 20, 22); pk('add', 16, 16, 20)
        a('v_add_f32 v16, v16, v17')

    a(f'{KN}:')
    if probe: a('s_mov_b32 s68, 0')
    stamp(0)
    if padto: a('s_memrealtime s[64:65]')
    a(f'''s_load_dwordx16 s[4:19], s[0:1], 0
          s_load_dwordx8 s[20:27], s[0:1], 64
          s_load_dwordx2 s[28:29], s[0:1], 96
          v_lshrrev_b32 v1, 6, v0
          s_getpc_b64 s[48:49]
          L_pc:
          v_lshlrev_b32 v2, 7, v0
          v_readfirstlane_b32 s31, v1
          v_cmp_gt_u32 vcc, (L_code_end-L_pc)/128, v0
          s_and_b32 s32, s2, 7
          s_lshr_b32 s33, s2, 3
          s_cmp_ge_u32 s2, 64
          s_cbranch_scc1 L_A''')
    if warm:
        a('''s_and_saveexec_b64 s[50:51], vcc
             s_cbranch_execz L_w1
             global_load_dword v127, v2, s[48:49]
             L_w1:
             s_mov_b64 exec, -1''')
    def dzero():
        if diag:
            for i in range(1, 16): a(f's_mov_b32 s{64+2*i}, 0')
    a(f'''s_branch L_F
          L_A:
          s_cmp_ge_u32 s2, 256
          s_cbranch_scc1 L_end
          s_sub_u32 s33, s33, 8
          s_cmp_lt_u32 s31, 8
          s_cbranch_scc1 L_att
          v_and_b32 v0, 63, v0
          s_cmp_ge_u32 s33, 17
          s_cselect_b32 s50, 9, 0
          s_cmp_eq_u32 s31, s50
          s_cbranch_scc1 L_t_mod
          s_barrier
          s_branch L_T''')
    K0, V0 = 8, 56
    role[0] = 'att'
    a(f'''L_att:
          v_lshrrev_b32 v9, 1, v0
          v_mov_b32 v8, {hex(f2u(-3e38))}
          v_cmp_eq_u32 vcc, {L_M // 16}, v9
          v_lshlrev_b32 v10, 3, v0
          v_and_b32 v0, 63, v0
          v_mov_b32 v9, 0
          v_cndmask_b32 v8, 0, v8, vcc
          ds_write_b64 v10, v[8:9]
          s_min_u32 s48, s33, 16
          s_lshl_b32 s48, s48, 2
          s_mul_i32 s49, s33, 40
          s_add_u32 s48, s48, s49
          s_mul_i32 s49, s31, 5
          s_add_u32 s48, s48, s49
          s_cmp_lt_u32 s33, 16
          s_cselect_b32 s50, 4, 0
          s_min_u32 s49, s31, s50
          s_add_u32 s48, s48, s49
          s_cmp_lt_u32 s31, s50
          s_cselect_b32 s51, 1, 0
          s_add_u32 s48, s48, s51
          s_lshl_b32 s48, s48, 11
          s_lshl_b32 s49, s32, 25
          s_add_u32 s48, s48, s49
          s_add_u32 s48, s48, {WINOFF - 2048}
          v_bfe_u32 v2, v0, 2, 2
          v_lshrrev_b32 v3, 4, v0
          v_and_b32 v4, 3, v0
          v_lshlrev_b32 v6, 9, v2
          v_lshl_add_u32 v6, v3, 6, v6
          v_lshl_add_u32 v6, v4, 4, v6
          v_and_b32 v5, 15, v0
          v_lshlrev_b32 v7, 9, v3
          v_lshl_add_u32 v7, v5, 4, v7
          s_mov_b32 s38, {6*2048}
          s_mov_b32 s39, 0x20000
          s_mov_b32 s42, {6*2048}
          s_mov_b32 s43, 0x20000
          s_mov_b32 s52, 4096
          s_mov_b32 s53, 8192
          s_waitcnt lgkmcnt(0)
          s_add_u32 s36, s6, s48
          s_addc_u32 s37, s7, 0
          s_cmp_ge_u32 s33, 17
          s_cbranch_scc0 L_a_nb
          s_barrier
          L_a_nb:''')
    cnt = [0]
    def kvload(srd, va, base, t, hf):
        if cnt[0] >= W:
            if WH != W: a(f's_waitcnt vmcnt({WH-1})\ns_cbranch_vccnz L_w{cnt[0]}_\ns_waitcnt vmcnt({W-1})\nL_w{cnt[0]}_:')
            else: a(f's_waitcnt vmcnt({W-1})')
        cnt[0] += 1
        r = base + 8 * t + 4 * hf
        so = ('0', 's52', 's53')[t // 2]
        a(f'buffer_load_dwordx4 v[{r}:{r+3}], v{va}, s[{srd}:{srd+3}], {so} offen offset:{(t & 1) * 2048 + hf * 256}{nt}')
    def setup_att():
        dzero(); stamp(1)
        a(f'''s_load_dword s30, s[28:29], 0
              s_add_u32 s40, s8, s48
              s_addc_u32 s41, s9, 0
              s_cmp_ge_u32 s33, 17
              s_cbranch_scc1 L_a_nb2
              s_barrier
              L_a_nb2:
              v_bfe_u32 v2, v0, 3, 1
              v_lshlrev_b32 v1, 10, v2
              v_lshl_add_u32 v1, v3, 7, v1
              v_lshl_add_u32 v1, v4, 5, v1
              v_and_b32 v104, 1, v0
              v_lshlrev_b32 v104, 4, v104
              v_mov_b32 v105, 0xffff
              v_lshlrev_b32 v104, v104, v105
              v_bfe_u32 v105, v0, 1, 2''')
        for rho in range(4):
            a(f'v_cmp_eq_u32 vcc, {rho}, v105')
            a(f'v_cndmask_b32 v{2+rho}, 0, v104, vcc')
        ws_srd(); perm_sel()
        a(f'''s_mov_b32 s58, {hex(f2u(0.0625 * LOG2E))}
              s_bfe_u32 s57, s31, 0x10001
              s_lshl_b32 s49, s32, 1
              s_add_u32 s54, s57, s49
              s_mul_i32 s54, s54, 24
              s_add_u32 s54, s54, s33
              s_lshl_b32 s54, s54, 10
              s_lshr_b32 s49, s31, 2
              s_lshl_b32 s49, s49, 9
              s_add_u32 s54, s54, s49
              s_and_b32 s49, s31, 1
              s_lshl_b32 s49, s49, 8
              s_add_u32 s54, s54, s49
              s_add_u32 s55, s54, {X3F}
              s_add_u32 s54, s54, {X3}
              s_mul_i32 s59, s32, 24
              s_add_u32 s59, s59, s33
              s_lshl_b32 s59, s59, 7
              s_add_u32 s59, s59, {HINT}
              v_lshlrev_b32 v104, 2, v0
              s_cmp_ge_u32 s33, 17
              s_cselect_b32 s48, 1, s51
              s_mov_b32 s49, 0
              s_mov_b64 vcc, s[48:49]''')
    a('s_cmp_eq_u32 s51, 0\ns_cbranch_scc1 L_a_k1')
    kvload(36, 6, K0, 0, 0); kvload(36, 6, K0, 0, 1)
    a('L_a_k1:')
    done_setup = False
    for t in range(1, 6):
        for hf in range(2):
            if cnt[0] == max(W, 2) and not done_setup: setup_att(); done_setup = True
            kvload(36, 6, K0, t, hf)
    assert done_setup
    stamp(2)
    a('s_cmp_eq_u32 s51, 0\ns_cbranch_scc0 L_a_v0')
    for i in range(4): a(f'v_mov_b32 v{K0+i}, {hex(f2u(-1e30))}')
    a('s_branch L_a_v1\nL_a_v0:')
    kvload(40, 7, V0, 0, 0); kvload(40, 7, V0, 0, 1)
    a('L_a_v1:\ns_waitcnt lgkmcnt(0)')
    tags()
    assert 2 * (6 - touchpos) >= max(W, WH)
    for t in range(1, 6):
        if t == lazypos:
            a(f'''v_mov_b32 v105, 1
                  s_mov_b64 exec, 1
                  ds_add_u32 v104, v105 offset:{L_C+16}
                  s_mov_b64 exec, -1''')
        if t == touchpos:
            a('buffer_load_dword v106, v104, s[44:47], s55 offen sc1')
        if t == hintpos and hintk:
            a(f'''s_cmp_eq_u32 s31, 0
                  s_cbranch_scc0 L_a_nh
                  v_mov_b32 v105, s3
                  s_mov_b64 exec, 1
                  buffer_store_dword v105, v104, s[44:47], s59 offen
                  s_mov_b64 exec, -1
                  L_a_nh:''')
        for hf in range(2): kvload(40, 7, V0, t, hf)
    stamp(3)
    a(f'''v_bfe_u32 v6, v0, 3, 1
          v_lshlrev_b32 v6, 3, v6
          v_mov_b32 v7, 1
          s_mov_b64 exec, 1
          ds_add_u32 v6, v7 offset:{L_C}
          s_mov_b64 exec, -1
          s_mov_b32 s62, 0''')
    setprio(2)
    a(f'''L_a_q:
          ds_read_b128 v[104:107], v1 offset:{L_Q}
          ds_read_b128 v[108:111], v1 offset:{L_Q+16}
          ds_read_b128 v[112:115], v1 offset:{L_Q+512}
          ds_read_b128 v[116:119], v1 offset:{L_Q+528}
          s_waitcnt lgkmcnt(0)
          v_bitop3_b32 v120, v104, v108, s3 bitop3:0x7e
          v_bitop3_b32 v121, v112, v116, s3 bitop3:0x7e
          v_or_b32 v121, v120, v121
          v_cmp_ne_u32_sdwa vcc, v121, 0 src0_sel:WORD_0 src1_sel:DWORD''')
    for i in range(8): a(f'v_perm_b32 v{120+i}, v{105+2*i}, v{104+2*i}, s61')
    a('s_cbranch_vccnz L_a_qr\nL_a_qok:')
    rare.append(lambda: a(f'''L_a_qr:
          s_sleep 1
          s_add_u32 s62, s62, {STEP}
          s_cbranch_scc0 L_a_q
          s_branch L_a_qok'''))
    stamp(4)
    def qk(t, hf):
        k = K0 + 8 * t; tmp = 104 + 4 * (t & 3)
        if hf == 0: a(f'v_mfma_f32_16x16x32_bf16 v[{tmp}:{tmp+3}], v[{k}:{k+3}], v[120:123], 0')
        else: a(f'v_mfma_f32_16x16x32_bf16 v[{k}:{k+3}], v[{k+4}:{k+7}], v[124:127], v[{tmp}:{tmp+3}]')
    def step(t, i):
        if t < 0 or t > 5: return
        k = K0 + 8 * t
        if i == 0: a(f'v_mov_b32_dpp v{k+4}, v{k} quad_perm:[0,0,0,0] {DPPF}')
        else: a(f'v_add_f32_dpp v{k+4}, v{k+i}, v{k+4} quad_perm:[{i},{i},{i},{i}] {DPPF}')
    a('s_cmp_eq_u32 s51, 0\ns_cbranch_scc1 L_a_qk1')
    qk(0, 0); qk(0, 1)
    a('L_a_qk1:')
    fill = ['v_mov_b32 v1, 0', 's_mov_b32 s62, 0', 's_lshl_b32 s48, s57, 3', 's_lshl_b32 s49, s31, 2']
    for t in range(1, 6):
        qk(t, 0); step(t - 3, 0); step(t - 4, 2)
        if t < 3: a(fill.pop(0))
        qk(t, 1); step(t - 3, 1); step(t - 4, 3)
        if t < 3: a(fill.pop(0))
    step(2, 2); step(3, 0); step(4, 0); step(2, 3); step(3, 1); step(4, 1)
    S = [K0 + 8 * t + 4 for t in range(6)]
    rnd(f'v{S[0]}', f'v{S[0]}')
    step(5, 0); step(3, 2); step(4, 2); step(5, 1); step(3, 3); step(4, 3); step(5, 2)
    rnd(f'v{S[1]}', f'v{S[1]}'); rnd(f'v{S[2]}', f'v{S[2]}')
    step(5, 3)
    rnd(f'v{S[3]}', f'v{S[3]}'); rnd(f'v{S[4]}', f'v{S[4]}')
    a(f'v_max3_f32 v112, v{S[0]}, v{S[1]}, v{S[2]}')
    rnd(f'v{S[5]}', f'v{S[5]}')
    a(f'''v_max3_f32 v112, v112, v{S[3]}, v{S[4]}
          s_mov_b32 exec_lo, 0x01010101
          s_mov_b32 exec_hi, 0x01010101
          v_max_f32 v112, v112, v{S[5]}
          ds_max_f32 v6, v112 offset:{L_M}
          s_mov_b64 exec, 1
          ds_add_u32 v6, v7 offset:{L_C+4}
          s_mov_b64 exec, -1
          v_mov_b32 v117, s48
          L_a_s1:
          ds_read_b32 v113, v1 offset:{L_C+4}
          ds_read_b32 v112, v6 offset:{L_M}
          ds_read_b32 v116, v117 offset:{L_M}
          s_waitcnt lgkmcnt(0)
          v_cmp_ne_u32 vcc, 8, v113
          v_mul_f32 v112, s58, v112''')
    order = [1, 0, 2, 3, 4, 5]
    for t in order: a(f'v_fma_f32 v{S[t]+2}, v{S[t]}, s58, -v112')
    a('s_cbranch_vccnz L_a_s1r\nL_a_s1ok:')
    rare.append(lambda: a(f'L_a_s1r:\ns_add_u32 s62, s62, {STEP}\ns_cbranch_scc0 L_a_s1\ns_branch L_a_s1ok'))
    stamp(5)
    for t in order: a(f'v_exp_f32 v{S[t]}, v{S[t]+2}')
    def abuild(t):
        k = K0 + 8 * t
        a(f'v_cvt_pk_bf16_f32 v{k+5}, v{k+4}, v{k+4}')
        for rho in range(4): a(f'v_and_b32 v{k+rho}, v{k+5}, v{2+rho}')
    def pv(t, hf, first=False):
        k = K0 + 8 * t; v = V0 + 8 * t + 4 * hf; acc = 104 + 4 * hf
        n = 2 * (5 - t) + 1 - hf
        if n < max(W, WH): a(f's_waitcnt vmcnt({n})')
        a(f'v_mfma_f32_16x16x32_bf16 v[{acc}:{acc+3}], v[{k}:{k+3}], v[{v}:{v+3}], ' + ('0' if first else f'v[{acc}:{acc+3}]'))
    abuild(1)
    a(f'v_add_f32 v113, v{S[0]}, v{S[1]}\nv_add_f32 v114, v{S[2]}, v{S[3]}')
    pv(1, 0, True); abuild(2); pv(1, 1, True)
    a('s_cmp_eq_u32 s51, 0\ns_cbranch_scc1 L_a_pv2')
    abuild(0); pv(0, 0); pv(0, 1)
    a('L_a_pv2:')
    for t in range(2, 6):
        pv(t, 0)
        if t < 5: abuild(t + 1)
        pv(t, 1)
        if t == 2:
            a(f'''v_add_f32 v115, v{S[4]}, v{S[5]}
                  v_add_f32 v113, v113, v114
                  v_lshl_add_u32 v6, v6, 2, s49
                  v_add_f32 v113, v113, v115''')
            allred_rows('v_add_f32', 113, 114)
            a(f'''s_mov_b64 exec, 0x101
                  ds_write_b32 v6, v113 offset:{L_L}
                  s_mov_b64 exec, -1''')
        if t == 3:
            a(f'''s_lshl_b32 s48, s31, 11
                  v_lshl_add_u32 v6, v0, 4, s48
                  v_and_b32 v120, 4, v0
                  v_cmp_eq_u32 vcc, 0, v120
                  v_or_b32 v116, s34, v116
                  v_mov_b32 v119, s35
                  v_mov_b32 v118, 0xffffff00
                  v_cndmask_b32 v119, v119, v116, vcc
                  v_cndmask_b32_e64 v118, v118, 0, vcc
                  v_and_b32 v120, 3, v0
                  v_or_b32 v120, 0x07060500, v120
                  s_lshl_b32 s49, s31, 8
                  s_add_u32 s49, s49, {L_O}
                  v_lshlrev_b32 v121, 2, v0
                  v_add_u32 v122, s49, v121
                  v_lshlrev_b32 v117, 2, v117
                  s_mov_b32 s62, 0''')
    a(f'''ds_write_b128 v6, v[104:107] offset:{L_O}
          ds_write_b128 v6, v[108:111] offset:{L_O+1024}
          s_mov_b64 exec, 1
          ds_add_u32 v1, v7 offset:{L_C+8}
          s_mov_b64 exec, -1''')
    stamp(6)
    a(f'''L_a_s2:
          ds_read_b32 v24, v1 offset:{L_C+8}
          ds_read_b128 v[16:19], v117 offset:{L_L}
          ds_read_b128 v[20:23], v117 offset:{L_L+16}''')
    for u in range(4): a(f'ds_read2st64_b32 v[{8+2*u}:{9+2*u}], v122 offset0:{16*u} offset1:{16*u+8}')
    a(f's_waitcnt lgkmcnt({0 if diag else 4})\nv_cmp_ne_u32 vcc, 8, v24')
    pk('add', 16, 16, 18); pk('add', 20, 20, 22); pk('add', 16, 16, 20)
    a('v_add_f32 v16, v16, v17\nv_and_or_b32 v16, v16, v118, v119\ns_waitcnt lgkmcnt(0)')
    pk('add', 8, 8, 10); pk('add', 12, 12, 14); pk('add', 8, 8, 12)
    a('''v_add_f32 v8, v8, v9
         v_perm_b32 v8, v8, v16, v120
         s_cbranch_vccnz L_a_s2r
         L_a_s2ok:
         buffer_store_dword v8, v121, s[44:47], s55 offen''')
    rare.append(lambda: a(f'L_a_s2r:\ns_add_u32 s62, s62, {STEP}\ns_cbranch_scc0 L_a_s2\ns_branch L_a_s2ok'))
    a(f'''s_mov_b64 exec, 1
          ds_add_u32 v1, v7 offset:{L_C+12}
          s_mov_b64 exec, -1
          buffer_store_dword v8, v121, s[44:47], s54 offen sc1''')
    stamp(7)
    a('s_cmp_lt_u32 s33, 14\ns_cbranch_scc0 L_a_x\ns_barrier\nL_a_x:')
    fin()
    for r in rare: r()
    rare.clear()

    role[0] = 'mod'
    def tail_setup():
        a('s_load_dword s30, s[28:29], 0\ns_sub_u32 s49, s31, 8')
        ws_srd(); perm_sel()
        a(f's_lshl_b32 s56, s49, 8\ns_add_u32 s56, s56, {L_PRIV}')
    a(f'''L_T:
          s_cmp_lt_u32 s33, 14
          s_cbranch_scc1 L_t_go
          s_cmp_eq_u32 s31, 8
          s_cbranch_scc1 L_t_go
          s_cmp_eq_u32 s31, 10
          s_cbranch_scc1 L_t_lazy
          s_cmp_eq_u32 s31, 11
          s_cbranch_scc0 L_end
          s_cmp_lt_u32 s33, 18
          s_cbranch_scc0 L_end
          L_t_lazy:''')
    ldswait('L_lz_g', L_C + (16 if lazypos else 0), lazyn, 4)
    a(f'''L_t_mod:
          s_mul_i32 s50, s31, 10
          s_add_u32 s50, s50, s33
          s_sub_u32 s50, s50, 107
          s_lshl_b32 s50, s50, 3
          s_add_u32 s50, s50, s32
          s_and_b32 s51, s50, 3
          s_lshr_b32 s52, s50, 2
          s_lshl_b32 s53, s51, 7
          s_cmp_eq_u32 s51, 3
          s_cselect_b32 s54, 32, 0
          s_sub_u32 s53, s53, s54
          s_mov_b32 s38, {448*5376}
          s_mov_b32 s39, 0x20000
          s_mov_b32 s42, 896
          s_mov_b32 s43, 0x20000
          s_mul_i32 s54, s53, 5376
          s_lshl_b32 s55, s52, 7
          s_add_u32 s54, s54, s55
          s_lshl_b32 s53, s53, 1
          v_lshlrev_b32 v2, 2, v0''')
    voff4(3, 8 * 5376, 5376, 4)
    a('''s_waitcnt lgkmcnt(0)
         s_mov_b32 s36, s22
         s_mov_b32 s37, s23
         s_mov_b32 s40, s20
         s_mov_b32 s41, s21
         buffer_load_dword v5, v2, s[40:43], s53 offen''')
    for u in range(4):
        if u == 3: a('s_cmp_ge_u32 s51, 2\ns_cbranch_scc1 L_m_ld')
        for t in range(4):
            a(f'buffer_load_dwordx4 v[{32+16*u+4*t}:{35+16*u+4*t}], v3, s[36:39], s54 offen{nt}')
            a(f's_add_u32 s54, s54, {2*5376 if t < 3 else 26*5376}')
    a('L_m_ld:\ns_cmp_eq_u32 s31, 9\ns_cbranch_scc0 L_m_nb\ns_barrier\nL_m_nb:')
    dzero(); stamp(1)
    tail_setup()
    maskaddr(8, 4, 's56', L_Z, 12)
    a('''s_waitcnt vmcnt(12)
         v_lshlrev_b32 v6, 16, v5
         v_and_b32 v7, 0xffff0000, v5''')
    silu(6, 6, 12); silu(7, 7, 13)
    a(f'''v_perm_b32 v6, v7, v6, s61
          v_add_u32 v2, s56, v2
          ds_write_b32 v2, v6
          s_waitcnt lgkmcnt(0)''')
    tags()
    a('v_and_b32_e64 v6, s34, 15\nv_and_b32_e64 v7, s35, 15\nv_lshlrev_b32 v2, 4, v0')
    for u in range(4):
        if u == 3: a('s_cmp_ge_u32 s51, 2\ns_cbranch_scc1 L_m_done')
        for tau in range(4): a(f'ds_read_b128 v[{96+4*tau}:{99+4*tau}], v{8+tau} offset:{64*u}')
        a(f's_waitcnt vmcnt({max(0, 8 - 4*u)})')
        fix4(32 + 16 * u, 112)
        perms64(32 + 16 * u, 16)
        a('s_waitcnt lgkmcnt(0)')
        for tau in range(4):
            a(f'v_mfma_f32_16x16x32_bf16 v[12:15], v[{96+4*tau}:{99+4*tau}], v[{16+4*tau}:{19+4*tau}], ' + ('0' if u == 0 and tau == 0 else 'v[12:15]'))
    a(f'''L_m_done:
          s_lshl_b32 s50, s50, 8
          s_add_u32 s50, s50, {X1}
          s_mov_b64 exec, 0xffff''')
    for i in range(4): a(f'v_and_or_b32 v{12+i}, v{12+i}, -16, v{6+(i&1)}')
    a('buffer_store_dwordx4 v[12:15], v2, s[44:47], s50 offen sc1')
    stamp(2)
    fin()
    role[0] = 'wo'
    a('L_t_go:\ns_waitcnt lgkmcnt(0)')
    dzero()
    tail_setup()
    a(f'''s_cmp_ge_u32 s33, 7
          s_cselect_b32 s50, 1, 0
          s_cselect_b32 s51, 7, 0
          s_sub_u32 s51, s33, s51
          s_lshl_b32 s52, s32, 1
          s_add_u32 s50, s50, s52
          s_lshl_b32 s52, s50, 8
          s_lshr_b32 s53, s49, 2
          s_lshl_b32 s53, s53, 7
          s_add_u32 s52, s52, s53
          s_and_b32 s53, s49, 1
          s_lshl_b32 s53, s53, 6
          s_add_u32 s52, s52, s53
          s_and_b32 s53, s49, 2
          s_lshl_b32 s53, s53, 1
          s_add_u32 s52, s52, s53
          s_mul_i32 s52, s52, 896
          s_lshl_b32 s53, s51, 7
          s_add_u32 s52, s52, s53
          s_add_u32 s53, s52, {8*896}
          s_mov_b32 s36, s12
          s_mov_b32 s37, s13
          s_mov_b32 s38, {4096*896}
          s_mov_b32 s39, 0x20000
          s_mul_i32 s40, s50, {24*1024}
          s_lshl_b32 s41, s49, 7
          s_add_u32 s40, s40, s41
          s_add_u32 s40, s40, {X3F}
          s_add_u32 s41, s40, 8192
          s_add_u32 s42, s40, 16384
          s_mul_i32 s54, s50, 1792
          s_lshl_b32 s55, s51, 8
          s_add_u32 s54, s54, s55
          s_add_u32 s54, s54, {X4}
          s_add_u32 s55, s54, {X4C}
          s_lshl_b32 s43, s32, 7
          s_add_u32 s43, s43, {FL}
          s_lshl_b32 s57, s33, 3
          s_add_u32 s57, s57, s49
          s_cmp_eq_u32 s57, 7
          s_cselect_b32 s10, 0xff, 0
          s_mov_b32 s11, 0
          s_mov_b32 s57, 0x0c04000c
          s_mov_b32 s58, {hex(f2u(0.0625 * LOG2E))}
          s_lshl_b32 s59, s49, 8
          s_add_u32 s59, s59, {L_P}
          v_lshrrev_b32 v12, 3, v0
          v_and_b32 v13, 7, v0
          v_lshlrev_b32 v3, 10, v12
          v_lshl_add_u32 v3, v13, 4, v3
          v_lshrrev_b32 v5, 4, v0
          v_lshl_add_u32 v5, v13, 2, v5
          v_lshl_add_u32 v5, v5, 1, s56
          v_lshl_add_u32 v6, v0, 4, s59
          v_lshlrev_b32 v4, 2, v0
          v_lshlrev_b32 v96, 10, v0''')
    voff4(1, 16 * 896, 896, 12)
    maskaddr(8, 4, 's56', L_Z, 12)
    a('s_waitcnt lgkmcnt(0)')
    tags()
    lanetag(7, 0); rowtag(98, 99)
    a(f'''v_mov_b32 v97, s3
          s_cmp_eq_u32 s49, 0
          s_cbranch_scc0 L_wo
          v_lshlrev_b32 v2, 4, v0
          s_lshl_b32 s4, s32, 11
          s_add_u32 s4, s4, {X2F}
          s_mov_b32 m0, {L_Q}
          s_mov_b32 s62, 0
          L_p_loop:
          buffer_load_dwordx4 v2, s[44:47], s4 offen sc1 lds
          buffer_load_dwordx4 v2, s[44:47], s4 offen offset:1024 sc1 lds
          s_sleep {sleep}
          s_cmp_eq_u32 s62, {(1 << fastbits) * STEP}
          s_cselect_b32 s5, {X2F - X2}, 0
          s_sub_u32 s4, s4, s5
          ds_read2st64_b32 v[12:13], v2 offset0:{L_Q // 256} offset1:{L_Q // 256 + 4}
          s_waitcnt vmcnt(32) lgkmcnt(0)
          v_bitop3_b32 v12, v12, v13, s3 bitop3:0x7e
          v_cmp_ne_u32_sdwa vcc, v12, 0 src0_sel:WORD_0 src1_sel:DWORD''')
    spin('L_p_loop', 'L_p_ok')
    stamp(2)
    a('s_cmp_lt_u32 s33, 14\ns_cbranch_scc0 L_fin\nL_wo:')
    ldswait('L_wo_g', L_C, gaten, 2)
    stamp(3)
    for u in range(4):
        a(f'buffer_load_dwordx4 v[{80+4*u}:{83+4*u}], v1, s[36:39], s{52+(u>>1)} offen offset:{(u&1)*2*896}{nt}')
    ldswait('L_wo_d', L_C + 12, 8, 1)
    setprio(3)
    stamp(4)
    x3l = [f'buffer_load_dwordx4 v[{32+4*s}:{35+4*s}], v3, s[44:47], s{40+s} offen sc1' for s in range(3)]
    for l in x3l: a(l)
    a('s_waitcnt vmcnt(3)')
    fix4(80, 48); perms64(80, 16)
    stamp(5)
    rare.append(gcheck('L_x3', x3l, 32, 4, 7, '\n'.join(f's_sub_u32 s{40+s}, s{40+s}, {X3F - X3}' for s in range(3)), 2 << fastbits))
    if flags: a('s_mov_b64 exec, s[10:11]\nbuffer_store_dword v97, v96, s[44:47], s43 offen sc1\ns_mov_b64 exec, -1')
    stamp(6)
    for s in range(3): a(f'v_perm_b32 v{48+2*s}, v{34+4*s}, v{33+4*s}, s57')
    for s in range(3): a(f'v_lshl_or_b32 v{48+2*s}, v{35+4*s}, 24, v{48+2*s}')
    a(f'''v_max3_f32 v54, v48, v50, v52
          v_xor_b32 v32, v32, v7
          v_xor_b32 v36, v36, v7
          v_max_f32_dpp v54, v54, v54 row_ror:8 {DPPF}
          v_mov_b32 v55, v54
          v_xor_b32 v40, v40, v7
          v_permlane32_swap_b32 v54, v55
          v_max_f32 v54, v54, v55
          v_mov_b32 v55, v54
          v_permlane16_swap_b32 v54, v55
          v_max_f32 v54, v54, v55''')
    for s in range(3): a(f'v_sub_f32 v{49+2*s}, v{48+2*s}, v54')
    for s in range(3): a(f'v_mul_f32 v{49+2*s}, s58, v{49+2*s}')
    for s in range(3): a(f'v_exp_f32 v{49+2*s}, v{49+2*s}')
    for s in range(3): a(f'v_mov_b32_dpp v{56+2*s}, v{49+2*s} quad_perm:[0,0,2,2] {DPPF}')
    a(f'''v_mul_f32 v54, v56, v48
          v_pk_mul_f32 v[32:33], v[32:33], v[56:57] op_sel_hi:[1,0]
          v_fmac_f32 v54, v58, v50
          v_pk_mul_f32 v[34:35], v[34:35], v[56:57] op_sel_hi:[1,0]
          v_fmac_f32 v54, v60, v52
          v_pk_fma_f32 v[32:33], v[36:37], v[58:59], v[32:33] op_sel_hi:[1,0,1]
          v_pk_fma_f32 v[34:35], v[38:39], v[58:59], v[34:35] op_sel_hi:[1,0,1]
          v_add_f32_dpp v54, v54, v54 row_ror:8 {DPPF}
          v_pk_fma_f32 v[32:33], v[40:41], v[60:61], v[32:33] op_sel_hi:[1,0,1]
          v_mov_b32 v55, v54
          v_pk_fma_f32 v[34:35], v[42:43], v[60:61], v[34:35] op_sel_hi:[1,0,1]
          v_permlane32_swap_b32 v54, v55
          v_add_f32 v54, v54, v55
          v_permlane32_swap_b32 v32, v34
          v_mov_b32 v55, v54
          v_permlane32_swap_b32 v33, v35
          v_pk_add_f32 v[32:33], v[32:33], v[34:35]
          v_permlane16_swap_b32 v54, v55
          v_add_f32 v54, v54, v55
          v_permlane16_swap_b32 v32, v33
          v_add_f32 v32, v32, v33
          v_rcp_f32 v54, v54
          v_add_f32_dpp v32, v32, v32 row_ror:8 {DPPF}
          v_mul_f32_dpp v32, v54, v32 quad_perm:[1,1,3,3] {DPPF}''')
    rnd('v32', 'v32')
    a('ds_write_b16_d16_hi v5, v32')
    for tau in range(4): a(f'ds_read_b128 v[{64+4*tau}:{67+4*tau}], v{8+tau}')
    mma(4, 12, 64, 16)
    a(f'''s_mov_b64 exec, 0xffff
          s_cmp_eq_u32 s49, 0
          ds_write_b128 v6, v[12:15]
          s_mov_b64 exec, -1
          s_waitcnt lgkmcnt(0)
          s_barrier
          s_cbranch_scc0 L_fin''')
    sumrows(8, L_P, 4)
    a('''v_and_or_b32 v16, v16, v98, v99
         buffer_store_dword v16, v4, s[44:47], s54 offen sc1
         buffer_store_dword v16, v4, s[44:47], s55 offen sc1''')
    stamp(7)
    a('L_fin:')
    fin()
    for r in rare: r()
    rare.clear()

    role[0] = 'F'
    a(f'''L_F:
          v_and_b32 v0, 63, v0
          s_cmp_ge_u32 s31, 7
          s_cbranch_scc1 L_F7
          s_lshl_b32 s48, s31, 19
          s_lshl_b32 s49, s32, 10
          s_add_u32 s48, s48, s49
          s_lshl_b32 s49, s33, 7
          s_add_u32 s48, s48, s49
          v_lshrrev_b32 v3, 4, v0
          v_lshlrev_b32 v2, 16, v3
          v_and_b32 v4, 8, v0
          v_lshl_add_u32 v2, v4, 10, v2
          v_and_b32 v5, 7, v0
          v_lshl_add_u32 v2, v5, 4, v2
          v_lshl_add_u32 v5, v5, 4, v4
          v_lshl_add_u32 v6, v3, 1, v5
          s_lshl_b32 s50, s31, 7
          v_add_u32 v101, s50, v6
          v_lshlrev_b32 v7, 4, v0
          s_mov_b32 s38, {448*8192}
          s_mov_b32 s39, 0x20000
          s_mov_b32 s42, 896
          s_mov_b32 s43, 0x20000
          s_waitcnt lgkmcnt(0)
          s_mov_b32 s36, s10
          s_mov_b32 s37, s11
          s_mov_b32 s40, s4
          s_mov_b32 s41, s5
          buffer_load_dwordx4 v[96:99], v7, s[40:43], 0 offen
          buffer_load_ushort v100, v101, s[40:43], 0 offen''')
    for u in range(2):
        for t in range(4):
            a(f'buffer_load_dwordx4 v[{32+16*u+4*t}:{35+16*u+4*t}], v2, s[36:39], s48 offen{nt}')
            if not (u == 1 and t == 3): a(f's_add_u32 s48, s48, {2*8192 if t < 3 else 26*8192}')
    dzero(); stamp(1)
    a('s_load_dword s30, s[28:29], 0')
    ws_srd(); perm_sel()
    a(f'''s_lshl_b32 s52, s31, 8
          s_add_u32 s56, s52, 0x400
          s_mov_b32 s59, {hex(f2u(448.0))}
          s_mov_b32 s58, 0x3f803f80
          v_mov_b32 v12, 0
          v_lshlrev_b32 v4, 2, v0
          ds_write_b32 v4, v12 offset:{FZ}
          v_add_u32 v6, s56, v6
          v_lshl_add_u32 v5, v5, 1, s52''')
    maskaddr(8, 4, 's56', FZ, 12)
    a('''s_waitcnt vmcnt(8)
         v_dot2_f32_bf16 v102, v96, s58, 0
         v_dot2_f32_bf16 v103, v96, v96, 0''')
    for i in range(1, 4):
        a(f'v_dot2_f32_bf16 v102, v{96+i}, s58, v102')
        a(f'v_dot2_f32_bf16 v103, v{96+i}, v{96+i}, v103')
    for sh in (8, 4, 2, 1):
        a(f'v_add_f32_dpp v102, v102, v102 row_ror:{sh} {DPPF}')
        a(f'v_add_f32_dpp v103, v103, v103 row_ror:{sh} {DPPF}')
    allred_rows('v_add_f32', 102, 104); allred_rows('v_add_f32', 103, 104)
    a('v_lshlrev_b32 v96, 16, v100')
    ln_apply(102, 103, (100, 96), 104)
    a(f'''s_lshl_b32 s50, s31, 10
          s_add_u32 s50, s50, {X1}
          s_add_u32 s51, s50, {7*1024}
          s_lshl_b32 s52, s32, 11
          s_lshl_b32 s53, s33, 8
          s_add_u32 s52, s52, s53
          s_add_u32 s53, s52, {X2F}
          s_add_u32 s52, s52, {X2}
          s_waitcnt lgkmcnt(0)''')
    tags()
    a('s_waitcnt vmcnt(4)')
    fix4(32, 104); perms64(32, 64)
    a('s_waitcnt vmcnt(0)')
    fix4(48, 104); perms64(48, 80)
    stamp(2)
    poll4('L_q_x1', [f'buffer_load_dwordx4 v[{32+4*s}:{35+4*s}], v7, s[44:47], s{50+s} offen sc1' for s in range(2)], 32, 40)
    stamp(3)
    rscatter(36); rscatter(32)
    rnd('v36', 'v36'); rnd('v32', 'v32')
    a('v_add_f32 v36, 1.0, v36'); rnd('v36', 'v36')
    a('v_mul_f32 v36, v100, v36'); rnd('v36', 'v36')
    a('v_add_f32 v36, v36, v32'); rnd('v36', 'v36')
    a('ds_write_b16_d16_hi v6, v36')
    for u in range(2):
        for tau in range(4): a(f'ds_read_b128 v[{32+16*u+4*tau}:{35+16*u+4*tau}], v{8+tau} offset:{64*u}')
    mma(8, 12, 32, 64)
    a(f'''s_mov_b64 exec, 0xffff
          s_cmp_eq_u32 s31, 0
          ds_write_b128 v5, v[12:15] offset:{FP}
          s_mov_b64 exec, -1
          s_waitcnt lgkmcnt(0)
          s_barrier
          s_cbranch_scc0 L_q_done''')
    sumrows(7, FP, 4)
    rnd('v16', 'v16')
    a('''v_or_b32 v16, s3, v16
         buffer_store_dword v16, v4, s[44:47], s53 offen
         buffer_store_dword v16, v4, s[44:47], s52 offen sc1
         L_q_done:''')
    stamp(4)
    if rewarm:
        a(f'''s_cmp_lt_u32 s31, 2
              s_cbranch_scc0 L_rw
              s_getpc_b64 s[4:5]
              L_pc2:
              s_sub_u32 s4, s4, L_pc2-L_pc
              s_subb_u32 s5, s5, 0
              s_lshl_b32 s6, s31, 13
              v_lshl_add_u32 v102, v0, 7, s6
              v_min_u32 v102, L_code_end-L_pc-4, v102
              global_load_dword v127, v102, s[4:5] sc1
              L_rw:''')
    def ffn_id(skip):
        a(f'''s_cmp_lt_u32 s32, 4
              s_cselect_b32 s50, 6, 8
              s_cselect_b32 s51, 0, 8
              s_cmp_lt_u32 s33, s50
              s_cbranch_scc0 {skip}''')
    ffn_id('L_fin2')
    a(f'''s_mul_i32 s50, s50, s32
          s_add_u32 s50, s50, s33
          s_sub_u32 s50, s50, s51
          s_mov_b32 s36, s16
          s_mov_b32 s37, s17
          s_mov_b32 s38, {448*3584}
          s_mov_b32 s40, s18
          s_mov_b32 s41, s19
          s_mov_b32 s42, {1792*896}
          s_mul_i32 s52, s31, {64*3584}
          s_lshl_b32 s53, s50, 6
          s_add_u32 s52, s52, s53
          s_mul_i32 s54, s50, {32*896}
          s_lshl_b32 s55, s31, 7
          s_add_u32 s54, s54, s55
          s_add_u32 s55, s54, {4*896}
          v_and_b32 v4, 15, v0
          v_mul_u32_u24 v2, {8*3584}, v3
          v_lshl_add_u32 v2, v4, 2, v2''')
    voff4(1, 8 * 896, 896, 102)
    if hintk:
        a(f'''s_mul_i32 s48, s32, {24*128}
              s_add_u32 s48, s48, {HINT}
              v_lshlrev_b32 v102, 7, v0
              s_mov_b64 exec, 0xffffff
              s_mov_b32 s62, 0
              L_f_h:
              s_sleep 2
              buffer_load_dword v103, v102, s[44:47], s48 offen sc1
              s_add_u32 s62, s62, {1 << (32 - fastbits)}
              s_waitcnt vmcnt(0)
              s_cbranch_scc1 L_f_hok
              v_cmp_eq_u32 vcc, s3, v103
              s_bcnt1_i32_b64 s53, vcc
              s_cmp_lt_u32 s53, {hintk}
              s_cbranch_scc1 L_f_h
              L_f_hok:
              s_mov_b64 exec, -1''')
    stamp(5)
    for i in range(16):
        a(f'buffer_load_dword v{32+i}, v2, s[36:39], s52 offen offset:{3584*(i&1)}{w1nt}')
        if i & 1: a(f's_add_u32 s52, s52, {2*3584 if i != 7 else 26*3584}')
    for u in range(4):
        a(f'buffer_load_dwordx4 v[{48+4*u}:{51+4*u}], v1, s[40:43], s{54+(u>>1)} offen offset:{(u&1)*2*896}{nt}')
    a(f'''s_mul_i32 s12, s50, 1792
          s_lshl_b32 s13, s31, 8
          s_add_u32 s12, s12, s13
          s_add_u32 s12, s12, {X5}
          v_lshrrev_b32 v102, 1, v0
          v_mul_u32_u24 v102, {X5C}, v102
          v_and_b32 v103, 1, v0
          v_lshl_add_u32 v102, v103, 7, v102
          s_mov_b32 s36, s24
          s_mov_b32 s37, s25
          s_mov_b32 s38, 896
          s_mov_b64 exec, {(1 << (2 * R5)) - 1}
          buffer_load_dword v126, v102, s[44:47], s12 offen sc1
          buffer_load_ushort v125, v101, s[36:39], 0 offen
          s_mov_b64 exec, -1''')
    for r in range(1, R5): a(f's_add_u32 s{12+r}, s12, {r * X5C}')
    a(f'''v_mul_u32_u24 v2, 1792, v3
          v_lshl_add_u32 v2, v4, 4, v2
          s_lshl_b32 s52, s31, 10
          s_add_u32 s52, s52, {X1 + 14*1024}
          s_add_u32 s53, s52, {7*1024}
          s_add_u32 s54, s52, {14*1024}
          s_add_u32 s55, s52, {21*1024}
          s_add_u32 s57, s56, 128''')
    maskaddr(8, 2, 's56', FZ, 102)
    maskaddr(10, 4, 's57', FZ, 102)
    stamp(6)
    poll4('L_f_mx', [f'buffer_load_dwordx4 v[{104+4*s}:{107+4*s}], v7, s[44:47], s{52+s} offen sc1' for s in range(4)], 104, 120, 2)
    a(f'''v_mov_b32 v102, 0
          v_mov_b32 v103, 1
          s_mov_b64 exec, 1
          ds_add_u32 v102, v103 offset:{FC}
          s_mov_b64 exec, -1''')
    for s in range(4): rscatter(104 + 4 * s)
    rnd('v97', 'v104'); rnd('v98', 'v108'); rnd('v99', 'v112'); rnd('v100', 'v116')
    for aa in range(2):
        for tau in range(2):
            for rho in range(4):
                a(f'v_perm_b32 v{16+8*aa+4*tau+rho}, v{32+8*aa+2*rho+1}, v{32+8*aa+2*rho}, s{60+tau}')
    fix4(48, 104); perms64(48, 64)
    a('v_add_f32 v99, 1.0, v99')
    rnd('v99', 'v99')
    lanetag(5, 0)
    a(f'''s_lshl_b32 s40, s31, 8
          s_add_u32 s40, s40, {X4}
          s_add_u32 s41, s40, {4*1792}
          s_add_u32 s42, s40, {8*1792}
          s_add_u32 s43, s40, {12*1792}
          s_lshl_b32 s52, s31, 3
          s_add_u32 s52, s52, {FST}
          v_lshrrev_b32 v1, 5, v0
          v_lshl_add_u32 v3, v1, 2, s52
          v_lshlrev_b32 v1, 4, v1
          s_lshl_b32 s52, s31, 7
          s_add_u32 s52, s52, {FP2}
          v_lshl_add_u32 v4, v0, 3, s52
          v_and_b32 v14, 31, v0
          v_lshl_add_u32 v15, v14, 1, s57
          v_lshlrev_b32 v14, 2, v14
          v_add_u32 v14, {FP2}, v14
          v_mov_b32 v80, {FST}
          v_lshrrev_b32 v81, 2, v0
          v_mul_u32_u24 v81, 1792, v81
          v_and_b32 v82, 3, v0
          v_lshl_add_u32 v81, v82, 4, v81
          s_lshl_b32 s58, s50, 5
          s_add_u32 s58, s58, {X5}
          s_bfe_u32 s52, s50, 0x20001
          s_lshl_b32 s52, s52, 2
          s_lshl_b32 s20, 0x000f000f, s52
          s_and_b32 s53, s50, 0x39
          s_lshl_b32 s52, s31, 3
          s_cmp_eq_u32 s52, s53
          s_cselect_b32 s20, s20, 0
          s_mov_b32 s21, s20
          s_mov_b32 s57, 0xffffff00''')
    x4l = [f'buffer_load_dwordx4 v[{32+4*s}:{35+4*s}], v2, s[44:47], s{40+s} offen sc1' for s in range(4)]
    setprio(2)
    stamp(7)
    if flags:
        for s in range(4): a(f's_mov_b64 s[{4+2*s}:{5+2*s}], -1')
        a(f'''s_mov_b32 s62, 0
              L_f_a:
              ds_read_b128 v[48:51], v1 offset:{FF}
              s_add_u32 s62, s62, {STEP}
              s_cbranch_scc1 L_f_aok
              s_waitcnt lgkmcnt(0)''')
        for s in range(4): a(f'v_cmp_eq_u32 s[{(16, 18, 22, 26)[s]}:{(16, 18, 22, 26)[s]+1}], s3, v{48+s}')
        for s in range(4):
            r = (16, 18, 22, 26)[s]
            a(f's_and_b64 exec, s[{4+2*s}:{5+2*s}], s[{r}:{r+1}]\n{x4l[s]}\ns_andn2_b64 s[{4+2*s}:{5+2*s}], s[{4+2*s}:{5+2*s}], s[{r}:{r+1}]')
        a('''s_mov_b64 exec, -1
             s_or_b64 vcc, s[4:5], s[6:7]
             s_or_b64 vcc, vcc, s[8:9]
             s_or_b64 vcc, vcc, s[10:11]
             s_cbranch_scc1 L_f_a
             L_f_aok:''')
    else:
        for l in x4l: a(l)
    stamp(10)
    rare.append(gcheck('L_x4', x4l, 32, 4, 5, '\n'.join(f's_add_u32 s{40+s}, s{40+s}, {X4C}' for s in range(4)), 0))
    stamp(8)
    def sum4x4(r):
        for s in range(4): a(f'v_xor_b32 v{r+4*s}, v{r+4*s}, v5')
        pk('add', r + 2, r + 2, r + 6); pk('add', r + 10, r + 10, r + 14)
        pk('add', r, r, r + 4); pk('add', r + 8, r + 8, r + 12)
        pk('add', 34, r + 2, r + 10); pk('add', 32, r, r + 8)
    sum4x4(32)
    rscatter(32)
    rnd('v32', 'v32'); a('v_mul_f32 v32, v97, v32'); rnd('v32', 'v32'); a('v_add_f32 v32, v96, v32'); rnd('v33', 'v32')
    a(f'''v_mul_f32 v34, v33, v33
          v_mov_b32 v96, v33
          v_permlane32_swap_b32 v33, v34
          v_add_f32 v33, v33, v34
          v_add_f32_dpp v33, v33, v33 row_ror:8 {DPPF}
          v_add_f32_dpp v33, v33, v33 row_ror:4 {DPPF}
          v_add_f32_dpp v33, v33, v33 row_ror:2 {DPPF}
          v_add_f32_dpp v33, v33, v33 row_ror:1 {DPPF}
          v_add_f32_dpp v33, v33, v33 row_bcast:15 row_mask:0xa bank_mask:0xf
          s_mov_b32 exec_lo, 0x10000
          s_mov_b32 exec_hi, 0x10000
          ds_write_b32 v3, v33
          s_mov_b64 exec, -1
          s_waitcnt lgkmcnt(0)
          s_barrier
          ds_read_b128 v[36:39], v80
          ds_read_b128 v[40:43], v80 offset:16
          ds_read_b128 v[44:47], v80 offset:32
          ds_read_b64 v[48:49], v80 offset:48
          s_waitcnt lgkmcnt(0)''')
    pk('add', 36, 36, 38); pk('add', 40, 40, 42); pk('add', 44, 44, 46)
    pk('add', 36, 36, 40); pk('add', 44, 44, 48); pk('add', 36, 36, 44)
    ln_apply(36, 37, (32, 96), 40)
    a('v_mul_f32 v32, v32, v99'); rnd('v32', 'v32')
    a('v_add_f32 v32, v32, v98'); rnd('v32', 'v32')
    a('ds_write_b16_d16_hi v6, v32')
    for aa in range(2):
        for tau in range(2): a(f'ds_read_b128 v[{36+8*aa+4*tau}:{39+8*aa+4*tau}], v{8+tau} offset:{64*aa}')
    mma(4, 52, 36, 16)
    stamp(11)
    a(f'''s_mov_b64 exec, 0xffff
          ds_write_b64 v4, v[52:53]
          s_mov_b64 exec, -1
          v_mov_b32 v43, 0
          s_waitcnt lgkmcnt(0)
          s_barrier
          ds_read2_b32 v[36:37], v14 offset0:0 offset1:32
          ds_read2_b32 v[38:39], v14 offset0:64 offset1:96
          ds_read2_b32 v[40:41], v14 offset0:128 offset1:160
          ds_read_b32 v42, v14 offset:768
          s_waitcnt lgkmcnt(0)''')
    pk('add', 36, 36, 38); pk('add', 40, 40, 42); pk('add', 36, 36, 40)
    a('v_add_f32 v36, v36, v37')
    rnd('v36', 'v36')
    silu(36, 36, 37)
    a('ds_write_b16_d16_hi v15, v36')
    for tau in range(4): a(f'ds_read_b128 v[{36+4*tau}:{39+4*tau}], v{10+tau}')
    mma(4, 52, 36, 64)
    a('''s_mov_b64 exec, 0xffff
         s_cmp_eq_u32 s20, 0
         v_and_or_b32 v52, v52, s57, v5''')
    for r in range(R5): a(f'buffer_store_dwordx4 v[52:55], v7, s[44:47], s{12+r} offen sc1')
    stamp(9)
    a('s_cbranch_scc1 L_fin2\ns_mov_b64 exec, -1')
    base = [104, 16, 64, 36][:R5]
    for r in range(R5):
        a(f'v_mov_b32 v{base[r]+12}, v5')
        for k in range(1, 4): a(f'v_mov_b32 v{base[r]+12+k}, 0')
    if d5: a(f's_sleep {d5}')
    x5l = None
    for r in range(R5):
        x5l = [f'buffer_load_dwordx4 v[{base[r]+4*s}:{base[r]+4*s+3}], v81, s[44:47], s{40+s} offen sc1' for s in range(4)]
        for s in range(4):
            a(f's_add_u32 s{40+s}, s58, {r * X5C + s * 16 * 1792}')
            if s == 3: a('s_mov_b32 exec_hi, 0')
            a(x5l[s])
        a('s_mov_b32 exec_hi, -1')
    for r in range(R5 - 1):
        a(f's_waitcnt vmcnt({4 * (R5 - 1 - r)})')
        a(f'''v_bitop3_b32 v56, v{base[r]}, v{base[r]+4}, v5 bitop3:0x7e
              v_bitop3_b32 v57, v{base[r]+8}, v{base[r]+12}, v5 bitop3:0x7e
              v_or_b32 v56, v56, v57
              v_cmp_ne_u32_sdwa vcc, v56, 0 src0_sel:BYTE_0 src1_sel:DWORD''')
        sum4x4(base[r])
        if diag: a(f's_mov_b32 s{64+2*13}, {r+1}')
        a('s_cbranch_vccz L_r_ok')
    rare.append(gcheck('L_x5', x5l, base[-1], 4, 5, None, 0))
    if diag: a(f's_lshr_b32 s{64+2*13}, s62, {32 - spinbits}\ns_add_u32 s{64+2*13}, s{64+2*13}, {R5}')
    sum4x4(base[-1])
    a('L_r_ok:')
    stamp(12)
    rscatter(32)
    a(f'''v_add_f32_dpp v32, v32, v32 row_ror:8 {DPPF}
          v_add_f32_dpp v32, v32, v32 row_ror:4 {DPPF}''')
    rnd('v32', 'v32'); a('v_mul_f32 v32, v100, v32'); rnd('v32', 'v32'); a('v_add_f32 v32, v96, v32\ns_mov_b64 exec, s[20:21]'); rnd('v32', 'v32')
    a('''buffer_store_short_d16_hi v32, v101, s[36:39], 0 offen
         s_cmp_eq_u32 s50, 0
         s_cbranch_scc0 L_fin3
         s_mov_b64 exec, 1
         v_mov_b32 v2, 0
         v_mov_b32 v3, s30
         buffer_store_dword v3, v2, s[44:47], 0 offen sc1
         L_fin3:''')
    stamp(14)
    if padto:
        a(f'''L_pad:
              s_memrealtime s[66:67]
              s_waitcnt lgkmcnt(0)
              s_sub_u32 s66, s66, s64
              s_cmp_lt_u32 s66, {padto*100}
              s_cbranch_scc1 L_pad''')
    a('L_fin2:')
    fin()
    for r in rare: r()
    rare.clear()
    a('L_F7:')
    if flags:
        a('s_cmp_eq_u32 s31, 7\ns_cbranch_scc0 L_end')
        ffn_id('L_end')
        a(f'''v_mov_b32 v2, 0
              v_lshlrev_b32 v3, 2, v0
              ds_write_b32 v3, v2 offset:{FF}
              v_and_b32 v4, 3, v0
              v_lshlrev_b32 v4, 8, v4
              v_lshrrev_b32 v5, 2, v0
              v_lshl_add_u32 v4, v5, 7, v4
              s_lshl_b32 s48, s32, 10
              s_add_u32 s48, s48, {FL}
              s_mov_b32 m0, {FF}
              s_waitcnt lgkmcnt(0)
              s_load_dword s30, s[28:29], 0''')
        ws_srd()
        a('s_waitcnt lgkmcnt(0)\ns_barrier')
        tags()
        ldswait('L_7_g', FC, 4, 4)
        setprio(3)
        a(f'''s_mov_b64 exec, 0xff
              s_mov_b32 s62, 0
              L_7_l:
              buffer_load_dword v4, s[44:47], s48 offen sc1 lds
              ds_read_b32 v6, v3 offset:{FF}
              s_add_u32 s62, s62, {STEP}
              s_cbranch_scc1 L_end
              s_waitcnt vmcnt(16) lgkmcnt(0)
              v_cmp_ne_u32 vcc, s3, v6
              s_and_b64 exec, vcc, vcc
              s_cbranch_scc1 L_7_l''')
    a('s_endpgm')
    if probe:
        a('L_probe:\ns_cmp_eq_u32 s68, 0\ns_cbranch_scc1 L_end')
        if len(probe) > 2 and probe[2] is not None: a(f's_cmp_eq_u32 s32, {probe[2]}\ns_cbranch_scc0 L_end')
        if len(probe) > 3 and probe[3] is not None: a(f's_cmp_eq_u32 s31, {probe[3]}\ns_cbranch_scc0 L_end')
        a('''s_setprio 0
             s_sleep 127
             s_sleep 127
             s_sleep 127
             s_sleep 127
             s_sleep 127
             L_probe_l:
             s_memrealtime s[66:67]
             s_waitcnt lgkmcnt(0)
             s_sub_u32 s66, s66, s64
             s_cmp_lt_u32 s66, 3000
             s_cbranch_scc1 L_probe_l
             s_endpgm''')
    if diag:
        a(f'''L_dump:
              s_mov_b64 exec, -1
              s_waitcnt vmcnt(0) lgkmcnt(0)
              s_memrealtime s[94:95]
              s_lshl_b32 s48, s2, 4
              s_add_u32 s48, s48, s31
              s_lshl_b32 s48, s48, 6
              s_add_u32 s48, s48, {STAMP_OFF}
              v_mov_b32 v1, s48
              s_waitcnt lgkmcnt(0)''')
        for i in range(16): a(f'v_mov_b32 v{8+i}, s{64+2*i}')
        a('s_mov_b64 exec, 1')
        for i in range(4): a(f'global_store_dwordx4 v1, v[{8+4*i}:{11+4*i}], s[28:29] offset:{16*i}')
    a('L_end:\ns_endpgm\nL_code_end:')
    head = open('adaLN_cond__sliding_block_cached__dense_activation_silu__decode.s.ref').read().split('; Override launch')[0]
    return head + f'''; @launch grid=(256,1,1) block=(1024,1,1) lds={L_END}
.amdgcn_target "amdgcn-amd-amdhsa--gfx950"
.text
.globl {KN}
.p2align 8
.type {KN},@function
''' + a.text() + f'''.section .rodata,"a"
.p2align 6
.amdhsa_kernel {KN}
  .amdhsa_next_free_vgpr 128
  .amdhsa_next_free_sgpr 96
  .amdhsa_accum_offset 128
  .amdhsa_group_segment_fixed_size 0
  .amdhsa_kernarg_size 104
  .amdhsa_user_sgpr_count 2
  .amdhsa_user_sgpr_kernarg_segment_ptr 1
  .amdhsa_system_sgpr_workgroup_id_x 1
.end_amdhsa_kernel
'''

if __name__ == '__main__':
    out = sys.argv[1]
    kw = eval('dict(' + (sys.argv[2] if len(sys.argv) > 2 else '') + ')')
    open(out, 'w').write(gen(**kw))
```

```python
import sys, struct
sys.path.insert(0, 'work')
from asmlib import Asm

KN = 'adaLN_cond__sliding_block_cached__dense_activation_silu__decode_kernel'
X2, X2F, HINT, PRB, X1, X4, X5, X3, X3F, WSEND = 0x4000, 0x8000, 0xC000, 0x80000, 0x18000, 0x30000, 0x40000, 0xA0000, 0x100000, 0x160000
SIDE = 0x2000
STAMP_OFF = 0x180000
L_Q, L_M, L_C, L_L, L_Z, L_O, L_PRIV, L_P, L_END = 0x0, 0x800, 0x810, 0x840, 0x900, 0x1000, 0x5000, 0x5800, 0x6100
FM = 0x300
FZ, FC, FP, FP2, FST, FX, FG = 0x0, 0x240, 0x1000, 0x1800, 0x2000, 0x3000, 0x3800
WINOFF = (65536 - 4096) * 512
def f2u(x): return struct.unpack('<I', struct.pack('<f', x))[0]
LOG2E = 1.4426950408889634
DPPF = 'row_mask:0xf bank_mask:0xf'

def gen(W=4, WH=5, WK=None, diag=False, sleep=8, nt=' nt', w1nt='', warm=True, rewarm=True, padto=0, gaten=8, lazyn=8,
        hintk=8, hintpos=4, touchpos=2, spinbits=17, fastbits=6, prio=True, probe=None, NL=4, nprb=6, cap5=0, W0=None, N0=0, fside=None, trprb=False):
    a = Asm()
    rare = []
    STEP = 1 << (32 - spinbits)
    role = ['all']
    def stamp(i):
        if diag: a(f's_memrealtime s[{64+2*i}:{65+2*i}]')
        if probe and probe[0] == role[0] and probe[1] == i: a('s_memrealtime s[64:65]\ns_mov_b32 s68, 1')
    def fin(): a('s_branch L_dump' if diag else 's_branch L_probe' if probe else 's_endpgm')
    def setprio(n):
        if prio: a(f's_setprio {n}')
    def tags():
        a('''s_add_u32 s30, s30, 1
             s_and_b32 s34, s30, 0x7f
             s_xor_b32 s35, s34, 0x5a
             s_lshl_b32 s3, s35, 8
             s_or_b32 s3, s3, s34''')
    def ws_srd():
        a(f'''s_mov_b32 s44, s28
              s_mov_b32 s45, s29
              s_mov_b32 s46, {WSEND}
              s_mov_b32 s47, 0x20000''')
    def lanetag(d, bit):
        a(f'''v_bfe_u32 v{d}, v0, {bit}, 1
              v_mul_u32_u24 v{d}, 0x5a, v{d}
              v_xor_b32 v{d}, s34, v{d}''')
    def rowtag(m, t):
        lanetag(t, 2)
        a(f'''v_and_b32 v{m}, 3, v0
              v_cmp_eq_u32 vcc, 0, v{m}
              v_mov_b32 v{m}, 0xffffff00
              v_cndmask_b32 v{t}, 0, v{t}, vcc
              v_cndmask_b32 v{m}, -1, v{m}, vcc''')
    def spin(loop, done):
        a(f'''s_cbranch_vccz {done}
              s_add_u32 s62, s62, {STEP}
              s_cbranch_scc0 {loop}
              {done}:''')
    def ldswait(lbl, off, n, sl, z=100):
        if not n: return
        a(f'v_mov_b32 v{z}, 0\ns_mov_b32 s62, 0\n{lbl}:')
        if sl: a(f's_sleep {sl}')
        a(f'''ds_read_b32 v{z+1}, v{z} offset:{off}
              s_waitcnt lgkmcnt(0)
              v_cmp_gt_u32 vcc, {n}, v{z+1}''')
        spin(lbl, lbl + 'ok')
    def gcheck(lbl, loads, raw, masks, vt, switch, nfast, valid=None):
        n = len(loads)
        a(f's_mov_b32 s62, 0\n{lbl}:\ns_waitcnt vmcnt(0)')
        for i in range(n): a(f'v_cmp_ne_u32_sdwa s[{masks+2*i}:{masks+2*i+1}], v{raw+4*i}, v{vt} src0_sel:BYTE_0 src1_sel:DWORD')
        a(f's_or_b64 vcc, s[{masks}:{masks+1}], s[{masks+2}:{masks+3}]')
        for i in range(2, n): a(f's_or_b64 vcc, vcc, s[{masks+2*i}:{masks+2*i+1}]')
        a(f's_cbranch_scc1 {lbl}_r\n{lbl}_ok:')
        def r():
            a(f'{lbl}_r:')
            if switch:
                a(f's_cmp_eq_u32 s62, {nfast * STEP}\ns_cbranch_scc0 {lbl}_n\n{switch}\n{lbl}_n:')
            for i, l in enumerate(loads): a(f's_wqm_b64 exec, s[{masks+2*i}:{masks+2*i+1}]\n{l}')
            a(f'''s_mov_b64 exec, -1
                  s_add_u32 s62, s62, {STEP}
                  s_cbranch_scc0 {lbl}
                  s_waitcnt vmcnt(0)
                  s_branch {lbl}_ok''')
        return r
    def poll4(lbl, loads, raw, t, sl=0):
        a(f'''v_mov_b32 v{t+2}, 0
              ds_read_b32 v{t+3}, v{t+2} offset:{FC+12}
              s_and_b32 s4, s34, 15
              s_and_b32 s5, s35, 15
              s_mov_b32 s62, 0
              s_waitcnt lgkmcnt(0)
              {lbl}:
              v_add_u32 v{t+1}, v7, v{t+3}''')
        if sl: a(f's_sleep {sl}')
        for l in loads: a(l)
        a(f'ds_read_b32 v{t+3}, v{t+2} offset:{FC+12}\ns_waitcnt vmcnt(0) lgkmcnt(0)')
        n = 4 * len(loads)
        for k in range(n): a(f'v_xor_b32 v{raw+k}, s{4+(k&1)}, v{raw+k}')
        a(f'v_or_b32 v{t}, v{raw}, v{raw+1}')
        for k in range(2, n, 2): a(f'v_or3_b32 v{t}, v{t}, v{raw+k}, v{raw+k+1}')
        a(f'v_and_b32 v{t}, 15, v{t}\nv_cmp_ne_u32 vcc, 0, v{t}')
        spin(lbl, lbl + '_ok')
    def pk(op, d, x, y): a(f'v_pk_{op}_f32 v[{d}:{d+1}], v[{x}:{x+1}], v[{y}:{y+1}]')
    def rscatter(r):
        a(f'v_permlane32_swap_b32 v{r}, v{r+2}\nv_permlane32_swap_b32 v{r+1}, v{r+3}')
        pk('add', r, r, r + 2)
        a(f'v_permlane16_swap_b32 v{r}, v{r+1}\nv_add_f32 v{r}, v{r}, v{r+1}')
    def rnd(d, s): a(f'v_cvt_pk_bf16_f32 {d}, 0, {s}')
    def allred_rows(op, r, t):
        a(f'''v_mov_b32 v{t}, v{r}
              v_permlane32_swap_b32 v{r}, v{t}
              {op} v{r}, v{r}, v{t}
              v_mov_b32 v{t}, v{r}
              v_permlane16_swap_b32 v{r}, v{t}
              {op} v{r}, v{r}, v{t}''')
    def perm_sel(): a('s_mov_b32 s60, 0x05040100\ns_mov_b32 s61, 0x07060302')
    def perms64(raw, dst):
        for tau in range(4):
            for rho in range(4):
                a(f'v_perm_b32 v{dst+4*tau+rho}, v{raw+2*(2*rho+1)+(tau>>1)}, v{raw+2*(2*rho)+(tau>>1)}, s{60+(tau&1)}')
    def fix4(raw, t):
        for u0 in (0, 2):
            for i in range(2): a(f'v_pk_mov_b32 v[{t+2*i}:{t+2*i+1}], v[{raw+4*(u0+i)+2}:{raw+4*(u0+i)+3}], v[{raw+4*(u0+i)+2}:{raw+4*(u0+i)+3}] op_sel:[0,1]')
            rs = [raw + 4 * u + d for u in (u0, u0 + 1) for d in (0, 1)]
            for i, r in enumerate(rs): a(f'v_mov_b32_dpp v{r+2}, v{r} row_ror:8 row_mask:0xf bank_mask:0x3')
            for i, r in enumerate(rs): a(f'v_mov_b32_dpp v{r}, v{t+i} row_ror:8 row_mask:0xf bank_mask:0xc')
    def voff4(d, gstride, stride, t):
        a(f'''v_lshrrev_b32 v{t}, 4, v0
              v_mul_u32_u24 v{d}, {gstride}, v{t}
              v_bfe_u32 v{t}, v0, 3, 1
              v_mul_u32_u24 v{t}, {stride}, v{t}
              v_add_u32 v{d}, v{d}, v{t}
              v_and_b32 v{t}, 7, v0
              v_lshl_add_u32 v{d}, v{t}, 4, v{d}''')
    def maskaddr(dst, n, base, zero, t):
        a(f'''v_lshrrev_b32 v{t}, 4, v0
              v_lshlrev_b32 v{t}, 4, v{t}
              v_add_u32 v{t}, {base}, v{t}
              v_and_b32 v{t+1}, {n-1}, v0
              v_mov_b32 v{t+2}, {zero}''')
        for tau in range(n):
            a(f'v_cmp_eq_u32 vcc, {tau}, v{t+1}')
            a(f'v_cndmask_b32 v{dst+tau}, v{t+2}, v{t}, vcc')
    def silu(d, x, t):
        a(f'''v_mul_f32 v{t}, {hex(f2u(-LOG2E))}, v{x}
              v_exp_f32 v{t}, v{t}
              v_add_f32 v{t}, 1.0, v{t}
              v_rcp_f32 v{t}, v{t}
              v_mul_f32 v{t}, v{x}, v{t}''')
        rnd(f'v{d}', f'v{t}')
    def ln_apply(s1, s2, x, t):
        a(f'''v_mul_f32 v{t}, v{s1}, v{s1}
              v_fma_f32 v{t+1}, v{s1}, v{s1}, -v{t}
              v_fma_f32 v{t}, v{s2}, s59, -v{t}
              v_sub_f32 v{t}, v{t}, v{t+1}
              v_mul_f32 v{t}, {hex(f2u(1/448/448))}, v{t}
              v_max_f32 v{t}, 0, v{t}''')
        rnd(f'v{t}', f'v{t}')
        a(f'v_add_f32 v{t}, {hex(f2u(1e-5))}, v{t}')
        rnd(f'v{t}', f'v{t}')
        a(f'v_sqrt_f32 v{t}, v{t}\nv_mul_f32 v{t+1}, {hex(f2u(1/448))}, v{s1}')
        rnd(f'v{t}', f'v{t}'); rnd(f'v{t+1}', f'v{t+1}')
        a(f'v_rcp_f32 v{t}, v{t}\nv_sub_f32 v{t+1}, v{x[1]}, v{t+1}')
        rnd(f'v{t+1}', f'v{t+1}')
        a(f'v_mul_f32 v{t+1}, v{t+1}, v{t}')
        rnd(f'v{x[0]}', f'v{t+1}')
    def mma(n, acc, A, B):
        for i in range(n):
            a(f's_waitcnt lgkmcnt({0 if diag else n-1-i})')
            a(f'v_mfma_f32_16x16x32_bf16 v[{acc}:{acc+3}], v[{A+4*i}:{A+4*i+3}], v[{B+4*i}:{B+4*i+3}], ' + ('0' if i == 0 else f'v[{acc}:{acc+3}]'))
    def sumrows(n, ldsoff, va, first=None):
        o = ldsoff // 256
        for u in range(n // 2): a(f'ds_read2st64_b32 v[{16+2*u}:{17+2*u}], v{va} offset0:{o+2*u} offset1:{o+2*u+1}')
        if n & 1: a(f'ds_read_b32 v22, v{va} offset:{ldsoff+256*(n-1)}\nv_mov_b32 v23, 0')
        a('s_waitcnt lgkmcnt(0)')
        if first: a(first)
        pk('add', 16, 16, 18); pk('add', 20, 20, 22); pk('add', 16, 16, 20)
        a('v_add_f32 v16, v16, v17')

    def getside(t):
        a(f'''v_mov_b32 v{t}, 0
              ds_read_b32 v{t}, v{t} offset:{FC+12}
              s_waitcnt lgkmcnt(0)
              v_readfirstlane_b32 s48, v{t}''')
    a(f'{KN}:')
    if probe: a('s_mov_b32 s68, 0')
    stamp(0)
    a(f'''s_load_dwordx16 s[4:19], s[0:1], 0
          s_load_dwordx8 s[20:27], s[0:1], 64
          s_load_dwordx2 s[28:29], s[0:1], 96
          v_lshrrev_b32 v1, 6, v0
          s_getpc_b64 s[48:49]
          L_pc:
          v_lshlrev_b32 v2, 7, v0
          v_readfirstlane_b32 s31, v1
          v_cmp_gt_u32 vcc, (L_code_end-L_pc)/128, v0
          s_and_b32 s32, s2, 7
          s_lshr_b32 s33, s2, 3
          s_cmp_ge_u32 s2, 64
          s_cbranch_scc1 L_A''')
    if warm:
        a('''s_and_saveexec_b64 s[50:51], vcc
             s_cbranch_execz L_w1
             global_load_dword v127, v2, s[48:49]
             L_w1:
             s_mov_b64 exec, -1''')
    def dzero():
        if diag:
            for i in range(1, 16): a(f's_mov_b32 s{64+2*i}, 0')
    a(f'''s_branch L_F
          L_A:
          s_cmp_ge_u32 s2, 256
          s_cbranch_scc1 L_end
          s_sub_u32 s33, s33, 8
          s_cmp_lt_u32 s31, 8
          s_cbranch_scc1 L_att
          v_and_b32 v0, 63, v0
          s_cmp_ge_u32 s33, 3
          s_cselect_b32 s50, 9, 0
          s_cmp_eq_u32 s31, s50
          s_cbranch_scc1 L_t_mod
          s_barrier
          s_branch L_T''')
    K0, V0 = 8, 56
    role[0] = 'att'
    a(f'''L_att:
          v_lshrrev_b32 v9, 1, v0
          v_mov_b32 v8, {hex(f2u(-3e38))}
          v_cmp_eq_u32 vcc, {L_M // 16}, v9
          v_lshlrev_b32 v10, 3, v0
          v_and_b32 v0, 63, v0
          v_mov_b32 v9, 0
          v_cndmask_b32 v8, 0, v8, vcc
          ds_write_b64 v10, v[8:9]
          s_lshr_b32 s50, s33, 1
          s_add_u32 s50, s50, 7
          s_cmp_lt_u32 s33, 3
          s_cselect_b32 s50, s50, 2
          s_cselect_b32 s48, 47, 42
          s_cselect_b32 s49, 0, 16
          s_mul_i32 s48, s48, s33
          s_add_u32 s48, s48, s49
          s_mul_i32 s49, s31, 5
          s_add_u32 s48, s48, s49
          s_min_u32 s49, s31, s50
          s_add_u32 s48, s48, s49
          s_cmp_lt_u32 s31, s50
          s_cselect_b32 s51, 1, 0
          s_add_u32 s48, s48, s51
          s_lshl_b32 s48, s48, 11
          s_lshl_b32 s49, s32, 25
          s_add_u32 s48, s48, s49
          s_add_u32 s48, s48, {WINOFF - 2048}
          v_bfe_u32 v2, v0, 2, 2
          v_lshrrev_b32 v3, 4, v0
          v_and_b32 v4, 3, v0
          v_lshlrev_b32 v6, 9, v2
          v_lshl_add_u32 v6, v3, 6, v6
          v_lshl_add_u32 v6, v4, 4, v6
          v_and_b32 v5, 15, v0
          v_lshlrev_b32 v7, 9, v3
          v_lshl_add_u32 v7, v5, 4, v7
          s_mov_b32 s38, {6*2048}
          s_mov_b32 s39, 0x20000
          s_mov_b32 s42, {6*2048}
          s_mov_b32 s43, 0x20000
          s_mov_b32 s52, 4096
          s_mov_b32 s53, 8192
          s_waitcnt lgkmcnt(0)
          s_add_u32 s36, s6, s48
          s_addc_u32 s37, s7, 0
          s_cmp_ge_u32 s33, 17
          s_cbranch_scc0 L_a_nb
          s_barrier
          L_a_nb:''')
    cnt = [0]
    def kvload(srd, va, base, t, hf, late=False):
        w = WH if late else WK if (WK and srd == 36) else W
        if W0 and W0 <= cnt[0] < N0: a(f's_waitcnt vmcnt({W0-1})')
        elif cnt[0] >= W:
            if WH != w: a(f's_waitcnt vmcnt({WH-1})\ns_cbranch_vccnz L_w{cnt[0]}_\ns_waitcnt vmcnt({w-1})\nL_w{cnt[0]}_:')
            else: a(f's_waitcnt vmcnt({w-1})')
        cnt[0] += 1
        r = base + 8 * t + 4 * hf
        so = ('0', 's52', 's53')[t // 2]
        a(f'buffer_load_dwordx4 v[{r}:{r+3}], v{va}, s[{srd}:{srd+3}], {so} offen offset:{(t & 1) * 2048 + hf * 256}{nt}')
    def setup_att():
        dzero(); stamp(1)
        a(f'''s_load_dword s30, s[28:29], 0
              s_add_u32 s40, s8, s48
              s_addc_u32 s41, s9, 0
              s_cmp_ge_u32 s33, 17
              s_cbranch_scc1 L_a_nb2
              s_barrier
              L_a_nb2:
              v_bfe_u32 v2, v0, 3, 1
              v_lshlrev_b32 v1, 10, v2
              v_lshl_add_u32 v1, v3, 7, v1
              v_lshl_add_u32 v1, v4, 5, v1
              v_and_b32 v104, 1, v0
              v_lshlrev_b32 v104, 4, v104
              v_mov_b32 v105, 0xffff
              v_lshlrev_b32 v104, v104, v105
              v_bfe_u32 v105, v0, 1, 2''')
        for rho in range(4):
            a(f'v_cmp_eq_u32 vcc, {rho}, v105')
            a(f'v_cndmask_b32 v{2+rho}, 0, v104, vcc')
        ws_srd(); perm_sel()
        a(f'''s_mov_b32 s58, {hex(f2u(0.0625 * LOG2E))}
              s_bfe_u32 s57, s31, 0x10001
              s_lshl_b32 s49, s32, 1
              s_add_u32 s54, s57, s49
              s_mul_i32 s54, s54, 24
              s_add_u32 s54, s54, s33
              s_lshl_b32 s54, s54, 10
              s_lshr_b32 s49, s31, 2
              s_lshl_b32 s49, s49, 9
              s_add_u32 s54, s54, s49
              s_and_b32 s49, s31, 1
              s_lshl_b32 s49, s49, 8
              s_add_u32 s54, s54, s49
              s_add_u32 s55, s54, {X3F}
              s_add_u32 s54, s54, {X3}
              s_mul_i32 s59, s32, 24
              s_add_u32 s59, s59, s33
              s_lshl_b32 s59, s59, 7
              s_add_u32 s59, s59, {HINT}
              v_lshlrev_b32 v104, 2, v0
              s_mov_b32 s48, s51
              s_mov_b32 s49, 0
              s_mov_b64 vcc, s[48:49]''')
    a('s_cmp_eq_u32 s51, 0\ns_cbranch_scc1 L_a_k1')
    kvload(36, 6, K0, 0, 0); kvload(36, 6, K0, 0, 1)
    a('L_a_k1:')
    done_setup = False
    for t in range(1, 6):
        for hf in range(2):
            if cnt[0] == 4 and not done_setup: setup_att(); done_setup = True
            kvload(36, 6, K0, t, hf)
    assert done_setup
    stamp(2)
    a('s_cmp_eq_u32 s51, 0\ns_cbranch_scc0 L_a_v0')
    for i in range(4): a(f'v_mov_b32 v{K0+i}, {hex(f2u(-1e30))}')
    a('s_branch L_a_v1\nL_a_v0:')
    kvload(40, 7, V0, 0, 0); kvload(40, 7, V0, 0, 1)
    a('L_a_v1:\ns_waitcnt lgkmcnt(0)')
    tags()
    vl = [(t, hf) for t in range(1, 6) for hf in range(2)]
    late = vl[10 - NL:]
    assert 2 * (6 - touchpos) - 1 >= max(W, WH) and 2 * (6 - max(touchpos, hintpos)) >= NL and NL <= 4
    for t in range(1, 7):
        if t == touchpos:
            a('buffer_load_dword v6, v104, s[44:47], s55 offen sc1')
        if t == hintpos and hintk:
            a(f'''s_cmp_eq_u32 s31, 0
                  s_cbranch_scc0 L_a_nh
                  v_mov_b32 v105, s3
                  s_mov_b64 exec, 1
                  buffer_store_dword v105, v104, s[44:47], s59 offen
                  s_mov_b64 exec, -1
                  L_a_nh:''')
        for hf in range(2):
            if (t, hf) in vl and (t, hf) not in late: kvload(40, 7, V0, t, hf)
    def count(off): a(f's_mov_b64 exec, 1\nds_inc_u32 v0, v2 offset:{off}\ns_mov_b64 exec, -1')
    def lateload(k):
        i = k - (4 - NL)
        if i >= 0: kvload(40, 7, V0, *late[i], late=True)
    if not NL: stamp(3); count(L_C)
    a('s_mov_b32 s62, 0')
    setprio(2)
    a(f'''L_a_q:
          ds_read_b128 v[104:107], v1 offset:{L_Q}
          ds_read_b128 v[108:111], v1 offset:{L_Q+16}
          ds_read_b128 v[112:115], v1 offset:{L_Q+512}
          ds_read_b128 v[116:119], v1 offset:{L_Q+528}
          s_waitcnt lgkmcnt(0)
          v_bitop3_b32 v120, v104, v108, s3 bitop3:0x7e
          v_bitop3_b32 v121, v112, v116, s3 bitop3:0x7e
          v_or_b32 v121, v120, v121
          v_cmp_ne_u32_sdwa vcc, v121, 0 src0_sel:WORD_0 src1_sel:DWORD''')
    for i in range(8): a(f'v_perm_b32 v{120+i}, v{105+2*i}, v{104+2*i}, s61')
    a('s_cbranch_vccnz L_a_qr\nL_a_qok:')
    rare.append(lambda: a(f'''L_a_qr:
          s_sleep 1
          s_add_u32 s62, s62, {STEP}
          s_cbranch_scc0 L_a_q
          s_branch L_a_qok'''))
    stamp(4)
    def qk(t, hf):
        k = K0 + 8 * t; tmp = 104 + 4 * (t & 3)
        if hf == 0: a(f'v_mfma_f32_16x16x32_bf16 v[{tmp}:{tmp+3}], v[{k}:{k+3}], v[120:123], 0')
        else: a(f'v_mfma_f32_16x16x32_bf16 v[{k}:{k+3}], v[{k+4}:{k+7}], v[124:127], v[{tmp}:{tmp+3}]')
    def step(t, i):
        if t < 0 or t > 5: return
        k = K0 + 8 * t
        if i == 0: a(f'v_mov_b32_dpp v{k+4}, v{k} quad_perm:[0,0,0,0] {DPPF}')
        else: a(f'v_add_f32_dpp v{k+4}, v{k+i}, v{k+4} quad_perm:[{i},{i},{i},{i}] {DPPF}')
    lateload(0)
    a('s_cmp_eq_u32 s51, 0\ns_cbranch_scc1 L_a_qk1')
    qk(0, 0); qk(0, 1)
    a('L_a_qk1:')
    fill = ['v_mov_b32 v1, 0', 's_mov_b32 s62, 0', 's_lshl_b32 s48, s57, 3', 's_lshl_b32 s49, s31, 2']
    for t in range(1, 6):
        qk(t, 0); step(t - 3, 0); step(t - 4, 2)
        if t < 3: a(fill.pop(0))
        qk(t, 1); step(t - 3, 1); step(t - 4, 3)
        if t < 3: a(fill.pop(0))
        if t == 3: lateload(1)
    lateload(2)
    step(2, 2); step(3, 0); step(4, 0); step(2, 3); step(3, 1); step(4, 1)
    S = [K0 + 8 * t + 4 for t in range(6)]
    rnd(f'v{S[0]}', f'v{S[0]}')
    a('v_and_b32 v6, 8, v0')
    step(5, 0); step(3, 2); step(4, 2); step(5, 1); step(3, 3); step(4, 3); step(5, 2)
    rnd(f'v{S[1]}', f'v{S[1]}'); rnd(f'v{S[2]}', f'v{S[2]}')
    step(5, 3)
    rnd(f'v{S[3]}', f'v{S[3]}'); rnd(f'v{S[4]}', f'v{S[4]}')
    a(f'v_max3_f32 v112, v{S[0]}, v{S[1]}, v{S[2]}')
    rnd(f'v{S[5]}', f'v{S[5]}')
    a(f'''v_max3_f32 v112, v112, v{S[3]}, v{S[4]}
          s_mov_b32 exec_lo, 0x01010101
          s_mov_b32 exec_hi, 0x01010101
          v_max_f32 v112, v112, v{S[5]}
          ds_max_f32 v6, v112 offset:{L_M}
          s_mov_b64 exec, 1
          ds_inc_u32 v0, v2 offset:{L_C+4}
          s_mov_b64 exec, -1
          v_mov_b32 v117, s48''')
    if NL: lateload(3); stamp(3); count(L_C)
    a(f'''L_a_s1:
          ds_read_b32 v113, v1 offset:{L_C+4}
          ds_read_b32 v112, v6 offset:{L_M}
          ds_read_b32 v116, v117 offset:{L_M}
          s_waitcnt lgkmcnt(0)
          v_cmp_ne_u32 vcc, 8, v113
          v_mul_f32 v112, s58, v112''')
    order = [1, 0, 2, 3, 4, 5]
    for t in order: a(f'v_fma_f32 v{S[t]+2}, v{S[t]}, s58, -v112')
    a('s_cbranch_vccnz L_a_s1r\nL_a_s1ok:')
    rare.append(lambda: a(f'L_a_s1r:\ns_add_u32 s62, s62, {STEP}\ns_cbranch_scc0 L_a_s1\ns_branch L_a_s1ok'))
    stamp(5)
    for t in order: a(f'v_exp_f32 v{S[t]}, v{S[t]+2}')
    def abuild(t):
        k = K0 + 8 * t
        a(f'v_cvt_pk_bf16_f32 v{k+5}, v{k+4}, v{k+4}')
        for rho in range(4): a(f'v_and_b32 v{k+rho}, v{k+5}, v{2+rho}')
    def pv(t, hf, first=False):
        k = K0 + 8 * t; v = V0 + 8 * t + 4 * hf; acc = 104 + 4 * hf
        n = 2 * (5 - t) + 1 - hf
        if n < max(W, WH): a(f's_waitcnt vmcnt({n})')
        a(f'v_mfma_f32_16x16x32_bf16 v[{acc}:{acc+3}], v[{k}:{k+3}], v[{v}:{v+3}], ' + ('0' if first else f'v[{acc}:{acc+3}]'))
    abuild(1)
    a(f'v_add_f32 v113, v{S[0]}, v{S[1]}\nv_add_f32 v114, v{S[2]}, v{S[3]}')
    pv(1, 0, True); abuild(2); pv(1, 1, True)
    a('s_cmp_eq_u32 s51, 0\ns_cbranch_scc1 L_a_pv2')
    abuild(0); pv(0, 0); pv(0, 1)
    a('L_a_pv2:')
    for t in range(2, 6):
        pv(t, 0)
        if t < 5: abuild(t + 1)
        pv(t, 1)
        if t == 2:
            a(f'''v_add_f32 v115, v{S[4]}, v{S[5]}
                  v_add_f32 v113, v113, v114
                  v_lshl_add_u32 v6, v6, 2, s49
                  v_add_f32 v113, v113, v115''')
            allred_rows('v_add_f32', 113, 114)
            a(f'''s_mov_b64 exec, 0x101
                  ds_write_b32 v6, v113 offset:{L_L}
                  s_mov_b64 exec, -1''')
        if t == 3:
            a(f'''s_lshl_b32 s48, s31, 11
                  v_lshl_add_u32 v6, v0, 4, s48
                  v_and_b32 v120, 4, v0
                  v_cmp_eq_u32 vcc, 0, v120
                  v_or_b32 v116, s34, v116
                  v_mov_b32 v119, s35
                  v_mov_b32 v118, 0xffffff00
                  v_cndmask_b32 v119, v119, v116, vcc
                  v_cndmask_b32_e64 v118, v118, 0, vcc
                  v_and_b32 v120, 3, v0
                  v_or_b32 v120, 0x07060500, v120
                  s_lshl_b32 s49, s31, 8
                  s_add_u32 s49, s49, {L_O}
                  v_lshlrev_b32 v121, 2, v0
                  v_add_u32 v122, s49, v121
                  v_lshlrev_b32 v117, 2, v117
                  s_mov_b32 s62, 0''')
    a(f'''ds_write_b128 v6, v[104:107] offset:{L_O}
          ds_write_b128 v6, v[108:111] offset:{L_O+1024}
          s_mov_b64 exec, 1
          ds_inc_u32 v0, v2 offset:{L_C+8}
          s_mov_b64 exec, -1''')
    stamp(6)
    a(f'''L_a_s2:
          ds_read_b32 v24, v1 offset:{L_C+8}
          ds_read_b128 v[16:19], v117 offset:{L_L}
          ds_read_b128 v[20:23], v117 offset:{L_L+16}''')
    for u in range(4): a(f'ds_read2st64_b32 v[{8+2*u}:{9+2*u}], v122 offset0:{16*u} offset1:{16*u+8}')
    a(f's_waitcnt lgkmcnt({0 if diag else 4})\nv_cmp_ne_u32 vcc, 8, v24')
    pk('add', 16, 16, 18); pk('add', 20, 20, 22); pk('add', 16, 16, 20)
    a('v_add_f32 v16, v16, v17\nv_and_or_b32 v16, v16, v118, v119\ns_waitcnt lgkmcnt(0)')
    pk('add', 8, 8, 10); pk('add', 12, 12, 14); pk('add', 8, 8, 12)
    a('''v_add_f32 v8, v8, v9
         v_perm_b32 v8, v8, v16, v120
         s_cbranch_vccnz L_a_s2r
         L_a_s2ok:
         buffer_store_dword v8, v121, s[44:47], s55 offen''')
    rare.append(lambda: a(f'L_a_s2r:\ns_add_u32 s62, s62, {STEP}\ns_cbranch_scc0 L_a_s2\ns_branch L_a_s2ok'))
    a(f'''s_mov_b64 exec, 1
          ds_inc_u32 v0, v2 offset:{L_C+12}
          s_mov_b64 exec, -1
          buffer_store_dword v8, v121, s[44:47], s54 offen sc1''')
    stamp(7)
    a('s_cmp_lt_u32 s33, 14\ns_cbranch_scc0 L_a_x\ns_barrier\nL_a_x:')
    fin()
    for r in rare: r()
    rare.clear()

    role[0] = 'mod'
    def tail_setup():
        a('s_load_dword s30, s[28:29], 0\ns_sub_u32 s49, s31, 8')
        ws_srd(); perm_sel()
        a(f's_lshl_b32 s56, s49, 8\ns_add_u32 s56, s56, {L_PRIV}')
    a('L_t_mod:')
    setprio(3)
    a(f'''s_cmp_ge_u32 s33, 17
          s_cselect_b32 s50, -17, 4
          s_add_u32 s50, s50, s33
          s_lshl_b32 s50, s50, 3
          s_add_u32 s50, s50, s32
          s_and_b32 s51, s50, 3
          s_lshr_b32 s52, s50, 2
          s_lshl_b32 s53, s51, 7
          s_cmp_eq_u32 s51, 3
          s_cselect_b32 s54, 32, 0
          s_sub_u32 s53, s53, s54
          s_mov_b32 s38, {448*5376}
          s_mov_b32 s39, 0x20000
          s_mov_b32 s42, 896
          s_mov_b32 s43, 0x20000
          s_mul_i32 s54, s53, 5376
          s_lshl_b32 s55, s52, 7
          s_add_u32 s54, s54, s55
          s_lshl_b32 s53, s53, 1
          v_lshlrev_b32 v2, 2, v0''')
    voff4(3, 8 * 5376, 5376, 4)
    a('''s_waitcnt lgkmcnt(0)
         s_mov_b32 s36, s22
         s_mov_b32 s37, s23
         s_mov_b32 s40, s20
         s_mov_b32 s41, s21
         buffer_load_dword v5, v2, s[40:43], s53 offen''')
    for u in range(4):
        if u == 3: a('s_cmp_ge_u32 s51, 2\ns_cbranch_scc1 L_m_ld')
        for t in range(4):
            a(f'buffer_load_dwordx4 v[{32+16*u+4*t}:{35+16*u+4*t}], v3, s[36:39], s54 offen{nt}')
            a(f's_add_u32 s54, s54, {2*5376 if t < 3 else 26*5376}')
    a('L_m_ld:\ns_barrier')
    dzero(); stamp(1)
    tail_setup()
    maskaddr(8, 4, 's56', L_Z, 12)
    a('''s_waitcnt vmcnt(12)
         v_lshlrev_b32 v6, 16, v5
         v_and_b32 v7, 0xffff0000, v5''')
    silu(6, 6, 12); silu(7, 7, 13)
    a(f'''v_perm_b32 v6, v7, v6, s61
          v_add_u32 v2, s56, v2
          ds_write_b32 v2, v6
          s_waitcnt lgkmcnt(0)''')
    tags()
    a('v_and_b32_e64 v6, s34, 15\nv_and_b32_e64 v7, s35, 15\nv_lshlrev_b32 v2, 4, v0')
    for u in range(4):
        if u == 3: a('s_cmp_ge_u32 s51, 2\ns_cbranch_scc1 L_m_done')
        for tau in range(4): a(f'ds_read_b128 v[{96+4*tau}:{99+4*tau}], v{8+tau} offset:{64*u}')
        a(f's_waitcnt vmcnt({max(0, 8 - 4*u)})')
        fix4(32 + 16 * u, 112)
        perms64(32 + 16 * u, 16)
        a('s_waitcnt lgkmcnt(0)')
        for tau in range(4):
            a(f'v_mfma_f32_16x16x32_bf16 v[12:15], v[{96+4*tau}:{99+4*tau}], v[{16+4*tau}:{19+4*tau}], ' + ('0' if u == 0 and tau == 0 else 'v[12:15]'))
    a(f'''L_m_done:
          s_lshr_b32 s51, s50, 5
          s_lshl_b32 s51, s51, 13
          s_lshl_b32 s50, s50, 8
          s_add_u32 s50, s50, s51
          s_add_u32 s50, s50, {X1}
          s_add_u32 s51, s50, {SIDE}
          s_mov_b64 exec, 0xffff''')
    for i in range(4): a(f'v_and_or_b32 v{12+i}, v{12+i}, -16, v{6+(i&1)}')
    a('buffer_store_dwordx4 v[12:15], v2, s[44:47], s50 offen sc1\nbuffer_store_dwordx4 v[12:15], v2, s[44:47], s51 offen sc1\ns_mov_b64 exec, -1')
    stamp(2)
    setprio(0)
    a('s_cmp_lt_u32 s33, 14\ns_cbranch_scc1 L_t_go2')
    fin()
    role[0] = 'wo'
    a('''L_T:
         s_cmp_lt_u32 s33, 14
         s_cbranch_scc1 L_t_go
         s_cmp_eq_u32 s31, 8
         s_cbranch_scc0 L_end
         L_t_go:
         s_waitcnt lgkmcnt(0)''')
    dzero()
    a('L_t_go2:')
    tail_setup()
    a(f'''s_cmp_ge_u32 s33, 7
          s_cselect_b32 s50, 1, 0
          s_cselect_b32 s51, 7, 0
          s_sub_u32 s51, s33, s51
          s_lshl_b32 s52, s32, 1
          s_add_u32 s50, s50, s52
          s_lshl_b32 s52, s50, 8
          s_lshr_b32 s53, s49, 2
          s_lshl_b32 s53, s53, 7
          s_add_u32 s52, s52, s53
          s_and_b32 s53, s49, 1
          s_lshl_b32 s53, s53, 6
          s_add_u32 s52, s52, s53
          s_and_b32 s53, s49, 2
          s_lshl_b32 s53, s53, 1
          s_add_u32 s52, s52, s53
          s_mul_i32 s52, s52, 896
          s_lshl_b32 s53, s51, 7
          s_add_u32 s52, s52, s53
          s_add_u32 s53, s52, {8*896}
          s_mov_b32 s36, s12
          s_mov_b32 s37, s13
          s_mov_b32 s38, {4096*896}
          s_mov_b32 s39, 0x20000
          s_mul_i32 s40, s50, {24*1024}
          s_lshl_b32 s41, s49, 7
          s_add_u32 s40, s40, s41
          s_add_u32 s40, s40, {X3F}
          s_add_u32 s41, s40, 8192
          s_add_u32 s42, s40, 16384
          s_lshr_b32 s54, s50, 2
          s_lshl_b32 s54, s54, 13
          s_lshl_b32 s55, s50, 11
          s_add_u32 s54, s54, s55
          s_lshl_b32 s55, s51, 8
          s_add_u32 s54, s54, s55
          s_add_u32 s54, s54, {X4}
          s_add_u32 s55, s54, {SIDE}
          s_mov_b32 s57, 0x0c04000c
          s_mov_b32 s58, {hex(f2u(0.0625 * LOG2E))}
          s_lshl_b32 s59, s49, 8
          s_add_u32 s59, s59, {L_P}
          v_lshrrev_b32 v12, 3, v0
          v_and_b32 v13, 7, v0
          v_lshlrev_b32 v3, 10, v12
          v_lshl_add_u32 v3, v13, 4, v3
          v_lshrrev_b32 v5, 4, v0
          v_lshl_add_u32 v5, v13, 2, v5
          v_lshl_add_u32 v5, v5, 1, s56
          v_lshl_add_u32 v6, v0, 4, s59
          v_lshlrev_b32 v4, 2, v0''')
    voff4(1, 16 * 896, 896, 12)
    maskaddr(8, 4, 's56', L_Z, 12)
    a('s_waitcnt lgkmcnt(0)')
    tags()
    lanetag(7, 0); rowtag(98, 99)
    a(f'''s_cmp_eq_u32 s49, 0
          s_cbranch_scc0 L_wo
          v_lshlrev_b32 v2, 4, v0
          s_lshl_b32 s4, s32, 11
          s_add_u32 s4, s4, {X2F}
          s_mov_b32 m0, {L_Q}
          s_mov_b32 s62, 0
          L_p_loop:
          buffer_load_dwordx4 v2, s[44:47], s4 offen sc1 lds
          buffer_load_dwordx4 v2, s[44:47], s4 offen offset:1024 sc1 lds
          s_sleep {sleep}
          s_cmp_eq_u32 s62, {(1 << fastbits) * STEP}
          s_cselect_b32 s5, {X2F - X2}, 0
          s_sub_u32 s4, s4, s5
          ds_read2st64_b32 v[12:13], v2 offset0:{L_Q // 256} offset1:{L_Q // 256 + 4}
          s_waitcnt vmcnt(32) lgkmcnt(0)
          v_bitop3_b32 v12, v12, v13, s3 bitop3:0x7e
          v_cmp_ne_u32_sdwa vcc, v12, 0 src0_sel:WORD_0 src1_sel:DWORD''')
    spin('L_p_loop', 'L_p_ok')
    stamp(2)
    a('s_cmp_lt_u32 s33, 14\ns_cbranch_scc0 L_fin\nL_wo:')
    ldswait('L_wo_g', L_C, gaten, 2)
    stamp(3)
    for u in range(4):
        a(f'buffer_load_dwordx4 v[{80+4*u}:{83+4*u}], v1, s[36:39], s{52+(u>>1)} offen offset:{(u&1)*2*896}{nt}')
    ldswait('L_wo_d', L_C + 12, 8, 1)
    setprio(3)
    stamp(4)
    x3l = [f'buffer_load_dwordx4 v[{32+4*s}:{35+4*s}], v3, s[44:47], s{40+s} offen sc1' for s in range(3)]
    for l in x3l: a(l)
    a('s_waitcnt vmcnt(3)')
    fix4(80, 48); perms64(80, 16)
    stamp(5)
    rare.append(gcheck('L_x3', x3l, 32, 4, 7, '\n'.join(f's_sub_u32 s{40+s}, s{40+s}, {X3F - X3}' for s in range(3)), 2 << fastbits))
    stamp(6)
    for s in range(3): a(f'v_perm_b32 v{48+2*s}, v{34+4*s}, v{33+4*s}, s57')
    for s in range(3): a(f'v_lshl_or_b32 v{48+2*s}, v{35+4*s}, 24, v{48+2*s}')
    a(f'''v_max3_f32 v54, v48, v50, v52
          v_xor_b32 v32, v32, v7
          v_xor_b32 v36, v36, v7
          v_max_f32_dpp v54, v54, v54 row_ror:8 {DPPF}
          v_mov_b32 v55, v54
          v_xor_b32 v40, v40, v7
          v_permlane32_swap_b32 v54, v55
          v_max_f32 v54, v54, v55
          v_mov_b32 v55, v54
          v_permlane16_swap_b32 v54, v55
          v_max_f32 v54, v54, v55''')
    for s in range(3): a(f'v_sub_f32 v{49+2*s}, v{48+2*s}, v54')
    for s in range(3): a(f'v_mul_f32 v{49+2*s}, s58, v{49+2*s}')
    for s in range(3): a(f'v_exp_f32 v{49+2*s}, v{49+2*s}')
    for s in range(3): a(f'v_mov_b32_dpp v{56+2*s}, v{49+2*s} quad_perm:[0,0,2,2] {DPPF}')
    a(f'''v_mul_f32 v54, v56, v48
          v_pk_mul_f32 v[32:33], v[32:33], v[56:57] op_sel_hi:[1,0]
          v_fmac_f32 v54, v58, v50
          v_pk_mul_f32 v[34:35], v[34:35], v[56:57] op_sel_hi:[1,0]
          v_fmac_f32 v54, v60, v52
          v_pk_fma_f32 v[32:33], v[36:37], v[58:59], v[32:33] op_sel_hi:[1,0,1]
          v_pk_fma_f32 v[34:35], v[38:39], v[58:59], v[34:35] op_sel_hi:[1,0,1]
          v_add_f32_dpp v54, v54, v54 row_ror:8 {DPPF}
          v_pk_fma_f32 v[32:33], v[40:41], v[60:61], v[32:33] op_sel_hi:[1,0,1]
          v_mov_b32 v55, v54
          v_pk_fma_f32 v[34:35], v[42:43], v[60:61], v[34:35] op_sel_hi:[1,0,1]
          v_permlane32_swap_b32 v54, v55
          v_add_f32 v54, v54, v55
          v_permlane32_swap_b32 v32, v34
          v_mov_b32 v55, v54
          v_permlane32_swap_b32 v33, v35
          v_pk_add_f32 v[32:33], v[32:33], v[34:35]
          v_permlane16_swap_b32 v54, v55
          v_add_f32 v54, v54, v55
          v_permlane16_swap_b32 v32, v33
          v_add_f32 v32, v32, v33
          v_rcp_f32 v54, v54
          v_add_f32_dpp v32, v32, v32 row_ror:8 {DPPF}
          v_mul_f32_dpp v32, v54, v32 quad_perm:[1,1,3,3] {DPPF}''')
    rnd('v32', 'v32')
    a('ds_write_b16_d16_hi v5, v32')
    for tau in range(4): a(f'ds_read_b128 v[{64+4*tau}:{67+4*tau}], v{8+tau}')
    mma(4, 12, 64, 16)
    a(f'''s_mov_b64 exec, 0xffff
          s_cmp_eq_u32 s49, 0
          ds_write_b128 v6, v[12:15]
          s_mov_b64 exec, -1
          s_waitcnt lgkmcnt(0)
          s_barrier
          s_cbranch_scc0 L_fin''')
    sumrows(8, L_P, 4)
    a('''v_and_or_b32 v16, v16, v98, v99
         buffer_store_dword v16, v4, s[44:47], s54 offen sc1
         buffer_store_dword v16, v4, s[44:47], s55 offen sc1''')
    stamp(7)
    a('L_fin:')
    fin()
    for r in rare: r()
    rare.clear()

    role[0] = 'F'
    a(f'''L_F:
          v_and_b32 v0, 63, v0
          s_cmp_ge_u32 s31, 7
          s_cbranch_scc1 L_F7
          s_lshl_b32 s48, s31, 19
          s_lshl_b32 s49, s32, 10
          s_add_u32 s48, s48, s49
          s_lshl_b32 s49, s33, 7
          s_add_u32 s48, s48, s49
          v_lshrrev_b32 v3, 4, v0
          v_lshlrev_b32 v2, 16, v3
          v_and_b32 v4, 8, v0
          v_lshl_add_u32 v2, v4, 10, v2
          v_and_b32 v5, 7, v0
          v_lshl_add_u32 v2, v5, 4, v2
          v_lshl_add_u32 v5, v5, 4, v4
          v_lshl_add_u32 v6, v3, 1, v5
          s_lshl_b32 s50, s31, 7
          v_add_u32 v101, s50, v6
          v_lshlrev_b32 v7, 4, v0
          s_mov_b32 s38, {448*8192}
          s_mov_b32 s39, 0x20000
          s_mov_b32 s42, 896
          s_mov_b32 s43, 0x20000
          s_waitcnt lgkmcnt(0)
          s_mov_b32 s36, s10
          s_mov_b32 s37, s11
          s_mov_b32 s40, s4
          s_mov_b32 s41, s5
          buffer_load_dwordx4 v[96:99], v7, s[40:43], 0 offen
          buffer_load_ushort v100, v101, s[40:43], 0 offen''')
    for u in range(2):
        for t in range(4):
            a(f'buffer_load_dwordx4 v[{32+16*u+4*t}:{35+16*u+4*t}], v2, s[36:39], s48 offen{nt}')
            if not (u == 1 and t == 3): a(f's_add_u32 s48, s48, {2*8192 if t < 3 else 26*8192}')
        if u == 0: a('s_barrier')
    dzero(); stamp(1)
    a('s_load_dword s30, s[28:29], 0')
    ws_srd(); perm_sel()
    a(f'''s_lshl_b32 s52, s31, 8
          s_add_u32 s56, s52, 0x2400
          s_mov_b32 s59, {hex(f2u(448.0))}
          s_mov_b32 s58, 0x3f803f80
          v_mov_b32 v12, 0
          v_lshlrev_b32 v4, 2, v0
          ds_write_b32 v4, v12 offset:{FZ}
          v_add_u32 v6, s56, v6
          v_lshl_add_u32 v5, v5, 1, s52''')
    maskaddr(8, 4, 's56', FZ, 12)
    a('''s_waitcnt vmcnt(8)
         v_dot2_f32_bf16 v102, v96, s58, 0
         v_dot2_f32_bf16 v103, v96, v96, 0''')
    for i in range(1, 4):
        a(f'v_dot2_f32_bf16 v102, v{96+i}, s58, v102')
        a(f'v_dot2_f32_bf16 v103, v{96+i}, v{96+i}, v103')
    for sh in (8, 4, 2, 1):
        a(f'v_add_f32_dpp v102, v102, v102 row_ror:{sh} {DPPF}')
        a(f'v_add_f32_dpp v103, v103, v103 row_ror:{sh} {DPPF}')
    allred_rows('v_add_f32', 102, 104); allred_rows('v_add_f32', 103, 104)
    a('v_lshlrev_b32 v96, 16, v100')
    ln_apply(102, 103, (100, 96), 104)
    a(f'''s_lshl_b32 s52, s32, 11
          s_lshl_b32 s53, s33, 8
          s_add_u32 s52, s52, s53
          s_add_u32 s53, s52, {X2F}
          s_add_u32 s52, s52, {X2}
          s_waitcnt lgkmcnt(0)''')
    tags()
    a('s_waitcnt vmcnt(4)')
    fix4(32, 104); perms64(32, 64)
    a(f'''s_mov_b32 s49, {X1}
          s_add_u32 s50, s31, 0
          s_lshr_b32 s63, s50, 3
          s_lshl_b32 s63, s63, 13
          s_lshl_b32 s50, s50, 10
          s_add_u32 s50, s50, s63
          s_add_u32 s50, s50, s49
          s_add_u32 s51, s31, 7
          s_lshr_b32 s63, s51, 3
          s_lshl_b32 s63, s63, 13
          s_lshl_b32 s51, s51, 10
          s_add_u32 s51, s51, s63
          s_add_u32 s51, s51, s49
          s_waitcnt vmcnt(0)''')
    fix4(48, 104); perms64(48, 80)
    stamp(2)
    poll4('L_q_x1', [f'buffer_load_dwordx4 v[{32+4*s}:{35+4*s}], v41, s[44:47], s{50+s} offen sc1' for s in range(2)], 32, 40)
    stamp(3)
    rscatter(36); rscatter(32)
    rnd('v36', 'v36'); rnd('v32', 'v32')
    a('v_add_f32 v36, 1.0, v36'); rnd('v36', 'v36')
    a('v_mul_f32 v36, v100, v36'); rnd('v36', 'v36')
    a('v_add_f32 v36, v36, v32'); rnd('v36', 'v36')
    a('ds_write_b16_d16_hi v6, v36')
    for u in range(2):
        for tau in range(4): a(f'ds_read_b128 v[{32+16*u+4*tau}:{35+16*u+4*tau}], v{8+tau} offset:{64*u}')
    mma(8, 12, 32, 64)
    a(f'''v_mov_b32 v24, 1
          s_mov_b32 s62, 0
          s_mov_b64 exec, 0xffff
          s_cmp_eq_u32 s31, 0
          ds_write_b128 v5, v[12:15] offset:{FP}
          s_mov_b64 exec, 1
          ds_add_u32 v0, v24 offset:{FC+4}
          s_mov_b64 exec, -1
          s_cbranch_scc0 L_q_done
          v_mov_b32 v25, 0
          L_q_s:
          ds_read_b32 v24, v25 offset:{FC+4}''')
    sumrows(7, FP, 4, 'v_cmp_ne_u32 vcc, 7, v24')
    rnd('v16', 'v16')
    rare.append(lambda: a(f'L_q_sr:\ns_add_u32 s62, s62, {STEP}\ns_cbranch_scc0 L_q_s\ns_branch L_q_sok'))
    a('''v_or_b32 v16, s3, v16
         s_cbranch_vccnz L_q_sr
         L_q_sok:
         buffer_store_dword v16, v4, s[44:47], s53 offen
         buffer_store_dword v16, v4, s[44:47], s52 offen sc1''')
    a(f'ds_write_b32 v25, v24 offset:{FC+16}')
    if rewarm:
        a(f'''s_cmp_eq_u32 s33, 7
              s_cbranch_scc0 L_q_done
              s_getpc_b64 s[4:5]
              L_pc2:
              s_sub_u32 s4, s4, L_pc2-L_pc
              s_subb_u32 s5, s5, 0
              v_lshlrev_b32 v102, 7, v0
              v_add_u32 v103, 0x2000, v102
              v_min_u32 v103, L_code_end-L_pc-4, v103
              global_load_dword v127, v102, s[4:5] sc1
              global_load_dword v127, v103, s[4:5] sc1''')
    a('L_q_done:')
    stamp(4)
    def ffn_id(skip):
        a(f'''s_cmp_lt_u32 s32, 4
              s_cselect_b32 s50, 6, 8
              s_cselect_b32 s51, 0, 8
              s_cmp_lt_u32 s33, s50
              s_cbranch_scc0 {skip}''')
    ffn_id('L_fin2')
    a(f'''s_mul_i32 s50, s50, s32
          s_add_u32 s50, s50, s33
          s_sub_u32 s50, s50, s51
          s_mov_b32 s36, s16
          s_mov_b32 s37, s17
          s_mov_b32 s38, {448*3584}
          s_mov_b32 s40, s18
          s_mov_b32 s41, s19
          s_mov_b32 s42, {1792*896}
          s_mul_i32 s52, s31, {64*3584}
          s_lshl_b32 s53, s50, 6
          s_add_u32 s52, s52, s53
          s_mul_i32 s54, s50, {32*896}
          s_lshl_b32 s55, s31, 7
          s_add_u32 s54, s54, s55
          s_add_u32 s55, s54, {4*896}
          v_and_b32 v4, 15, v0
          v_mul_u32_u24 v2, {8*3584}, v3
          v_lshl_add_u32 v2, v4, 2, v2''')
    voff4(1, 8 * 896, 896, 102)
    a('''s_add_u32 s8, s31, 14
          s_lshr_b32 s63, s8, 3
          s_lshl_b32 s63, s63, 13
          s_lshl_b32 s8, s8, 10
          s_add_u32 s8, s8, s63
          s_add_u32 s8, s8, s49
          s_add_u32 s9, s31, 21
          s_lshr_b32 s63, s9, 3
          s_lshl_b32 s63, s63, 13
          s_lshl_b32 s9, s9, 10
          s_add_u32 s9, s9, s63
          s_add_u32 s9, s9, s49
          s_add_u32 s10, s31, 28
          s_lshr_b32 s63, s10, 3
          s_lshl_b32 s63, s63, 13
          s_lshl_b32 s10, s10, 10
          s_add_u32 s10, s10, s63
          s_add_u32 s10, s10, s49
          s_add_u32 s11, s31, 35
          s_lshr_b32 s63, s11, 3
          s_lshl_b32 s63, s63, 13
          s_lshl_b32 s11, s11, 10
          s_add_u32 s11, s11, s63
          s_add_u32 s11, s11, s49''')
    ldswait('L_f_q', FC + 16, 1, 1, 102)
    poll4('L_f_mx', [f'buffer_load_dwordx4 v[{104+4*s}:{107+4*s}], v121, s[44:47], s{8+s} offen sc1' for s in range(4)], 104, 120, 0)
    if hintk: ldswait('L_f_g', FC + 8, 1, 1, 102)
    stamp(5)
    for i in range(16):
        a(f'buffer_load_dword v{32+i}, v2, s[36:39], s52 offen offset:{3584*(i&1)}{w1nt}')
        if i & 1: a(f's_add_u32 s52, s52, {2*3584 if i != 7 else 26*3584}')
    for u in range(4):
        a(f'buffer_load_dwordx4 v[{48+4*u}:{51+4*u}], v1, s[40:43], s{54+(u>>1)} offen offset:{(u&1)*2*896}{nt}')
    a(f'''s_lshr_b32 s12, s50, 2
          s_lshl_b32 s12, s12, 13
          s_lshl_b32 s13, s50, 11
          s_add_u32 s12, s12, s13
          s_lshl_b32 s13, s31, 8
          s_add_u32 s12, s12, s13
          v_lshl_add_u32 v81, v0, 2, s13
          s_add_u32 s12, s12, {X5}
          s_add_u32 s13, s12, {SIDE}
          v_lshlrev_b32 v2, 11, v3
          v_lshl_add_u32 v2, v4, 4, v2
          s_add_u32 s57, s56, 128''')
    for s in range(4): rscatter(104 + 4 * s)
    rnd('v97', 'v104'); rnd('v98', 'v108'); rnd('v99', 'v112'); rnd('v100', 'v116')
    a(f'ds_write_b32 v81, v100 offset:{FG}')
    maskaddr(8, 2, 's56', FZ, 102)
    maskaddr(10, 4, 's57', FZ, 102)
    stamp(6)
    a(f'''s_waitcnt vmcnt(0)
          v_mov_b32 v102, 0
          v_mov_b32 v103, 1
          s_mov_b64 exec, 1
          ds_add_u32 v102, v103 offset:{FC}
          s_mov_b64 exec, -1''')
    for aa in range(2):
        for tau in range(2):
            for rho in range(4):
                a(f'v_perm_b32 v{16+8*aa+4*tau+rho}, v{32+8*aa+2*rho+1}, v{32+8*aa+2*rho}, s{60+tau}')
    fix4(48, 104); perms64(48, 64)
    a('v_add_f32 v99, 1.0, v99')
    rnd('v99', 'v99')
    lanetag(5, 0)
    getside(102)
    a(f'''s_lshl_b32 s40, s31, 8
          s_add_u32 s40, s40, s48
          s_add_u32 s40, s40, {X4}
          s_add_u32 s41, s40, {1 << 14}
          s_add_u32 s42, s40, {2 << 14}
          s_add_u32 s43, s40, {3 << 14}
          s_lshl_b32 s52, s31, 3
          s_add_u32 s52, s52, {FST}
          v_lshrrev_b32 v1, 5, v0
          v_lshl_add_u32 v3, v1, 2, s52
          s_lshl_b32 s52, s31, 7
          s_add_u32 s52, s52, {FP2}
          v_lshl_add_u32 v4, v0, 3, s52
          v_and_b32 v14, 31, v0
          v_lshl_add_u32 v15, v14, 1, s57
          v_lshlrev_b32 v14, 2, v14
          v_add_u32 v14, {FP2}, v14
          v_mov_b32 v80, {FST}
          s_mov_b32 s57, 0xffffff00''')
    x4l = [f'buffer_load_dwordx4 v[{32+4*s}:{35+4*s}], v2, s[44:47], s{40+s} offen sc1' for s in range(4)]
    setprio(2)
    stamp(7)
    for l in x4l: a(l)
    rare.append(gcheck('L_x4', x4l, 32, 4, 5, None, 0))
    stamp(8)
    def sum4x4(r):
        for s in range(4): a(f'v_xor_b32 v{r+4*s}, v{r+4*s}, v5')
        pk('add', r + 2, r + 2, r + 6); pk('add', r + 10, r + 10, r + 14)
        pk('add', r, r, r + 4); pk('add', r + 8, r + 8, r + 12)
        pk('add', 34, r + 2, r + 10); pk('add', 32, r, r + 8)
    sum4x4(32)
    rscatter(32)
    rnd('v32', 'v32'); a('v_mul_f32 v32, v97, v32'); rnd('v32', 'v32'); a('v_add_f32 v32, v96, v32'); rnd('v33', 'v32')
    a(f'''v_mul_f32 v34, v33, v33
          v_mov_b32 v96, v33
          ds_write_b32 v81, v33 offset:{FX}
          v_permlane32_swap_b32 v33, v34
          v_add_f32 v33, v33, v34
          v_add_f32_dpp v33, v33, v33 row_ror:8 {DPPF}
          v_add_f32_dpp v33, v33, v33 row_ror:4 {DPPF}
          v_add_f32_dpp v33, v33, v33 row_ror:2 {DPPF}
          v_add_f32_dpp v33, v33, v33 row_ror:1 {DPPF}
          v_add_f32_dpp v33, v33, v33 row_bcast:15 row_mask:0xa bank_mask:0xf
          s_mov_b32 exec_lo, 0x10000
          s_mov_b32 exec_hi, 0x10000
          ds_write_b32 v3, v33
          s_mov_b64 exec, -1
          s_waitcnt lgkmcnt(0)
          s_barrier
          ds_read_b128 v[36:39], v80
          ds_read_b128 v[40:43], v80 offset:16
          ds_read_b128 v[44:47], v80 offset:32
          ds_read_b64 v[48:49], v80 offset:48
          s_waitcnt lgkmcnt(0)''')
    pk('add', 36, 36, 38); pk('add', 40, 40, 42); pk('add', 44, 44, 46)
    pk('add', 36, 36, 40); pk('add', 44, 44, 48); pk('add', 36, 36, 44)
    ln_apply(36, 37, (32, 96), 40)
    a('v_mul_f32 v32, v32, v99'); rnd('v32', 'v32')
    a('v_add_f32 v32, v32, v98'); rnd('v32', 'v32')
    a('ds_write_b16_d16_hi v6, v32')
    for aa in range(2):
        for tau in range(2): a(f'ds_read_b128 v[{36+8*aa+4*tau}:{39+8*aa+4*tau}], v{8+tau} offset:{64*aa}')
    mma(4, 52, 36, 16)
    stamp(11)
    a(f'''s_mov_b64 exec, 0xffff
          ds_write_b64 v4, v[52:53]
          s_mov_b64 exec, -1
          v_mov_b32 v43, 0
          s_waitcnt lgkmcnt(0)
          s_barrier
          ds_read2_b32 v[36:37], v14 offset0:0 offset1:32
          ds_read2_b32 v[38:39], v14 offset0:64 offset1:96
          ds_read2_b32 v[40:41], v14 offset0:128 offset1:160
          ds_read_b32 v42, v14 offset:768
          s_waitcnt lgkmcnt(0)''')
    pk('add', 36, 36, 38); pk('add', 40, 40, 42); pk('add', 36, 36, 40)
    a('v_add_f32 v36, v36, v37')
    rnd('v36', 'v36')
    silu(36, 36, 37)
    a('ds_write_b16_d16_hi v15, v36')
    for tau in range(4): a(f'ds_read_b128 v[{36+4*tau}:{39+4*tau}], v{10+tau}')
    mma(4, 52, 36, 64)
    a('''s_mov_b64 exec, 0xffff
         v_and_or_b32 v52, v52, s57, v5
         buffer_store_dwordx4 v[52:55], v7, s[44:47], s12 offen sc1
         buffer_store_dwordx4 v[52:55], v7, s[44:47], s13 offen sc1''')
    stamp(9)
    a('s_barrier\nL_fin2:')
    fin()
    for r in rare: r()
    rare.clear()
    a(f'''L_F7:
          v_mov_b32 v2, 0
          s_cmp_eq_u32 s31, 7
          s_cbranch_scc0 L_F8
          v_lshlrev_b32 v3, 2, v0
          ds_write_b32 v3, v2 offset:{FC & ~255}
          s_waitcnt lgkmcnt(0)
          s_load_dword s30, s[28:29], 0''')
    a('s_barrier')
    dzero()
    ws_srd()
    ffn_id('L_fin3')
    ldswait('L_7_q', FC + 16, 1, 4, 102)
    tags()
    if hintk:
        a(f'''s_mul_i32 s49, s32, {24*128}
              s_add_u32 s49, s49, {HINT}
              v_lshlrev_b32 v102, 7, v0
              s_mov_b64 exec, 0xffffff
              s_mov_b32 s62, 0
              L_f_h:
              s_sleep 2
              buffer_load_dword v103, v102, s[44:47], s49 offen sc1
              s_add_u32 s62, s62, {1 << (32 - fastbits)}
              s_waitcnt vmcnt(0)
              s_cbranch_scc1 L_f_hok
              v_cmp_eq_u32 vcc, s3, v103
              s_bcnt1_i32_b64 s53, vcc
              s_cmp_lt_u32 s53, {hintk}
              s_cbranch_scc1 L_f_h
              L_f_hok:
              s_mov_b64 exec, -1
              v_mov_b32 v103, 1
              ds_write_b32 v2, v103 offset:{FC+8}''')
    a(f'''s_mul_i32 s50, s50, s32
          s_add_u32 s50, s50, s33
          s_sub_u32 s50, s50, s51
          s_bitcmp1_b32 s50, 0
          s_cbranch_scc1 L_fin3
          v_lshrrev_b32 v4, 4, v0
          v_lshlrev_b32 v81, 14, v4
          v_bfe_u32 v6, v0, 2, 2
          v_lshl_add_u32 v81, v6, 11, v81
          v_and_b32 v6, 3, v0
          v_lshl_add_u32 v81, v6, 4, v81
          s_bfe_u32 s52, s50, 0x20001
          s_lshl_b32 s52, s52, 2
          s_lshl_b32 s20, 0x000f000f, s52
          s_mov_b32 s21, s20
          s_lshr_b32 s52, s50, 3
          s_lshl_b32 s53, s52, 8
          v_add_u32 v3, s53, v3
          s_lshl_b32 s52, s52, 7
          v_and_b32 v6, 7, v0
          v_lshlrev_b32 v6, 4, v6
          v_and_b32 v7, 8, v0
          v_lshl_add_u32 v7, v4, 1, v7
          v_add3_u32 v101, v6, v7, s52
          s_mov_b32 s36, s24
          s_mov_b32 s37, s25
          s_mov_b32 s38, 896
          s_mov_b32 s39, 0x20000''')
    lanetag(5, 0)
    x5l = [f'buffer_load_dwordx4 v[{36+4*s}:{39+4*s}], v81, s[44:47], s{40+s} offen sc1' for s in range(4)]
    a('v_mov_b32 v48, v5\nv_mov_b32 v49, 0\nv_mov_b32 v50, 0\nv_mov_b32 v51, 0')
    ldswait('L_7_g', FC, 3, 4, 102)
    getside(102)
    a(f'''s_lshl_b32 s40, s50, 5
          s_add_u32 s40, s40, s48
          s_add_u32 s40, s40, {X5}
          s_add_u32 s41, s40, {4 << 14}
          s_add_u32 s42, s40, {8 << 14}
          s_add_u32 s43, s40, {12 << 14}''')
    a('\n'.join(x5l[:3]) + f'''
          s_mov_b32 exec_hi, 0
          {x5l[3]}
          buffer_load_ushort v125, v101, s[36:39], 0 offen
          s_mov_b32 exec_hi, -1
          s_waitcnt vmcnt(0)''')
    setprio(3)
    a(f'''s_barrier
          s_barrier
          ds_read_b32 v96, v3 offset:{FX}
          ds_read_b32 v100, v3 offset:{FG}
          s_barrier
          s_mov_b32 s62, 0
          s_branch L_x5_c
          L_x5:''')
    for i, l in enumerate(x5l): a(f's_wqm_b64 exec, s[{4+2*i}:{5+2*i}]\n{l}')
    a(f'''s_mov_b64 exec, -1
          s_add_u32 s62, s62, {STEP}
          s_cbranch_scc1 L_x5_ok
          s_waitcnt vmcnt({cap5})
          L_x5_c:''')
    for i in range(4): a(f'v_cmp_ne_u32_sdwa s[{4+2*i}:{5+2*i}], v{39+4*i if False else 36+4*i}, v5 src0_sel:BYTE_0 src1_sel:DWORD')
    a('''s_or_b64 vcc, s[4:5], s[6:7]
         s_or_b64 vcc, vcc, s[8:9]
         s_or_b64 vcc, vcc, s[10:11]
         s_cbranch_scc1 L_x5
         L_x5_ok:
         s_waitcnt vmcnt(0) lgkmcnt(0)''')
    stamp(12)
    sum4x4(36)
    rscatter(32)
    a(f'''v_add_f32_dpp v32, v32, v32 row_ror:8 {DPPF}
          v_add_f32_dpp v32, v32, v32 row_ror:4 {DPPF}''')
    rnd('v32', 'v32'); a('v_mul_f32 v32, v100, v32'); rnd('v32', 'v32'); a('v_add_f32 v32, v96, v32\ns_mov_b64 exec, s[20:21]'); rnd('v32', 'v32')
    a('''buffer_store_short_d16_hi v32, v101, s[36:39], 0 offen
         s_cmp_eq_u32 s50, 0
         s_cbranch_scc0 L_fin4
         s_mov_b64 exec, 1
         v_mov_b32 v3, s30
         buffer_store_dword v3, v2, s[44:47], 0 offen sc1
         L_fin4:''')
    stamp(14)
    a('L_fin3:')
    fin()
    a(f'''L_F8:
          s_cmp_eq_u32 s31, 8
          s_cbranch_scc0 L_end
          s_lshl_b32 s48, s2, 7
          s_add_u32 s48, s48, {PRB}
          s_add_u32 s49, s48, {SIDE}
          s_mov_b32 s52, -1
          s_mov_b32 s53, -1
          s_mov_b32 s54, 0
          s_waitcnt lgkmcnt(0)
          s_barrier''')
    dzero()
    if fside is not None:
        a(f'''s_getreg_b32 s55, hwreg(HW_REG_XCC_ID)
              s_bfe_u32 s55, s55, 0x10002
              s_xor_b32 s55, s55, {fside}
              s_lshl_b32 s55, s55, 13
              v_mov_b32 v3, s55
              ds_write_b32 v2, v3 offset:{FC+12}''')
    else:
        a('L_8_l:')
        for sd in range(2):
            a(f'''s_memtime s[4:5]
                  s_waitcnt lgkmcnt(0)
                  s_load_dword s10, s[28:29], s{48+sd} glc
                  s_waitcnt lgkmcnt(0)
                  s_memtime s[6:7]
                  s_lshr_b32 s8, s33, {sd}
                  s_add_u32 s8, s8, s54
                  s_bitcmp1_b32 s8, 0
                  s_waitcnt lgkmcnt(0)
                  s_cbranch_scc0 L_8_n{sd}
                  s_sleep 3
                  L_8_n{sd}:
                  s_sub_u32 s4, s6, s4
                  s_min_u32 s{52+sd}, s{52+sd}, s4''')
        a(f'''s_cmp_lt_u32 s53, s52
              s_cselect_b32 s55, {SIDE}, 0
              v_mov_b32 v3, s55
              ds_write_b32 v2, v3 offset:{FC+12}''')
        if diag:
            for k in (1, 2, 3, 4): a(f's_cmp_eq_u32 s54, {k}\ns_cbranch_scc0 L_8_d{k}\ns_memrealtime s[{64+2*k}:{65+2*k}]\ns_add_u32 s{64+2*(k+4)}, s55, 1\nL_8_d{k}:')
        a(f'''s_add_u32 s54, s54, 1
              s_cmp_lt_u32 s54, {nprb}
              s_cbranch_scc1 L_8_l''')
    if diag:
        a('s_add_u32 s90, s55, 1\ns_getreg_b32 s88, hwreg(HW_REG_XCC_ID)\ns_mov_b32 s86, s52\ns_mov_b32 s84, s53')
        fin()
    else: a('s_endpgm')
    if probe:
        a('L_probe:\ns_cmp_eq_u32 s68, 0\ns_cbranch_scc1 L_end')
        if len(probe) > 2 and probe[2] is not None: a(f's_cmp_eq_u32 s32, {probe[2]}\ns_cbranch_scc0 L_end')
        if len(probe) > 3 and probe[3] is not None: a(f's_cmp_eq_u32 s31, {probe[3]}\ns_cbranch_scc0 L_end')
        a('''s_setprio 0
             s_sleep 127
             s_sleep 127
             s_sleep 127
             s_sleep 127
             s_sleep 127
             L_probe_l:
             s_memrealtime s[66:67]
             s_waitcnt lgkmcnt(0)
             s_sub_u32 s66, s66, s64
             s_cmp_lt_u32 s66, 3000
             s_cbranch_scc1 L_probe_l
             s_endpgm''')
    if diag:
        a(f'''L_dump:
              s_mov_b64 exec, -1
              s_waitcnt vmcnt(0) lgkmcnt(0)
              s_memrealtime s[94:95]
              s_lshl_b32 s48, s2, 4
              s_add_u32 s48, s48, s31
              s_lshl_b32 s48, s48, 6
              s_add_u32 s48, s48, {STAMP_OFF}
              v_mov_b32 v1, s48
              s_waitcnt lgkmcnt(0)''')
        for i in range(16): a(f'v_mov_b32 v{8+i}, s{64+2*i}')
        a('s_mov_b64 exec, 1')
        for i in range(4): a(f'global_store_dwordx4 v1, v[{8+4*i}:{11+4*i}], s[28:29] offset:{16*i}')
    a('L_end:\ns_endpgm\nL_code_end:')
    head = open('adaLN_cond__sliding_block_cached__dense_activation_silu__decode.s.ref').read().split('; Override launch')[0]
    return head + f'''; @launch grid=(256,1,1) block=(1024,1,1) lds={L_END}
.amdgcn_target "amdgcn-amd-amdhsa--gfx950"
.text
.globl {KN}
.p2align 8
.type {KN},@function
''' + a.text() + f'''.section .rodata,"a"
.p2align 6
.amdhsa_kernel {KN}
  .amdhsa_next_free_vgpr 128
  .amdhsa_next_free_sgpr 96
  .amdhsa_accum_offset 128
  .amdhsa_group_segment_fixed_size 0
  .amdhsa_kernarg_size 104
  .amdhsa_user_sgpr_count 2
  .amdhsa_user_sgpr_kernarg_segment_ptr 1
  .amdhsa_system_sgpr_workgroup_id_x 1
.end_amdhsa_kernel
'''

if __name__ == '__main__':
    out = sys.argv[1]
    kw = eval('dict(' + (sys.argv[2] if len(sys.argv) > 2 else '') + ')')
    open(out, 'w').write(gen(**kw))
```

```python
import sys, struct
sys.path.insert(0, 'work')
from asmlib import Asm

KN = 'adaLN_cond__sliding_block_cached__dense_activation_silu__decode_kernel'
X2, X2F, HINT, PRB, X1, X4, X5, X3, X3F, WSEND = 0x4000, 0x8000, 0xC000, 0x80000, 0x18000, 0x30000, 0x40000, 0xA0000, 0x100000, 0x160000
SIDE = 0x2000
STAMP_OFF = 0x180000
L_Q, L_M, L_C, L_L, L_Z, L_O, L_PRIV, L_P, L_END = 0x0, 0x800, 0x810, 0x840, 0x900, 0x1000, 0x5000, 0x5800, 0x6100
FM = 0x300
FZ, FC, FP, FP2, FST, FX, FG = 0x0, 0x240, 0x1000, 0x1800, 0x2000, 0x3000, 0x3800
WINOFF = (65536 - 4096) * 512
def f2u(x): return struct.unpack('<I', struct.pack('<f', x))[0]
LOG2E = 1.4426950408889634
DPPF = 'row_mask:0xf bank_mask:0xf'

def gen(W=4, WH=5, WK=None, WE=7, NE=6, NL=4, adapt=True, diag=False, lite=False, probe=None, sleep=8, nt=' nt', w1nt='', wont='',
        rewarm=True, gaten=8, hintk=16, hintpos=7, touchpos=2, spinbits=17, fastbits=6, prio=True, pprio=3, nprb=5, cap5=0,
        fside=None, nob=False, fpf=8, pfoff=12, tbl=1, hyb=True):
    a = Asm()
    rare = []
    STEP = 1 << (32 - spinbits)
    role = ['all']
    def stamp(i):
        if diag or (lite and i in (0, 14)): a(f's_memrealtime s[{64+2*i}:{65+2*i}]')
        if probe and probe[0] == role[0] and probe[1] == i: a('s_memrealtime s[64:65]\ns_mov_b32 s68, 1')
    def fin(): a('s_branch L_dump' if diag else 's_branch L_probe' if probe else 's_endpgm')
    def setprio(n):
        if prio: a(f's_setprio {n}')
    def tags():
        a('''s_add_u32 s30, s30, 1
             s_and_b32 s34, s30, 0x7f
             s_xor_b32 s35, s34, 0x5a
             s_lshl_b32 s3, s35, 8
             s_or_b32 s3, s3, s34''')
    def ws_srd():
        a(f'''s_mov_b32 s44, s28
              s_mov_b32 s45, s29
              s_mov_b32 s46, {WSEND}
              s_mov_b32 s47, 0x20000''')
    def lanetag(d, bit):
        a(f'''v_bfe_u32 v{d}, v0, {bit}, 1
              v_mul_u32_u24 v{d}, 0x5a, v{d}
              v_xor_b32 v{d}, s34, v{d}''')
    def rowtag(m, t):
        lanetag(t, 2)
        a(f'''v_and_b32 v{m}, 3, v0
              v_cmp_eq_u32 vcc, 0, v{m}
              v_mov_b32 v{m}, 0xffffff00
              v_cndmask_b32 v{t}, 0, v{t}, vcc
              v_cndmask_b32 v{m}, -1, v{m}, vcc''')
    def spin(loop, done):
        a(f'''s_cbranch_vccz {done}
              s_add_u32 s62, s62, {STEP}
              s_cbranch_scc0 {loop}
              {done}:''')
    def ldswait(lbl, off, n, sl, z=100):
        if not n: return
        a(f'v_mov_b32 v{z}, 0\ns_mov_b32 s62, 0\n{lbl}:')
        if sl: a(f's_sleep {sl}')
        a(f'''ds_read_b32 v{z+1}, v{z} offset:{off}
              s_waitcnt lgkmcnt(0)
              v_cmp_gt_u32 vcc, {n}, v{z+1}''')
        spin(lbl, lbl + 'ok')
    def gcheck(lbl, loads, raw, masks, vt, switch, nfast, valid=None):
        n = len(loads)
        a(f's_mov_b32 s62, 0\n{lbl}:\ns_waitcnt vmcnt(0)')
        for i in range(n): a(f'v_cmp_ne_u32_sdwa s[{masks+2*i}:{masks+2*i+1}], v{raw+4*i}, v{vt} src0_sel:BYTE_0 src1_sel:DWORD')
        a(f's_or_b64 vcc, s[{masks}:{masks+1}], s[{masks+2}:{masks+3}]')
        for i in range(2, n): a(f's_or_b64 vcc, vcc, s[{masks+2*i}:{masks+2*i+1}]')
        a(f's_cbranch_scc1 {lbl}_r\n{lbl}_ok:')
        def r():
            a(f'{lbl}_r:')
            if switch:
                a(f's_cmp_eq_u32 s62, {nfast * STEP}\ns_cbranch_scc0 {lbl}_n\n{switch}\n{lbl}_n:')
            for i, l in enumerate(loads): a(f's_wqm_b64 exec, s[{masks+2*i}:{masks+2*i+1}]\n{l}')
            a(f'''s_mov_b64 exec, -1
                  s_add_u32 s62, s62, {STEP}
                  s_cbranch_scc0 {lbl}
                  s_waitcnt vmcnt(0)
                  s_branch {lbl}_ok''')
        return r
    def poll4(lbl, loads, raw, t, sl=0):
        a(f'''v_mov_b32 v{t+2}, 0
              ds_read_b32 v{t+3}, v{t+2} offset:{FC+12}
              s_and_b32 s4, s34, 15
              s_and_b32 s5, s35, 15
              s_mov_b32 s62, 0
              s_waitcnt lgkmcnt(0)
              {lbl}:
              v_add_u32 v{t+1}, v7, v{t+3}''')
        if sl: a(f's_sleep {sl}')
        for l in loads: a(l)
        a(f'ds_read_b32 v{t+3}, v{t+2} offset:{FC+12}\ns_waitcnt vmcnt(0) lgkmcnt(0)')
        n = 4 * len(loads)
        for k in range(n): a(f'v_xor_b32 v{raw+k}, s{4+(k&1)}, v{raw+k}')
        a(f'v_or_b32 v{t}, v{raw}, v{raw+1}')
        for k in range(2, n, 2): a(f'v_or3_b32 v{t}, v{t}, v{raw+k}, v{raw+k+1}')
        a(f'v_and_b32 v{t}, 15, v{t}\nv_cmp_ne_u32 vcc, 0, v{t}')
        spin(lbl, lbl + '_ok')
    def pk(op, d, x, y): a(f'v_pk_{op}_f32 v[{d}:{d+1}], v[{x}:{x+1}], v[{y}:{y+1}]')
    def rscatter(r):
        a(f'v_permlane32_swap_b32 v{r}, v{r+2}\nv_permlane32_swap_b32 v{r+1}, v{r+3}')
        pk('add', r, r, r + 2)
        a(f'v_permlane16_swap_b32 v{r}, v{r+1}\nv_add_f32 v{r}, v{r}, v{r+1}')
    def rnd(d, s): a(f'v_cvt_pk_bf16_f32 {d}, 0, {s}')
    def allred_rows(op, r, t):
        a(f'''v_mov_b32 v{t}, v{r}
              v_permlane32_swap_b32 v{r}, v{t}
              {op} v{r}, v{r}, v{t}
              v_mov_b32 v{t}, v{r}
              v_permlane16_swap_b32 v{r}, v{t}
              {op} v{r}, v{r}, v{t}''')
    def perm_sel(): a('s_mov_b32 s60, 0x05040100\ns_mov_b32 s61, 0x07060302')
    def perms64(raw, dst):
        for tau in range(4):
            for rho in range(4):
                a(f'v_perm_b32 v{dst+4*tau+rho}, v{raw+2*(2*rho+1)+(tau>>1)}, v{raw+2*(2*rho)+(tau>>1)}, s{60+(tau&1)}')
    def fix4(raw, t):
        for u0 in (0, 2):
            for i in range(2): a(f'v_pk_mov_b32 v[{t+2*i}:{t+2*i+1}], v[{raw+4*(u0+i)+2}:{raw+4*(u0+i)+3}], v[{raw+4*(u0+i)+2}:{raw+4*(u0+i)+3}] op_sel:[0,1]')
            rs = [raw + 4 * u + d for u in (u0, u0 + 1) for d in (0, 1)]
            for i, r in enumerate(rs): a(f'v_mov_b32_dpp v{r+2}, v{r} row_ror:8 row_mask:0xf bank_mask:0x3')
            for i, r in enumerate(rs): a(f'v_mov_b32_dpp v{r}, v{t+i} row_ror:8 row_mask:0xf bank_mask:0xc')
    def voff4(d, gstride, stride, t):
        a(f'''v_lshrrev_b32 v{t}, 4, v0
              v_mul_u32_u24 v{d}, {gstride}, v{t}
              v_bfe_u32 v{t}, v0, 3, 1
              v_mul_u32_u24 v{t}, {stride}, v{t}
              v_add_u32 v{d}, v{d}, v{t}
              v_and_b32 v{t}, 7, v0
              v_lshl_add_u32 v{d}, v{t}, 4, v{d}''')
    def maskaddr(dst, n, base, zero, t):
        a(f'''v_lshrrev_b32 v{t}, 4, v0
              v_lshlrev_b32 v{t}, 4, v{t}
              v_add_u32 v{t}, {base}, v{t}
              v_and_b32 v{t+1}, {n-1}, v0
              v_mov_b32 v{t+2}, {zero}''')
        for tau in range(n):
            a(f'v_cmp_eq_u32 vcc, {tau}, v{t+1}')
            a(f'v_cndmask_b32 v{dst+tau}, v{t+2}, v{t}, vcc')
    def silu(d, x, t):
        a(f'''v_mul_f32 v{t}, {hex(f2u(-LOG2E))}, v{x}
              v_exp_f32 v{t}, v{t}
              v_add_f32 v{t}, 1.0, v{t}
              v_rcp_f32 v{t}, v{t}
              v_mul_f32 v{t}, v{x}, v{t}''')
        rnd(f'v{d}', f'v{t}')
    def ln_apply(s1, s2, x, t):
        a(f'''v_mul_f32 v{t}, v{s1}, v{s1}
              v_fma_f32 v{t+1}, v{s1}, v{s1}, -v{t}
              v_fma_f32 v{t}, v{s2}, s59, -v{t}
              v_sub_f32 v{t}, v{t}, v{t+1}
              v_mul_f32 v{t}, {hex(f2u(1/448/448))}, v{t}
              v_max_f32 v{t}, 0, v{t}''')
        rnd(f'v{t}', f'v{t}')
        a(f'v_add_f32 v{t}, {hex(f2u(1e-5))}, v{t}')
        rnd(f'v{t}', f'v{t}')
        a(f'v_sqrt_f32 v{t}, v{t}\nv_mul_f32 v{t+1}, {hex(f2u(1/448))}, v{s1}')
        rnd(f'v{t}', f'v{t}'); rnd(f'v{t+1}', f'v{t+1}')
        a(f'v_rcp_f32 v{t}, v{t}\nv_sub_f32 v{t+1}, v{x[1]}, v{t+1}')
        rnd(f'v{t+1}', f'v{t+1}')
        a(f'v_mul_f32 v{t+1}, v{t+1}, v{t}')
        rnd(f'v{x[0]}', f'v{t+1}')
    def mma(n, acc, A, B):
        for i in range(n):
            a(f's_waitcnt lgkmcnt({0 if diag else n-1-i})')
            a(f'v_mfma_f32_16x16x32_bf16 v[{acc}:{acc+3}], v[{A+4*i}:{A+4*i+3}], v[{B+4*i}:{B+4*i+3}], ' + ('0' if i == 0 else f'v[{acc}:{acc+3}]'))
    def sumrows(n, ldsoff, va, first=None):
        o = ldsoff // 256
        for u in range(n // 2): a(f'ds_read2st64_b32 v[{16+2*u}:{17+2*u}], v{va} offset0:{o+2*u} offset1:{o+2*u+1}')
        if n & 1: a(f'ds_read_b32 v22, v{va} offset:{ldsoff+256*(n-1)}\nv_mov_b32 v23, 0')
        a('s_waitcnt lgkmcnt(0)')
        if first: a(first)
        pk('add', 16, 16, 18); pk('add', 20, 20, 22); pk('add', 16, 16, 20)
        a('v_add_f32 v16, v16, v17')

    def getside(t):
        a(f'''v_mov_b32 v{t}, 0
              ds_read_b32 v{t}, v{t} offset:{FC+12}
              s_waitcnt lgkmcnt(0)
              v_readfirstlane_b32 s48, v{t}''')
    def dzero():
        if diag:
            for i in range(1, 16): a(f's_mov_b32 s{64+2*i}, 0')
    K0, V0 = 8, 56
    a(f'{KN}:')
    if probe: a('s_mov_b32 s68, 0')
    stamp(0)
    a(f'''s_load_dwordx16 s[4:19], s[0:1], 0
          s_load_dwordx8 s[20:27], s[0:1], 64
          s_load_dwordx2 s[28:29], s[0:1], 96
          v_readfirstlane_b32 s31, v0
          s_and_b32 s32, s2, 7
          s_lshr_b32 s33, s2, 3
          s_lshr_b32 s31, s31, 6
          s_sub_u32 s33, s33, 8
          s_cbranch_scc0 L_A''')
    a(f'''s_getpc_b64 s[48:49]
          L_pc:
          v_lshlrev_b32 v2, 7, v0
          v_min_u32 v2, L_code_end-L_pc-4, v2
          global_load_dword v127, v2, s[48:49]
          s_branch L_F
          L_A:
          s_cmp_ge_u32 s31, 8
          s_cbranch_scc1 L_Td
          s_cmp_ge_u32 s33, 17
          s_cbranch_scc1 L_a_u
          L_att:''')
    role[0] = 'att'
    ta, tb, tc, td = ((5, 16, 17, 42), (4, 13, 15, 43))[tbl]
    a(f'''s_mul_i32 s50, s33, {ta}
          s_add_u32 s51, s50, 6
          s_min_u32 s50, s50, {tb}
          s_min_u32 s51, s51, {tc}
          s_mul_i32 s49, s33, {td}
          L_att2:
          s_add_u32 s50, s50, s31
          s_min_u32 s48, s50, s51
          s_add_u32 s48, s48, s49
          s_mul_i32 s49, s31, 5
          s_add_u32 s48, s48, s49
          s_lshl_b32 s49, s32, 14
          s_add_u32 s48, s48, s49
          s_addk_i32 s48, {WINOFF // 2048 + 2}
          s_lshl_b32 s48, s48, 11
          v_and_b32 v2, 12, v0
          v_and_b32 v3, 48, v0
          v_and_b32 v4, 3, v0
          v_lshlrev_b32 v6, 7, v2
          v_lshl_add_u32 v6, v3, 2, v6
          v_lshl_add_u32 v6, v4, 4, v6
          s_waitcnt lgkmcnt(0)
          s_add_u32 s36, s6, s48
          s_addc_u32 s37, s7, 0
          s_cmp_le_u32 s50, s51
          s_cbranch_scc0 L_a_k1''')
    cnt = [0]
    def kvload(srd, va, base, t, hf, late=False):
        w = WH if late else WK if (WK and srd == 36) else W
        if WE and srd == 40 and 2 * (5 - t) + 1 - hf < NE: a(f's_waitcnt vmcnt({WE-1})')
        elif cnt[0] >= 6:
            if WH != w: a(f's_waitcnt vmcnt({WH-1})\ns_cbranch_vccnz L_w{cnt[0]}_\ns_waitcnt vmcnt({w-1})\nL_w{cnt[0]}_:')
            else: a(f's_waitcnt vmcnt({w-1})')
        cnt[0] += 1
        r = base + 8 * t + 4 * hf
        b = srd + 2 * (t // 4)
        a(f'global_load_dwordx4 v[{r}:{r+3}], v{va}, s[{b}:{b+1}] offset:{((t & 3) - 2) * 2048 + hf * 256}{nt}')
    kvload(36, 6, K0, 0, 0); kvload(36, 6, K0, 0, 1)
    a('L_a_k1:')
    for t in (1, 2): kvload(36, 6, K0, t, 0); kvload(36, 6, K0, t, 1)
    a('s_branch L_a_c')
    a('''L_a_u:
         s_cmp_ge_u32 s33, 24
         s_cbranch_scc1 L_end
         s_barrier''')
    if tbl: a('s_mov_b32 s50, 64\ns_mov_b32 s51, 63\ns_mul_i32 s49, s33, 40\ns_branch L_att2')
    else: a('s_branch L_att')
    a(f'''L_Td:
          s_cmp_ge_u32 s33, 24
          s_cbranch_scc1 L_end
          s_cmp_ge_u32 s33, 3
          s_cselect_b32 s50, 9, 0
          s_cmp_eq_u32 s31, s50
          s_cbranch_scc1 L_mod''')
    a(f'''s_cmp_ge_u32 s31, 12
          s_cbranch_scc0 L_T0
          v_mov_b32 v8, {hex(f2u(-3e38))}
          v_cmp_eq_u32 vcc, {768 + L_M // 16}, v0
          v_lshlrev_b32 v2, 4, v0
          v_mov_b32 v9, 0
          v_cndmask_b32 v8, 0, v8, vcc
          v_mov_b32 v11, 0
          v_subrev_u32 v2, {768 * 16}, v2
          v_mov_b32 v10, v8
          ds_write_b128 v2, v[8:11]
          s_waitcnt lgkmcnt(0)
          L_T0:
          s_barrier
          s_branch L_T
          L_mod:''')
    role[0] = 'mod'
    def tail_setup():
        a('s_load_dword s30, s[28:29], 0\ns_sub_u32 s49, s31, 8')
        ws_srd(); perm_sel()
        a(f's_lshl_b32 s56, s49, 8\ns_add_u32 s56, s56, {L_PRIV}')
    a('v_and_b32 v0, 63, v0')
    setprio(3)
    a(f'''s_cmp_ge_u32 s33, 17
          s_cselect_b32 s50, -17, 4
          s_add_u32 s50, s50, s33
          s_lshl_b32 s50, s50, 3
          s_add_u32 s50, s50, s32
          s_and_b32 s51, s50, 3
          s_lshr_b32 s52, s50, 2
          s_mov_b32 s38, {448*5376}
          s_mov_b32 s39, 0x20000
          s_mov_b32 s42, 896
          s_mov_b32 s43, 0x20000
          s_mul_i32 s54, s51, {112*5376}
          s_lshl_b32 s55, s52, 7
          s_add_u32 s54, s54, s55
          s_mul_i32 s53, s51, 224
          v_lshlrev_b32 v2, 2, v0
          v_lshrrev_b32 v1, 3, v0
          v_mul_u32_u24 v3, {14*5376}, v1
          v_and_b32 v4, 7, v0
          v_lshl_add_u32 v3, v4, 4, v3
          s_waitcnt lgkmcnt(0)
          s_mov_b32 s36, s22
          s_mov_b32 s37, s23
          s_mov_b32 s40, s20
          s_mov_b32 s41, s21
          buffer_load_dword v8, v2, s[40:43], s53 offen''')
    for m in range(14):
        a(f'buffer_load_dwordx4 v[{72+4*m}:{75+4*m}], v3, s[36:39], s54 offen{nt}')
        if m < 13: a('s_add_u32 s54, s54, 5376')
    a('s_barrier')
    dzero(); stamp(1)
    tail_setup()
    a(f'''v_mul_u32_u24 v3, 37, v0
          v_lshrrev_b32 v3, 8, v3
          v_add_u32 v3, v3, v0
          v_lshl_add_u32 v3, v3, 2, s56
          v_lshl_add_u32 v1, v1, 5, s56
          v_and_b32 v9, 1, v0
          v_lshlrev_b32 v9, 4, v9
          v_mov_b32 v10, 0xffff
          v_lshlrev_b32 v9, v9, v10
          v_bfe_u32 v10, v0, 1, 2''')
    for rho in range(4):
        a(f'v_cmp_eq_u32 vcc, {rho}, v10')
        a(f'v_cndmask_b32 v{4+rho}, 0, v9, vcc')
    a('''s_mov_b32 s52, 0x01000100
         s_mov_b32 s53, 0x03020302
         s_waitcnt vmcnt(14)
         v_lshlrev_b32 v9, 16, v8
         v_and_b32 v10, 0xffff0000, v8''')
    silu(9, 9, 12); silu(10, 10, 13)
    a(f'''v_perm_b32 v9, v10, v9, s61
          s_mov_b32 exec_hi, 0xffffff
          ds_write_b32 v3, v9
          s_mov_b32 exec_hi, -1
          ds_read_b128 v[8:11], v1
          ds_read_b96 v[12:14], v1 offset:16
          s_lshr_b32 s51, s50, 5
          s_lshl_b32 s51, s51, 13
          s_lshl_b32 s50, s50, 8
          s_add_u32 s50, s50, s51
          s_add_u32 s50, s50, {X1}
          s_add_u32 s51, s50, {SIDE}
          v_lshrrev_b32 v2, 4, v0
          v_and_b32 v3, 7, v0
          v_lshlrev_b32 v3, 4, v3
          v_lshl_add_u32 v2, v2, 7, v3
          s_waitcnt lgkmcnt(0)''')
    tags()
    for m in range(14):
        a(f'v_perm_b32 v15, v{8+(m>>1)}, v{8+(m>>1)}, s{52+(m&1)}')
        for rho in range(4): a(f'v_and_b32 v{16+4*m+rho}, v15, v{4+rho}')
    a('v_and_b32_e64 v4, s34, 15\nv_and_b32_e64 v5, s35, 15')
    for m in range(14):
        a(f's_waitcnt vmcnt({13-m})')
        a(f'v_mfma_f32_16x16x32_bf16 v[8:11], v[{16+4*m}:{19+4*m}], v[{72+4*m}:{75+4*m}], ' + ('0' if m == 0 else 'v[8:11]'))
    a('''v_pk_mov_b32 v[12:13], v[8:9], v[8:9] op_sel:[0,1]
         v_pk_mov_b32 v[14:15], v[10:11], v[10:11] op_sel:[0,1]''')
    for i in range(4): a(f'v_permlane32_swap_b32 v{8+i}, v{12+i}')
    for i in range(4): a(f'v_add_f32_dpp v{8+i}, v{12+i}, v{8+i} row_ror:8 {DPPF}')
    a('s_mov_b64 exec, 0xff00ff')
    for i in range(4): a(f'v_and_or_b32 v{8+i}, v{8+i}, -16, v{4+(i&1)}')
    a('buffer_store_dwordx4 v[8:11], v2, s[44:47], s50 offen sc1\nbuffer_store_dwordx4 v[8:11], v2, s[44:47], s51 offen sc1\ns_mov_b64 exec, -1')
    stamp(2)
    setprio(0)
    a('s_cmp_lt_u32 s33, 14\ns_cbranch_scc1 L_t_go2')
    fin()
    role[0] = 'att'
    a('L_a_c:')
    def setup_att():
        dzero(); stamp(1)
        a(f'''s_load_dword s30, s[28:29], 0
              s_cmp_le_u32 s50, s51
              s_cselect_b32 s51, 1, 0
              s_add_u32 s38, s36, 8192
              s_addc_u32 s39, s37, 0
              s_add_u32 s40, s8, s48
              s_addc_u32 s41, s9, 0
              s_add_u32 s42, s40, 8192
              s_addc_u32 s43, s41, 0
              s_cmp_ge_u32 s33, 17
              s_cbranch_scc1 L_a_nb2
              s_barrier
              L_a_nb2:
              v_and_b32 v0, 63, v0
              v_and_b32 v5, 15, v0
              v_lshlrev_b32 v7, 5, v3
              v_lshl_add_u32 v7, v5, 4, v7
              v_bfe_u32 v2, v0, 3, 1
              v_lshlrev_b32 v1, 10, v2
              v_lshl_add_u32 v1, v3, 3, v1
              v_lshl_add_u32 v1, v4, 5, v1
              v_and_b32 v104, 1, v0
              v_lshlrev_b32 v104, 4, v104
              v_mov_b32 v105, 0xffff
              v_lshlrev_b32 v104, v104, v105
              v_bfe_u32 v105, v0, 1, 2''')
        for rho in range(4):
            a(f'v_cmp_eq_u32 vcc, {rho}, v105')
            a(f'v_cndmask_b32 v{2+rho}, 0, v104, vcc')
        ws_srd(); perm_sel()
        a(f'''s_mov_b32 s58, {hex(f2u(0.0625 * LOG2E))}
              s_bfe_u32 s57, s31, 0x10001
              s_lshl_b32 s49, s32, 1
              s_add_u32 s54, s57, s49
              s_mul_i32 s54, s54, 24
              s_add_u32 s54, s54, s33
              s_lshl_b32 s54, s54, 10
              s_lshr_b32 s49, s31, 2
              s_lshl_b32 s49, s49, 9
              s_add_u32 s54, s54, s49
              s_and_b32 s49, s31, 1
              s_lshl_b32 s49, s49, 8
              s_add_u32 s54, s54, s49
              s_add_u32 s55, s54, {X3F}
              s_add_u32 s54, s54, {X3}
              s_mul_i32 s59, s32, 24
              s_add_u32 s59, s59, s33
              s_lshl_b32 s59, s59, 7
              s_add_u32 s59, s59, {HINT}
              v_lshlrev_b32 v104, 2, v0
              s_mov_b32 s48, s51
              s_mov_b32 s49, 0
              s_mov_b64 vcc, s[48:49]''')
    setup_att()
    for t in range(3, 6): kvload(36, 6, K0, t, 0); kvload(36, 6, K0, t, 1)
    stamp(2)
    a('s_cmp_eq_u32 s51, 0\ns_cbranch_scc0 L_a_v0')
    for i in range(4): a(f'v_mov_b32 v{K0+i}, {hex(f2u(-1e30))}')
    a('s_branch L_a_v1\nL_a_v0:')
    kvload(40, 7, V0, 0, 0); kvload(40, 7, V0, 0, 1)
    a('L_a_v1:\ns_waitcnt lgkmcnt(0)')
    tags()
    vl = [(t, hf) for t in range(1, 6) for hf in range(2)]
    late = vl[10 - NL:]
    assert 2 * (6 - touchpos) - 1 >= max(W, WH) and 2 * (6 - max(touchpos, hintpos if hintpos < 7 else 0)) >= NL and NL <= 4
    for t in range(1, 7):
        if t == touchpos:
            a('buffer_load_dword v6, v104, s[44:47], s55 offen sc1')
        if t == hintpos and hintk:
            a(f'''s_cmp_eq_u32 s31, 0
                  s_cbranch_scc0 L_a_nh
                  v_mov_b32 v105, s3
                  s_mov_b64 exec, 1
                  buffer_store_dword v105, v104, s[44:47], s59 offen
                  s_mov_b64 exec, -1
                  L_a_nh:''')
        for hf in range(2):
            if (t, hf) in vl and (t, hf) not in late: kvload(40, 7, V0, t, hf)
    def count(off): a(f's_mov_b64 exec, 1\nds_inc_u32 v0, v2 offset:{off}\ns_mov_b64 exec, -1')
    def lateload(k):
        i = k - (4 - NL)
        if i < 0: return
        if adapt: a(f's_cmp_gt_u32 s63, {i}\ns_cbranch_scc1 L_a_l{i}')
        kvload(40, 7, V0, *late[i], late=True)
        if i == NL - 1: vdone('a')
        if adapt: a(f'L_a_l{i}:')
    def vdone(sfx):
        stamp(3); count(L_C)
        if hintpos == 7 and hintk:
            a(f'''s_cmp_eq_u32 s31, 0
                  s_cbranch_scc0 L_a_nh{sfx}
                  v_mov_b32 v114, s3
                  s_mov_b64 exec, 1
                  buffer_store_dword v114, v0, s[44:47], s59 offen
                  s_mov_b64 exec, -1
                  L_a_nh{sfx}:''')
    if not NL: vdone('a')
    a('s_mov_b32 s62, 0\ns_mov_b32 s63, 0')
    stamp(8)
    setprio(2)
    a(f'''L_a_q:
          ds_read_b128 v[104:107], v1 offset:{L_Q}
          ds_read_b128 v[108:111], v1 offset:{L_Q+16}
          ds_read_b128 v[112:115], v1 offset:{L_Q+512}
          ds_read_b128 v[116:119], v1 offset:{L_Q+528}
          s_waitcnt lgkmcnt(0)
          v_bitop3_b32 v120, v104, v108, s3 bitop3:0x7e
          v_bitop3_b32 v121, v112, v116, s3 bitop3:0x7e
          v_or_b32 v121, v120, v121
          v_cmp_ne_u32_sdwa vcc, v121, 0 src0_sel:WORD_0 src1_sel:DWORD''')
    for i in range(8): a(f'v_perm_b32 v{120+i}, v{105+2*i}, v{104+2*i}, s61')
    a('s_cbranch_vccnz L_a_qr\nL_a_qok:')
    def qrare():
        a('L_a_qr:')
        if adapt:
            for i in range(NL):
                a(f's_cmp_eq_u32 s63, {i}\ns_cbranch_scc0 L_a_qr{i}')
                kvload(40, 7, V0, *late[i], late=True)
                if i == NL - 1: vdone('b')
                a(f's_mov_b32 s63, {i+1}\ns_branch L_a_q\nL_a_qr{i}:')
        a(f'''s_sleep 1
              s_add_u32 s62, s62, {STEP}
              s_cbranch_scc0 L_a_q
              s_branch L_a_qok''')
    rare.append(qrare)
    stamp(4)
    def qk(t, hf):
        k = K0 + 8 * t; tmp = 104 + 4 * (t & 3)
        if hf == 0: a(f'v_mfma_f32_16x16x32_bf16 v[{tmp}:{tmp+3}], v[{k}:{k+3}], v[120:123], 0')
        else: a(f'v_mfma_f32_16x16x32_bf16 v[{k}:{k+3}], v[{k+4}:{k+7}], v[124:127], v[{tmp}:{tmp+3}]')
    def step(t, i):
        if t < 0 or t > 5: return
        k = K0 + 8 * t
        if i == 0: a(f'v_mov_b32_dpp v{k+4}, v{k} quad_perm:[0,0,0,0] {DPPF}')
        else: a(f'v_add_f32_dpp v{k+4}, v{k+i}, v{k+4} quad_perm:[{i},{i},{i},{i}] {DPPF}')
    lateload(0)
    if WE: a(f's_waitcnt vmcnt({11 - NL})')
    a('s_cmp_eq_u32 s51, 0\ns_cbranch_scc1 L_a_qk1')
    qk(0, 0); qk(0, 1)
    a('L_a_qk1:')
    fill = ['v_mov_b32 v1, 0', 's_mov_b32 s62, 0', 's_lshl_b32 s48, s57, 3', 's_lshl_b32 s49, s31, 2']
    for t in range(1, 6):
        qk(t, 0); step(t - 3, 0); step(t - 4, 2)
        if t < 3: a(fill.pop(0))
        qk(t, 1); step(t - 3, 1); step(t - 4, 3)
        if t < 3: a(fill.pop(0))
        if t == 3: lateload(1)
    lateload(2)
    step(2, 2); step(3, 0); step(4, 0); step(2, 3); step(3, 1); step(4, 1)
    S = [K0 + 8 * t + 4 for t in range(6)]
    rnd(f'v{S[0]}', f'v{S[0]}')
    if WE: a(f's_waitcnt vmcnt({2 * (6 - touchpos) - 1})')
    a('v_and_b32 v6, 8, v0')
    step(5, 0); step(3, 2); step(4, 2); step(5, 1); step(3, 3); step(4, 3); step(5, 2)
    rnd(f'v{S[1]}', f'v{S[1]}'); rnd(f'v{S[2]}', f'v{S[2]}')
    step(5, 3)
    rnd(f'v{S[3]}', f'v{S[3]}'); rnd(f'v{S[4]}', f'v{S[4]}')
    a(f'v_max3_f32 v112, v{S[0]}, v{S[1]}, v{S[2]}')
    rnd(f'v{S[5]}', f'v{S[5]}')
    a(f'''v_max3_f32 v112, v112, v{S[3]}, v{S[4]}
          s_mov_b32 exec_lo, 0x01010101
          s_mov_b32 exec_hi, 0x01010101
          v_max_f32 v112, v112, v{S[5]}
          ds_max_f32 v6, v112 offset:{L_M}
          s_mov_b64 exec, 1
          ds_inc_u32 v0, v2 offset:{L_C+4}
          s_mov_b64 exec, -1
          v_mov_b32 v117, s48''')
    lateload(3)
    a(f'''L_a_s1:
          ds_read_b32 v113, v1 offset:{L_C+4}
          ds_read_b32 v112, v6 offset:{L_M}
          ds_read_b32 v116, v117 offset:{L_M}
          s_waitcnt lgkmcnt(0)
          v_cmp_ne_u32 vcc, 8, v113
          v_mul_f32 v112, s58, v112''')
    order = [1, 0, 2, 3, 4, 5]
    for t in order: a(f'v_fma_f32 v{S[t]+2}, v{S[t]}, s58, -v112')
    a('s_cbranch_vccnz L_a_s1r\nL_a_s1ok:')
    rare.append(lambda: a(f'L_a_s1r:\ns_add_u32 s62, s62, {STEP}\ns_cbranch_scc0 L_a_s1\ns_branch L_a_s1ok'))
    stamp(5)
    for t in order: a(f'v_exp_f32 v{S[t]}, v{S[t]+2}')
    def abuild(t):
        k = K0 + 8 * t
        a(f'v_cvt_pk_bf16_f32 v{k+5}, v{k+4}, v{k+4}')
        for rho in range(4): a(f'v_and_b32 v{k+rho}, v{k+5}, v{2+rho}')
    def pv(t, hf, first=False):
        k = K0 + 8 * t; v = V0 + 8 * t + 4 * hf; acc = 104 + 4 * hf
        n = 2 * (5 - t) + 1 - hf
        if n < max(W, WH, WE or 0): a(f's_waitcnt vmcnt({n})')
        a(f'v_mfma_f32_16x16x32_bf16 v[{acc}:{acc+3}], v[{k}:{k+3}], v[{v}:{v+3}], ' + ('0' if first else f'v[{acc}:{acc+3}]'))
    abuild(1)
    a(f'v_add_f32 v113, v{S[0]}, v{S[1]}\nv_add_f32 v114, v{S[2]}, v{S[3]}')
    pv(1, 0, True); abuild(2); pv(1, 1, True)
    a('s_cmp_eq_u32 s51, 0\ns_cbranch_scc1 L_a_pv2')
    abuild(0); pv(0, 0); pv(0, 1)
    a('L_a_pv2:')
    for t in range(2, 6):
        pv(t, 0)
        if t < 5: abuild(t + 1)
        pv(t, 1)
        if t == 2:
            a(f'''v_add_f32 v115, v{S[4]}, v{S[5]}
                  v_add_f32 v113, v113, v114
                  v_lshl_add_u32 v6, v6, 2, s49
                  v_add_f32 v113, v113, v115''')
            allred_rows('v_add_f32', 113, 114)
            a(f'''s_mov_b64 exec, 0x101
                  ds_write_b32 v6, v113 offset:{L_L}
                  s_mov_b64 exec, -1''')
        if t == 3:
            a(f'''s_lshl_b32 s48, s31, 11
                  v_lshl_add_u32 v6, v0, 4, s48
                  v_and_b32 v120, 4, v0
                  v_cmp_eq_u32 vcc, 0, v120
                  v_or_b32 v116, s34, v116
                  v_mov_b32 v119, s35
                  v_mov_b32 v118, 0xffffff00
                  v_cndmask_b32 v119, v119, v116, vcc
                  v_cndmask_b32_e64 v118, v118, 0, vcc
                  v_and_b32 v120, 3, v0
                  v_or_b32 v120, 0x07060500, v120
                  s_lshl_b32 s49, s31, 8
                  s_add_u32 s49, s49, {L_O}
                  v_lshlrev_b32 v121, 2, v0
                  v_add_u32 v122, s49, v121
                  v_lshlrev_b32 v117, 2, v117
                  s_mov_b32 s62, 0''')
    a(f'''ds_write_b128 v6, v[104:107] offset:{L_O}
          ds_write_b128 v6, v[108:111] offset:{L_O+1024}
          s_mov_b64 exec, 1
          ds_inc_u32 v0, v2 offset:{L_C+8}
          s_mov_b64 exec, -1''')
    stamp(6)
    a(f'''L_a_s2:
          ds_read_b32 v24, v1 offset:{L_C+8}
          ds_read_b128 v[16:19], v117 offset:{L_L}
          ds_read_b128 v[20:23], v117 offset:{L_L+16}''')
    for u in range(4): a(f'ds_read2st64_b32 v[{8+2*u}:{9+2*u}], v122 offset0:{16*u} offset1:{16*u+8}')
    a(f's_waitcnt lgkmcnt({0 if diag else 4})\nv_cmp_ne_u32 vcc, 8, v24')
    pk('add', 16, 16, 18); pk('add', 20, 20, 22); pk('add', 16, 16, 20)
    a('v_add_f32 v16, v16, v17\nv_and_or_b32 v16, v16, v118, v119\ns_waitcnt lgkmcnt(0)')
    pk('add', 8, 8, 10); pk('add', 12, 12, 14); pk('add', 8, 8, 12)
    a('''v_add_f32 v8, v8, v9
         v_perm_b32 v8, v8, v16, v120
         s_cbranch_vccnz L_a_s2r
         L_a_s2ok:
         buffer_store_dword v8, v121, s[44:47], s55 offen''')
    rare.append(lambda: a(f'L_a_s2r:\ns_add_u32 s62, s62, {STEP}\ns_cbranch_scc0 L_a_s2\ns_branch L_a_s2ok'))
    a(f'''s_mov_b64 exec, 1
          ds_inc_u32 v0, v2 offset:{L_C+12}
          s_mov_b64 exec, -1''')
    stamp(7)
    setprio(0)
    if hyb: a('s_cmp_lt_u32 s33, 14\ns_cbranch_scc0 L_a_x\ns_barrier\ns_sleep 3\nL_a_x:')
    else:
        a(f'''s_cmp_lt_u32 s33, 14
              s_cbranch_scc0 L_a_x
              s_mov_b32 s62, 0
              L_a_b:
              s_sleep 2
              ds_read_b32 v24, v1 offset:{L_C+20}
              s_add_u32 s62, s62, {1 << (32 - fastbits)}
              s_cbranch_scc1 L_a_x
              s_waitcnt lgkmcnt(0)
              v_cmp_eq_u32 vcc, 0, v24
              s_cbranch_vccnz L_a_b
              L_a_x:''')
    if not nob: a('buffer_store_dword v8, v121, s[44:47], s54 offen sc1')
    fin()
    for r in rare: r()
    rare.clear()

    role[0] = 'wo'
    a('L_T:\nv_and_b32 v0, 63, v0')
    a('''s_cmp_lt_u32 s33, 14
         s_cbranch_scc1 L_t_go
         s_cmp_eq_u32 s31, 8
         s_cbranch_scc1 L_t_go''')
    if fpf:
        a(f'''s_cmp_lt_u32 s31, 10
              s_cbranch_scc1 L_end
              s_mul_i32 s50, s33, 6
              s_add_u32 s50, s50, s31
              s_sub_u32 s50, s50, 94
              s_cmp_lt_u32 s50, 56
              s_cbranch_scc0 L_end''')
        if fpf:
            a(f'''s_cmp_lt_u32 s32, 4
                  s_cselect_b32 s52, 6, 8
                  s_cselect_b32 s53, 0, 8
                  s_cselect_b32 s56, 0x77777777, -1
                  s_cselect_b32 s58, 21, 28
                  s_mul_i32 s52, s52, s32
                  s_sub_u32 s52, s52, s53
                  s_lshr_b32 s51, s50, 1
                  s_waitcnt lgkmcnt(0)
                  s_bitcmp1_b32 s50, 0
                  s_cbranch_scc1 L_pf_2
                  s_mul_i32 s54, s51, {16*3584}
                  s_lshl_b32 s52, s52, 6
                  s_add_u32 s54, s54, s52
                  v_lshrrev_b32 v4, 2, v0
                  v_mul_u32_u24 v4, 3584, v4
                  v_and_b32 v5, 3, v0
                  v_lshl_add_u32 v4, v5, 7, v4
                  v_add_u32 v4, s54, v4
                  s_branch L_pf_3
                  L_pf_2:
                  s_mul_i32 s52, s52, {32*896}
                  s_lshl_b32 s54, s51, 13
                  s_add_u32 s54, s54, s52
                  v_lshl_add_u32 v4, v0, 7, s54
                  s_mov_b64 s[16:17], s[18:19]
                  s_cmp_lt_u32 s51, s58
                  s_cselect_b32 s56, -1, 0
                  L_pf_3:
                  s_mov_b32 s57, s56''')
        ldswait('L_pf_g', L_C + pfoff, fpf, 4)
        if fpf: a('s_mov_b64 exec, s[56:57]\ns_cbranch_execz L_end\nglobal_load_dword v6, v4, s[16:17]')
    a('''s_endpgm
         L_t_go:
         s_waitcnt lgkmcnt(0)''')
    dzero()
    a('L_t_go2:')
    tail_setup()
    a(f'''s_cmp_ge_u32 s33, 7
          s_cselect_b32 s50, 1, 0
          s_cselect_b32 s51, 7, 0
          s_sub_u32 s51, s33, s51
          s_lshl_b32 s52, s32, 1
          s_add_u32 s50, s50, s52
          s_lshl_b32 s52, s50, 8
          s_lshr_b32 s53, s49, 2
          s_lshl_b32 s53, s53, 7
          s_add_u32 s52, s52, s53
          s_and_b32 s53, s49, 1
          s_lshl_b32 s53, s53, 6
          s_add_u32 s52, s52, s53
          s_and_b32 s53, s49, 2
          s_lshl_b32 s53, s53, 1
          s_add_u32 s52, s52, s53
          s_mul_i32 s52, s52, 896
          s_lshl_b32 s53, s51, 7
          s_add_u32 s52, s52, s53
          s_add_u32 s53, s52, {8*896}
          s_mov_b32 s36, s12
          s_mov_b32 s37, s13
          s_mov_b32 s38, {4096*896}
          s_mov_b32 s39, 0x20000
          s_mul_i32 s40, s50, {24*1024}
          s_lshl_b32 s41, s49, 7
          s_add_u32 s40, s40, s41
          s_add_u32 s40, s40, {X3F}
          s_add_u32 s41, s40, 8192
          s_add_u32 s42, s40, 16384
          s_lshr_b32 s54, s50, 2
          s_lshl_b32 s54, s54, 13
          s_lshl_b32 s55, s50, 11
          s_add_u32 s54, s54, s55
          s_lshl_b32 s55, s51, 8
          s_add_u32 s54, s54, s55
          s_add_u32 s54, s54, {X4}
          s_add_u32 s55, s54, {SIDE}
          s_mov_b32 s43, 0
          s_mov_b32 s57, 0x0c04000c
          s_mov_b32 s58, {hex(f2u(0.0625 * LOG2E))}
          s_lshl_b32 s59, s49, 8
          s_add_u32 s59, s59, {L_P}
          v_lshrrev_b32 v12, 3, v0
          v_and_b32 v13, 7, v0
          v_lshlrev_b32 v3, 10, v12
          v_lshl_add_u32 v3, v13, 4, v3
          v_lshrrev_b32 v5, 4, v0
          v_lshl_add_u32 v5, v13, 2, v5
          v_lshl_add_u32 v5, v5, 1, s56
          v_lshl_add_u32 v6, v0, 4, s59
          v_lshlrev_b32 v4, 2, v0''')
    voff4(1, 16 * 896, 896, 12)
    def wold():
        stamp(3)
        for u in range(4):
            a(f'buffer_load_dwordx4 v[{80+4*u}:{83+4*u}], v1, s[36:39], s{52+(u>>1)} offen offset:{(u&1)*2*896}{wont}')
    maskaddr(8, 4, 's56', L_Z, 12)
    a('s_waitcnt lgkmcnt(0)')
    tags()
    lanetag(7, 0); rowtag(98, 99)
    a(f'''s_cmp_eq_u32 s49, 0
          s_cbranch_scc0 L_wo
          v_lshlrev_b32 v2, 4, v0
          s_lshl_b32 s4, s32, 11
          s_add_u32 s4, s4, {X2F}
          s_mov_b32 m0, {L_Q}
          s_mov_b32 s62, 0
          s_setprio {pprio}
          L_p_loop:
          buffer_load_dwordx4 v2, s[44:47], s4 offen sc1 lds
          buffer_load_dwordx4 v2, s[44:47], s4 offen offset:1024 sc1 lds
          s_sleep {sleep}
          s_cmp_eq_u32 s62, {(1 << fastbits) * STEP}
          s_cselect_b32 s5, {X2F - X2}, 0
          s_sub_u32 s4, s4, s5
          ds_read2st64_b32 v[12:13], v2 offset0:{L_Q // 256} offset1:{L_Q // 256 + 4}
          s_waitcnt vmcnt(32) lgkmcnt(0)
          v_bitop3_b32 v12, v12, v13, s3 bitop3:0x7e
          v_cmp_ne_u32_sdwa vcc, v12, 0 src0_sel:WORD_0 src1_sel:DWORD''')
    spin('L_p_loop', 'L_p_ok')
    a('s_setprio 0')
    stamp(2)
    a('s_cmp_lt_u32 s33, 14\ns_cbranch_scc0 L_fin\nL_wo:')
    ldswait('L_wo_g', L_C, gaten, 2)
    wold()
    ldswait('L_wo_d', L_C + 12, 8, 1)
    setprio(3)
    stamp(4)
    x3l = [f'buffer_load_dwordx4 v[{32+4*s}:{35+4*s}], v3, s[44:47], s{40+s} offen sc1' for s in range(3)]
    for l in x3l: a(l)
    a('s_waitcnt vmcnt(3)')
    fix4(80, 48); perms64(80, 16)
    stamp(5)
    rare.append(gcheck('L_x3', x3l, 32, 4, 7, '\n'.join(f's_sub_u32 s{40+s}, s{40+s}, {X3F - X3}' for s in range(3)) + ('\ns_barrier\ns_mov_b32 s43, 1' if hyb else ''), 2 << fastbits))
    stamp(6)
    for s in range(3): a(f'v_perm_b32 v{48+2*s}, v{34+4*s}, v{33+4*s}, s57')
    for s in range(3): a(f'v_lshl_or_b32 v{48+2*s}, v{35+4*s}, 24, v{48+2*s}')
    a(f'''v_max3_f32 v54, v48, v50, v52
          v_xor_b32 v32, v32, v7
          v_xor_b32 v36, v36, v7
          v_max_f32_dpp v54, v54, v54 row_ror:8 {DPPF}
          v_mov_b32 v55, v54
          v_xor_b32 v40, v40, v7
          v_permlane32_swap_b32 v54, v55
          v_max_f32 v54, v54, v55
          v_mov_b32 v55, v54
          v_permlane16_swap_b32 v54, v55
          v_max_f32 v54, v54, v55''')
    for s in range(3): a(f'v_sub_f32 v{49+2*s}, v{48+2*s}, v54')
    for s in range(3): a(f'v_mul_f32 v{49+2*s}, s58, v{49+2*s}')
    for s in range(3): a(f'v_exp_f32 v{49+2*s}, v{49+2*s}')
    for s in range(3): a(f'v_mov_b32_dpp v{56+2*s}, v{49+2*s} quad_perm:[0,0,2,2] {DPPF}')
    a(f'''v_mul_f32 v54, v56, v48
          v_pk_mul_f32 v[32:33], v[32:33], v[56:57] op_sel_hi:[1,0]
          v_fmac_f32 v54, v58, v50
          v_pk_mul_f32 v[34:35], v[34:35], v[56:57] op_sel_hi:[1,0]
          v_fmac_f32 v54, v60, v52
          v_pk_fma_f32 v[32:33], v[36:37], v[58:59], v[32:33] op_sel_hi:[1,0,1]
          v_pk_fma_f32 v[34:35], v[38:39], v[58:59], v[34:35] op_sel_hi:[1,0,1]
          v_add_f32_dpp v54, v54, v54 row_ror:8 {DPPF}
          v_pk_fma_f32 v[32:33], v[40:41], v[60:61], v[32:33] op_sel_hi:[1,0,1]
          v_mov_b32 v55, v54
          v_pk_fma_f32 v[34:35], v[42:43], v[60:61], v[34:35] op_sel_hi:[1,0,1]
          v_permlane32_swap_b32 v54, v55
          v_add_f32 v54, v54, v55
          v_permlane32_swap_b32 v32, v34
          v_mov_b32 v55, v54
          v_permlane32_swap_b32 v33, v35
          v_pk_add_f32 v[32:33], v[32:33], v[34:35]
          v_permlane16_swap_b32 v54, v55
          v_add_f32 v54, v54, v55
          v_permlane16_swap_b32 v32, v33
          v_add_f32 v32, v32, v33
          v_rcp_f32 v54, v54
          v_add_f32_dpp v32, v32, v32 row_ror:8 {DPPF}
          v_mul_f32_dpp v32, v54, v32 quad_perm:[1,1,3,3] {DPPF}''')
    rnd('v32', 'v32')
    a('ds_write_b16_d16_hi v5, v32')
    for tau in range(4): a(f'ds_read_b128 v[{64+4*tau}:{67+4*tau}], v{8+tau}')
    mma(4, 12, 64, 16)
    a(f'''s_mov_b32 s62, 0
          s_mov_b64 exec, 0xffff
          s_cmp_eq_u32 s43, 0
          ds_write_b128 v6, v[12:15]
          s_mov_b64 exec, 1
          ds_inc_u32 v0, v98 offset:{L_C+16}''')
    if hyb: a('s_cbranch_scc0 L_wo_nb\ns_barrier\nL_wo_nb:')
    a(f'''s_mov_b64 exec, -1
          s_cmp_eq_u32 s49, 0
          s_cbranch_scc0 L_fin
          L_wo_s:
          ds_read_b32 v24, v100 offset:{L_C+16}''')
    sumrows(8, L_P, 4, 'v_cmp_ne_u32 vcc, 8, v24')
    rare.append(lambda: a(f'L_wo_sr:\ns_add_u32 s62, s62, {STEP}\ns_cbranch_scc0 L_wo_s\ns_branch L_wo_sok'))
    a(f'''v_and_or_b32 v16, v16, v98, v99
          s_cbranch_vccnz L_wo_sr
          L_wo_sok:
          buffer_store_dword v16, v4, s[44:47], s54 offen sc1
          buffer_store_dword v16, v4, s[44:47], s55 offen sc1
          ds_write_b32 v100, v24 offset:{L_C+20}''')
    stamp(7)
    a('L_fin:')
    fin()
    for r in rare: r()
    rare.clear()

    role[0] = 'F'
    a(f'''L_F:
          s_add_u32 s33, s33, 8
          v_and_b32 v0, 63, v0
          s_cmp_ge_u32 s31, 7
          s_cbranch_scc1 L_F7
          s_lshl_b32 s48, s31, 19
          s_lshl_b32 s49, s32, 10
          s_add_u32 s48, s48, s49
          s_lshl_b32 s49, s33, 7
          s_add_u32 s48, s48, s49
          v_lshrrev_b32 v3, 4, v0
          v_lshlrev_b32 v2, 16, v3
          v_and_b32 v4, 8, v0
          v_lshl_add_u32 v2, v4, 10, v2
          v_and_b32 v5, 7, v0
          v_lshl_add_u32 v2, v5, 4, v2
          v_lshl_add_u32 v5, v5, 4, v4
          v_lshl_add_u32 v6, v3, 1, v5
          s_lshl_b32 s50, s31, 7
          v_add_u32 v101, s50, v6
          v_lshlrev_b32 v7, 4, v0
          s_mov_b32 s38, {448*8192}
          s_mov_b32 s39, 0x20000
          s_mov_b32 s42, 896
          s_mov_b32 s43, 0x20000
          s_waitcnt lgkmcnt(0)
          s_mov_b32 s36, s10
          s_mov_b32 s37, s11
          s_mov_b32 s40, s4
          s_mov_b32 s41, s5
          buffer_load_dwordx4 v[96:99], v7, s[40:43], 0 offen
          buffer_load_ushort v100, v101, s[40:43], 0 offen''')
    for u in range(2):
        for t in range(4):
            a(f'buffer_load_dwordx4 v[{32+16*u+4*t}:{35+16*u+4*t}], v2, s[36:39], s48 offen{nt}')
            if not (u == 1 and t == 3): a(f's_add_u32 s48, s48, {2*8192 if t < 3 else 26*8192}')
        if u == 0: a('s_barrier')
    dzero(); stamp(1)
    a('s_load_dword s30, s[28:29], 0')
    ws_srd(); perm_sel()
    a(f'''s_lshl_b32 s52, s31, 8
          s_add_u32 s56, s52, 0x2400
          s_mov_b32 s59, {hex(f2u(448.0))}
          s_mov_b32 s58, 0x3f803f80
          v_mov_b32 v12, 0
          v_lshlrev_b32 v4, 2, v0
          ds_write_b32 v4, v12 offset:{FZ}
          v_add_u32 v6, s56, v6
          v_lshl_add_u32 v5, v5, 1, s52''')
    maskaddr(8, 4, 's56', FZ, 12)
    a('''s_waitcnt vmcnt(8)
         v_dot2_f32_bf16 v102, v96, s58, 0
         v_dot2_f32_bf16 v103, v96, v96, 0''')
    for i in range(1, 4):
        a(f'v_dot2_f32_bf16 v102, v{96+i}, s58, v102')
        a(f'v_dot2_f32_bf16 v103, v{96+i}, v{96+i}, v103')
    for sh in (8, 4, 2, 1):
        a(f'v_add_f32_dpp v102, v102, v102 row_ror:{sh} {DPPF}')
        a(f'v_add_f32_dpp v103, v103, v103 row_ror:{sh} {DPPF}')
    allred_rows('v_add_f32', 102, 104); allred_rows('v_add_f32', 103, 104)
    a('v_lshlrev_b32 v96, 16, v100')
    ln_apply(102, 103, (100, 96), 104)
    a(f'''s_lshl_b32 s52, s32, 11
          s_lshl_b32 s53, s33, 8
          s_add_u32 s52, s52, s53
          s_add_u32 s53, s52, {X2F}
          s_add_u32 s52, s52, {X2}
          s_waitcnt lgkmcnt(0)''')
    tags()
    a('s_waitcnt vmcnt(4)')
    fix4(32, 104); perms64(32, 64)
    a(f'''s_mov_b32 s49, {X1}
          s_add_u32 s50, s31, 0
          s_lshr_b32 s63, s50, 3
          s_lshl_b32 s63, s63, 13
          s_lshl_b32 s50, s50, 10
          s_add_u32 s50, s50, s63
          s_add_u32 s50, s50, s49
          s_add_u32 s51, s31, 7
          s_lshr_b32 s63, s51, 3
          s_lshl_b32 s63, s63, 13
          s_lshl_b32 s51, s51, 10
          s_add_u32 s51, s51, s63
          s_add_u32 s51, s51, s49
          s_waitcnt vmcnt(0)''')
    fix4(48, 104); perms64(48, 80)
    stamp(2)
    poll4('L_q_x1', [f'buffer_load_dwordx4 v[{32+4*s}:{35+4*s}], v41, s[44:47], s{50+s} offen sc1' for s in range(2)], 32, 40)
    stamp(3)
    rscatter(36); rscatter(32)
    rnd('v36', 'v36'); rnd('v32', 'v32')
    a('v_add_f32 v36, 1.0, v36'); rnd('v36', 'v36')
    a('v_mul_f32 v36, v100, v36'); rnd('v36', 'v36')
    a('v_add_f32 v36, v36, v32'); rnd('v36', 'v36')
    a('ds_write_b16_d16_hi v6, v36')
    for u in range(2):
        for tau in range(4): a(f'ds_read_b128 v[{32+16*u+4*tau}:{35+16*u+4*tau}], v{8+tau} offset:{64*u}')
    mma(8, 12, 32, 64)
    a(f'''v_mov_b32 v24, 1
          s_mov_b32 s62, 0
          s_mov_b64 exec, 0xffff
          s_cmp_eq_u32 s31, 0
          ds_write_b128 v5, v[12:15] offset:{FP}
          s_mov_b64 exec, 1
          ds_add_u32 v0, v24 offset:{FC+4}
          s_mov_b64 exec, -1
          s_cbranch_scc0 L_q_done
          v_mov_b32 v25, 0
          L_q_s:
          ds_read_b32 v24, v25 offset:{FC+4}''')
    sumrows(7, FP, 4, 'v_cmp_ne_u32 vcc, 7, v24')
    rnd('v16', 'v16')
    rare.append(lambda: a(f'L_q_sr:\ns_add_u32 s62, s62, {STEP}\ns_cbranch_scc0 L_q_s\ns_branch L_q_sok'))
    a('''v_or_b32 v16, s3, v16
         s_cbranch_vccnz L_q_sr
         L_q_sok:
         buffer_store_dword v16, v4, s[44:47], s53 offen
         buffer_store_dword v16, v4, s[44:47], s52 offen sc1''')
    a(f'ds_write_b32 v25, v24 offset:{FC+16}')
    if rewarm:
        a(f'''s_cmp_eq_u32 s33, 7
              s_cbranch_scc0 L_q_done
              s_getpc_b64 s[4:5]
              L_pc2:
              s_sub_u32 s4, s4, L_pc2-L_pc
              s_subb_u32 s5, s5, 0
              v_lshlrev_b32 v102, 7, v0
              v_add_u32 v103, 0x2000, v102
              v_min_u32 v103, L_code_end-L_pc-4, v103
              global_load_dword v127, v102, s[4:5] sc1
              global_load_dword v127, v103, s[4:5] sc1''')
    a('L_q_done:')
    stamp(4)
    def ffn_id(skip):
        a(f'''s_cmp_lt_u32 s32, 4
              s_cselect_b32 s50, 6, 8
              s_cselect_b32 s51, 0, 8
              s_cmp_lt_u32 s33, s50
              s_cbranch_scc0 {skip}''')
    ffn_id('L_fin2')
    a(f'''s_mul_i32 s50, s50, s32
          s_add_u32 s50, s50, s33
          s_sub_u32 s50, s50, s51
          s_mov_b32 s36, s16
          s_mov_b32 s37, s17
          s_mov_b32 s38, {448*3584}
          s_mov_b32 s40, s18
          s_mov_b32 s41, s19
          s_mov_b32 s42, {1792*896}
          s_mul_i32 s52, s31, {64*3584}
          s_lshl_b32 s53, s50, 6
          s_add_u32 s52, s52, s53
          s_mul_i32 s54, s50, {32*896}
          s_lshl_b32 s55, s31, 7
          s_add_u32 s54, s54, s55
          s_add_u32 s55, s54, {4*896}
          v_and_b32 v4, 15, v0
          v_mul_u32_u24 v2, {8*3584}, v3
          v_lshl_add_u32 v2, v4, 2, v2''')
    voff4(1, 8 * 896, 896, 102)
    a('''s_add_u32 s8, s31, 14
          s_lshr_b32 s63, s8, 3
          s_lshl_b32 s63, s63, 13
          s_lshl_b32 s8, s8, 10
          s_add_u32 s8, s8, s63
          s_add_u32 s8, s8, s49
          s_add_u32 s9, s31, 21
          s_lshr_b32 s63, s9, 3
          s_lshl_b32 s63, s63, 13
          s_lshl_b32 s9, s9, 10
          s_add_u32 s9, s9, s63
          s_add_u32 s9, s9, s49
          s_add_u32 s10, s31, 28
          s_lshr_b32 s63, s10, 3
          s_lshl_b32 s63, s63, 13
          s_lshl_b32 s10, s10, 10
          s_add_u32 s10, s10, s63
          s_add_u32 s10, s10, s49
          s_add_u32 s11, s31, 35
          s_lshr_b32 s63, s11, 3
          s_lshl_b32 s63, s63, 13
          s_lshl_b32 s11, s11, 10
          s_add_u32 s11, s11, s63
          s_add_u32 s11, s11, s49''')
    ldswait('L_f_q', FC + 16, 1, 1, 102)
    poll4('L_f_mx', [f'buffer_load_dwordx4 v[{104+4*s}:{107+4*s}], v121, s[44:47], s{8+s} offen sc1' for s in range(4)], 104, 120, 0)
    if hintk: ldswait('L_f_g', FC + 8, 1, 1, 102)
    stamp(5)
    for i in range(16):
        a(f'buffer_load_dword v{32+i}, v2, s[36:39], s52 offen offset:{3584*(i&1)}{w1nt}')
        if i & 1: a(f's_add_u32 s52, s52, {2*3584 if i != 7 else 26*3584}')
    for u in range(4):
        a(f'buffer_load_dwordx4 v[{48+4*u}:{51+4*u}], v1, s[40:43], s{54+(u>>1)} offen offset:{(u&1)*2*896}{nt}')
    a(f'''s_lshr_b32 s12, s50, 2
          s_lshl_b32 s12, s12, 13
          s_lshl_b32 s13, s50, 11
          s_add_u32 s12, s12, s13
          s_lshl_b32 s13, s31, 8
          s_add_u32 s12, s12, s13
          v_lshl_add_u32 v81, v0, 2, s13
          s_add_u32 s12, s12, {X5}
          s_add_u32 s13, s12, {SIDE}
          v_lshlrev_b32 v2, 11, v3
          v_lshl_add_u32 v2, v4, 4, v2
          s_add_u32 s57, s56, 128''')
    for s in range(4): rscatter(104 + 4 * s)
    rnd('v97', 'v104'); rnd('v98', 'v108'); rnd('v99', 'v112'); rnd('v100', 'v116')
    a(f'ds_write_b32 v81, v100 offset:{FG}')
    maskaddr(8, 2, 's56', FZ, 102)
    maskaddr(10, 4, 's57', FZ, 102)
    stamp(6)
    a(f'''s_waitcnt vmcnt(0)
          v_mov_b32 v102, 0
          v_mov_b32 v103, 1
          s_mov_b64 exec, 1
          ds_add_u32 v102, v103 offset:{FC}
          s_mov_b64 exec, -1''')
    for aa in range(2):
        for tau in range(2):
            for rho in range(4):
                a(f'v_perm_b32 v{16+8*aa+4*tau+rho}, v{32+8*aa+2*rho+1}, v{32+8*aa+2*rho}, s{60+tau}')
    fix4(48, 104); perms64(48, 64)
    a('v_add_f32 v99, 1.0, v99')
    rnd('v99', 'v99')
    lanetag(5, 0)
    getside(102)
    a(f'''s_lshl_b32 s40, s31, 8
          s_add_u32 s40, s40, s48
          s_add_u32 s40, s40, {X4}
          s_add_u32 s41, s40, {1 << 14}
          s_add_u32 s42, s40, {2 << 14}
          s_add_u32 s43, s40, {3 << 14}
          s_lshl_b32 s52, s31, 3
          s_add_u32 s52, s52, {FST}
          v_lshrrev_b32 v1, 5, v0
          v_lshl_add_u32 v3, v1, 2, s52
          s_lshl_b32 s52, s31, 7
          s_add_u32 s52, s52, {FP2}
          v_lshl_add_u32 v4, v0, 3, s52
          v_and_b32 v14, 31, v0
          v_lshl_add_u32 v15, v14, 1, s57
          v_lshlrev_b32 v14, 2, v14
          v_add_u32 v14, {FP2}, v14
          v_mov_b32 v80, {FST}
          s_mov_b32 s57, 0xffffff00''')
    x4l = [f'buffer_load_dwordx4 v[{32+4*s}:{35+4*s}], v2, s[44:47], s{40+s} offen sc1' for s in range(4)]
    setprio(2)
    stamp(7)
    for l in x4l: a(l)
    rare.append(gcheck('L_x4', x4l, 32, 4, 5, None, 0))
    stamp(8)
    def sum4x4(r):
        for s in range(4): a(f'v_xor_b32 v{r+4*s}, v{r+4*s}, v5')
        pk('add', r + 2, r + 2, r + 6); pk('add', r + 10, r + 10, r + 14)
        pk('add', r, r, r + 4); pk('add', r + 8, r + 8, r + 12)
        pk('add', 34, r + 2, r + 10); pk('add', 32, r, r + 8)
    sum4x4(32)
    rscatter(32)
    rnd('v32', 'v32'); a('v_mul_f32 v32, v97, v32'); rnd('v32', 'v32'); a('v_add_f32 v32, v96, v32'); rnd('v33', 'v32')
    a(f'''v_mul_f32 v34, v33, v33
          v_mov_b32 v96, v33
          ds_write_b32 v81, v33 offset:{FX}
          v_permlane32_swap_b32 v33, v34
          v_add_f32 v33, v33, v34
          v_add_f32_dpp v33, v33, v33 row_ror:8 {DPPF}
          v_add_f32_dpp v33, v33, v33 row_ror:4 {DPPF}
          v_add_f32_dpp v33, v33, v33 row_ror:2 {DPPF}
          v_add_f32_dpp v33, v33, v33 row_ror:1 {DPPF}
          v_add_f32_dpp v33, v33, v33 row_bcast:15 row_mask:0xa bank_mask:0xf
          s_mov_b32 exec_lo, 0x10000
          s_mov_b32 exec_hi, 0x10000
          ds_write_b32 v3, v33
          s_mov_b64 exec, -1
          s_waitcnt lgkmcnt(0)
          s_barrier
          ds_read_b128 v[36:39], v80
          ds_read_b128 v[40:43], v80 offset:16
          ds_read_b128 v[44:47], v80 offset:32
          ds_read_b64 v[48:49], v80 offset:48
          s_waitcnt lgkmcnt(0)''')
    pk('add', 36, 36, 38); pk('add', 40, 40, 42); pk('add', 44, 44, 46)
    pk('add', 36, 36, 40); pk('add', 44, 44, 48); pk('add', 36, 36, 44)
    ln_apply(36, 37, (32, 96), 40)
    a('v_mul_f32 v32, v32, v99'); rnd('v32', 'v32')
    a('v_add_f32 v32, v32, v98'); rnd('v32', 'v32')
    a('ds_write_b16_d16_hi v6, v32')
    for aa in range(2):
        for tau in range(2): a(f'ds_read_b128 v[{36+8*aa+4*tau}:{39+8*aa+4*tau}], v{8+tau} offset:{64*aa}')
    mma(4, 52, 36, 16)
    stamp(11)
    a(f'''s_mov_b64 exec, 0xffff
          ds_write_b64 v4, v[52:53]
          s_mov_b64 exec, -1
          v_mov_b32 v43, 0
          s_waitcnt lgkmcnt(0)
          s_barrier
          ds_read2_b32 v[36:37], v14 offset0:0 offset1:32
          ds_read2_b32 v[38:39], v14 offset0:64 offset1:96
          ds_read2_b32 v[40:41], v14 offset0:128 offset1:160
          ds_read_b32 v42, v14 offset:768
          s_waitcnt lgkmcnt(0)''')
    pk('add', 36, 36, 38); pk('add', 40, 40, 42); pk('add', 36, 36, 40)
    a('v_add_f32 v36, v36, v37')
    rnd('v36', 'v36')
    silu(36, 36, 37)
    a('ds_write_b16_d16_hi v15, v36')
    for tau in range(4): a(f'ds_read_b128 v[{36+4*tau}:{39+4*tau}], v{10+tau}')
    mma(4, 52, 36, 64)
    a('''s_mov_b64 exec, 0xffff
         v_and_or_b32 v52, v52, s57, v5
         buffer_store_dwordx4 v[52:55], v7, s[44:47], s12 offen sc1
         buffer_store_dwordx4 v[52:55], v7, s[44:47], s13 offen sc1''')
    stamp(9)
    a('s_barrier\nL_fin2:')
    fin()
    for r in rare: r()
    rare.clear()
    a(f'''L_F7:
          v_mov_b32 v2, 0
          s_cmp_eq_u32 s31, 7
          s_cbranch_scc0 L_F8
          v_lshlrev_b32 v3, 2, v0
          ds_write_b32 v3, v2 offset:{FC & ~255}
          s_waitcnt lgkmcnt(0)
          s_load_dword s30, s[28:29], 0''')
    a('s_barrier')
    dzero()
    ws_srd()
    ffn_id('L_fin3')
    ldswait('L_7_q', FC + 16, 1, 4, 102)
    tags()
    if hintk:
        a(f'''s_mul_i32 s49, s32, {24*128}
              s_add_u32 s49, s49, {HINT}
              v_lshlrev_b32 v102, 7, v0
              s_mov_b64 exec, 0xffffff
              s_mov_b32 s62, 0
              L_f_h:
              s_sleep 2
              buffer_load_dword v103, v102, s[44:47], s49 offen sc1
              s_add_u32 s62, s62, {1 << (32 - fastbits)}
              s_waitcnt vmcnt(0)
              s_cbranch_scc1 L_f_hok
              v_cmp_eq_u32 vcc, s3, v103
              s_bcnt1_i32_b64 s53, vcc
              s_cmp_lt_u32 s53, {hintk}
              s_cbranch_scc1 L_f_h
              L_f_hok:
              s_mov_b64 exec, -1
              v_mov_b32 v103, 1
              ds_write_b32 v2, v103 offset:{FC+8}''')
    a(f'''s_mul_i32 s50, s50, s32
          s_add_u32 s50, s50, s33
          s_sub_u32 s50, s50, s51
          s_bitcmp1_b32 s50, 0
          s_cbranch_scc1 L_fin3
          v_lshrrev_b32 v4, 4, v0
          v_lshlrev_b32 v81, 14, v4
          v_bfe_u32 v6, v0, 2, 2
          v_lshl_add_u32 v81, v6, 11, v81
          v_and_b32 v6, 3, v0
          v_lshl_add_u32 v81, v6, 4, v81
          s_bfe_u32 s52, s50, 0x20001
          s_lshl_b32 s52, s52, 2
          s_lshl_b32 s20, 0x000f000f, s52
          s_mov_b32 s21, s20
          s_lshr_b32 s52, s50, 3
          s_lshl_b32 s53, s52, 8
          v_add_u32 v3, s53, v3
          s_lshl_b32 s52, s52, 7
          v_and_b32 v6, 7, v0
          v_lshlrev_b32 v6, 4, v6
          v_and_b32 v7, 8, v0
          v_lshl_add_u32 v7, v4, 1, v7
          v_add3_u32 v101, v6, v7, s52
          s_mov_b32 s36, s24
          s_mov_b32 s37, s25
          s_mov_b32 s38, 896
          s_mov_b32 s39, 0x20000''')
    lanetag(5, 0)
    x5l = [f'buffer_load_dwordx4 v[{36+4*s}:{39+4*s}], v81, s[44:47], s{40+s} offen sc1' for s in range(4)]
    a('v_mov_b32 v48, v5\nv_mov_b32 v49, 0\nv_mov_b32 v50, 0\nv_mov_b32 v51, 0')
    ldswait('L_7_g', FC, 3, 4, 102)
    getside(102)
    a(f'''s_lshl_b32 s40, s50, 5
          s_add_u32 s40, s40, s48
          s_add_u32 s40, s40, {X5}
          s_add_u32 s41, s40, {4 << 14}
          s_add_u32 s42, s40, {8 << 14}
          s_add_u32 s43, s40, {12 << 14}''')
    a('\n'.join(x5l[:3]) + f'''
          s_mov_b32 exec_hi, 0
          {x5l[3]}
          buffer_load_ushort v125, v101, s[36:39], 0 offen
          s_mov_b32 exec_hi, -1
          s_waitcnt vmcnt(0)''')
    setprio(3)
    a(f'''s_barrier
          s_barrier
          ds_read_b32 v96, v3 offset:{FX}
          ds_read_b32 v100, v3 offset:{FG}
          s_barrier
          s_mov_b32 s62, 0
          s_branch L_x5_c
          L_x5:''')
    for i, l in enumerate(x5l): a(f's_wqm_b64 exec, s[{4+2*i}:{5+2*i}]\n{l}')
    a(f'''s_mov_b64 exec, -1
          s_add_u32 s62, s62, {STEP}
          s_cbranch_scc1 L_x5_ok
          s_waitcnt vmcnt({cap5})
          L_x5_c:''')
    for i in range(4): a(f'v_cmp_ne_u32_sdwa s[{4+2*i}:{5+2*i}], v{39+4*i if False else 36+4*i}, v5 src0_sel:BYTE_0 src1_sel:DWORD')
    a('''s_or_b64 vcc, s[4:5], s[6:7]
         s_or_b64 vcc, vcc, s[8:9]
         s_or_b64 vcc, vcc, s[10:11]
         s_cbranch_scc1 L_x5
         L_x5_ok:
         s_waitcnt vmcnt(0) lgkmcnt(0)''')
    stamp(12)
    sum4x4(36)
    rscatter(32)
    a(f'''v_add_f32_dpp v32, v32, v32 row_ror:8 {DPPF}
          v_add_f32_dpp v32, v32, v32 row_ror:4 {DPPF}''')
    rnd('v32', 'v32'); a('v_mul_f32 v32, v100, v32'); rnd('v32', 'v32'); a('v_add_f32 v32, v96, v32\ns_mov_b64 exec, s[20:21]'); rnd('v32', 'v32')
    a('''buffer_store_short_d16_hi v32, v101, s[36:39], 0 offen
         s_cmp_eq_u32 s50, 0
         s_cbranch_scc0 L_fin4
         s_mov_b64 exec, 1
         v_mov_b32 v3, s30
         buffer_store_dword v3, v2, s[44:47], 0 offen sc1
         L_fin4:''')
    stamp(14)
    if lite: a('s_branch L_dump')
    a('L_fin3:')
    fin()
    a(f'''L_F8:
          s_cmp_eq_u32 s31, 8
          s_cbranch_scc0 L_end
          s_lshl_b32 s48, s2, 7
          s_add_u32 s48, s48, {PRB}
          s_add_u32 s49, s48, {SIDE}
          s_mov_b32 s52, -1
          s_mov_b32 s53, -1
          s_mov_b32 s54, 0
          s_waitcnt lgkmcnt(0)
          s_barrier''')
    dzero()
    if fside is not None:
        a(f'''s_getreg_b32 s55, hwreg(HW_REG_XCC_ID)
              s_bfe_u32 s55, s55, 0x10002
              s_xor_b32 s55, s55, {fside}
              s_lshl_b32 s55, s55, 13
              v_mov_b32 v3, s55
              ds_write_b32 v2, v3 offset:{FC+12}''')
    else:
        a('s_load_dword s10, s[28:29], s48 glc\ns_load_dword s11, s[28:29], s49 glc\ns_waitcnt lgkmcnt(0)\nL_8_l:')
        for sd in range(2):
            a(f'''s_memtime s[4:5]
                  s_waitcnt lgkmcnt(0)
                  s_load_dword s10, s[28:29], s{48+sd} glc
                  s_waitcnt lgkmcnt(0)
                  s_memtime s[6:7]
                  s_lshr_b32 s8, s33, {sd}
                  s_add_u32 s8, s8, s54
                  s_bitcmp1_b32 s8, 0
                  s_waitcnt lgkmcnt(0)
                  s_cbranch_scc0 L_8_n{sd}
                  s_sleep 3
                  L_8_n{sd}:
                  s_sub_u32 s4, s6, s4
                  s_min_u32 s{52+sd}, s{52+sd}, s4''')
        a(f'''s_cmp_lt_u32 s53, s52
              s_cselect_b32 s55, {SIDE}, 0
              v_mov_b32 v3, s55
              ds_write_b32 v2, v3 offset:{FC+12}''')
        if diag:
            for k in (1, 2, 3, 4): a(f's_cmp_eq_u32 s54, {k-1}\ns_cbranch_scc0 L_8_d{k}\ns_memrealtime s[{64+2*k}:{65+2*k}]\ns_add_u32 s{64+2*(k+4)}, s55, 1\nL_8_d{k}:')
        a(f'''s_add_u32 s54, s54, 1
              s_cmp_lt_u32 s54, {nprb}
              s_cbranch_scc1 L_8_l''')
    if diag:
        a('s_add_u32 s90, s55, 1\ns_getreg_b32 s88, hwreg(HW_REG_XCC_ID)\ns_mov_b32 s86, s52\ns_mov_b32 s84, s53')
        fin()
    else: a('s_endpgm')
    if probe:
        a('L_probe:\ns_cmp_eq_u32 s68, 0\ns_cbranch_scc1 L_end')
        if len(probe) > 2 and probe[2] is not None: a(f's_cmp_eq_u32 s32, {probe[2]}\ns_cbranch_scc0 L_end')
        if len(probe) > 3 and probe[3] is not None: a(f's_cmp_eq_u32 s31, {probe[3]}\ns_cbranch_scc0 L_end')
        a('''s_setprio 0
             s_sleep 127
             s_sleep 127
             s_sleep 127
             s_sleep 127
             s_sleep 127
             L_probe_l:
             s_memrealtime s[66:67]
             s_waitcnt lgkmcnt(0)
             s_sub_u32 s66, s66, s64
             s_cmp_lt_u32 s66, 3000
             s_cbranch_scc1 L_probe_l
             s_endpgm''')
    if diag or lite:
        a(f'''L_dump:
              s_mov_b64 exec, -1
              s_waitcnt vmcnt(0) lgkmcnt(0)
              s_memrealtime s[94:95]
              s_lshl_b32 s48, s2, 4
              s_add_u32 s48, s48, s31
              s_lshl_b32 s48, s48, 6
              s_add_u32 s48, s48, {STAMP_OFF}
              v_mov_b32 v1, s48
              s_waitcnt lgkmcnt(0)''')
        for i in range(16): a(f'v_mov_b32 v{8+i}, s{64+2*i}')
        a('s_mov_b64 exec, 1')
        for i in range(4): a(f'global_store_dwordx4 v1, v[{8+4*i}:{11+4*i}], s[28:29] offset:{16*i}')
    a('L_end:\ns_endpgm\nL_code_end:')
    head = open('adaLN_cond__sliding_block_cached__dense_activation_silu__decode.s.ref').read().split('; Override launch')[0]
    return head + f'''; @launch grid=(256,1,1) block=(1024,1,1) lds={L_END}
.amdgcn_target "amdgcn-amd-amdhsa--gfx950"
.text
.globl {KN}
.p2align 8
.type {KN},@function
''' + a.text() + f'''.section .rodata,"a"
.p2align 6
.amdhsa_kernel {KN}
  .amdhsa_next_free_vgpr 128
  .amdhsa_next_free_sgpr 96
  .amdhsa_accum_offset 128
  .amdhsa_group_segment_fixed_size 0
  .amdhsa_kernarg_size 104
  .amdhsa_user_sgpr_count 2
  .amdhsa_user_sgpr_kernarg_segment_ptr 1
  .amdhsa_system_sgpr_workgroup_id_x 1
.end_amdhsa_kernel
'''

if __name__ == '__main__':
    out = sys.argv[1]
    kw = eval('dict(' + (sys.argv[2] if len(sys.argv) > 2 else '') + ')')
    open(out, 'w').write(gen(**kw))
```

```python
import re

TRANS = ('v_exp_f32', 'v_log_f32', 'v_rcp_f32', 'v_rsq_f32', 'v_sqrt_f32', 'v_sin_f32', 'v_cos_f32')

def regs_of(op):
    op = op.strip()
    op = re.sub(r'^-|^abs\(|\)$|^\|', '', op).strip('|')
    m = re.fullmatch(r'([vsa])(\d+)', op)
    if m: return {(m.group(1), int(m.group(2)))}
    m = re.fullmatch(r'([vsa])\[(\d+):(\d+)\]', op)
    if m: return {(m.group(1), i) for i in range(int(m.group(2)), int(m.group(3)) + 1)}
    if op in ('vcc', 'vcc_lo', 'vcc_hi'): return {('x', 'vcc')}
    if op in ('exec', 'exec_lo', 'exec_hi'): return {('x', 'exec')}
    if op == 'm0': return {('x', 'm0')}
    return set()

class Ins:
    def __init__(self, text):
        self.text = text
        t = text.split(';')[0].strip()
        self.label = t.endswith(':')
        self.directive = t.startswith('.')
        self.mn = t.split()[0] if t else ''
        rest = t[len(self.mn):].strip()
        ops = [o.strip() for o in rest.split(',')] if rest else []
        self.mods = ''
        if ops:
            joined = rest
            mm = re.search(r'\s(quad_perm|row_|wave_|op_sel|offen|idxen|offset|sc0|sc1|nt\b|lds\b|glc|bitop3|neg_|clamp|mul:|div:|bound_ctrl|bank_mask|dst_sel|src0_sel|src1_sel|cbsz|abid|blgp)', ' ' + joined)
            if mm:
                self.mods = joined[mm.start():]
                joined = joined[:mm.start()]
            ops = [o.strip() for o in joined.split(',') if o.strip()]
        self.ops = ops
        mn = self.mn
        self.valu = mn.startswith('v_') and not mn.startswith('v_mfma')
        self.mfma = mn.startswith('v_mfma')
        self.ds = mn.startswith('ds_')
        self.vmem = mn.startswith(('buffer_', 'global_'))
        self.salu = mn.startswith('s_')
        self.dpp = self.valu and ('_dpp' in mn or 'quad_perm' in self.mods or 'row_' in self.mods)
        self.trans = any(mn.startswith(x) for x in TRANS)
        self.perml = mn.startswith('v_permlane')
        self.rdlane = mn.startswith(('v_readlane', 'v_readfirstlane'))
        self.dot = mn.startswith('v_dot')
        R = [regs_of(o) for o in ops]
        d = set(); u = set()
        if self.mfma:
            d = R[0]; u = R[1] | R[2] | R[3]; self.A = R[1] | R[2]; self.C = R[3]
        elif self.valu:
            if self.perml or mn.startswith('v_swap'):
                d = R[0] | R[1]; u = R[0] | R[1]
            elif mn.startswith(('v_add_co', 'v_sub_co', 'v_addc_co')):
                d = R[0] | R[1]; u = set().union(*R[2:])
            elif mn == 'v_nop':
                pass
            else:
                d = R[0]; u = set().union(*R[1:]) if len(R) > 1 else set()
                if mn.startswith(('v_fmac', 'v_dot2c', 'v_writelane')) or self.dpp: u |= R[0]
                if mn.startswith('v_cndmask') and len(ops) == 3: u |= {('x', 'vcc')}
        elif self.ds:
            if mn.startswith(('ds_read', 'ds_bpermute', 'ds_permute', 'ds_swizzle')) or '_rtn' in mn:
                d = R[0]; u = set().union(*R[1:])
            else: u = set().union(*R)
        elif self.vmem:
            isld = '_load' in mn
            if isld and (' lds' in (' ' + self.mods) or '_lds_' in mn): u = set().union(*R) | {('x', 'm0')}; self.ldsdma = True
            elif isld: d = R[0]; u = set().union(*R[1:])
            elif R: u = set().union(*R)
        elif self.salu:
            if mn.startswith(('s_cmp', 's_cbranch', 's_branch', 's_waitcnt', 's_nop', 's_barrier', 's_endpgm', 's_sleep', 's_setprio', 's_bitcmp')):
                u = set().union(*R) if R else set()
            elif R:
                d = R[0]; u = set().union(*R[1:]) if len(R) > 1 else set()
                if 'saveexec' in mn: d = d | {('x', 'exec')}; u |= {('x', 'exec')}
        self.d = d; self.u = u
        self.widestore = self.vmem and '_store' in mn and ('x4' in mn or 'x3' in mn)
        if self.widestore:
            self.sdata = R[0] if mn.startswith('buffer_') else R[1]
    def states(self):
        if self.label or self.directive or not self.mn: return 0
        if self.mn == 's_nop': return int(self.ops[0]) + 1
        return 1

def isv(s): return {r for r in s if r[0] in 'va'}
def iss(s): return {r for r in s if r[0] == 's' or r == ('x', 'vcc')}

def need(p, c):
    n = 0
    if p.valu:
        wv = isv(p.d); ws = iss(p.d)
        if wv:
            if c.dpp and wv & c.u: n = max(n, 2)
            if c.perml and wv & c.u: n = max(n, 2)
            if c.mfma and wv & c.u: n = max(n, 2)
            if c.rdlane and wv & c.u: n = max(n, 1)
            if p.trans and c.valu and wv & c.u: n = max(n, 1)
            if p.dot and (c.valu or c.mfma or c.ds or c.vmem) and wv & (c.u | c.d):
                if not (c.mn == p.mn and not (wv & (regs_of(c.ops[1]) | regs_of(c.ops[2])))): n = max(n, 3)
        if ws:
            if c.valu and ws & c.u: n = max(n, 4 if c.mn.startswith(('v_readlane', 'v_writelane')) else 2)
            if c.vmem and ws & c.u: n = max(n, 5)
            if c.salu and ws & c.u: n = max(n, 1)
        if ('x', 'exec') in p.d: n = max(n, 5)
    if p.mfma:
        passes = 8 if '32x32' in p.mn else 4
        big = {4: 8, 8: 12}[passes]
        if c.mfma:
            if p.d & c.A: n = max(n, big)
            if p.d & c.C and p.d != c.C: n = max(n, {4: 6, 8: 10}[passes])
            if p.d & c.d and p.d != c.C and p.d != c.d: n = max(n, big)
        elif (c.valu or c.ds or c.vmem) and p.d & (c.u | c.d): n = max(n, big)
        if c.valu and p.C & c.d: n = max(n, {4: 3, 8: 7}[passes])
    if p.salu and ('x', 'm0') in p.d and getattr(c, 'ldsdma', False): n = max(n, 1)
    if p.widestore and (c.valu or c.mfma or c.ds or c.vmem) and p.sdata & c.d: n = max(n, 2)
    return n

class Asm:
    def __init__(self):
        self.L = []; self.nops = 0; self.src = {}; self.lab = {}; self.fill = None
    def _req(self, ins, pos, dist, depth=0):
        req = 0
        k = pos
        first = True
        while k >= 0 and dist < 20:
            p = self.L[k]
            if p.mn in ('s_endpgm', 's_branch') and not (first and depth): break
            first = False
            if p.label and depth < 4:
                for q in self.src.get(p.text.split(':')[0].strip(), []):
                    if q < k: req = max(req, self._req(ins, q, dist, depth + 1))
            if p.states():
                req = max(req, need(p, ins) - dist)
                dist += p.states()
            k -= 1
        return req
    def __call__(self, text):
        for line in text.split('\n'):
            line = line.strip()
            if not line: continue
            ins = Ins(line)
            if ins.label:
                self.lab[line.split(':')[0].strip()] = len(self.L)
            if ins.states():
                req = self._req(ins, len(self.L) - 1, 0)
                if ins.mn.startswith(('s_cbranch', 's_branch')) and 'L_pad' not in ins.ops[0]:
                    tgt = ins.ops[0]
                    if tgt in self.lab:
                        d = 1
                        for c in self.L[self.lab[tgt]:self.lab[tgt] + 24]:
                            if c.states():
                                req = max(req, self._req(c, len(self.L) - 1, d))
                                d += c.states()
                if req > 0:
                    if self.fill is not None and req >= 4:
                        for _ in range(req): self.L.append(Ins(f'v_mov_b32 v{self.fill}, 0'))
                    else: self.L.append(Ins(f's_nop {req-1}'))
                    self.nops += req
                if ins.mn.startswith(('s_cbranch', 's_branch')) and 'L_pad' not in ins.ops[0]:
                    self.src.setdefault(ins.ops[0], []).append(len(self.L))
            self.L.append(ins)
    def text(self):
        return '\n'.join((i.text if (i.label or i.directive or i.text.startswith(';')) else '    ' + i.text) for i in self.L) + '\n'
```

```python
import sys, struct
sys.path.insert(0, 'work')
from asmlib import Asm

KN = 'adaLN_cond__sliding_block_cached__dense_activation_silu__decode_kernel'
X2, X2F, HINT, PRB, X1, X4, X5, X3, X3F, WSEND = 0x4000, 0x8000, 0xC000, 0x80000, 0x18000, 0x30000, 0x40000, 0xA0000, 0x100000, 0x160000
SIDE = 0x2000
STAMP_OFF = 0x180000
L_Q, L_M, L_C, L_L, L_Z, L_O, L_PRIV, L_P, L_END = 0x0, 0x800, 0x810, 0x840, 0x900, 0x1000, 0x5000, 0x5800, 0x6100
FM = 0x300
FZ, FC, FP, FP2, FST, FX, FG, FS, FK = 0x0, 0x240, 0x1000, 0x1800, 0x2000, 0x3000, 0x3800, 0x4000, 0x4800
WINOFF = (65536 - 4096) * 512
def f2u(x): return struct.unpack('<I', struct.pack('<f', x))[0]
LOG2E = 1.4426950408889634
DPPF = 'row_mask:0xf bank_mask:0xf'

def gen(W=4, WH=5, WK=None, WE=7, NE=6, NL=4, adapt=True, diag=False, lite=False, probe=None, sleep=8, nt=' nt', w1nt='', wont='',
        rewarm=True, gaten=8, hintk=16, hintpos=7, touchpos=2, spinbits=17, fastbits=6, prio=True, pprio=3, nprb=5,
        fside=None, nob=False, fpf=8, tbl=1, only=None, lk=0, LW=(5, 6, 7, 6), WR=None, pf3=True, wolate=False, fdelay=0, wopf=0, wolanes=32, fB3=0, fB3p=0, fB4=(12, 12), fM=True, tlb=True, mxe=False, fX3=0, fX4=0, fA=(0, 0), half=True):
    a = Asm()
    rare = []
    STEP = 1 << (32 - spinbits)
    role = ['all']
    def stamp(i):
        if (diag and (only is None or i == 0 or (role[0], i) in only)) or (lite and i in (0, 14)): a(f's_memrealtime s[{64+2*i}:{65+2*i}]')
        if probe and probe[0] == role[0] and probe[1] == i: a('s_memrealtime s[64:65]\ns_mov_b32 s68, 1')
    def xs(name):
        if diag and only and name in only: a('s_memrealtime s[84:85]')
        if diag and only and 'clk' in only and name in ('B3', 'mm2'):
            k = 1 if name == 'B3' else 3
            a(f's_memrealtime s[{64+2*k}:{65+2*k}]\ns_memtime s[{66+2*k}:{67+2*k}]')
            if name == 'B3': a('s_waitcnt lgkmcnt(0)')
    def fill(n, r):
        if fM and r == 9:
            for _ in range((n + 2) // 4): a('v_mfma_f32_16x16x32_bf16 v[116:119], v[16:19], v[16:19], 0')
        else:
            for _ in range(n): a(f'v_mov_b32 v{r}, 0')
    def fin(): a('s_branch L_dump' if diag else 's_branch L_probe' if probe else 's_endpgm')
    def setprio(n):
        if prio: a(f's_setprio {n}')
    def tags():
        a('''s_add_u32 s30, s30, 1
             s_and_b32 s34, s30, 0x7f
             s_xor_b32 s35, s34, 0x5a
             s_lshl_b32 s3, s35, 8
             s_or_b32 s3, s3, s34''')
    def ws_srd():
        a(f'''s_mov_b32 s44, s28
              s_mov_b32 s45, s29
              s_mov_b32 s46, {WSEND}
              s_mov_b32 s47, 0x20000''')
    def lanetag(d, bit):
        a(f'''v_bfe_u32 v{d}, v0, {bit}, 1
              v_mul_u32_u24 v{d}, 0x5a, v{d}
              v_xor_b32 v{d}, s34, v{d}''')
    def rowtag(m, t):
        lanetag(t, 2)
        a(f'''v_and_b32 v{m}, 3, v0
              v_cmp_eq_u32 vcc, 0, v{m}
              v_mov_b32 v{m}, 0xffffff00
              v_cndmask_b32 v{t}, 0, v{t}, vcc
              v_cndmask_b32 v{m}, -1, v{m}, vcc''')
    def spin(loop, done):
        a(f'''s_cbranch_vccz {done}
              s_add_u32 s62, s62, {STEP}
              s_cbranch_scc0 {loop}
              {done}:''')
    def ldswait(lbl, off, n, sl, z=100):
        if not n: return
        a(f'v_mov_b32 v{z}, 0\ns_mov_b32 s62, 0\n{lbl}:')
        if sl: a(f's_sleep {sl}')
        a(f'''ds_read_b32 v{z+1}, v{z} offset:{off}
              s_waitcnt lgkmcnt(0)
              v_cmp_gt_u32 vcc, {n}, v{z+1}''')
        spin(lbl, lbl + 'ok')
    def gather(lbl, loads, raw, masks, vt, spec='', switch=None, nfast=0, issued=False, warm=None):
        n = len(loads)
        a('s_mov_b32 s62, 0')
        if switch: a(f's_mov_b32 s63, {(1 << 32) // nfast}')
        if issued: a(f's_branch {lbl}_w')
        else:
            for i in range(n): a(f's_mov_b64 s[{masks+2*i}:{masks+2*i+1}], -1')
        a(f'{lbl}:')
        for i, l in enumerate(loads): a(f's_wqm_b64 exec, s[{masks+2*i}:{masks+2*i+1}]\n{l}')
        a(f'''s_mov_b64 exec, -1
              s_add_u32 s62, s62, {'s63' if switch else STEP}
              s_cbranch_scc1 {lbl}_r''')
        if warm: fill(*warm)
        a(f'{lbl}_w:\ns_waitcnt vmcnt(0)')
        for i in range(n): a(f'v_cmp_ne_u32_sdwa s[{masks+2*i}:{masks+2*i+1}], v{raw+4*i}, v{vt} src0_sel:BYTE_0 src1_sel:DWORD')
        a(spec)
        a(f's_or_b64 vcc, s[{masks}:{masks+1}], s[{masks+2}:{masks+3}]')
        for i in range(2, n): a(f's_or_b64 vcc, vcc, s[{masks+2*i}:{masks+2*i+1}]')
        a(f's_cbranch_scc1 {lbl}\n{lbl}_ok:')
        def r():
            a(f'{lbl}_r:')
            if switch:
                a(f's_cmp_eq_u32 s63, {STEP}\ns_cbranch_scc1 {lbl}_x\ns_mov_b32 s63, {STEP}\n{switch}\ns_branch {lbl}_w\n{lbl}_x:')
            a(f's_waitcnt vmcnt(0)\ns_mov_b64 vcc, 0\ns_branch {lbl}_ok')
        rare.append(r)
    def poll4(lbl, loads, raw, t, sl=0, issued=False):
        a(f'''v_mov_b32 v{t+2}, 0
              ds_read_b32 v{t+3}, v{t+2} offset:{FC+12}
              s_and_b32 s4, s34, 15
              s_and_b32 s5, s35, 15
              s_mov_b32 s62, 0
              s_waitcnt lgkmcnt(0)''')
        if issued: a(f's_branch {lbl}_w')
        a(f'{lbl}:\nv_add_u32 v{t+1}, v7, v{t+3}')
        if sl: a(f's_sleep {sl}')
        for l in loads: a(l)
        a(f'ds_read_b32 v{t+3}, v{t+2} offset:{FC+12}\n{lbl}_w:\ns_waitcnt vmcnt(0) lgkmcnt(0)')
        n = 4 * len(loads)
        for k in range(n): a(f'v_xor_b32 v{raw+k}, s{4+(k&1)}, v{raw+k}')
        a(f'v_or_b32 v{t}, v{raw}, v{raw+1}')
        for k in range(2, n, 2): a(f'v_or3_b32 v{t}, v{t}, v{raw+k}, v{raw+k+1}')
        a(f'v_and_b32 v{t}, 15, v{t}\nv_cmp_ne_u32 vcc, 0, v{t}')
        spin(lbl, lbl + '_ok')
    def pk(op, d, x, y): a(f'v_pk_{op}_f32 v[{d}:{d+1}], v[{x}:{x+1}], v[{y}:{y+1}]')
    def rscatter(r):
        a(f'v_permlane32_swap_b32 v{r}, v{r+2}\nv_permlane32_swap_b32 v{r+1}, v{r+3}')
        pk('add', r, r, r + 2)
        a(f'v_permlane16_swap_b32 v{r}, v{r+1}\nv_add_f32 v{r}, v{r}, v{r+1}')
    def rnd(d, s): a(f'v_cvt_pk_bf16_f32 {d}, 0, {s}')
    def allred_rows(op, r, t):
        a(f'''v_mov_b32 v{t}, v{r}
              v_permlane32_swap_b32 v{r}, v{t}
              {op} v{r}, v{r}, v{t}
              v_mov_b32 v{t}, v{r}
              v_permlane16_swap_b32 v{r}, v{t}
              {op} v{r}, v{r}, v{t}''')
    def perm_sel(): a('s_mov_b32 s60, 0x05040100\ns_mov_b32 s61, 0x07060302')
    def perms64(raw, dst):
        for tau in range(4):
            for rho in range(4):
                a(f'v_perm_b32 v{dst+4*tau+rho}, v{raw+2*(2*rho+1)+(tau>>1)}, v{raw+2*(2*rho)+(tau>>1)}, s{60+(tau&1)}')
    def fix4(raw, t):
        for u0 in (0, 2):
            for i in range(2): a(f'v_pk_mov_b32 v[{t+2*i}:{t+2*i+1}], v[{raw+4*(u0+i)+2}:{raw+4*(u0+i)+3}], v[{raw+4*(u0+i)+2}:{raw+4*(u0+i)+3}] op_sel:[0,1]')
            rs = [raw + 4 * u + d for u in (u0, u0 + 1) for d in (0, 1)]
            for i, r in enumerate(rs): a(f'v_mov_b32_dpp v{r+2}, v{r} row_ror:8 row_mask:0xf bank_mask:0x3')
            for i, r in enumerate(rs): a(f'v_mov_b32_dpp v{r}, v{t+i} row_ror:8 row_mask:0xf bank_mask:0xc')
    def voff4(d, gstride, stride, t):
        a(f'''v_lshrrev_b32 v{t}, 4, v0
              v_mul_u32_u24 v{d}, {gstride}, v{t}
              v_bfe_u32 v{t}, v0, 3, 1
              v_mul_u32_u24 v{t}, {stride}, v{t}
              v_add_u32 v{d}, v{d}, v{t}
              v_and_b32 v{t}, 7, v0
              v_lshl_add_u32 v{d}, v{t}, 4, v{d}''')
    def maskaddr(dst, n, base, zero, t):
        a(f'''v_lshrrev_b32 v{t}, 4, v0
              v_lshlrev_b32 v{t}, 4, v{t}
              v_add_u32 v{t}, {base}, v{t}
              v_and_b32 v{t+1}, {n-1}, v0
              v_mov_b32 v{t+2}, {zero}''')
        for tau in range(n):
            a(f'v_cmp_eq_u32 vcc, {tau}, v{t+1}')
            a(f'v_cndmask_b32 v{dst+tau}, v{t+2}, v{t}, vcc')
    def silu(d, x, t):
        a(f'''v_mul_f32 v{t}, {hex(f2u(-LOG2E))}, v{x}
              v_exp_f32 v{t}, v{t}
              v_add_f32 v{t}, 1.0, v{t}
              v_rcp_f32 v{t}, v{t}
              v_mul_f32 v{t}, v{x}, v{t}''')
        rnd(f'v{d}', f'v{t}')
    def ln_apply(s1, s2, x, t):
        a(f'''v_mul_f32 v{t}, v{s1}, v{s1}
              v_fma_f32 v{t+1}, v{s1}, v{s1}, -v{t}
              v_fma_f32 v{t}, v{s2}, s59, -v{t}
              v_sub_f32 v{t}, v{t}, v{t+1}
              v_mul_f32 v{t}, {hex(f2u(1/448/448))}, v{t}
              v_max_f32 v{t}, 0, v{t}''')
        rnd(f'v{t}', f'v{t}')
        a(f'v_add_f32 v{t}, {hex(f2u(1e-5))}, v{t}')
        rnd(f'v{t}', f'v{t}')
        a(f'v_sqrt_f32 v{t}, v{t}\nv_mul_f32 v{t+1}, {hex(f2u(1/448))}, v{s1}')
        rnd(f'v{t}', f'v{t}'); rnd(f'v{t+1}', f'v{t+1}')
        a(f'v_rcp_f32 v{t}, v{t}\nv_sub_f32 v{t+1}, v{x[1]}, v{t+1}')
        rnd(f'v{t+1}', f'v{t+1}')
        a(f'v_mul_f32 v{t+1}, v{t+1}, v{t}')
        rnd(f'v{x[0]}', f'v{t+1}')
    def mma(n, acc, A, B, left=0, first=True, wait=True):
        for i in range(n):
            if wait: a(f's_waitcnt lgkmcnt({0 if (diag and only is None) else n-1-i+left})')
            a(f'v_mfma_f32_16x16x32_bf16 v[{acc}:{acc+3}], v[{A+4*i}:{A+4*i+3}], v[{B+4*i}:{B+4*i+3}], ' + ('0' if i == 0 and first else f'v[{acc}:{acc+3}]'))
    def mma2(acc, A, B, left=0, first=True, wait=True):
        for par in range(2):
            if wait: a(f's_waitcnt lgkmcnt({0 if (diag and only is None) else 1-par+left})')
            for hi in range(2):
                d = acc + 4 * hi; b = B + 4 * (2 * hi + par)
                a(f'v_mfma_f32_16x16x32_bf16 v[{d}:{d+3}], v[{A+4*par}:{A+4*par+3}], v[{b}:{b+3}], ' + ('0' if par == 0 and first else f'v[{d}:{d+3}]'))
    def sumrows(n, ldsoff, va, first=None):
        o = ldsoff // 256
        for u in range(n // 2): a(f'ds_read2st64_b32 v[{16+2*u}:{17+2*u}], v{va} offset0:{o+2*u} offset1:{o+2*u+1}')
        if n & 1: a(f'ds_read_b32 v22, v{va} offset:{ldsoff+256*(n-1)}\nv_mov_b32 v23, 0')
        a('s_waitcnt lgkmcnt(0)')
        if first: a(first)
        pk('add', 16, 16, 18); pk('add', 20, 20, 22); pk('add', 16, 16, 20)
        a('v_add_f32 v16, v16, v17')

    def getside(t):
        a(f'''v_mov_b32 v{t}, 0
              ds_read_b32 v{t}, v{t} offset:{FC+12}
              s_waitcnt lgkmcnt(0)
              v_readfirstlane_b32 s48, v{t}''')
    def dzero():
        if diag:
            for i in range(1, 16): a(f's_mov_b32 s{64+2*i}, 0')
    K0, V0 = 8, 56
    a(f'{KN}:')
    if probe: a('s_mov_b32 s68, 0')
    stamp(0)
    a(f'''s_load_dwordx16 s[4:19], s[0:1], 0
          s_load_dwordx8 s[20:27], s[0:1], 64
          s_load_dwordx2 s[28:29], s[0:1], 96
          v_readfirstlane_b32 s31, v0
          s_and_b32 s32, s2, 7
          s_lshr_b32 s33, s2, 3
          s_lshr_b32 s31, s31, 6
          s_sub_u32 s33, s33, 8
          s_cbranch_scc0 L_A''')
    a(f'''s_getpc_b64 s[48:49]
          L_pc:
          v_lshlrev_b32 v2, 7, v0
          v_min_u32 v2, L_code_end-L_pc-4, v2
          global_load_dword v127, v2, s[48:49]
          s_branch L_F
          L_A:
          s_cmp_ge_u32 s31, 8
          s_cbranch_scc1 L_Td
          s_cmp_ge_u32 s33, 17
          s_cbranch_scc1 L_a_u
          L_att:''')
    role[0] = 'att'
    ta, tb, tc, td = ((5, 16, 17, 42), (4, 13, 15, 43))[tbl]
    a(f'''s_mul_i32 s50, s33, {ta}
          s_add_u32 s51, s50, 6
          s_min_u32 s50, s50, {tb}
          s_min_u32 s51, s51, {tc}
          s_mul_i32 s49, s33, {td}
          L_att2:
          s_add_u32 s50, s50, s31
          s_min_u32 s48, s50, s51
          s_add_u32 s48, s48, s49
          s_mul_i32 s49, s31, 5
          s_add_u32 s48, s48, s49
          s_lshl_b32 s49, s32, 14
          s_add_u32 s48, s48, s49
          s_addk_i32 s48, {WINOFF // 2048 + 2}
          s_lshl_b32 s48, s48, 11
          v_and_b32 v2, 12, v0
          v_and_b32 v3, 48, v0
          v_and_b32 v4, 3, v0
          v_lshlrev_b32 v6, 7, v2
          v_lshl_add_u32 v6, v3, 2, v6
          v_lshl_add_u32 v6, v4, 4, v6
          s_waitcnt lgkmcnt(0)
          s_add_u32 s36, s6, s48
          s_addc_u32 s37, s7, 0
          s_cmp_le_u32 s50, s51
          s_cbranch_scc0 L_a_k1''')
    cnt = [0]
    win = [W, WH, WE, NE]
    def kvload(srd, va, base, t, hf, late=False):
        W, WH, WE, NE = win
        w = WH if late else WK if (WK and srd == 36) else W
        if WE and srd == 40 and 2 * (5 - t) + 1 - hf < NE: a(f's_waitcnt vmcnt({WE-1})')
        elif cnt[0] >= 6:
            if WH != w: a(f's_waitcnt vmcnt({WH-1})\ns_cbranch_vccnz L_w{cnt[0]}_\ns_waitcnt vmcnt({w-1})\nL_w{cnt[0]}_:')
            else: a(f's_waitcnt vmcnt({w-1})')
        cnt[0] += 1
        r = base + 8 * t + 4 * hf
        b = srd + 2 * (t // 4)
        a(f'global_load_dwordx4 v[{r}:{r+3}], v{va}, s[{b}:{b+1}] offset:{((t & 3) - 2) * 2048 + hf * 256}{nt}')
    kvload(36, 6, K0, 0, 0); kvload(36, 6, K0, 0, 1)
    a('L_a_k1:')
    for t in (1, 2): kvload(36, 6, K0, t, 0); kvload(36, 6, K0, t, 1)
    a('s_branch L_a_c')
    a('''L_a_u:
         s_cmp_ge_u32 s33, 24
         s_cbranch_scc1 L_end
         s_barrier''')
    if tbl: a('s_mov_b32 s50, 64\ns_mov_b32 s51, 63\ns_mul_i32 s49, s33, 40\ns_branch L_att2')
    else: a('s_branch L_att')
    a(f'''L_Td:
          s_cmp_ge_u32 s33, 24
          s_cbranch_scc1 L_end
          s_cmp_ge_u32 s33, 3
          s_cselect_b32 s50, 9, 0
          s_cmp_eq_u32 s31, s50
          s_cbranch_scc1 L_mod''')
    a(f'''s_cmp_ge_u32 s31, 12
          s_cbranch_scc0 L_T0
          v_mov_b32 v8, {hex(f2u(-3e38))}
          v_cmp_eq_u32 vcc, {768 + L_M // 16}, v0
          v_lshlrev_b32 v2, 4, v0
          v_mov_b32 v9, 0
          v_cndmask_b32 v8, 0, v8, vcc
          v_mov_b32 v11, 0
          v_subrev_u32 v2, {768 * 16}, v2
          v_mov_b32 v10, v8
          ds_write_b128 v2, v[8:11]
          s_waitcnt lgkmcnt(0)''')
    if lk:
        a('''s_lshl_b32 s50, s33, 4
             s_add_u32 s50, s50, s31
             s_cmp_eq_u32 s50, 12
             s_cbranch_scc0 L_T0
             v_mov_b32 v8, 1
             s_mov_b64 exec, 1
             global_atomic_add v9, v8, s[26:27] sc1
             s_mov_b64 exec, -1''')
    a(f'''L_T0:
          s_barrier
          s_branch L_T
          L_mod:''')
    role[0] = 'mod'
    def tail_setup():
        a('s_load_dword s30, s[28:29], 0\ns_sub_u32 s49, s31, 8')
        ws_srd(); perm_sel()
        a(f's_lshl_b32 s56, s49, 8\ns_add_u32 s56, s56, {L_PRIV}')
    a('v_and_b32 v0, 63, v0')
    setprio(3)
    a(f'''s_cmp_ge_u32 s33, 17
          s_cselect_b32 s50, -17, 4
          s_add_u32 s50, s50, s33
          s_lshl_b32 s50, s50, 3
          s_add_u32 s50, s50, s32
          s_and_b32 s51, s50, 3
          s_lshr_b32 s52, s50, 2
          s_mov_b32 s38, {448*5376}
          s_mov_b32 s39, 0x20000
          s_mov_b32 s42, 896
          s_mov_b32 s43, 0x20000
          s_mul_i32 s54, s51, {112*5376}
          s_lshl_b32 s55, s52, 7
          s_add_u32 s54, s54, s55
          s_mul_i32 s53, s51, 224
          v_lshlrev_b32 v2, 2, v0
          v_lshrrev_b32 v1, 3, v0
          v_mul_u32_u24 v3, {14*5376}, v1
          v_and_b32 v4, 7, v0
          v_lshl_add_u32 v3, v4, 4, v3
          s_waitcnt lgkmcnt(0)
          s_mov_b32 s36, s22
          s_mov_b32 s37, s23
          s_mov_b32 s40, s20
          s_mov_b32 s41, s21
          buffer_load_dword v8, v2, s[40:43], s53 offen''')
    for m in range(14):
        a(f'buffer_load_dwordx4 v[{72+4*m}:{75+4*m}], v3, s[36:39], s54 offen{nt}')
        if m < 13: a('s_add_u32 s54, s54, 5376')
    a('s_barrier')
    dzero(); stamp(1)
    tail_setup()
    a(f'''v_mul_u32_u24 v3, 37, v0
          v_lshrrev_b32 v3, 8, v3
          v_add_u32 v3, v3, v0
          v_lshl_add_u32 v3, v3, 2, s56
          v_lshl_add_u32 v1, v1, 5, s56
          v_and_b32 v9, 1, v0
          v_lshlrev_b32 v9, 4, v9
          v_mov_b32 v10, 0xffff
          v_lshlrev_b32 v9, v9, v10
          v_bfe_u32 v10, v0, 1, 2''')
    for rho in range(4):
        a(f'v_cmp_eq_u32 vcc, {rho}, v10')
        a(f'v_cndmask_b32 v{4+rho}, 0, v9, vcc')
    a('''s_mov_b32 s52, 0x01000100
         s_mov_b32 s53, 0x03020302
         s_waitcnt vmcnt(14)
         v_lshlrev_b32 v9, 16, v8
         v_and_b32 v10, 0xffff0000, v8''')
    silu(9, 9, 12); silu(10, 10, 13)
    a(f'''v_perm_b32 v9, v10, v9, s61
          s_mov_b32 exec_hi, 0xffffff
          ds_write_b32 v3, v9
          s_mov_b32 exec_hi, -1
          ds_read_b128 v[8:11], v1
          ds_read_b96 v[12:14], v1 offset:16
          s_lshr_b32 s51, s50, 5
          s_lshl_b32 s51, s51, 13
          s_lshl_b32 s50, s50, 8
          s_add_u32 s50, s50, s51
          s_add_u32 s50, s50, {X1}
          s_add_u32 s51, s50, {SIDE}
          v_lshrrev_b32 v2, 4, v0
          v_and_b32 v3, 7, v0
          v_lshlrev_b32 v3, 4, v3
          v_lshl_add_u32 v2, v2, 7, v3
          s_waitcnt lgkmcnt(0)''')
    tags()
    for m in range(14):
        a(f'v_perm_b32 v15, v{8+(m>>1)}, v{8+(m>>1)}, s{52+(m&1)}')
        for rho in range(4): a(f'v_and_b32 v{16+4*m+rho}, v15, v{4+rho}')
    a('v_and_b32_e64 v4, s34, 15\nv_and_b32_e64 v5, s35, 15')
    for m in range(14):
        a(f's_waitcnt vmcnt({13-m})')
        a(f'v_mfma_f32_16x16x32_bf16 v[8:11], v[{16+4*m}:{19+4*m}], v[{72+4*m}:{75+4*m}], ' + ('0' if m == 0 else 'v[8:11]'))
    a('''v_pk_mov_b32 v[12:13], v[8:9], v[8:9] op_sel:[0,1]
         v_pk_mov_b32 v[14:15], v[10:11], v[10:11] op_sel:[0,1]''')
    for i in range(4): a(f'v_permlane32_swap_b32 v{8+i}, v{12+i}')
    for i in range(4): a(f'v_add_f32_dpp v{8+i}, v{12+i}, v{8+i} row_ror:8 {DPPF}')
    a('s_mov_b64 exec, 0xff00ff')
    for i in range(4): a(f'v_and_or_b32 v{8+i}, v{8+i}, -16, v{4+(i&1)}')
    a('buffer_store_dwordx4 v[8:11], v2, s[44:47], s50 offen sc1\nbuffer_store_dwordx4 v[8:11], v2, s[44:47], s51 offen sc1\ns_mov_b64 exec, -1')
    stamp(2)
    setprio(0)
    a('s_cmp_lt_u32 s33, 14\ns_cbranch_scc1 L_t_go2')
    fin()
    role[0] = 'att'
    a('L_a_c:')
    def setup_att():
        dzero(); stamp(1)
        if lk: a('s_load_dword s56, s[26:27], 0')
        a(f'''s_load_dword s30, s[28:29], 0
              s_cmp_le_u32 s50, s51
              s_cselect_b32 s51, 1, 0
              s_add_u32 s38, s36, 8192
              s_addc_u32 s39, s37, 0
              s_add_u32 s40, s8, s48
              s_addc_u32 s41, s9, 0
              s_add_u32 s42, s40, 8192
              s_addc_u32 s43, s41, 0
              s_cmp_ge_u32 s33, 17
              s_cbranch_scc1 L_a_nb2
              s_barrier
              L_a_nb2:
              v_and_b32 v0, 63, v0
              v_and_b32 v5, 15, v0
              v_lshlrev_b32 v7, 5, v3
              v_lshl_add_u32 v7, v5, 4, v7
              v_bfe_u32 v2, v0, 3, 1
              v_lshlrev_b32 v1, 10, v2
              v_lshl_add_u32 v1, v3, 3, v1
              v_lshl_add_u32 v1, v4, 5, v1
              v_and_b32 v104, 1, v0
              v_lshlrev_b32 v104, 4, v104
              v_mov_b32 v105, 0xffff
              v_lshlrev_b32 v104, v104, v105
              v_bfe_u32 v105, v0, 1, 2''')
        for rho in range(4):
            a(f'v_cmp_eq_u32 vcc, {rho}, v105')
            a(f'v_cndmask_b32 v{2+rho}, 0, v104, vcc')
        ws_srd(); perm_sel()
        a(f'''s_mov_b32 s58, {hex(f2u(0.0625 * LOG2E))}
              s_bfe_u32 s57, s31, 0x10001
              s_lshl_b32 s49, s32, 1
              s_add_u32 s54, s57, s49
              s_mul_i32 s54, s54, 24
              s_add_u32 s54, s54, s33
              s_lshl_b32 s54, s54, 10
              s_lshr_b32 s49, s31, 2
              s_lshl_b32 s49, s49, 9
              s_add_u32 s54, s54, s49
              s_and_b32 s49, s31, 1
              s_lshl_b32 s49, s49, 8
              s_add_u32 s54, s54, s49
              s_add_u32 s55, s54, {X3F}
              s_add_u32 s54, s54, {X3}
              s_mul_i32 s59, s32, 24
              s_add_u32 s59, s59, s33
              s_lshl_b32 s59, s59, 7
              s_add_u32 s59, s59, {HINT}
              v_lshlrev_b32 v104, 2, v0
              s_mov_b32 s48, s51
              s_mov_b32 s49, 0
              s_mov_b64 vcc, s[48:49]''')
    setup_att()
    vl = [(t, hf) for t in range(1, 6) for hf in range(2)]
    late = vl[10 - NL:]
    assert 2 * (6 - touchpos) >= NL and NL <= 4 and hintpos == 7 and WE and NE >= NL and (not lk or LW[2] == WE)
    kvload(36, 6, K0, 3, 0); kvload(36, 6, K0, 3, 1)
    a('s_waitcnt lgkmcnt(0)')
    tags()
    def paced(x):
        for t in range(4, 6): kvload(36, 6, K0, t, 0); kvload(36, 6, K0, t, 1)
        stamp(2)
        a(f's_cmp_eq_u32 s51, 0\ns_cbranch_scc0 L_a_v0{x}')
        for i in range(4): a(f'v_mov_b32 v{K0+i}, {hex(f2u(-1e30))}')
        a(f's_branch L_a_v1{x}\nL_a_v0{x}:')
        kvload(40, 7, V0, 0, 0); kvload(40, 7, V0, 0, 1)
        a(f'L_a_v1{x}:')
        for t in range(1, 6):
            if t == touchpos:
                a('buffer_load_dword v6, v104, s[44:47], s55 offen sc1')
            for hf in range(2):
                if (t, hf) not in late: kvload(40, 7, V0, t, hf)
    if lk:
        if diag: a('s_add_u32 s82, s56, 1')
        a(f's_cmp_ge_u32 s56, {lk}\ns_cbranch_scc1 L_a_pl')
        def pl():
            keep = list(win); win[:] = LW
            a('L_a_pl:'); paced('l'); a('s_branch L_a_pd')
            win[:] = keep
        rare.append(pl)
    paced('')
    a('L_a_pd:')
    def count(off): a(f's_mov_b64 exec, 1\nds_inc_u32 v0, v2 offset:{off}\ns_mov_b64 exec, -1')
    def lateload(k):
        i = k - (4 - NL)
        if i < 0: return
        if adapt: a(f's_cmp_gt_u32 s63, {i}\ns_cbranch_scc1 L_a_l{i}')
        kvload(40, 7, V0, *late[i], late=True)
        if i == NL - 1: vdone('a')
        if adapt: a(f'L_a_l{i}:')
    def vdone(sfx):
        stamp(3); count(L_C)
        if hintpos == 7 and hintk:
            a(f'''s_cmp_eq_u32 s31, 0
                  s_cbranch_scc0 L_a_nh{sfx}
                  v_mov_b32 v114, s3
                  s_mov_b64 exec, 1
                  buffer_store_dword v114, v0, s[44:47], s59 offen
                  s_mov_b64 exec, -1
                  L_a_nh{sfx}:''')
    if not NL: vdone('a')
    a('s_mov_b32 s62, 0\ns_mov_b32 s63, 0')
    stamp(8)
    setprio(2)
    a(f'''L_a_q:
          ds_read_b128 v[104:107], v1 offset:{L_Q}
          ds_read_b128 v[108:111], v1 offset:{L_Q+16}
          ds_read_b128 v[112:115], v1 offset:{L_Q+512}
          ds_read_b128 v[116:119], v1 offset:{L_Q+528}
          s_waitcnt lgkmcnt(0)
          v_bitop3_b32 v120, v104, v108, s3 bitop3:0x7e
          v_bitop3_b32 v121, v112, v116, s3 bitop3:0x7e
          v_or_b32 v121, v120, v121
          v_cmp_ne_u32_sdwa vcc, v121, 0 src0_sel:WORD_0 src1_sel:DWORD''')
    for i in range(8): a(f'v_perm_b32 v{120+i}, v{105+2*i}, v{104+2*i}, s61')
    a('s_cbranch_vccnz L_a_qr\nL_a_qok:')
    def qrare():
        a('L_a_qr:')
        if adapt:
            for i in range(NL):
                a(f's_cmp_eq_u32 s63, {i}\ns_cbranch_scc0 L_a_qr{i}')
                keep = win[2]; win[2] = WR or keep
                kvload(40, 7, V0, *late[i], late=True)
                win[2] = keep
                if i == NL - 1: vdone('b')
                a(f's_mov_b32 s63, {i+1}\ns_branch L_a_q\nL_a_qr{i}:')
        a(f'''s_sleep 1
              s_add_u32 s62, s62, {STEP}
              s_cbranch_scc0 L_a_q
              s_branch L_a_qok''')
    rare.append(qrare)
    stamp(4)
    def qk(t, hf):
        k = K0 + 8 * t; tmp = 104 + 4 * (t & 3)
        if hf == 0: a(f'v_mfma_f32_16x16x32_bf16 v[{tmp}:{tmp+3}], v[{k}:{k+3}], v[120:123], 0')
        else: a(f'v_mfma_f32_16x16x32_bf16 v[{k}:{k+3}], v[{k+4}:{k+7}], v[124:127], v[{tmp}:{tmp+3}]')
    def step(t, i):
        if t < 0 or t > 5: return
        k = K0 + 8 * t
        if i == 0: a(f'v_mov_b32_dpp v{k+4}, v{k} quad_perm:[0,0,0,0] {DPPF}')
        else: a(f'v_add_f32_dpp v{k+4}, v{k+i}, v{k+4} quad_perm:[{i},{i},{i},{i}] {DPPF}')
    lateload(0)
    if WE: a(f's_waitcnt vmcnt({11 - NL})')
    a('s_cmp_eq_u32 s51, 0\ns_cbranch_scc1 L_a_qk1')
    qk(0, 0); qk(0, 1)
    a('L_a_qk1:')
    fl = ['v_mov_b32 v1, 0', 's_mov_b32 s62, 0', 's_lshl_b32 s48, s57, 3', 's_lshl_b32 s49, s31, 2']
    for t in range(1, 6):
        qk(t, 0); step(t - 3, 0); step(t - 4, 2)
        if t < 3: a(fl.pop(0))
        qk(t, 1); step(t - 3, 1); step(t - 4, 3)
        if t < 3: a(fl.pop(0))
        if t == 3: lateload(1)
    lateload(2)
    step(2, 2); step(3, 0); step(4, 0); step(2, 3); step(3, 1); step(4, 1)
    S = [K0 + 8 * t + 4 for t in range(6)]
    rnd(f'v{S[0]}', f'v{S[0]}')
    if WE: a(f's_waitcnt vmcnt({2 * (6 - touchpos) - 1})')
    a('v_and_b32 v6, 8, v0')
    step(5, 0); step(3, 2); step(4, 2); step(5, 1); step(3, 3); step(4, 3); step(5, 2)
    rnd(f'v{S[1]}', f'v{S[1]}'); rnd(f'v{S[2]}', f'v{S[2]}')
    step(5, 3)
    rnd(f'v{S[3]}', f'v{S[3]}'); rnd(f'v{S[4]}', f'v{S[4]}')
    a(f'v_max3_f32 v112, v{S[0]}, v{S[1]}, v{S[2]}')
    rnd(f'v{S[5]}', f'v{S[5]}')
    a(f'''v_max3_f32 v112, v112, v{S[3]}, v{S[4]}
          s_mov_b32 exec_lo, 0x01010101
          s_mov_b32 exec_hi, 0x01010101
          v_max_f32 v112, v112, v{S[5]}
          ds_max_f32 v6, v112 offset:{L_M}
          s_mov_b64 exec, 1
          ds_inc_u32 v0, v2 offset:{L_C+4}
          s_mov_b64 exec, -1
          v_mov_b32 v117, s48''')
    lateload(3)
    a(f'''L_a_s1:
          ds_read_b32 v113, v1 offset:{L_C+4}
          ds_read_b32 v112, v6 offset:{L_M}
          ds_read_b32 v116, v117 offset:{L_M}
          s_waitcnt lgkmcnt(0)
          v_cmp_ne_u32 vcc, 8, v113
          v_mul_f32 v112, s58, v112''')
    order = [1, 0, 2, 3, 4, 5]
    for t in order: a(f'v_fma_f32 v{S[t]+2}, v{S[t]}, s58, -v112')
    a('s_cbranch_vccnz L_a_s1r\nL_a_s1ok:')
    rare.append(lambda: a(f'L_a_s1r:\ns_add_u32 s62, s62, {STEP}\ns_cbranch_scc0 L_a_s1\ns_branch L_a_s1ok'))
    stamp(5)
    for t in order: a(f'v_exp_f32 v{S[t]}, v{S[t]+2}')
    def abuild(t):
        k = K0 + 8 * t
        a(f'v_cvt_pk_bf16_f32 v{k+5}, v{k+4}, v{k+4}')
        for rho in range(4): a(f'v_and_b32 v{k+rho}, v{k+5}, v{2+rho}')
    def pv(t, hf, first=False):
        k = K0 + 8 * t; v = V0 + 8 * t + 4 * hf; acc = 104 + 4 * hf
        n = 2 * (5 - t) + 1 - hf
        if n < max(W, WH, WE or 0): a(f's_waitcnt vmcnt({n})')
        a(f'v_mfma_f32_16x16x32_bf16 v[{acc}:{acc+3}], v[{k}:{k+3}], v[{v}:{v+3}], ' + ('0' if first else f'v[{acc}:{acc+3}]'))
    abuild(1)
    a(f'v_add_f32 v113, v{S[0]}, v{S[1]}\nv_add_f32 v114, v{S[2]}, v{S[3]}')
    pv(1, 0, True); abuild(2); pv(1, 1, True)
    a('s_cmp_eq_u32 s51, 0\ns_cbranch_scc1 L_a_pv2')
    abuild(0); pv(0, 0); pv(0, 1)
    a('L_a_pv2:')
    for t in range(2, 6):
        pv(t, 0)
        if t < 5: abuild(t + 1)
        pv(t, 1)
        if t == 2:
            a(f'''v_add_f32 v115, v{S[4]}, v{S[5]}
                  v_add_f32 v113, v113, v114
                  v_lshl_add_u32 v6, v6, 2, s49
                  v_add_f32 v113, v113, v115''')
            allred_rows('v_add_f32', 113, 114)
            a(f'''s_mov_b64 exec, 0x101
                  ds_write_b32 v6, v113 offset:{L_L}
                  s_mov_b64 exec, -1''')
        if t == 3:
            a(f'''s_lshl_b32 s48, s31, 11
                  v_lshl_add_u32 v6, v0, 4, s48
                  v_and_b32 v120, 4, v0
                  v_cmp_eq_u32 vcc, 0, v120
                  v_or_b32 v116, s34, v116
                  v_mov_b32 v119, s35
                  v_mov_b32 v118, 0xffffff00
                  v_cndmask_b32 v119, v119, v116, vcc
                  v_cndmask_b32_e64 v118, v118, 0, vcc
                  v_and_b32 v120, 3, v0
                  v_or_b32 v120, 0x07060500, v120
                  s_lshl_b32 s49, s31, 8
                  s_add_u32 s49, s49, {L_O}
                  v_lshlrev_b32 v121, 2, v0
                  v_add_u32 v122, s49, v121
                  v_lshlrev_b32 v117, 2, v117
                  s_mov_b32 s62, 0''')
    a(f'''ds_write_b128 v6, v[104:107] offset:{L_O}
          ds_write_b128 v6, v[108:111] offset:{L_O+1024}''')
    stamp(6)
    fill(fA[0], 123)
    a(f'''s_waitcnt lgkmcnt(0)
          s_barrier
          ds_read_b128 v[16:19], v117 offset:{L_L}
          ds_read_b128 v[20:23], v117 offset:{L_L+16}''')
    for u in range(4): a(f'ds_read2st64_b32 v[{8+2*u}:{9+2*u}], v122 offset0:{16*u} offset1:{16*u+8}')
    fill(fA[1], 123)
    a('s_waitcnt lgkmcnt(4)')
    pk('add', 16, 16, 18); pk('add', 20, 20, 22); pk('add', 16, 16, 20)
    a('v_add_f32 v16, v16, v17\nv_and_or_b32 v16, v16, v118, v119\ns_waitcnt lgkmcnt(0)')
    pk('add', 8, 8, 10); pk('add', 12, 12, 14); pk('add', 8, 8, 12)
    a('''v_add_f32 v8, v8, v9
         v_perm_b32 v8, v8, v16, v120
         buffer_store_dword v8, v121, s[44:47], s55 offen
         s_barrier''')
    stamp(7)
    setprio(0)
    a('s_cmp_lt_u32 s33, 14\ns_cbranch_scc0 L_a_x\ns_barrier\ns_sleep 3\nL_a_x:')
    if not nob: a('buffer_store_dword v8, v121, s[44:47], s54 offen sc1')
    fin()
    for r in rare: r()
    rare.clear()

    role[0] = 'wo'
    a('L_T:\nv_and_b32 v0, 63, v0')
    if pf3:
        a(f'''s_cmp_eq_u32 s31, 13
              s_cbranch_scc0 L_T1
              s_mul_i32 s50, s33, 19
              s_lshl_b32 s51, s32, 10
              v_add_u32 v2, s50, v0
              v_min_u32 v2, 447, v2
              v_lshl_add_u32 v2, v2, 13, s51
              s_mov_b64 exec, 0x7ffff
              global_load_dword v127, v2, s[10:11] offset:384
              s_mov_b64 exec, -1
              L_T1:''')
    a('''s_cmp_lt_u32 s33, 14
         s_cbranch_scc1 L_t_go
         s_cmp_eq_u32 s31, 8
         s_cbranch_scc1 L_t_go''')
    if fpf:
        a(f'''s_cmp_lt_u32 s31, 10
              s_cbranch_scc1 L_end
              s_mul_i32 s50, s33, 6
              s_add_u32 s50, s50, s31
              s_sub_u32 s50, s50, 94
              s_cmp_lt_u32 s50, 56
              s_cbranch_scc0 L_end''')
        if fpf:
            a(f'''s_cmp_lt_u32 s32, 4
                  s_cselect_b32 s52, 6, 8
                  s_cselect_b32 s53, 0, 8
                  s_cselect_b32 s56, 0x77777777, -1
                  s_cselect_b32 s58, 21, 28
                  s_mul_i32 s52, s52, s32
                  s_sub_u32 s52, s52, s53
                  s_lshr_b32 s51, s50, 1
                  s_waitcnt lgkmcnt(0)
                  s_bitcmp1_b32 s50, 0
                  s_cbranch_scc1 L_pf_2
                  s_mul_i32 s54, s51, {16*3584}
                  s_lshl_b32 s52, s52, 6
                  s_add_u32 s54, s54, s52
                  v_lshrrev_b32 v4, 2, v0
                  v_mul_u32_u24 v4, 3584, v4
                  v_and_b32 v5, 3, v0
                  v_lshl_add_u32 v4, v5, 7, v4
                  v_add_u32 v4, s54, v4
                  s_branch L_pf_3
                  L_pf_2:
                  s_mul_i32 s52, s52, {32*896}
                  s_lshl_b32 s54, s51, 13
                  s_add_u32 s54, s54, s52
                  v_lshl_add_u32 v4, v0, 7, s54
                  s_mov_b64 s[16:17], s[18:19]
                  s_cmp_lt_u32 s51, s58
                  s_cselect_b32 s56, -1, 0
                  L_pf_3:
                  s_mov_b32 s57, s56''')
        if wopf:
            a(f'''s_lshl_b32 s52, s50, 13
                  s_mul_i32 s51, s32, {512*896}
                  s_add_u32 s52, s52, s51
                  v_lshl_add_u32 v2, v0, 7, s52''')
            ldswait('L_pf_g', L_C, wopf, 4)
            if wolanes < 64: a(f's_mov_b32 exec_hi, {(1 << (wolanes - 32)) - 1}')
            a('global_load_dword v3, v2, s[12:13]')
        a('s_barrier\ns_barrier')
        if fpf: a('s_mov_b64 exec, s[56:57]\ns_cbranch_execz L_end\nglobal_load_dword v6, v4, s[16:17]')
    a('''s_endpgm
         L_t_go:
         s_waitcnt lgkmcnt(0)''')
    dzero()
    a('L_t_go2:')
    tail_setup()
    a(f'''s_cmp_ge_u32 s33, 7
          s_cselect_b32 s50, 1, 0
          s_cselect_b32 s51, 7, 0
          s_sub_u32 s51, s33, s51
          s_lshl_b32 s52, s32, 1
          s_add_u32 s50, s50, s52
          s_lshl_b32 s52, s50, 8
          s_lshr_b32 s53, s49, 2
          s_lshl_b32 s53, s53, 7
          s_add_u32 s52, s52, s53
          s_and_b32 s53, s49, 1
          s_lshl_b32 s53, s53, 6
          s_add_u32 s52, s52, s53
          s_and_b32 s53, s49, 2
          s_lshl_b32 s53, s53, 1
          s_add_u32 s52, s52, s53
          s_mul_i32 s52, s52, 896
          s_lshl_b32 s53, s51, 7
          s_add_u32 s52, s52, s53
          s_add_u32 s53, s52, {8*896}
          s_mov_b32 s36, s12
          s_mov_b32 s37, s13
          s_mov_b32 s38, {4096*896}
          s_mov_b32 s39, 0x20000
          s_mul_i32 s40, s50, {24*1024}
          s_lshl_b32 s41, s49, 7
          s_add_u32 s40, s40, s41
          s_add_u32 s40, s40, {X3F}
          s_add_u32 s41, s40, 8192
          s_add_u32 s42, s40, 16384
          s_lshr_b32 s54, s50, 2
          s_lshl_b32 s54, s54, 13
          s_lshl_b32 s55, s50, 11
          s_add_u32 s54, s54, s55
          s_lshl_b32 s55, s51, 8
          s_add_u32 s54, s54, s55
          s_add_u32 s54, s54, {X4}
          s_add_u32 s55, s54, {SIDE}
          s_mov_b32 s43, 0
          s_mov_b32 s57, 0x0c04000c
          s_mov_b32 s58, {hex(f2u(0.0625 * LOG2E))}
          s_lshl_b32 s59, s49, 8
          s_add_u32 s59, s59, {L_P}
          v_lshrrev_b32 v12, 3, v0
          v_and_b32 v13, 7, v0
          v_lshlrev_b32 v3, 10, v12
          v_lshl_add_u32 v3, v13, 4, v3
          v_lshrrev_b32 v5, 4, v0
          v_lshl_add_u32 v5, v13, 2, v5
          v_lshl_add_u32 v5, v5, 1, s56
          v_lshl_add_u32 v6, v0, 4, s59
          v_lshlrev_b32 v4, 2, v0''')
    voff4(1, 16 * 896, 896, 12)
    def wold():
        stamp(3)
        for u in range(4):
            a(f'buffer_load_dwordx4 v[{80+4*u}:{83+4*u}], v1, s[36:39], s{52+(u>>1)} offen offset:{(u&1)*2*896}{wont}')
    maskaddr(8, 2, 's56', L_Z + 64, 12)
    a('s_waitcnt lgkmcnt(0)')
    tags()
    lanetag(7, 0); rowtag(98, 99)
    a(f'''s_cmp_eq_u32 s49, 0
          s_cbranch_scc0 L_wo
          v_lshlrev_b32 v2, 4, v0
          s_lshl_b32 s4, s32, 11
          s_add_u32 s4, s4, {X2F}
          s_mov_b32 m0, {L_Q}
          s_mov_b32 s62, 0
          s_setprio {pprio}
          L_p_loop:
          buffer_load_dwordx4 v2, s[44:47], s4 offen sc1 lds
          buffer_load_dwordx4 v2, s[44:47], s4 offen offset:1024 sc1 lds
          s_sleep {sleep}
          s_cmp_eq_u32 s62, {(1 << fastbits) * STEP}
          s_cselect_b32 s5, {X2F - X2}, 0
          s_sub_u32 s4, s4, s5
          ds_read2st64_b32 v[12:13], v2 offset0:{L_Q // 256} offset1:{L_Q // 256 + 4}
          s_waitcnt vmcnt(32) lgkmcnt(0)
          v_bitop3_b32 v12, v12, v13, s3 bitop3:0x7e
          v_cmp_ne_u32_sdwa vcc, v12, 0 src0_sel:WORD_0 src1_sel:DWORD''')
    spin('L_p_loop', 'L_p_ok')
    a('s_setprio 0')
    stamp(2)
    a('s_cmp_lt_u32 s33, 14\ns_cbranch_scc0 L_fin\nL_wo:')
    if not wolate:
        ldswait('L_wo_g', L_C, gaten, 2)
        wold()
    else: a('v_mov_b32 v100, 0')
    setprio(3)
    a('s_barrier\ns_barrier')
    if wolate: wold()
    stamp(4)
    x3l = [f'buffer_load_dwordx4 v[{32+4*s}:{35+4*s}], v3, s[44:47], s{40+s} offen sc1' for s in range(3)]
    for l in x3l: a(l)
    a('s_waitcnt vmcnt(3)')
    fix4(80, 48); perms64(80, 16)
    stamp(5)
    gather('L_x3', x3l, 32, 4, 7, issued=True, nfast=2 << fastbits, warm=(fX3, 62),
           spec='\n'.join(f'v_perm_b32 v{48+2*s}, v{34+4*s}, v{33+4*s}, s57' for s in range(3)),
           switch='\n'.join(f's_sub_u32 s{40+s}, s{40+s}, {X3F - X3}' for s in range(3)) + '\ns_barrier\ns_mov_b32 s43, 1')
    stamp(6)
    for s in range(3): a(f'v_lshl_or_b32 v{48+2*s}, v{35+4*s}, 24, v{48+2*s}')
    a(f'''v_max3_f32 v54, v48, v50, v52
          v_xor_b32 v32, v32, v7
          v_xor_b32 v36, v36, v7
          v_max_f32_dpp v54, v54, v54 row_ror:8 {DPPF}
          v_mov_b32 v55, v54
          v_xor_b32 v40, v40, v7
          v_permlane32_swap_b32 v54, v55
          v_max_f32 v54, v54, v55
          v_mov_b32 v55, v54
          v_permlane16_swap_b32 v54, v55
          v_max_f32 v54, v54, v55''')
    for s in range(3): a(f'v_sub_f32 v{49+2*s}, v{48+2*s}, v54')
    for s in range(3): a(f'v_mul_f32 v{49+2*s}, s58, v{49+2*s}')
    for s in range(3): a(f'v_exp_f32 v{49+2*s}, v{49+2*s}')
    for s in range(3): a(f'v_mov_b32_dpp v{56+2*s}, v{49+2*s} quad_perm:[0,0,2,2] {DPPF}')
    a(f'''v_mul_f32 v54, v56, v48
          v_pk_mul_f32 v[32:33], v[32:33], v[56:57] op_sel_hi:[1,0]
          v_fmac_f32 v54, v58, v50
          v_pk_mul_f32 v[34:35], v[34:35], v[56:57] op_sel_hi:[1,0]
          v_fmac_f32 v54, v60, v52
          v_pk_fma_f32 v[32:33], v[36:37], v[58:59], v[32:33] op_sel_hi:[1,0,1]
          v_pk_fma_f32 v[34:35], v[38:39], v[58:59], v[34:35] op_sel_hi:[1,0,1]
          v_add_f32_dpp v54, v54, v54 row_ror:8 {DPPF}
          v_pk_fma_f32 v[32:33], v[40:41], v[60:61], v[32:33] op_sel_hi:[1,0,1]
          v_mov_b32 v55, v54
          v_pk_fma_f32 v[34:35], v[42:43], v[60:61], v[34:35] op_sel_hi:[1,0,1]
          v_permlane32_swap_b32 v54, v55
          v_add_f32 v54, v54, v55
          v_permlane32_swap_b32 v32, v34
          v_mov_b32 v55, v54
          v_permlane32_swap_b32 v33, v35
          v_pk_add_f32 v[32:33], v[32:33], v[34:35]
          v_permlane16_swap_b32 v54, v55
          v_add_f32 v54, v54, v55
          v_permlane16_swap_b32 v32, v33
          v_add_f32 v32, v32, v33
          v_rcp_f32 v54, v54
          v_add_f32_dpp v32, v32, v32 row_ror:8 {DPPF}
          v_mul_f32_dpp v32, v54, v32 quad_perm:[1,1,3,3] {DPPF}''')
    rnd('v32', 'v32')
    a('ds_write_b16_d16_hi v5, v32')
    for tau in range(2): a(f'ds_read_b128 v[{64+4*tau}:{67+4*tau}], v{8+tau}')
    mma2(72, 64, 16)
    a(f'''s_mov_b32 s62, 0
          s_mov_b64 exec, 0xffff
          s_cmp_eq_u32 s43, 0
          ds_write_b128 v6, v[74:77]
          s_mov_b64 exec, 1
          ds_inc_u32 v0, v98 offset:{L_C+16}''')
    a('s_cbranch_scc0 L_wo_nb\ns_barrier\nL_wo_nb:')
    a(f'''s_mov_b64 exec, -1
          s_cmp_eq_u32 s49, 0
          s_cbranch_scc0 L_fin
          L_wo_s:
          ds_read_b32 v24, v100 offset:{L_C+16}''')
    sumrows(8, L_P, 4, 'v_cmp_ne_u32 vcc, 8, v24')
    rare.append(lambda: a(f'L_wo_sr:\ns_add_u32 s62, s62, {STEP}\ns_cbranch_scc0 L_wo_s\ns_branch L_wo_sok'))
    a(f'''v_and_or_b32 v16, v16, v98, v99
          s_cbranch_vccnz L_wo_sr
          L_wo_sok:
          buffer_store_dword v16, v4, s[44:47], s54 offen sc1
          buffer_store_dword v16, v4, s[44:47], s55 offen sc1''')
    stamp(7)
    a('L_fin:')
    fin()
    for r in rare: r()
    rare.clear()

    role[0] = 'F'
    a(f'''L_F:
          s_add_u32 s33, s33, 8
          v_and_b32 v0, 63, v0
          s_cmp_ge_u32 s31, 7
          s_cbranch_scc1 L_F7
          s_lshl_b32 s48, s31, 19
          s_lshl_b32 s49, s32, 10
          s_add_u32 s48, s48, s49
          s_lshl_b32 s49, s33, 7
          s_add_u32 s48, s48, s49
          v_lshrrev_b32 v3, 4, v0
          v_lshlrev_b32 v2, 16, v3
          v_and_b32 v4, 8, v0
          v_lshl_add_u32 v2, v4, 10, v2
          v_and_b32 v5, 7, v0
          v_lshl_add_u32 v2, v5, 4, v2
          v_lshl_add_u32 v5, v5, 4, v4
          v_lshl_add_u32 v6, v3, 1, v5
          s_lshl_b32 s50, s31, 7
          v_add_u32 v101, s50, v6
          v_lshlrev_b32 v7, 4, v0
          s_mov_b32 s38, {448*8192}
          s_mov_b32 s39, 0x20000
          s_mov_b32 s42, 896
          s_mov_b32 s43, 0x20000
          s_waitcnt lgkmcnt(0)
          s_mov_b32 s36, s10
          s_mov_b32 s37, s11
          s_mov_b32 s40, s4
          s_mov_b32 s41, s5
          buffer_load_dwordx4 v[96:99], v7, s[40:43], 0 offen
          buffer_load_ushort v100, v101, s[40:43], 0 offen''')
    for u in range(2):
        for t in range(4):
            a(f'buffer_load_dwordx4 v[{32+16*u+4*t}:{35+16*u+4*t}], v2, s[36:39], s48 offen{nt}')
            if not (u == 1 and t == 3): a(f's_add_u32 s48, s48, {2*8192 if t < 3 else 26*8192}')
        if u == 0: a('s_barrier')
    dzero(); stamp(1)
    a('s_load_dword s30, s[28:29], 0')
    ws_srd(); perm_sel()
    a(f'''s_lshl_b32 s52, s31, 8
          s_add_u32 s56, s52, 0x2400
          s_mov_b32 s59, {hex(f2u(448.0))}
          s_mov_b32 s58, 0x3f803f80
          v_mov_b32 v12, 0
          v_lshlrev_b32 v4, 2, v0
          ds_write_b32 v4, v12 offset:{FZ}
          v_add_u32 v6, s56, v6
          v_lshl_add_u32 v5, v5, 1, s52''')
    maskaddr(8, 2, 's56', FZ + 64, 12)
    a('''s_waitcnt vmcnt(8)
         v_dot2_f32_bf16 v102, v96, s58, 0
         v_dot2_f32_bf16 v103, v96, v96, 0''')
    for i in range(1, 4):
        a(f'v_dot2_f32_bf16 v102, v{96+i}, s58, v102')
        a(f'v_dot2_f32_bf16 v103, v{96+i}, v{96+i}, v103')
    for sh in (8, 4, 2, 1):
        a(f'v_add_f32_dpp v102, v102, v102 row_ror:{sh} {DPPF}')
        a(f'v_add_f32_dpp v103, v103, v103 row_ror:{sh} {DPPF}')
    allred_rows('v_add_f32', 102, 104); allred_rows('v_add_f32', 103, 104)
    a('v_lshlrev_b32 v96, 16, v100')
    ln_apply(102, 103, (100, 96), 104)
    a(f'''s_lshl_b32 s52, s32, 11
          s_lshl_b32 s53, s33, 8
          s_add_u32 s52, s52, s53
          s_add_u32 s53, s52, {X2F}
          s_add_u32 s52, s52, {X2}
          s_waitcnt lgkmcnt(0)''')
    tags()
    a('s_waitcnt vmcnt(4)')
    fix4(32, 104); perms64(32, 64)
    a(f'''s_mov_b32 s49, {X1}
          s_add_u32 s50, s31, 0
          s_lshr_b32 s63, s50, 3
          s_lshl_b32 s63, s63, 13
          s_lshl_b32 s50, s50, 10
          s_add_u32 s50, s50, s63
          s_add_u32 s50, s50, s49
          s_add_u32 s51, s31, 7
          s_lshr_b32 s63, s51, 3
          s_lshl_b32 s63, s63, 13
          s_lshl_b32 s51, s51, 10
          s_add_u32 s51, s51, s63
          s_add_u32 s51, s51, s49
          s_waitcnt vmcnt(0)''')
    fix4(48, 104); perms64(48, 80)
    a('''s_add_u32 s8, s31, 14
          s_lshr_b32 s63, s8, 3
          s_lshl_b32 s63, s63, 13
          s_lshl_b32 s8, s8, 10
          s_add_u32 s8, s8, s63
          s_add_u32 s8, s8, s49
          s_add_u32 s9, s31, 21
          s_lshr_b32 s63, s9, 3
          s_lshl_b32 s63, s63, 13
          s_lshl_b32 s9, s9, 10
          s_add_u32 s9, s9, s63
          s_add_u32 s9, s9, s49
          s_add_u32 s10, s31, 28
          s_lshr_b32 s63, s10, 3
          s_lshl_b32 s63, s63, 13
          s_lshl_b32 s10, s10, 10
          s_add_u32 s10, s10, s63
          s_add_u32 s10, s10, s49
          s_add_u32 s11, s31, 35
          s_lshr_b32 s63, s11, 3
          s_lshl_b32 s63, s63, 13
          s_lshl_b32 s11, s11, 10
          s_add_u32 s11, s11, s63
          s_add_u32 s11, s11, s49''')
    stamp(2)
    poll4('L_q_x1', [f'buffer_load_dwordx4 v[{32+4*s}:{35+4*s}], v41, s[44:47], s{50+s} offen sc1' for s in range(2)], 32, 40)
    stamp(3)
    if mxe:
        for s in range(4): a(f'buffer_load_dwordx4 v[{104+4*s}:{107+4*s}], v41, s[44:47], s{8+s} offen sc1')
    rscatter(36); rscatter(32)
    rnd('v36', 'v36'); rnd('v32', 'v32')
    a('v_add_f32 v36, 1.0, v36'); rnd('v36', 'v36')
    a('v_mul_f32 v36, v100, v36'); rnd('v36', 'v36')
    a('v_add_f32 v36, v36, v32'); rnd('v36', 'v36')
    a('ds_write_b16_d16_hi v6, v36')
    for u in range(2):
        for tau in range(2): a(f'ds_read_b128 v[{32+8*u+4*tau}:{35+8*u+4*tau}], v{8+tau} offset:{64*u}')
    mma2(48, 32, 64, left=2); mma2(48, 40, 80, first=False)
    a(f'''v_mov_b32 v24, 1
          s_mov_b32 s62, 0
          s_mov_b64 exec, 0xffff
          s_cmp_eq_u32 s31, 0
          ds_write_b128 v5, v[50:53] offset:{FP}
          s_mov_b64 exec, 1
          ds_add_u32 v0, v24 offset:{FC+4}
          s_mov_b64 exec, -1
          s_cbranch_scc0 L_q_done
          v_mov_b32 v25, 0
          L_q_s:
          ds_read_b32 v24, v25 offset:{FC+4}''')
    sumrows(7, FP, 4, 'v_cmp_ne_u32 vcc, 7, v24')
    rnd('v16', 'v16')
    rare.append(lambda: a(f'L_q_sr:\ns_add_u32 s62, s62, {STEP}\ns_cbranch_scc0 L_q_s\ns_branch L_q_sok'))
    a('''v_or_b32 v16, s3, v16
         s_cbranch_vccnz L_q_sr
         L_q_sok:
         buffer_store_dword v16, v4, s[44:47], s53 offen
         buffer_store_dword v16, v4, s[44:47], s52 offen sc1''')
    a(f'ds_write_b32 v25, v24 offset:{FC+16}')
    if rewarm:
        a(f'''s_cmp_eq_u32 s33, 7
              s_cbranch_scc0 L_q_done
              s_getpc_b64 s[4:5]
              L_pc2:
              s_sub_u32 s4, s4, L_pc2-L_pc
              s_subb_u32 s5, s5, 0
              v_lshlrev_b32 v102, 7, v0
              v_add_u32 v103, 0x2000, v102
              v_min_u32 v103, L_code_end-L_pc-4, v103
              global_load_dword v127, v102, s[4:5] sc1
              global_load_dword v127, v103, s[4:5] sc1''')
    a('L_q_done:')
    stamp(4)
    def ffn_id(skip):
        a(f'''s_cmp_lt_u32 s32, 4
              s_cselect_b32 s50, 6, 8
              s_cselect_b32 s51, 0, 8
              s_cmp_lt_u32 s33, s50
              s_cbranch_scc0 {skip}''')
    ffn_id('L_fin2')
    a(f'''s_mul_i32 s50, s50, s32
          s_add_u32 s50, s50, s33
          s_sub_u32 s50, s50, s51
          s_mov_b32 s36, s16
          s_mov_b32 s37, s17
          s_mov_b32 s38, {448*3584}
          s_mov_b32 s40, s18
          s_mov_b32 s41, s19
          s_mov_b32 s42, {1792*896}
          s_mul_i32 s52, s31, {64*3584}
          s_lshl_b32 s53, s50, 6
          s_add_u32 s52, s52, s53
          s_mul_i32 s54, s50, {32*896}
          s_lshl_b32 s55, s31, 7
          s_add_u32 s54, s54, s55
          s_add_u32 s55, s54, {4*896}
          v_and_b32 v4, 15, v0
          v_mul_u32_u24 v2, {8*3584}, v3
          v_lshl_add_u32 v2, v4, 2, v2''')
    voff4(1, 8 * 896, 896, 102)
    if not mxe or not hintk: ldswait('L_f_q', FC + 16, 1, 1, 102)
    poll4('L_f_mx', [f'buffer_load_dwordx4 v[{104+4*s}:{107+4*s}], v121, s[44:47], s{8+s} offen sc1' for s in range(4)], 104, 120, 0, mxe)
    for s in range(4): rscatter(104 + 4 * s)
    rnd('v102', 'v104'); rnd('v98', 'v108'); rnd('v100', 'v112'); rnd('v116', 'v116')
    a('v_add_f32 v100, 1.0, v100\ns_lshl_b32 s13, s31, 8\nv_lshl_add_u32 v103, v0, 2, s13')
    rnd('v100', 'v100')
    a(f'''ds_write_b32 v103, v116 offset:{FG}
          ds_write_b32 v103, v98 offset:{FS}
          ds_write_b32 v103, v100 offset:{FK}
          v_mov_b32 v105, 1
          s_mov_b64 exec, 1
          ds_add_u32 v0, v105 offset:{FC+20}
          s_mov_b64 exec, -1
          s_cmp_ge_u32 s31, 4
          s_cbranch_scc1 L_f_nw''')
    if hintk: ldswait('L_f_g', FC + 8, 1, 1, 104)
    if fdelay: a(f's_sleep {fdelay}')
    stamp(5)
    def w1ld(r):
        for i in range(16):
            a(f'buffer_load_dword v{r+i}, v2, s[36:39], s52 offen offset:{3584*(i&1)}{w1nt}')
            if i & 1: a(f's_add_u32 s52, s52, {(2 if i & 7 != 7 else 26 if i == 7 else 256 - 38)*3584}')
    def w2ld(r, o):
        for u in range(4):
            a(f'buffer_load_dwordx4 v[{r+4*u}:{r+3+4*u}], v1, s[40:43], s{54+(u>>1)} offen offset:{(u&1)*2*896 + o}{nt}')
    def w1perm(r, d):
        for aa in range(2):
            for tau in range(2):
                for rho in range(4):
                    a(f'v_perm_b32 v{d+8*aa+4*tau+rho}, v{r+8*aa+2*rho+1}, v{r+8*aa+2*rho}, s{60+tau}')
    w1ld(32)
    a('s_cmp_eq_u32 s31, 3\ns_cbranch_scc1 L_f_n1')
    w1ld(48)
    a('L_f_n1:')
    w2ld(64, 0)
    a('s_cmp_eq_u32 s31, 3\ns_cbranch_scc1 L_f_n2')
    w2ld(80, 512)
    a(f'''L_f_n2:
          s_lshr_b32 s12, s50, 2
          s_lshl_b32 s12, s12, 13
          s_lshl_b32 s14, s50, 11
          s_add_u32 s12, s12, s14
          s_add_u32 s12, s12, s13
          s_add_u32 s12, s12, {X5}
          v_and_b32 v7, 1, v3
          v_lshlrev_b32 v7, 13, v7
          v_lshl_add_u32 v7, v4, 4, v7
          s_add_u32 s57, s56, 1024
          s_lshl_b32 s52, s31, 7
          s_add_u32 s52, s52, {FP2}
          v_and_b32 v14, 31, v0
          v_lshl_add_u32 v15, v14, 1, s57
          v_lshlrev_b32 v14, 2, v14
          v_add_u32 v14, {FP2}, v14''')
    maskaddr(10, 2, 's57', FZ + 64, 104)
    a('v_lshl_add_u32 v8, v3, 4, s56')
    ldswait('L_f_k', FC + 20, 7, 1, 104)
    a(f'''ds_read_b32 v99, v103 offset:{FS+1024}
          ds_read_b32 v101, v103 offset:{FK+1024}''')
    stamp(6)
    a('s_cmp_eq_u32 s31, 3\ns_cbranch_scc0 L_f_n3\ns_waitcnt vmcnt(0)\nL_f_n3:\ns_waitcnt vmcnt(24)')
    w1perm(32, 16)
    a('s_waitcnt vmcnt(8)')
    w1perm(48, 32)
    a('s_waitcnt vmcnt(4)')
    fix4(64, 104); perms64(64, 48)
    a(f'''v_mov_b32 v105, 1
          s_waitcnt vmcnt(0)
          s_mov_b64 exec, 1
          ds_add_u32 v0, v105 offset:{FC}
          s_mov_b64 exec, -1''')
    fix4(80, 108); perms64(80, 64)
    a('s_branch L_f_w\nL_f_nw:')
    ldswait('L_f_g2', FC, 3, 2, 104)
    a('L_f_w:')
    lanetag(5, 0)
    getside(104)
    a(f'''v_lshlrev_b32 v2, 11, v3
          v_lshl_add_u32 v2, v4, 4, v2
          v_lshl_add_u32 v4, v0, 3, s52
          s_add_u32 s40, s13, s48
          s_add_u32 s40, s40, {X4}
          s_add_u32 s41, s40, {1 << 14}
          s_add_u32 s42, s40, {2 << 14}
          s_add_u32 s43, s40, {3 << 14}
          s_lshl_b32 s52, s31, 3
          s_add_u32 s52, s52, {FST}
          v_lshrrev_b32 v1, 5, v0
          v_lshl_add_u32 v3, v1, 2, s52
          v_mov_b32 v1, {FST}
          s_mov_b32 s57, 0xffffff00''')
    x4l = [f'buffer_load_dwordx4 v[{80+4*s}:{83+4*s}], v2, s[44:47], s{40+s} offen sc1' for s in range(4)]
    setprio(2)
    stamp(7)
    def sum_hi(r, d):
        return f'''v_pk_add_f32 v[{d+2}:{d+3}], v[{r+2}:{r+3}], v[{r+6}:{r+7}]
                   v_pk_add_f32 v[{d}:{d+1}], v[{r+10}:{r+11}], v[{r+14}:{r+15}]
                   v_pk_add_f32 v[{d+2}:{d+3}], v[{d+2}:{d+3}], v[{d}:{d+1}]'''
    def sum_lo(r, d):
        for s in range(4): a(f'v_xor_b32 v{r+4*s}, v{r+4*s}, v5')
        pk('add', r, r, r + 4); pk('add', r + 8, r + 8, r + 12); pk('add', d, r, r + 8)
    gather('L_x4', x4l, 80, 4, 5, spec=sum_hi(80, 104), warm=(fX4, 9))
    stamp(8)
    sum_lo(80, 104)
    rscatter(104)
    rnd('v104', 'v104'); a('v_mul_f32 v104, v102, v104'); rnd('v104', 'v104'); a('v_add_f32 v104, v96, v104'); rnd('v105', 'v104')
    xs('x2')
    a(f'''v_mul_f32 v106, v105, v105
          v_mov_b32 v96, v105
          ds_write_b32 v103, v105 offset:{FX}
          v_permlane32_swap_b32 v105, v106
          v_add_f32 v105, v105, v106
          v_add_f32_dpp v105, v105, v105 row_ror:8 {DPPF}
          v_add_f32_dpp v105, v105, v105 row_ror:4 {DPPF}
          v_add_f32_dpp v105, v105, v105 row_ror:2 {DPPF}
          v_add_f32_dpp v105, v105, v105 row_ror:1 {DPPF}
          s_cmp_ge_u32 s31, 4
          v_add_f32_dpp v105, v105, v105 row_bcast:15 row_mask:0xa bank_mask:0xf
          s_mov_b32 exec_lo, 0x10000
          s_mov_b32 exec_hi, 0x10000
          ds_write_b32 v3, v105
          s_mov_b64 exec, -1''')
    fill(fB3p, 9)
    a('s_waitcnt lgkmcnt(0)')
    xs('preB3')
    a('s_barrier\ns_cbranch_scc1 L_fin5')
    xs('B3')
    a(f'''ds_read_b128 v[80:83], v1
          ds_read_b128 v[84:87], v1 offset:16
          ds_read_b128 v[88:91], v1 offset:32
          ds_read_b64 v[92:93], v1 offset:48
          ds_read_b32 v97, v103 offset:{FX+1024}
          s_cmp_eq_u32 s31, 3''')
    fill(fB3, 9)
    a(f's_waitcnt lgkmcnt({0 if (diag and only is None) else 3})')
    pk('add', 80, 80, 82); pk('add', 84, 84, 86)
    a(f's_waitcnt lgkmcnt({0 if (diag and only is None) else 1})')
    xs('st')
    pk('add', 88, 88, 90); pk('add', 80, 80, 84); pk('add', 88, 88, 92); pk('add', 80, 80, 88)
    a(f'''v_mul_f32 v84, v80, v80
          v_fma_f32 v85, v80, v80, -v84
          v_fma_f32 v84, v81, s59, -v84
          v_sub_f32 v84, v84, v85
          v_mul_f32 v84, {hex(f2u(1/448/448))}, v84
          v_max_f32 v84, 0, v84''')
    rnd('v84', 'v84')
    a(f'v_add_f32 v84, {hex(f2u(1e-5))}, v84')
    rnd('v84', 'v84')
    a(f'v_sqrt_f32 v84, v84\nv_mul_f32 v86, {hex(f2u(1/448))}, v80')
    rnd('v84', 'v84'); rnd('v86', 'v86')
    a('''v_rcp_f32 v84, v84
         s_waitcnt lgkmcnt(0)
         v_pk_add_f32 v[82:83], v[96:97], v[86:87] op_sel_hi:[1,0] neg_lo:[0,1] neg_hi:[0,1]''')
    rnd('v82', 'v82'); rnd('v83', 'v83')
    a('v_pk_mul_f32 v[82:83], v[82:83], v[84:85] op_sel_hi:[1,0]')
    rnd('v82', 'v82'); rnd('v83', 'v83')
    xs('ln')
    pk('mul', 82, 82, 100)
    rnd('v82', 'v82'); rnd('v83', 'v83')
    pk('add', 82, 82, 98)
    a('''v_cvt_pk_bf16_f32 v120, v82, v83
         ds_write_b16 v6, v120
         ds_write_b16_d16_hi v6, v120 offset:128''')
    for k in range(4): a(f'ds_read_b128 v[{80+4*k}:{83+4*k}], v8 offset:{64*k}')
    if fB4[0]: a.fill = 9; fill(8, 9)
    for k in range(4):
        if k == 2: a('s_cbranch_scc1 L_f_m1')
        a(f's_waitcnt lgkmcnt({0 if (diag and only is None) else 3-k})')
        for tau in range(2):
            d = 120 + 4 * tau; b = 16 + 8 * k + 4 * tau
            a(f'v_mfma_f32_16x16x32_bf16 v[{d}:{d+3}], v[{80+4*k}:{83+4*k}], v[{b}:{b+3}], ' + ('0' if k == 0 else f'v[{d}:{d+3}]'))
    a('L_f_m1:')
    stamp(11); xs('mm1')
    a(f'''s_mov_b64 exec, 0xffff
          ds_write2_b32 v4, v120, v124 offset0:0 offset1:1
          s_mov_b64 exec, -1''')
    a.fill = None
    fill(fB4[0], 9)
    a('s_waitcnt lgkmcnt(0)')
    xs('preB4')
    a('s_barrier')
    xs('B4')
    a(f'''ds_read2_b32 v[80:81], v14 offset0:0 offset1:32
          ds_read2_b32 v[82:83], v14 offset0:64 offset1:96''')
    fill(fB4[1], 9)
    a('s_waitcnt lgkmcnt(0)')
    xs('u')
    pk('add', 80, 80, 82)
    a('v_add_f32 v80, v80, v81')
    rnd('v80', 'v80')
    silu(80, 80, 81)
    a('ds_write_b16_d16_hi v15, v80')
    for tau in range(2): a(f'ds_read_b128 v[{84+4*tau}:{87+4*tau}], v{10+tau}')
    mma2(104, 84, 48)
    a('s_cbranch_scc1 L_f_m2')
    mma2(112, 84, 64, wait=False)
    xs('mm2')
    a('''s_mov_b32 exec_hi, 0
         v_and_or_b32 v106, v106, s57, v5
         buffer_store_dwordx4 v[106:109], v7, s[44:47], s12 offen sc1
         v_and_or_b32 v114, v114, s57, v5
         buffer_store_dwordx4 v[114:117], v7, s[44:47], s12 offen offset:1024 sc1
         L_f_m3:''')
    rare.append(lambda: a('''L_f_m2:
         s_mov_b32 exec_hi, 0
         v_and_or_b32 v106, v106, s57, v5
         buffer_store_dwordx4 v[106:109], v7, s[44:47], s12 offen sc1
         s_branch L_f_m3'''))
    stamp(9)
    a('s_barrier\nL_fin2:')
    fin()
    a('L_fin5:')
    if diag: a('s_barrier\ns_barrier')
    fin()
    for r in rare: r()
    rare.clear()
    a(f'''L_F7:
          v_mov_b32 v2, 0
          s_cmp_eq_u32 s31, 7
          s_cbranch_scc0 L_F8
          v_lshlrev_b32 v3, 2, v0
          ds_write_b32 v3, v2 offset:{FC & ~255}
          s_waitcnt lgkmcnt(0)
          s_load_dword s30, s[28:29], 0''')
    a('s_barrier')
    dzero()
    ws_srd()
    ffn_id('L_fin3')
    if hintk:
        a(f'''s_mul_i32 s49, s32, {24*128}
              s_add_u32 s49, s49, {HINT}
              v_lshlrev_b32 v102, 7, v0''')
        if mxe:
            ldswait('L_7_t', FC + 4, 1, 4, 104)
            a('s_mov_b64 exec, 0xffffff\nbuffer_load_dword v103, v102, s[44:47], s49 offen sc1\ns_mov_b64 exec, -1')
    ldswait('L_7_q', FC + 16, 1, 4, 104)
    tags()
    if hintk:
        a(f'''s_mov_b64 exec, 0xffffff
              s_mov_b32 s62, 0
              L_f_h:
              s_sleep 2
              buffer_load_dword v103, v102, s[44:47], s49 offen sc1
              s_add_u32 s62, s62, {1 << (32 - fastbits)}
              s_waitcnt vmcnt(0)
              s_cbranch_scc1 L_f_hok
              v_cmp_eq_u32 vcc, s3, v103
              s_bcnt1_i32_b64 s53, vcc
              s_cmp_lt_u32 s53, {hintk}
              s_cbranch_scc1 L_f_h
              L_f_hok:
              s_mov_b64 exec, -1
              v_mov_b32 v103, 1
              ds_write_b32 v2, v103 offset:{FC+8}''')
    a(f'''s_mul_i32 s50, s50, s32
          s_add_u32 s50, s50, s33
          s_sub_u32 s50, s50, s51
          s_bitcmp1_b32 s50, 0
          s_cbranch_scc1 L_fin3
          v_lshrrev_b32 v4, 4, v0
          v_lshlrev_b32 v81, 14, v4
          v_bfe_u32 v6, v0, 2, 2
          v_lshl_add_u32 v81, v6, 11, v81
          v_and_b32 v6, 3, v0
          v_lshl_add_u32 v81, v6, 4, v81
          s_bfe_u32 s52, s50, 0x20001
          s_lshl_b32 s52, s52, 2
          s_lshl_b32 s20, 0x000f000f, s52
          s_mov_b32 s21, s20
          s_lshr_b32 s52, s50, 3
          s_lshl_b32 s53, s52, 8
          v_add_u32 v3, s53, v3
          s_lshl_b32 s52, s52, 7
          v_and_b32 v6, 7, v0
          v_lshlrev_b32 v6, 4, v6
          v_and_b32 v7, 8, v0
          v_lshl_add_u32 v7, v4, 1, v7
          v_add3_u32 v101, v6, v7, s52
          s_mov_b32 s36, s24
          s_mov_b32 s37, s25
          s_mov_b32 s38, 896
          s_mov_b32 s39, 0x20000''')
    lanetag(5, 0)
    x5l = [f'buffer_load_dwordx4 v[{36+4*s}:{39+4*s}], v81, s[44:47], s{40+s} offen sc1' for s in range(4)]
    a('v_mov_b32 v48, v5\nv_mov_b32 v49, 0\nv_mov_b32 v50, 0\nv_mov_b32 v51, 0')
    ldswait('L_7_g', FC, 2, 4, 102)
    getside(102)
    a(f'''s_lshl_b32 s40, s50, 5
          s_add_u32 s40, s40, s48
          s_add_u32 s40, s40, {X5}
          s_add_u32 s41, s40, {4 << 14}
          s_add_u32 s42, s40, {8 << 14}
          s_add_u32 s43, s40, {12 << 14}''')
    a('\n'.join(x5l[:3]) + f'''
          s_mov_b32 exec_hi, 0
          {x5l[3]}
          buffer_load_ushort v125, v101, s[36:39], 0 offen
          s_mov_b32 exec_hi, -1
          s_waitcnt vmcnt(0)''')
    setprio(3)
    a(f'''s_barrier
          s_barrier
          ds_read_b32 v96, v3 offset:{FX}
          ds_read_b32 v100, v3 offset:{FG}
          s_barrier
          s_waitcnt lgkmcnt(0)''')
    gather('L_x5', x5l, 36, 4, 5, issued=True, spec=sum_hi(36, 32))
    stamp(12)
    sum_lo(36, 32)
    rscatter(32)
    a(f'''v_add_f32_dpp v32, v32, v32 row_ror:8 {DPPF}
          v_add_f32_dpp v32, v32, v32 row_ror:4 {DPPF}''')
    rnd('v32', 'v32'); a('v_mul_f32 v32, v100, v32'); rnd('v32', 'v32'); a('v_add_f32 v32, v96, v32\ns_mov_b64 exec, s[20:21]'); rnd('v32', 'v32')
    a('''buffer_store_short_d16_hi v32, v101, s[36:39], 0 offen
         s_cmp_eq_u32 s50, 0
         s_cbranch_scc0 L_fin4
         s_mov_b64 exec, 1
         v_mov_b32 v3, s30
         buffer_store_dword v3, v2, s[44:47], 0 offen sc1
         L_fin4:''')
    stamp(14)
    if lite: a('s_branch L_dump')
    a('L_fin3:')
    fin()
    for r in rare: r()
    rare.clear()
    a(f'''L_F8:
          s_cmp_eq_u32 s31, 8
          s_cbranch_scc0 L_end
          s_lshl_b32 s48, s2, 7
          s_add_u32 s48, s48, {PRB}
          s_add_u32 s49, s48, {SIDE}
          s_mov_b32 s52, -1
          s_mov_b32 s53, -1
          s_mov_b32 s54, 0
          s_waitcnt lgkmcnt(0)''')
    if tlb:
        a(f'''s_lshl_b32 s50, s32, 25
              s_add_u32 s50, s50, {WINOFF}
              s_mov_b32 s51, {4096*896-4}
              s_load_dword s56, s[8:9], s50
              s_load_dword s57, s[12:13], 0
              s_load_dword s58, s[12:13], s51
              s_load_dword s59, s[16:17], 0
              s_load_dword s60, s[18:19], 0
              s_load_dword s61, s[24:25], 0''')
    a('s_barrier')
    dzero()
    if fside is not None:
        a(f'''s_getreg_b32 s55, hwreg(HW_REG_XCC_ID)
              s_bfe_u32 s55, s55, 0x10002
              s_xor_b32 s55, s55, {fside}
              s_lshl_b32 s55, s55, 13
              v_mov_b32 v3, s55
              ds_write_b32 v2, v3 offset:{FC+12}''')
    else:
        a('s_load_dword s10, s[28:29], s48 glc\ns_load_dword s11, s[28:29], s49 glc\ns_waitcnt lgkmcnt(0)\nL_8_l:')
        for sd in range(2):
            a(f'''s_memtime s[4:5]
                  s_waitcnt lgkmcnt(0)
                  s_load_dword s10, s[28:29], s{48+sd} glc
                  s_waitcnt lgkmcnt(0)
                  s_memtime s[6:7]
                  s_lshr_b32 s8, s33, {sd}
                  s_add_u32 s8, s8, s54
                  s_bitcmp1_b32 s8, 0
                  s_waitcnt lgkmcnt(0)
                  s_cbranch_scc0 L_8_n{sd}
                  s_sleep 3
                  L_8_n{sd}:
                  s_sub_u32 s4, s6, s4
                  s_min_u32 s{52+sd}, s{52+sd}, s4''')
        a(f'''s_cmp_lt_u32 s53, s52
              s_cselect_b32 s55, {SIDE}, 0
              v_mov_b32 v3, s55
              ds_write_b32 v2, v3 offset:{FC+12}''')
        if diag:
            for k in (1, 2, 3, 4): a(f's_cmp_eq_u32 s54, {k-1}\ns_cbranch_scc0 L_8_d{k}\ns_memrealtime s[{64+2*k}:{65+2*k}]\ns_add_u32 s{64+2*(k+4)}, s55, 1\nL_8_d{k}:')
        a(f'''s_add_u32 s54, s54, 1
              s_cmp_lt_u32 s54, {nprb}
              s_cbranch_scc1 L_8_l''')
    if diag:
        a('s_add_u32 s90, s55, 1\ns_getreg_b32 s88, hwreg(HW_REG_XCC_ID)\ns_mov_b32 s86, s52\ns_mov_b32 s84, s53')
        fin()
    else: a('s_endpgm')
    if probe:
        a('L_probe:\ns_cmp_eq_u32 s68, 0\ns_cbranch_scc1 L_end')
        if len(probe) > 2 and probe[2] is not None: a(f's_cmp_eq_u32 s32, {probe[2]}\ns_cbranch_scc0 L_end')
        if len(probe) > 3 and probe[3] is not None: a(f's_cmp_eq_u32 s31, {probe[3]}\ns_cbranch_scc0 L_end')
        a('''s_setprio 0
             s_sleep 127
             s_sleep 127
             s_sleep 127
             s_sleep 127
             s_sleep 127
             L_probe_l:
             s_memrealtime s[66:67]
             s_waitcnt lgkmcnt(0)
             s_sub_u32 s66, s66, s64
             s_cmp_lt_u32 s66, 3000
             s_cbranch_scc1 L_probe_l
             s_endpgm''')
    if diag or lite:
        a(f'''L_dump:
              s_mov_b64 exec, -1
              s_waitcnt vmcnt(0) lgkmcnt(0)
              s_memrealtime s[94:95]
              s_lshl_b32 s48, s2, 4
              s_add_u32 s48, s48, s31
              s_lshl_b32 s48, s48, 6
              s_add_u32 s48, s48, {STAMP_OFF}
              v_mov_b32 v1, s48
              s_waitcnt lgkmcnt(0)''')
        for i in range(16): a(f'v_mov_b32 v{8+i}, s{64+2*i}')
        a('s_mov_b64 exec, 1')
        for i in range(4): a(f'global_store_dwordx4 v1, v[{8+4*i}:{11+4*i}], s[28:29] offset:{16*i}')
    a('L_end:\ns_endpgm\nL_code_end:')
    head = open('adaLN_cond__sliding_block_cached__dense_activation_silu__decode.s.ref').read().split('; Override launch')[0]
    return head + f'''; @launch grid=(256,1,1) block=(1024,1,1) lds={L_END}
.amdgcn_target "amdgcn-amd-amdhsa--gfx950"
.text
.globl {KN}
.p2align 8
.type {KN},@function
''' + a.text() + f'''.section .rodata,"a"
.p2align 6
.amdhsa_kernel {KN}
  .amdhsa_next_free_vgpr 128
  .amdhsa_next_free_sgpr 96
  .amdhsa_accum_offset 128
  .amdhsa_group_segment_fixed_size 0
  .amdhsa_kernarg_size 104
  .amdhsa_user_sgpr_count 2
  .amdhsa_user_sgpr_kernarg_segment_ptr 1
  .amdhsa_system_sgpr_workgroup_id_x 1
.end_amdhsa_kernel
'''

if __name__ == '__main__':
    out = sys.argv[1]
    kw = eval('dict(' + (sys.argv[2] if len(sys.argv) > 2 else '') + ')')
    open(out, 'w').write(gen(**kw))
```

```python
import sys, struct
sys.path.insert(0, 'work')
from asmlib import Asm

KN = 'adaLN_cond__sliding_block_cached__dense_activation_silu__decode_kernel'
X2, X2F, HINT, PRB, X1, X4, X5, X3, X3F, WSEND = 0x4000, 0x8000, 0xC000, 0x80000, 0x18000, 0x30000, 0x40000, 0xA0000, 0x100000, 0x160000
SIDE = 0x2000
STAMP_OFF = 0x180000
L_Q, L_M, L_C, L_L, L_Z, L_O, L_PRIV, L_P, L_END = 0x0, 0x800, 0x810, 0x840, 0x900, 0x1000, 0x5000, 0x5800, 0x6100
FM = 0x300
FZ, FC, FP, FP2, FST, FX, FG, FS, FK = 0x0, 0x240, 0x1000, 0x1800, 0x2000, 0x3000, 0x3800, 0x4000, 0x4800
WINOFF = (65536 - 4096) * 512
def f2u(x): return struct.unpack('<I', struct.pack('<f', x))[0]
LOG2E = 1.4426950408889634
DPPF = 'row_mask:0xf bank_mask:0xf'

def gen(W=4, WH=5, WK=None, WE=7, NE=6, NL=4, adapt=True, diag=False, lite=False, probe=None, sleep=8, nt=' nt', w1nt='', wont='',
        rewarm=True, gaten=8, hintk=16, hintpos=7, touchpos=2, spinbits=17, fastbits=6, prio=True, pprio=3, nprb=5,
        fside=None, nob=False, fpf=8, tbl=1, only=None, lk=0, LW=(5, 6, 7, 6), WR=None, pf3=True, wolate=False, fdelay=0, wopf=0, wolanes=32, fB3=0, fB3p=0, fB4=(12, 12), fM=True, tlb=True, mxe=False, dirty=0, epe=True, fX3=0, fX4=0, fA=(0, 0), half=True):
    a = Asm()
    rare = []
    STEP = 1 << (32 - spinbits)
    role = ['all']
    def stamp(i):
        if (diag and (only is None or i == 0 or (role[0], i) in only)) or (lite and i in (0, 14)): a(f's_memrealtime s[{64+2*i}:{65+2*i}]')
        if probe and probe[0] == role[0] and probe[1] == i: a('s_memrealtime s[64:65]\ns_mov_b32 s68, 1')
    def xs(name):
        if diag and only and name in only: a('s_memrealtime s[84:85]')
        if diag and only and 'clk' in only and name in ('B3', 'mm2'):
            k = 1 if name == 'B3' else 3
            a(f's_memrealtime s[{64+2*k}:{65+2*k}]\ns_memtime s[{66+2*k}:{67+2*k}]')
            if name == 'B3': a('s_waitcnt lgkmcnt(0)')
    def fill(n, r):
        if fM and r == 9:
            for _ in range((n + 2) // 4): a('v_mfma_f32_16x16x32_bf16 v[116:119], v[16:19], v[16:19], 0')
        else:
            for _ in range(n): a(f'v_mov_b32 v{r}, 0')
    def fin(): a('s_branch L_dump' if diag else 's_branch L_probe' if probe else 's_endpgm')
    def setprio(n):
        if prio: a(f's_setprio {n}')
    def tags():
        a('''s_add_u32 s30, s30, 1
             s_and_b32 s34, s30, 0x7f
             s_xor_b32 s35, s34, 0x5a
             s_lshl_b32 s3, s35, 8
             s_or_b32 s3, s3, s34''')
    def ws_srd():
        a(f'''s_mov_b32 s44, s28
              s_mov_b32 s45, s29
              s_mov_b32 s46, {WSEND}
              s_mov_b32 s47, 0x20000''')
    def lanetag(d, bit):
        a(f'''v_bfe_u32 v{d}, v0, {bit}, 1
              v_mul_u32_u24 v{d}, 0x5a, v{d}
              v_xor_b32 v{d}, s34, v{d}''')
    def rowtag(m, t):
        lanetag(t, 2)
        a(f'''v_and_b32 v{m}, 3, v0
              v_cmp_eq_u32 vcc, 0, v{m}
              v_mov_b32 v{m}, 0xffffff00
              v_cndmask_b32 v{t}, 0, v{t}, vcc
              v_cndmask_b32 v{m}, -1, v{m}, vcc''')
    def spin(loop, done):
        a(f'''s_cbranch_vccz {done}
              s_add_u32 s62, s62, {STEP}
              s_cbranch_scc0 {loop}
              {done}:''')
    def ldswait(lbl, off, n, sl, z=100):
        if not n: return
        a(f'v_mov_b32 v{z}, 0\ns_mov_b32 s62, 0\n{lbl}:')
        if sl: a(f's_sleep {sl}')
        a(f'''ds_read_b32 v{z+1}, v{z} offset:{off}
              s_waitcnt lgkmcnt(0)
              v_cmp_gt_u32 vcc, {n}, v{z+1}''')
        spin(lbl, lbl + 'ok')
    def gather(lbl, loads, raw, masks, vt, spec='', switch=None, nfast=0, issued=False, warm=None):
        n = len(loads)
        a('s_mov_b32 s62, 0')
        if switch: a(f's_mov_b32 s63, {(1 << 32) // nfast}')
        if issued: a(f's_branch {lbl}_w')
        else:
            for i in range(n): a(f's_mov_b64 s[{masks+2*i}:{masks+2*i+1}], -1')
        a(f'{lbl}:')
        for i, l in enumerate(loads): a(f's_wqm_b64 exec, s[{masks+2*i}:{masks+2*i+1}]\n{l}')
        a(f'''s_mov_b64 exec, -1
              s_add_u32 s62, s62, {'s63' if switch else STEP}
              s_cbranch_scc1 {lbl}_r''')
        if warm: fill(*warm)
        a(f'{lbl}_w:\ns_waitcnt vmcnt(0)')
        for i in range(n): a(f'v_cmp_ne_u32_sdwa s[{masks+2*i}:{masks+2*i+1}], v{raw+4*i}, v{vt} src0_sel:BYTE_0 src1_sel:DWORD')
        a(spec)
        a(f's_or_b64 vcc, s[{masks}:{masks+1}], s[{masks+2}:{masks+3}]')
        for i in range(2, n): a(f's_or_b64 vcc, vcc, s[{masks+2*i}:{masks+2*i+1}]')
        a(f's_cbranch_scc1 {lbl}\n{lbl}_ok:')
        def r():
            a(f'{lbl}_r:')
            if switch:
                a(f's_cmp_eq_u32 s63, {STEP}\ns_cbranch_scc1 {lbl}_x\ns_mov_b32 s63, {STEP}\n{switch}\ns_branch {lbl}_w\n{lbl}_x:')
            a(f's_waitcnt vmcnt(0)\ns_mov_b64 vcc, 0\ns_branch {lbl}_ok')
        rare.append(r)
    def poll4(lbl, loads, raw, t, sl=0, issued=False):
        a(f'''v_mov_b32 v{t+2}, 0
              ds_read_b32 v{t+3}, v{t+2} offset:{FC+12}
              s_and_b32 s4, s34, 15
              s_and_b32 s5, s35, 15
              s_mov_b32 s62, 0
              s_waitcnt lgkmcnt(0)''')
        if issued: a(f's_branch {lbl}_w')
        a(f'{lbl}:\nv_add_u32 v{t+1}, v7, v{t+3}')
        if sl: a(f's_sleep {sl}')
        for l in loads: a(l)
        a(f'ds_read_b32 v{t+3}, v{t+2} offset:{FC+12}\n{lbl}_w:\ns_waitcnt vmcnt(0) lgkmcnt(0)')
        n = 4 * len(loads)
        for k in range(n): a(f'v_xor_b32 v{raw+k}, s{4+(k&1)}, v{raw+k}')
        a(f'v_or_b32 v{t}, v{raw}, v{raw+1}')
        for k in range(2, n, 2): a(f'v_or3_b32 v{t}, v{t}, v{raw+k}, v{raw+k+1}')
        a(f'v_and_b32 v{t}, 15, v{t}\nv_cmp_ne_u32 vcc, 0, v{t}')
        spin(lbl, lbl + '_ok')
    def pk(op, d, x, y): a(f'v_pk_{op}_f32 v[{d}:{d+1}], v[{x}:{x+1}], v[{y}:{y+1}]')
    def rscatter(r):
        a(f'v_permlane32_swap_b32 v{r}, v{r+2}\nv_permlane32_swap_b32 v{r+1}, v{r+3}')
        pk('add', r, r, r + 2)
        a(f'v_permlane16_swap_b32 v{r}, v{r+1}\nv_add_f32 v{r}, v{r}, v{r+1}')
    def rnd(d, s): a(f'v_cvt_pk_bf16_f32 {d}, 0, {s}')
    def allred_rows(op, r, t):
        a(f'''v_mov_b32 v{t}, v{r}
              v_permlane32_swap_b32 v{r}, v{t}
              {op} v{r}, v{r}, v{t}
              v_mov_b32 v{t}, v{r}
              v_permlane16_swap_b32 v{r}, v{t}
              {op} v{r}, v{r}, v{t}''')
    def perm_sel(): a('s_mov_b32 s60, 0x05040100\ns_mov_b32 s61, 0x07060302')
    def perms64(raw, dst):
        for tau in range(4):
            for rho in range(4):
                a(f'v_perm_b32 v{dst+4*tau+rho}, v{raw+2*(2*rho+1)+(tau>>1)}, v{raw+2*(2*rho)+(tau>>1)}, s{60+(tau&1)}')
    def fix4(raw, t):
        for u0 in (0, 2):
            for i in range(2): a(f'v_pk_mov_b32 v[{t+2*i}:{t+2*i+1}], v[{raw+4*(u0+i)+2}:{raw+4*(u0+i)+3}], v[{raw+4*(u0+i)+2}:{raw+4*(u0+i)+3}] op_sel:[0,1]')
            rs = [raw + 4 * u + d for u in (u0, u0 + 1) for d in (0, 1)]
            for i, r in enumerate(rs): a(f'v_mov_b32_dpp v{r+2}, v{r} row_ror:8 row_mask:0xf bank_mask:0x3')
            for i, r in enumerate(rs): a(f'v_mov_b32_dpp v{r}, v{t+i} row_ror:8 row_mask:0xf bank_mask:0xc')
    def voff4(d, gstride, stride, t):
        a(f'''v_lshrrev_b32 v{t}, 4, v0
              v_mul_u32_u24 v{d}, {gstride}, v{t}
              v_bfe_u32 v{t}, v0, 3, 1
              v_mul_u32_u24 v{t}, {stride}, v{t}
              v_add_u32 v{d}, v{d}, v{t}
              v_and_b32 v{t}, 7, v0
              v_lshl_add_u32 v{d}, v{t}, 4, v{d}''')
    def maskaddr(dst, n, base, zero, t):
        a(f'''v_lshrrev_b32 v{t}, 4, v0
              v_lshlrev_b32 v{t}, 4, v{t}
              v_add_u32 v{t}, {base}, v{t}
              v_and_b32 v{t+1}, {n-1}, v0
              v_mov_b32 v{t+2}, {zero}''')
        for tau in range(n):
            a(f'v_cmp_eq_u32 vcc, {tau}, v{t+1}')
            a(f'v_cndmask_b32 v{dst+tau}, v{t+2}, v{t}, vcc')
    def silu(d, x, t):
        a(f'''v_mul_f32 v{t}, {hex(f2u(-LOG2E))}, v{x}
              v_exp_f32 v{t}, v{t}
              v_add_f32 v{t}, 1.0, v{t}
              v_rcp_f32 v{t}, v{t}
              v_mul_f32 v{t}, v{x}, v{t}''')
        rnd(f'v{d}', f'v{t}')
    def ln_apply(s1, s2, x, t):
        a(f'''v_mul_f32 v{t}, v{s1}, v{s1}
              v_fma_f32 v{t+1}, v{s1}, v{s1}, -v{t}
              v_fma_f32 v{t}, v{s2}, s59, -v{t}
              v_sub_f32 v{t}, v{t}, v{t+1}
              v_mul_f32 v{t}, {hex(f2u(1/448/448))}, v{t}
              v_max_f32 v{t}, 0, v{t}''')
        rnd(f'v{t}', f'v{t}')
        a(f'v_add_f32 v{t}, {hex(f2u(1e-5))}, v{t}')
        rnd(f'v{t}', f'v{t}')
        a(f'v_sqrt_f32 v{t}, v{t}\nv_mul_f32 v{t+1}, {hex(f2u(1/448))}, v{s1}')
        rnd(f'v{t}', f'v{t}'); rnd(f'v{t+1}', f'v{t+1}')
        a(f'v_rcp_f32 v{t}, v{t}\nv_sub_f32 v{t+1}, v{x[1]}, v{t+1}')
        rnd(f'v{t+1}', f'v{t+1}')
        a(f'v_mul_f32 v{t+1}, v{t+1}, v{t}')
        rnd(f'v{x[0]}', f'v{t+1}')
    def mma(n, acc, A, B, left=0, first=True, wait=True):
        for i in range(n):
            if wait: a(f's_waitcnt lgkmcnt({0 if (diag and only is None) else n-1-i+left})')
            a(f'v_mfma_f32_16x16x32_bf16 v[{acc}:{acc+3}], v[{A+4*i}:{A+4*i+3}], v[{B+4*i}:{B+4*i+3}], ' + ('0' if i == 0 and first else f'v[{acc}:{acc+3}]'))
    def mma2(acc, A, B, left=0, first=True, wait=True):
        for par in range(2):
            if wait: a(f's_waitcnt lgkmcnt({0 if (diag and only is None) else 1-par+left})')
            for hi in range(2):
                d = acc + 4 * hi; b = B + 4 * (2 * hi + par)
                a(f'v_mfma_f32_16x16x32_bf16 v[{d}:{d+3}], v[{A+4*par}:{A+4*par+3}], v[{b}:{b+3}], ' + ('0' if par == 0 and first else f'v[{d}:{d+3}]'))
    def sumrows(n, ldsoff, va, first=None):
        o = ldsoff // 256
        for u in range(n // 2): a(f'ds_read2st64_b32 v[{16+2*u}:{17+2*u}], v{va} offset0:{o+2*u} offset1:{o+2*u+1}')
        if n & 1: a(f'ds_read_b32 v22, v{va} offset:{ldsoff+256*(n-1)}\nv_mov_b32 v23, 0')
        a('s_waitcnt lgkmcnt(0)')
        if first: a(first)
        pk('add', 16, 16, 18); pk('add', 20, 20, 22); pk('add', 16, 16, 20)
        a('v_add_f32 v16, v16, v17')

    def getside(t):
        a(f'''v_mov_b32 v{t}, 0
              ds_read_b32 v{t}, v{t} offset:{FC+12}
              s_waitcnt lgkmcnt(0)
              v_readfirstlane_b32 s48, v{t}''')
    def dzero():
        if diag:
            for i in range(1, 16): a(f's_mov_b32 s{64+2*i}, 0')
    K0, V0 = 8, 56
    a(f'{KN}:')
    if probe: a('s_mov_b32 s68, 0')
    stamp(0)
    a(f'''s_load_dwordx16 s[4:19], s[0:1], 0
          s_load_dwordx8 s[20:27], s[0:1], 64
          s_load_dwordx2 s[28:29], s[0:1], 96
          v_readfirstlane_b32 s31, v0
          s_and_b32 s32, s2, 7
          s_lshr_b32 s33, s2, 3
          s_lshr_b32 s31, s31, 6
          s_sub_u32 s33, s33, 8
          s_cbranch_scc0 L_A''')
    a(f'''s_getpc_b64 s[48:49]
          L_pc:
          v_lshlrev_b32 v2, 7, v0
          v_min_u32 v2, L_code_end-L_pc-4, v2
          global_load_dword v127, v2, s[48:49]
          s_branch L_F
          L_A:
          s_cmp_ge_u32 s31, 8
          s_cbranch_scc1 L_Td
          s_cmp_ge_u32 s33, 17
          s_cbranch_scc1 L_a_u
          L_att:''')
    role[0] = 'att'
    ta, tb, tc, td = ((5, 16, 17, 42), (4, 13, 15, 43))[tbl]
    a(f'''s_mul_i32 s50, s33, {ta}
          s_add_u32 s51, s50, 6
          s_min_u32 s50, s50, {tb}
          s_min_u32 s51, s51, {tc}
          s_mul_i32 s49, s33, {td}
          L_att2:
          s_add_u32 s50, s50, s31
          s_min_u32 s48, s50, s51
          s_add_u32 s48, s48, s49
          s_mul_i32 s49, s31, 5
          s_add_u32 s48, s48, s49
          s_lshl_b32 s49, s32, 14
          s_add_u32 s48, s48, s49
          s_addk_i32 s48, {WINOFF // 2048 + 2}
          s_lshl_b32 s48, s48, 11
          v_and_b32 v2, 12, v0
          v_and_b32 v3, 48, v0
          v_and_b32 v4, 3, v0
          v_lshlrev_b32 v6, 7, v2
          v_lshl_add_u32 v6, v3, 2, v6
          v_lshl_add_u32 v6, v4, 4, v6
          s_waitcnt lgkmcnt(0)
          s_add_u32 s36, s6, s48
          s_addc_u32 s37, s7, 0
          s_cmp_le_u32 s50, s51
          s_cbranch_scc0 L_a_k1''')
    cnt = [0]
    win = [W, WH, WE, NE]
    def kvload(srd, va, base, t, hf, late=False):
        W, WH, WE, NE = win
        w = WH if late else WK if (WK and srd == 36) else W
        if WE and srd == 40 and 2 * (5 - t) + 1 - hf < NE: a(f's_waitcnt vmcnt({WE-1})')
        elif cnt[0] >= 6:
            if WH != w: a(f's_waitcnt vmcnt({WH-1})\ns_cbranch_vccnz L_w{cnt[0]}_\ns_waitcnt vmcnt({w-1})\nL_w{cnt[0]}_:')
            else: a(f's_waitcnt vmcnt({w-1})')
        cnt[0] += 1
        r = base + 8 * t + 4 * hf
        b = srd + 2 * (t // 4)
        a(f'global_load_dwordx4 v[{r}:{r+3}], v{va}, s[{b}:{b+1}] offset:{((t & 3) - 2) * 2048 + hf * 256}{nt}')
    kvload(36, 6, K0, 0, 0); kvload(36, 6, K0, 0, 1)
    a('L_a_k1:')
    for t in (1, 2): kvload(36, 6, K0, t, 0); kvload(36, 6, K0, t, 1)
    a('s_branch L_a_c')
    a('''L_a_u:
         s_cmp_ge_u32 s33, 24
         s_cbranch_scc1 L_end
         s_barrier''')
    if tbl: a('s_mov_b32 s50, 64\ns_mov_b32 s51, 63\ns_mul_i32 s49, s33, 40\ns_branch L_att2')
    else: a('s_branch L_att')
    a(f'''L_Td:
          s_cmp_ge_u32 s33, 24
          s_cbranch_scc1 L_end
          s_cmp_ge_u32 s33, 3
          s_cselect_b32 s50, 9, 0
          s_cmp_eq_u32 s31, s50
          s_cbranch_scc1 L_mod''')
    a(f'''s_cmp_ge_u32 s31, 12
          s_cbranch_scc0 L_T0
          v_mov_b32 v8, {hex(f2u(-3e38))}
          v_cmp_eq_u32 vcc, {768 + L_M // 16}, v0
          v_lshlrev_b32 v2, 4, v0
          v_mov_b32 v9, 0
          v_cndmask_b32 v8, 0, v8, vcc
          v_mov_b32 v11, 0
          v_subrev_u32 v2, {768 * 16}, v2
          v_mov_b32 v10, v8
          ds_write_b128 v2, v[8:11]
          s_waitcnt lgkmcnt(0)''')
    if lk:
        a('''s_lshl_b32 s50, s33, 4
             s_add_u32 s50, s50, s31
             s_cmp_eq_u32 s50, 12
             s_cbranch_scc0 L_T0
             v_mov_b32 v8, 1
             s_mov_b64 exec, 1
             global_atomic_add v9, v8, s[26:27] sc1
             s_mov_b64 exec, -1''')
    a(f'''L_T0:
          s_barrier
          s_branch L_T
          L_mod:''')
    role[0] = 'mod'
    def tail_setup():
        a('s_load_dword s30, s[28:29], 0\ns_sub_u32 s49, s31, 8')
        ws_srd(); perm_sel()
        a(f's_lshl_b32 s56, s49, 8\ns_add_u32 s56, s56, {L_PRIV}')
    a('v_and_b32 v0, 63, v0')
    setprio(3)
    a(f'''s_cmp_ge_u32 s33, 17
          s_cselect_b32 s50, -17, 4
          s_add_u32 s50, s50, s33
          s_lshl_b32 s50, s50, 3
          s_add_u32 s50, s50, s32
          s_and_b32 s51, s50, 3
          s_lshr_b32 s52, s50, 2
          s_mov_b32 s38, {448*5376}
          s_mov_b32 s39, 0x20000
          s_mov_b32 s42, 896
          s_mov_b32 s43, 0x20000
          s_mul_i32 s54, s51, {112*5376}
          s_lshl_b32 s55, s52, 7
          s_add_u32 s54, s54, s55
          s_mul_i32 s53, s51, 224
          v_lshlrev_b32 v2, 2, v0
          v_lshrrev_b32 v1, 3, v0
          v_mul_u32_u24 v3, {14*5376}, v1
          v_and_b32 v4, 7, v0
          v_lshl_add_u32 v3, v4, 4, v3
          s_waitcnt lgkmcnt(0)
          s_mov_b32 s36, s22
          s_mov_b32 s37, s23
          s_mov_b32 s40, s20
          s_mov_b32 s41, s21
          buffer_load_dword v8, v2, s[40:43], s53 offen''')
    for m in range(14):
        a(f'buffer_load_dwordx4 v[{72+4*m}:{75+4*m}], v3, s[36:39], s54 offen{nt}')
        if m < 13: a('s_add_u32 s54, s54, 5376')
    a('s_barrier')
    dzero(); stamp(1)
    tail_setup()
    a(f'''v_mul_u32_u24 v3, 37, v0
          v_lshrrev_b32 v3, 8, v3
          v_add_u32 v3, v3, v0
          v_lshl_add_u32 v3, v3, 2, s56
          v_lshl_add_u32 v1, v1, 5, s56
          v_and_b32 v9, 1, v0
          v_lshlrev_b32 v9, 4, v9
          v_mov_b32 v10, 0xffff
          v_lshlrev_b32 v9, v9, v10
          v_bfe_u32 v10, v0, 1, 2''')
    for rho in range(4):
        a(f'v_cmp_eq_u32 vcc, {rho}, v10')
        a(f'v_cndmask_b32 v{4+rho}, 0, v9, vcc')
    a('''s_mov_b32 s52, 0x01000100
         s_mov_b32 s53, 0x03020302
         s_waitcnt vmcnt(14)
         v_lshlrev_b32 v9, 16, v8
         v_and_b32 v10, 0xffff0000, v8''')
    silu(9, 9, 12); silu(10, 10, 13)
    a(f'''v_perm_b32 v9, v10, v9, s61
          s_mov_b32 exec_hi, 0xffffff
          ds_write_b32 v3, v9
          s_mov_b32 exec_hi, -1
          ds_read_b128 v[8:11], v1
          ds_read_b96 v[12:14], v1 offset:16
          s_lshr_b32 s51, s50, 5
          s_lshl_b32 s51, s51, 13
          s_lshl_b32 s50, s50, 8
          s_add_u32 s50, s50, s51
          s_add_u32 s50, s50, {X1}
          s_add_u32 s51, s50, {SIDE}
          v_lshrrev_b32 v2, 4, v0
          v_and_b32 v3, 7, v0
          v_lshlrev_b32 v3, 4, v3
          v_lshl_add_u32 v2, v2, 7, v3
          s_waitcnt lgkmcnt(0)''')
    tags()
    for m in range(14):
        a(f'v_perm_b32 v15, v{8+(m>>1)}, v{8+(m>>1)}, s{52+(m&1)}')
        for rho in range(4): a(f'v_and_b32 v{16+4*m+rho}, v15, v{4+rho}')
    a('v_and_b32_e64 v4, s34, 15\nv_and_b32_e64 v5, s35, 15')
    for m in range(14):
        a(f's_waitcnt vmcnt({13-m})')
        a(f'v_mfma_f32_16x16x32_bf16 v[8:11], v[{16+4*m}:{19+4*m}], v[{72+4*m}:{75+4*m}], ' + ('0' if m == 0 else 'v[8:11]'))
    a('''v_pk_mov_b32 v[12:13], v[8:9], v[8:9] op_sel:[0,1]
         v_pk_mov_b32 v[14:15], v[10:11], v[10:11] op_sel:[0,1]''')
    for i in range(4): a(f'v_permlane32_swap_b32 v{8+i}, v{12+i}')
    for i in range(4): a(f'v_add_f32_dpp v{8+i}, v{12+i}, v{8+i} row_ror:8 {DPPF}')
    a('s_mov_b64 exec, 0xff00ff')
    for i in range(4): a(f'v_and_or_b32 v{8+i}, v{8+i}, -16, v{4+(i&1)}')
    a('buffer_store_dwordx4 v[8:11], v2, s[44:47], s50 offen sc1\nbuffer_store_dwordx4 v[8:11], v2, s[44:47], s51 offen sc1\ns_mov_b64 exec, -1')
    stamp(2)
    setprio(0)
    a('s_cmp_lt_u32 s33, 14\ns_cbranch_scc1 L_t_go2')
    fin()
    role[0] = 'att'
    a('L_a_c:')
    def setup_att():
        dzero(); stamp(1)
        if lk: a('s_load_dword s56, s[26:27], 0')
        a(f'''s_load_dword s30, s[28:29], 0
              s_cmp_le_u32 s50, s51
              s_cselect_b32 s51, 1, 0
              s_add_u32 s38, s36, 8192
              s_addc_u32 s39, s37, 0
              s_add_u32 s40, s8, s48
              s_addc_u32 s41, s9, 0
              s_add_u32 s42, s40, 8192
              s_addc_u32 s43, s41, 0
              s_cmp_ge_u32 s33, 17
              s_cbranch_scc1 L_a_nb2
              s_barrier
              L_a_nb2:
              v_and_b32 v0, 63, v0
              v_and_b32 v5, 15, v0
              v_lshlrev_b32 v7, 5, v3
              v_lshl_add_u32 v7, v5, 4, v7
              v_bfe_u32 v2, v0, 3, 1
              v_lshlrev_b32 v1, 10, v2
              v_lshl_add_u32 v1, v3, 3, v1
              v_lshl_add_u32 v1, v4, 5, v1
              v_and_b32 v104, 1, v0
              v_lshlrev_b32 v104, 4, v104
              v_mov_b32 v105, 0xffff
              v_lshlrev_b32 v104, v104, v105
              v_bfe_u32 v105, v0, 1, 2''')
        for rho in range(4):
            a(f'v_cmp_eq_u32 vcc, {rho}, v105')
            a(f'v_cndmask_b32 v{2+rho}, 0, v104, vcc')
        ws_srd(); perm_sel()
        a(f'''s_mov_b32 s58, {hex(f2u(0.0625 * LOG2E))}
              s_bfe_u32 s57, s31, 0x10001
              s_lshl_b32 s49, s32, 1
              s_add_u32 s54, s57, s49
              s_mul_i32 s54, s54, 24
              s_add_u32 s54, s54, s33
              s_lshl_b32 s54, s54, 10
              s_lshr_b32 s49, s31, 2
              s_lshl_b32 s49, s49, 9
              s_add_u32 s54, s54, s49
              s_and_b32 s49, s31, 1
              s_lshl_b32 s49, s49, 8
              s_add_u32 s54, s54, s49
              s_add_u32 s55, s54, {X3F}
              s_add_u32 s54, s54, {X3}
              s_mul_i32 s59, s32, 24
              s_add_u32 s59, s59, s33
              s_lshl_b32 s59, s59, 7
              s_add_u32 s59, s59, {HINT}
              v_lshlrev_b32 v104, 2, v0
              s_mov_b32 s48, s51
              s_mov_b32 s49, 0
              s_mov_b64 vcc, s[48:49]''')
    setup_att()
    vl = [(t, hf) for t in range(1, 6) for hf in range(2)]
    late = vl[10 - NL:]
    assert 2 * (6 - touchpos) >= NL and NL <= 4 and hintpos == 7 and WE and NE >= NL and (not lk or LW[2] == WE)
    kvload(36, 6, K0, 3, 0); kvload(36, 6, K0, 3, 1)
    a('s_waitcnt lgkmcnt(0)')
    tags()
    def paced(x):
        for t in range(4, 6): kvload(36, 6, K0, t, 0); kvload(36, 6, K0, t, 1)
        stamp(2)
        a(f's_cmp_eq_u32 s51, 0\ns_cbranch_scc0 L_a_v0{x}')
        for i in range(4): a(f'v_mov_b32 v{K0+i}, {hex(f2u(-1e30))}')
        a(f's_branch L_a_v1{x}\nL_a_v0{x}:')
        kvload(40, 7, V0, 0, 0); kvload(40, 7, V0, 0, 1)
        a(f'L_a_v1{x}:')
        for t in range(1, 6):
            if t == touchpos:
                a('buffer_load_dword v6, v104, s[44:47], s55 offen sc1')
            for hf in range(2):
                if (t, hf) not in late: kvload(40, 7, V0, t, hf)
    if lk:
        if diag: a('s_add_u32 s82, s56, 1')
        a(f's_cmp_ge_u32 s56, {lk}\ns_cbranch_scc1 L_a_pl')
        def pl():
            keep = list(win); win[:] = LW
            a('L_a_pl:'); paced('l'); a('s_branch L_a_pd')
            win[:] = keep
        rare.append(pl)
    paced('')
    a('L_a_pd:')
    def count(off): a(f's_mov_b64 exec, 1\nds_inc_u32 v0, v2 offset:{off}\ns_mov_b64 exec, -1')
    def lateload(k):
        i = k - (4 - NL)
        if i < 0: return
        if adapt: a(f's_cmp_gt_u32 s63, {i}\ns_cbranch_scc1 L_a_l{i}')
        kvload(40, 7, V0, *late[i], late=True)
        if i == NL - 1: vdone('a')
        if adapt: a(f'L_a_l{i}:')
    def vdone(sfx):
        stamp(3); count(L_C)
        if hintpos == 7 and hintk:
            a(f'''s_cmp_eq_u32 s31, 0
                  s_cbranch_scc0 L_a_nh{sfx}
                  v_mov_b32 v114, s3
                  s_mov_b64 exec, 1
                  buffer_store_dword v114, v0, s[44:47], s59 offen
                  s_mov_b64 exec, -1
                  L_a_nh{sfx}:''')
    if not NL: vdone('a')
    a('s_mov_b32 s62, 0\ns_mov_b32 s63, 0')
    stamp(8)
    setprio(2)
    a(f'''L_a_q:
          ds_read_b128 v[104:107], v1 offset:{L_Q}
          ds_read_b128 v[108:111], v1 offset:{L_Q+16}
          ds_read_b128 v[112:115], v1 offset:{L_Q+512}
          ds_read_b128 v[116:119], v1 offset:{L_Q+528}
          s_waitcnt lgkmcnt(0)
          v_bitop3_b32 v120, v104, v108, s3 bitop3:0x7e
          v_bitop3_b32 v121, v112, v116, s3 bitop3:0x7e
          v_or_b32 v121, v120, v121
          v_cmp_ne_u32_sdwa vcc, v121, 0 src0_sel:WORD_0 src1_sel:DWORD''')
    for i in range(8): a(f'v_perm_b32 v{120+i}, v{105+2*i}, v{104+2*i}, s61')
    a('s_cbranch_vccnz L_a_qr\nL_a_qok:')
    def qrare():
        a('L_a_qr:')
        if adapt:
            for i in range(NL):
                a(f's_cmp_eq_u32 s63, {i}\ns_cbranch_scc0 L_a_qr{i}')
                keep = win[2]; win[2] = WR or keep
                kvload(40, 7, V0, *late[i], late=True)
                win[2] = keep
                if i == NL - 1: vdone('b')
                a(f's_mov_b32 s63, {i+1}\ns_branch L_a_q\nL_a_qr{i}:')
        a(f'''s_sleep 1
              s_add_u32 s62, s62, {STEP}
              s_cbranch_scc0 L_a_q
              s_branch L_a_qok''')
    rare.append(qrare)
    stamp(4)
    def qk(t, hf):
        k = K0 + 8 * t; tmp = 104 + 4 * (t & 3)
        if hf == 0: a(f'v_mfma_f32_16x16x32_bf16 v[{tmp}:{tmp+3}], v[{k}:{k+3}], v[120:123], 0')
        else: a(f'v_mfma_f32_16x16x32_bf16 v[{k}:{k+3}], v[{k+4}:{k+7}], v[124:127], v[{tmp}:{tmp+3}]')
    def step(t, i):
        if t < 0 or t > 5: return
        k = K0 + 8 * t
        if i == 0: a(f'v_mov_b32_dpp v{k+4}, v{k} quad_perm:[0,0,0,0] {DPPF}')
        else: a(f'v_add_f32_dpp v{k+4}, v{k+i}, v{k+4} quad_perm:[{i},{i},{i},{i}] {DPPF}')
    lateload(0)
    if WE: a(f's_waitcnt vmcnt({11 - NL})')
    a('s_cmp_eq_u32 s51, 0\ns_cbranch_scc1 L_a_qk1')
    qk(0, 0); qk(0, 1)
    a('L_a_qk1:')
    fl = ['v_mov_b32 v1, 0', 's_mov_b32 s62, 0', 's_lshl_b32 s48, s57, 3', 's_lshl_b32 s49, s31, 2']
    for t in range(1, 6):
        qk(t, 0); step(t - 3, 0); step(t - 4, 2)
        if t < 3: a(fl.pop(0))
        qk(t, 1); step(t - 3, 1); step(t - 4, 3)
        if t < 3: a(fl.pop(0))
        if t == 3: lateload(1)
    lateload(2)
    step(2, 2); step(3, 0); step(4, 0); step(2, 3); step(3, 1); step(4, 1)
    S = [K0 + 8 * t + 4 for t in range(6)]
    rnd(f'v{S[0]}', f'v{S[0]}')
    if WE: a(f's_waitcnt vmcnt({2 * (6 - touchpos) - 1})')
    a('v_and_b32 v6, 8, v0')
    step(5, 0); step(3, 2); step(4, 2); step(5, 1); step(3, 3); step(4, 3); step(5, 2)
    rnd(f'v{S[1]}', f'v{S[1]}'); rnd(f'v{S[2]}', f'v{S[2]}')
    step(5, 3)
    rnd(f'v{S[3]}', f'v{S[3]}'); rnd(f'v{S[4]}', f'v{S[4]}')
    a(f'v_max3_f32 v112, v{S[0]}, v{S[1]}, v{S[2]}')
    rnd(f'v{S[5]}', f'v{S[5]}')
    a(f'''v_max3_f32 v112, v112, v{S[3]}, v{S[4]}
          s_mov_b32 exec_lo, 0x01010101
          s_mov_b32 exec_hi, 0x01010101
          v_max_f32 v112, v112, v{S[5]}
          ds_max_f32 v6, v112 offset:{L_M}
          s_mov_b64 exec, 1
          ds_inc_u32 v0, v2 offset:{L_C+4}
          s_mov_b64 exec, -1
          v_mov_b32 v117, s48''')
    lateload(3)
    a(f'''L_a_s1:
          ds_read_b32 v113, v1 offset:{L_C+4}
          ds_read_b32 v112, v6 offset:{L_M}
          ds_read_b32 v116, v117 offset:{L_M}
          s_waitcnt lgkmcnt(0)
          v_cmp_ne_u32 vcc, 8, v113
          v_mul_f32 v112, s58, v112''')
    order = [1, 0, 2, 3, 4, 5]
    for t in order: a(f'v_fma_f32 v{S[t]+2}, v{S[t]}, s58, -v112')
    a('s_cbranch_vccnz L_a_s1r\nL_a_s1ok:')
    rare.append(lambda: a(f'L_a_s1r:\ns_add_u32 s62, s62, {STEP}\ns_cbranch_scc0 L_a_s1\ns_branch L_a_s1ok'))
    stamp(5)
    for t in order: a(f'v_exp_f32 v{S[t]}, v{S[t]+2}')
    def abuild(t):
        k = K0 + 8 * t
        a(f'v_cvt_pk_bf16_f32 v{k+5}, v{k+4}, v{k+4}')
        for rho in range(4): a(f'v_and_b32 v{k+rho}, v{k+5}, v{2+rho}')
    def pv(t, hf, first=False):
        k = K0 + 8 * t; v = V0 + 8 * t + 4 * hf; acc = 104 + 4 * hf
        n = 2 * (5 - t) + 1 - hf
        if n < max(W, WH, WE or 0): a(f's_waitcnt vmcnt({n})')
        a(f'v_mfma_f32_16x16x32_bf16 v[{acc}:{acc+3}], v[{k}:{k+3}], v[{v}:{v+3}], ' + ('0' if first else f'v[{acc}:{acc+3}]'))
    abuild(1)
    a(f'v_add_f32 v113, v{S[0]}, v{S[1]}\nv_add_f32 v114, v{S[2]}, v{S[3]}')
    pv(1, 0, True); abuild(2); pv(1, 1, True)
    a('s_cmp_eq_u32 s51, 0\ns_cbranch_scc1 L_a_pv2')
    abuild(0); pv(0, 0); pv(0, 1)
    a('L_a_pv2:')
    for t in range(2, 6):
        pv(t, 0)
        if t < 5: abuild(t + 1)
        pv(t, 1)
        if t == 2:
            a(f'''v_add_f32 v115, v{S[4]}, v{S[5]}
                  v_add_f32 v113, v113, v114
                  v_lshl_add_u32 v6, v6, 2, s49
                  v_add_f32 v113, v113, v115''')
            allred_rows('v_add_f32', 113, 114)
            a(f'''s_mov_b64 exec, 0x101
                  ds_write_b32 v6, v113 offset:{L_L}
                  s_mov_b64 exec, -1''')
        if t == 3:
            a(f'''s_lshl_b32 s48, s31, 11
                  v_lshl_add_u32 v6, v0, 4, s48
                  v_and_b32 v120, 4, v0
                  v_cmp_eq_u32 vcc, 0, v120
                  v_or_b32 v116, s34, v116
                  v_mov_b32 v119, s35
                  v_mov_b32 v118, 0xffffff00
                  v_cndmask_b32 v119, v119, v116, vcc
                  v_cndmask_b32_e64 v118, v118, 0, vcc
                  v_and_b32 v120, 3, v0
                  v_or_b32 v120, 0x07060500, v120
                  s_lshl_b32 s49, s31, 8
                  s_add_u32 s49, s49, {L_O}
                  v_lshlrev_b32 v121, 2, v0
                  v_add_u32 v122, s49, v121
                  v_lshlrev_b32 v117, 2, v117
                  s_mov_b32 s62, 0''')
    a(f'''ds_write_b128 v6, v[104:107] offset:{L_O}
          ds_write_b128 v6, v[108:111] offset:{L_O+1024}''')
    stamp(6)
    fill(fA[0], 123)
    a(f'''s_waitcnt lgkmcnt(0)
          s_barrier
          ds_read_b128 v[16:19], v117 offset:{L_L}
          ds_read_b128 v[20:23], v117 offset:{L_L+16}''')
    for u in range(4): a(f'ds_read2st64_b32 v[{8+2*u}:{9+2*u}], v122 offset0:{16*u} offset1:{16*u+8}')
    fill(fA[1], 123)
    a('s_waitcnt lgkmcnt(4)')
    pk('add', 16, 16, 18); pk('add', 20, 20, 22); pk('add', 16, 16, 20)
    a('v_add_f32 v16, v16, v17\nv_and_or_b32 v16, v16, v118, v119\ns_waitcnt lgkmcnt(0)')
    pk('add', 8, 8, 10); pk('add', 12, 12, 14); pk('add', 8, 8, 12)
    a('''v_add_f32 v8, v8, v9
         v_perm_b32 v8, v8, v16, v120
         buffer_store_dword v8, v121, s[44:47], s55 offen
         s_barrier''')
    stamp(7)
    setprio(0)
    a('s_cmp_lt_u32 s33, 14\ns_cbranch_scc0 L_a_x\ns_barrier\ns_sleep 3\nL_a_x:')
    if not nob: a('buffer_store_dword v8, v121, s[44:47], s54 offen sc1')
    if dirty:
        a(f's_add_u32 s28, s28, s55\ns_addc_u32 s29, s29, 0')
        for k in range(dirty): a(f's_add_u32 s28, s28, 0x100000\ns_addc_u32 s29, s29, 0\nglobal_store_dword v121, v8, s[28:29]')
    fin()
    for r in rare: r()
    rare.clear()

    role[0] = 'wo'
    a('L_T:\nv_and_b32 v0, 63, v0')
    if pf3:
        a(f'''s_cmp_eq_u32 s31, 13
              s_cbranch_scc0 L_T1
              s_mul_i32 s50, s33, 19
              s_lshl_b32 s51, s32, 10
              v_add_u32 v2, s50, v0
              v_min_u32 v2, 447, v2
              v_lshl_add_u32 v2, v2, 13, s51
              s_mov_b64 exec, 0x7ffff
              global_load_dword v127, v2, s[10:11] offset:384
              s_mov_b64 exec, -1
              L_T1:''')
    a('''s_cmp_lt_u32 s33, 14
         s_cbranch_scc1 L_t_go
         s_cmp_eq_u32 s31, 8
         s_cbranch_scc1 L_t_go''')
    if fpf:
        a(f'''s_cmp_lt_u32 s31, 10
              s_cbranch_scc1 L_end
              s_mul_i32 s50, s33, 6
              s_add_u32 s50, s50, s31
              s_sub_u32 s50, s50, 94
              s_cmp_lt_u32 s50, 56
              s_cbranch_scc0 L_end''')
        if fpf:
            a(f'''s_cmp_lt_u32 s32, 4
                  s_cselect_b32 s52, 6, 8
                  s_cselect_b32 s53, 0, 8
                  s_cselect_b32 s56, 0x77777777, -1
                  s_cselect_b32 s58, 21, 28
                  s_mul_i32 s52, s52, s32
                  s_sub_u32 s52, s52, s53
                  s_lshr_b32 s51, s50, 1
                  s_waitcnt lgkmcnt(0)
                  s_bitcmp1_b32 s50, 0
                  s_cbranch_scc1 L_pf_2
                  s_mul_i32 s54, s51, {16*3584}
                  s_lshl_b32 s52, s52, 6
                  s_add_u32 s54, s54, s52
                  v_lshrrev_b32 v4, 2, v0
                  v_mul_u32_u24 v4, 3584, v4
                  v_and_b32 v5, 3, v0
                  v_lshl_add_u32 v4, v5, 7, v4
                  v_add_u32 v4, s54, v4
                  s_branch L_pf_3
                  L_pf_2:
                  s_mul_i32 s52, s52, {32*896}
                  s_lshl_b32 s54, s51, 13
                  s_add_u32 s54, s54, s52
                  v_lshl_add_u32 v4, v0, 7, s54
                  s_mov_b64 s[16:17], s[18:19]
                  s_cmp_lt_u32 s51, s58
                  s_cselect_b32 s56, -1, 0
                  L_pf_3:
                  s_mov_b32 s57, s56''')
        if wopf:
            a(f'''s_lshl_b32 s52, s50, 13
                  s_mul_i32 s51, s32, {512*896}
                  s_add_u32 s52, s52, s51
                  v_lshl_add_u32 v2, v0, 7, s52''')
            ldswait('L_pf_g', L_C, wopf, 4)
            if wolanes < 64: a(f's_mov_b32 exec_hi, {(1 << (wolanes - 32)) - 1}')
            a('global_load_dword v3, v2, s[12:13]')
        a('s_barrier\ns_barrier')
        if fpf: a('s_mov_b64 exec, s[56:57]\ns_cbranch_execz L_end\nglobal_load_dword v6, v4, s[16:17]')
    a('''s_endpgm
         L_t_go:
         s_waitcnt lgkmcnt(0)''')
    dzero()
    a('L_t_go2:')
    tail_setup()
    a(f'''s_cmp_ge_u32 s33, 7
          s_cselect_b32 s50, 1, 0
          s_cselect_b32 s51, 7, 0
          s_sub_u32 s51, s33, s51
          s_lshl_b32 s52, s32, 1
          s_add_u32 s50, s50, s52
          s_lshl_b32 s52, s50, 8
          s_lshr_b32 s53, s49, 2
          s_lshl_b32 s53, s53, 7
          s_add_u32 s52, s52, s53
          s_and_b32 s53, s49, 1
          s_lshl_b32 s53, s53, 6
          s_add_u32 s52, s52, s53
          s_and_b32 s53, s49, 2
          s_lshl_b32 s53, s53, 1
          s_add_u32 s52, s52, s53
          s_mul_i32 s52, s52, 896
          s_lshl_b32 s53, s51, 7
          s_add_u32 s52, s52, s53
          s_add_u32 s53, s52, {8*896}
          s_mov_b32 s36, s12
          s_mov_b32 s37, s13
          s_mov_b32 s38, {4096*896}
          s_mov_b32 s39, 0x20000
          s_mul_i32 s40, s50, {24*1024}
          s_lshl_b32 s41, s49, 7
          s_add_u32 s40, s40, s41
          s_add_u32 s40, s40, {X3F}
          s_add_u32 s41, s40, 8192
          s_add_u32 s42, s40, 16384
          s_lshr_b32 s54, s50, 2
          s_lshl_b32 s54, s54, 13
          s_lshl_b32 s55, s50, 11
          s_add_u32 s54, s54, s55
          s_lshl_b32 s55, s51, 8
          s_add_u32 s54, s54, s55
          s_add_u32 s54, s54, {X4}
          s_add_u32 s55, s54, {SIDE}
          s_mov_b32 s43, 0
          s_mov_b32 s57, 0x0c04000c
          s_mov_b32 s58, {hex(f2u(0.0625 * LOG2E))}
          s_lshl_b32 s59, s49, 8
          s_add_u32 s59, s59, {L_P}
          v_lshrrev_b32 v12, 3, v0
          v_and_b32 v13, 7, v0
          v_lshlrev_b32 v3, 10, v12
          v_lshl_add_u32 v3, v13, 4, v3
          v_lshrrev_b32 v5, 4, v0
          v_lshl_add_u32 v5, v13, 2, v5
          v_lshl_add_u32 v5, v5, 1, s56
          v_lshl_add_u32 v6, v0, 4, s59
          v_lshlrev_b32 v4, 2, v0''')
    voff4(1, 16 * 896, 896, 12)
    def wold():
        stamp(3)
        for u in range(4):
            a(f'buffer_load_dwordx4 v[{80+4*u}:{83+4*u}], v1, s[36:39], s{52+(u>>1)} offen offset:{(u&1)*2*896}{wont}')
    maskaddr(8, 2, 's56', L_Z + 64, 12)
    a('s_waitcnt lgkmcnt(0)')
    tags()
    lanetag(7, 0); rowtag(98, 99)
    a(f'''s_cmp_eq_u32 s49, 0
          s_cbranch_scc0 L_wo
          v_lshlrev_b32 v2, 4, v0
          s_lshl_b32 s4, s32, 11
          s_add_u32 s4, s4, {X2F}
          s_mov_b32 m0, {L_Q}
          s_mov_b32 s62, 0
          s_setprio {pprio}
          L_p_loop:
          buffer_load_dwordx4 v2, s[44:47], s4 offen sc1 lds
          buffer_load_dwordx4 v2, s[44:47], s4 offen offset:1024 sc1 lds
          s_sleep {sleep}
          s_cmp_eq_u32 s62, {(1 << fastbits) * STEP}
          s_cselect_b32 s5, {X2F - X2}, 0
          s_sub_u32 s4, s4, s5
          ds_read2st64_b32 v[12:13], v2 offset0:{L_Q // 256} offset1:{L_Q // 256 + 4}
          s_waitcnt vmcnt(32) lgkmcnt(0)
          v_bitop3_b32 v12, v12, v13, s3 bitop3:0x7e
          v_cmp_ne_u32_sdwa vcc, v12, 0 src0_sel:WORD_0 src1_sel:DWORD''')
    spin('L_p_loop', 'L_p_ok')
    a('s_setprio 0')
    stamp(2)
    a('s_cmp_lt_u32 s33, 14\ns_cbranch_scc0 L_fin\nL_wo:')
    if not wolate:
        ldswait('L_wo_g', L_C, gaten, 2)
        wold()
    else: a('v_mov_b32 v100, 0')
    setprio(3)
    a('s_barrier\ns_barrier')
    if wolate: wold()
    stamp(4)
    x3l = [f'buffer_load_dwordx4 v[{32+4*s}:{35+4*s}], v3, s[44:47], s{40+s} offen sc1' for s in range(3)]
    for l in x3l: a(l)
    a('s_waitcnt vmcnt(3)')
    fix4(80, 48); perms64(80, 16)
    stamp(5)
    gather('L_x3', x3l, 32, 4, 7, issued=True, nfast=2 << fastbits, warm=(fX3, 62),
           spec='\n'.join(f'v_perm_b32 v{48+2*s}, v{34+4*s}, v{33+4*s}, s57' for s in range(3)),
           switch='\n'.join(f's_sub_u32 s{40+s}, s{40+s}, {X3F - X3}' for s in range(3)) + '\ns_barrier\ns_mov_b32 s43, 1')
    stamp(6)
    for s in range(3): a(f'v_lshl_or_b32 v{48+2*s}, v{35+4*s}, 24, v{48+2*s}')
    a(f'''v_max3_f32 v54, v48, v50, v52
          v_xor_b32 v32, v32, v7
          v_xor_b32 v36, v36, v7
          v_max_f32_dpp v54, v54, v54 row_ror:8 {DPPF}
          v_mov_b32 v55, v54
          v_xor_b32 v40, v40, v7
          v_permlane32_swap_b32 v54, v55
          v_max_f32 v54, v54, v55
          v_mov_b32 v55, v54
          v_permlane16_swap_b32 v54, v55
          v_max_f32 v54, v54, v55''')
    for s in range(3): a(f'v_sub_f32 v{49+2*s}, v{48+2*s}, v54')
    for s in range(3): a(f'v_mul_f32 v{49+2*s}, s58, v{49+2*s}')
    for s in range(3): a(f'v_exp_f32 v{49+2*s}, v{49+2*s}')
    for s in range(3): a(f'v_mov_b32_dpp v{56+2*s}, v{49+2*s} quad_perm:[0,0,2,2] {DPPF}')
    a(f'''v_mul_f32 v54, v56, v48
          v_pk_mul_f32 v[32:33], v[32:33], v[56:57] op_sel_hi:[1,0]
          v_fmac_f32 v54, v58, v50
          v_pk_mul_f32 v[34:35], v[34:35], v[56:57] op_sel_hi:[1,0]
          v_fmac_f32 v54, v60, v52
          v_pk_fma_f32 v[32:33], v[36:37], v[58:59], v[32:33] op_sel_hi:[1,0,1]
          v_pk_fma_f32 v[34:35], v[38:39], v[58:59], v[34:35] op_sel_hi:[1,0,1]
          v_add_f32_dpp v54, v54, v54 row_ror:8 {DPPF}
          v_pk_fma_f32 v[32:33], v[40:41], v[60:61], v[32:33] op_sel_hi:[1,0,1]
          v_mov_b32 v55, v54
          v_pk_fma_f32 v[34:35], v[42:43], v[60:61], v[34:35] op_sel_hi:[1,0,1]
          v_permlane32_swap_b32 v54, v55
          v_add_f32 v54, v54, v55
          v_permlane32_swap_b32 v32, v34
          v_mov_b32 v55, v54
          v_permlane32_swap_b32 v33, v35
          v_pk_add_f32 v[32:33], v[32:33], v[34:35]
          v_permlane16_swap_b32 v54, v55
          v_add_f32 v54, v54, v55
          v_permlane16_swap_b32 v32, v33
          v_add_f32 v32, v32, v33
          v_rcp_f32 v54, v54
          v_add_f32_dpp v32, v32, v32 row_ror:8 {DPPF}
          v_mul_f32_dpp v32, v54, v32 quad_perm:[1,1,3,3] {DPPF}''')
    rnd('v32', 'v32')
    a('ds_write_b16_d16_hi v5, v32')
    for tau in range(2): a(f'ds_read_b128 v[{64+4*tau}:{67+4*tau}], v{8+tau}')
    mma2(72, 64, 16)
    a(f'''s_mov_b32 s62, 0
          s_mov_b64 exec, 0xffff
          s_cmp_eq_u32 s43, 0
          ds_write_b128 v6, v[74:77]
          s_mov_b64 exec, 1
          ds_inc_u32 v0, v98 offset:{L_C+16}''')
    a('s_cbranch_scc0 L_wo_nb\ns_barrier\nL_wo_nb:')
    a(f'''s_mov_b64 exec, -1
          s_cmp_eq_u32 s49, 0
          s_cbranch_scc0 L_fin
          L_wo_s:
          ds_read_b32 v24, v100 offset:{L_C+16}''')
    sumrows(8, L_P, 4, 'v_cmp_ne_u32 vcc, 8, v24')
    rare.append(lambda: a(f'L_wo_sr:\ns_add_u32 s62, s62, {STEP}\ns_cbranch_scc0 L_wo_s\ns_branch L_wo_sok'))
    a(f'''v_and_or_b32 v16, v16, v98, v99
          s_cbranch_vccnz L_wo_sr
          L_wo_sok:
          buffer_store_dword v16, v4, s[44:47], s54 offen sc1
          buffer_store_dword v16, v4, s[44:47], s55 offen sc1''')
    stamp(7)
    a('L_fin:')
    fin()
    for r in rare: r()
    rare.clear()

    role[0] = 'F'
    a(f'''L_F:
          s_add_u32 s33, s33, 8
          v_and_b32 v0, 63, v0
          s_cmp_ge_u32 s31, 7
          s_cbranch_scc1 L_F7
          s_lshl_b32 s48, s31, 19
          s_lshl_b32 s49, s32, 10
          s_add_u32 s48, s48, s49
          s_lshl_b32 s49, s33, 7
          s_add_u32 s48, s48, s49
          v_lshrrev_b32 v3, 4, v0
          v_lshlrev_b32 v2, 16, v3
          v_and_b32 v4, 8, v0
          v_lshl_add_u32 v2, v4, 10, v2
          v_and_b32 v5, 7, v0
          v_lshl_add_u32 v2, v5, 4, v2
          v_lshl_add_u32 v5, v5, 4, v4
          v_lshl_add_u32 v6, v3, 1, v5
          s_lshl_b32 s50, s31, 7
          v_add_u32 v101, s50, v6
          v_lshlrev_b32 v7, 4, v0
          s_mov_b32 s38, {448*8192}
          s_mov_b32 s39, 0x20000
          s_mov_b32 s42, 896
          s_mov_b32 s43, 0x20000
          s_waitcnt lgkmcnt(0)
          s_mov_b32 s36, s10
          s_mov_b32 s37, s11
          s_mov_b32 s40, s4
          s_mov_b32 s41, s5
          buffer_load_dwordx4 v[96:99], v7, s[40:43], 0 offen
          buffer_load_ushort v100, v101, s[40:43], 0 offen''')
    for u in range(2):
        for t in range(4):
            a(f'buffer_load_dwordx4 v[{32+16*u+4*t}:{35+16*u+4*t}], v2, s[36:39], s48 offen{nt}')
            if not (u == 1 and t == 3): a(f's_add_u32 s48, s48, {2*8192 if t < 3 else 26*8192}')
        if u == 0: a('s_barrier')
    dzero(); stamp(1)
    a('s_load_dword s30, s[28:29], 0')
    ws_srd(); perm_sel()
    a(f'''s_lshl_b32 s52, s31, 8
          s_add_u32 s56, s52, 0x2400
          s_mov_b32 s59, {hex(f2u(448.0))}
          s_mov_b32 s58, 0x3f803f80
          v_mov_b32 v12, 0
          v_lshlrev_b32 v4, 2, v0
          ds_write_b32 v4, v12 offset:{FZ}
          v_add_u32 v6, s56, v6
          v_lshl_add_u32 v5, v5, 1, s52''')
    maskaddr(8, 2, 's56', FZ + 64, 12)
    a('''s_waitcnt vmcnt(8)
         v_dot2_f32_bf16 v102, v96, s58, 0
         v_dot2_f32_bf16 v103, v96, v96, 0''')
    for i in range(1, 4):
        a(f'v_dot2_f32_bf16 v102, v{96+i}, s58, v102')
        a(f'v_dot2_f32_bf16 v103, v{96+i}, v{96+i}, v103')
    for sh in (8, 4, 2, 1):
        a(f'v_add_f32_dpp v102, v102, v102 row_ror:{sh} {DPPF}')
        a(f'v_add_f32_dpp v103, v103, v103 row_ror:{sh} {DPPF}')
    allred_rows('v_add_f32', 102, 104); allred_rows('v_add_f32', 103, 104)
    a('v_lshlrev_b32 v96, 16, v100')
    ln_apply(102, 103, (100, 96), 104)
    a(f'''s_lshl_b32 s52, s32, 11
          s_lshl_b32 s53, s33, 8
          s_add_u32 s52, s52, s53
          s_add_u32 s53, s52, {X2F}
          s_add_u32 s52, s52, {X2}
          s_waitcnt lgkmcnt(0)''')
    tags()
    a('s_waitcnt vmcnt(4)')
    fix4(32, 104); perms64(32, 64)
    a(f'''s_mov_b32 s49, {X1}
          s_add_u32 s50, s31, 0
          s_lshr_b32 s63, s50, 3
          s_lshl_b32 s63, s63, 13
          s_lshl_b32 s50, s50, 10
          s_add_u32 s50, s50, s63
          s_add_u32 s50, s50, s49
          s_add_u32 s51, s31, 7
          s_lshr_b32 s63, s51, 3
          s_lshl_b32 s63, s63, 13
          s_lshl_b32 s51, s51, 10
          s_add_u32 s51, s51, s63
          s_add_u32 s51, s51, s49
          s_waitcnt vmcnt(0)''')
    fix4(48, 104); perms64(48, 80)
    a('''s_add_u32 s8, s31, 14
          s_lshr_b32 s63, s8, 3
          s_lshl_b32 s63, s63, 13
          s_lshl_b32 s8, s8, 10
          s_add_u32 s8, s8, s63
          s_add_u32 s8, s8, s49
          s_add_u32 s9, s31, 21
          s_lshr_b32 s63, s9, 3
          s_lshl_b32 s63, s63, 13
          s_lshl_b32 s9, s9, 10
          s_add_u32 s9, s9, s63
          s_add_u32 s9, s9, s49
          s_add_u32 s10, s31, 28
          s_lshr_b32 s63, s10, 3
          s_lshl_b32 s63, s63, 13
          s_lshl_b32 s10, s10, 10
          s_add_u32 s10, s10, s63
          s_add_u32 s10, s10, s49
          s_add_u32 s11, s31, 35
          s_lshr_b32 s63, s11, 3
          s_lshl_b32 s63, s63, 13
          s_lshl_b32 s11, s11, 10
          s_add_u32 s11, s11, s63
          s_add_u32 s11, s11, s49''')
    stamp(2)
    poll4('L_q_x1', [f'buffer_load_dwordx4 v[{32+4*s}:{35+4*s}], v41, s[44:47], s{50+s} offen sc1' for s in range(2)], 32, 40)
    stamp(3)
    if mxe:
        for s in range(4): a(f'buffer_load_dwordx4 v[{104+4*s}:{107+4*s}], v41, s[44:47], s{8+s} offen sc1')
    rscatter(36); rscatter(32)
    rnd('v36', 'v36'); rnd('v32', 'v32')
    a('v_add_f32 v36, 1.0, v36'); rnd('v36', 'v36')
    a('v_mul_f32 v36, v100, v36'); rnd('v36', 'v36')
    a('v_add_f32 v36, v36, v32'); rnd('v36', 'v36')
    a('ds_write_b16_d16_hi v6, v36')
    for u in range(2):
        for tau in range(2): a(f'ds_read_b128 v[{32+8*u+4*tau}:{35+8*u+4*tau}], v{8+tau} offset:{64*u}')
    mma2(48, 32, 64, left=2); mma2(48, 40, 80, first=False)
    a(f'''v_mov_b32 v24, 1
          s_mov_b32 s62, 0
          s_mov_b64 exec, 0xffff
          s_cmp_eq_u32 s31, 0
          ds_write_b128 v5, v[50:53] offset:{FP}
          s_mov_b64 exec, 1
          ds_add_u32 v0, v24 offset:{FC+4}
          s_mov_b64 exec, -1
          s_cbranch_scc0 L_q_done
          v_mov_b32 v25, 0
          L_q_s:
          ds_read_b32 v24, v25 offset:{FC+4}''')
    sumrows(7, FP, 4, 'v_cmp_ne_u32 vcc, 8, v24')
    rnd('v16', 'v16')
    rare.append(lambda: a(f'L_q_sr:\ns_add_u32 s62, s62, {STEP}\ns_cbranch_scc0 L_q_s\ns_branch L_q_sok'))
    a('''v_or_b32 v16, s3, v16
         s_cbranch_vccnz L_q_sr
         L_q_sok:
         buffer_store_dword v16, v4, s[44:47], s53 offen
         buffer_store_dword v16, v4, s[44:47], s52 offen sc1''')
    a(f'ds_write_b32 v25, v24 offset:{FC+16}')
    if rewarm:
        a(f'''s_cmp_eq_u32 s33, 7
              s_cbranch_scc0 L_q_done
              s_getpc_b64 s[4:5]
              L_pc2:
              s_sub_u32 s4, s4, L_pc2-L_pc
              s_subb_u32 s5, s5, 0
              v_lshlrev_b32 v102, 7, v0
              v_add_u32 v103, 0x2000, v102
              v_min_u32 v103, L_code_end-L_pc-4, v103
              global_load_dword v127, v102, s[4:5] sc1
              global_load_dword v127, v103, s[4:5] sc1''')
    a('L_q_done:')
    stamp(4)
    def ffn_id(skip):
        a(f'''s_cmp_lt_u32 s32, 4
              s_cselect_b32 s50, 6, 8
              s_cselect_b32 s51, 0, 8
              s_cmp_lt_u32 s33, s50
              s_cbranch_scc0 {skip}''')
    ffn_id('L_fin2')
    a(f'''s_mul_i32 s50, s50, s32
          s_add_u32 s50, s50, s33
          s_sub_u32 s50, s50, s51
          s_mov_b32 s36, s16
          s_mov_b32 s37, s17
          s_mov_b32 s38, {448*3584}
          s_mov_b32 s40, s18
          s_mov_b32 s41, s19
          s_mov_b32 s42, {1792*896}
          s_mul_i32 s52, s31, {64*3584}
          s_lshl_b32 s53, s50, 6
          s_add_u32 s52, s52, s53
          s_mul_i32 s54, s50, {32*896}
          s_lshl_b32 s55, s31, 7
          s_add_u32 s54, s54, s55
          s_add_u32 s55, s54, {4*896}
          v_and_b32 v4, 15, v0
          v_mul_u32_u24 v2, {8*3584}, v3
          v_lshl_add_u32 v2, v4, 2, v2''')
    voff4(1, 8 * 896, 896, 102)
    if not mxe or not hintk: ldswait('L_f_q', FC + 16, 1, 1, 102)
    poll4('L_f_mx', [f'buffer_load_dwordx4 v[{104+4*s}:{107+4*s}], v121, s[44:47], s{8+s} offen sc1' for s in range(4)], 104, 120, 0, mxe)
    for s in range(4): rscatter(104 + 4 * s)
    rnd('v102', 'v104'); rnd('v98', 'v108'); rnd('v100', 'v112'); rnd('v116', 'v116')
    a('v_add_f32 v100, 1.0, v100\ns_lshl_b32 s13, s31, 8\nv_lshl_add_u32 v103, v0, 2, s13')
    rnd('v100', 'v100')
    a(f'''ds_write_b32 v103, v116 offset:{FG}
          ds_write_b32 v103, v98 offset:{FS}
          ds_write_b32 v103, v100 offset:{FK}
          v_mov_b32 v105, 1
          s_mov_b64 exec, 1
          ds_add_u32 v0, v105 offset:{FC+20}
          s_mov_b64 exec, -1
          s_cmp_ge_u32 s31, 4
          s_cbranch_scc1 L_f_nw''')
    if hintk: ldswait('L_f_g', FC + 8, 1, 1, 104)
    if fdelay: a(f's_sleep {fdelay}')
    stamp(5)
    def w1ld(r):
        for i in range(16):
            a(f'buffer_load_dword v{r+i}, v2, s[36:39], s52 offen offset:{3584*(i&1)}{w1nt}')
            if i & 1: a(f's_add_u32 s52, s52, {(2 if i & 7 != 7 else 26 if i == 7 else 256 - 38)*3584}')
    def w2ld(r, o):
        for u in range(4):
            a(f'buffer_load_dwordx4 v[{r+4*u}:{r+3+4*u}], v1, s[40:43], s{54+(u>>1)} offen offset:{(u&1)*2*896 + o}{nt}')
    def w1perm(r, d):
        for aa in range(2):
            for tau in range(2):
                for rho in range(4):
                    a(f'v_perm_b32 v{d+8*aa+4*tau+rho}, v{r+8*aa+2*rho+1}, v{r+8*aa+2*rho}, s{60+tau}')
    w1ld(32)
    a('s_cmp_eq_u32 s31, 3\ns_cbranch_scc1 L_f_n1')
    w1ld(48)
    a('L_f_n1:')
    w2ld(64, 0)
    a('s_cmp_eq_u32 s31, 3\ns_cbranch_scc1 L_f_n2')
    w2ld(80, 512)
    a(f'''L_f_n2:
          s_lshr_b32 s12, s50, 2
          s_lshl_b32 s12, s12, 13
          s_lshl_b32 s14, s50, 11
          s_add_u32 s12, s12, s14
          s_add_u32 s12, s12, s13
          s_add_u32 s12, s12, {X5}
          v_and_b32 v7, 1, v3
          v_lshlrev_b32 v7, 13, v7
          v_lshl_add_u32 v7, v4, 4, v7
          s_add_u32 s57, s56, 1024
          s_lshl_b32 s52, s31, 7
          s_add_u32 s52, s52, {FP2}
          v_and_b32 v14, 31, v0
          v_lshl_add_u32 v15, v14, 1, s57
          v_lshlrev_b32 v14, 2, v14
          v_add_u32 v14, {FP2}, v14''')
    maskaddr(10, 2, 's57', FZ + 64, 104)
    a('v_lshl_add_u32 v8, v3, 4, s56')
    ldswait('L_f_k', FC + 20, 7, 1, 104)
    a(f'''ds_read_b32 v99, v103 offset:{FS+1024}
          ds_read_b32 v101, v103 offset:{FK+1024}''')
    stamp(6)
    a('s_cmp_eq_u32 s31, 3\ns_cbranch_scc0 L_f_n3\ns_waitcnt vmcnt(0)\nL_f_n3:\ns_waitcnt vmcnt(24)')
    w1perm(32, 16)
    a('s_waitcnt vmcnt(8)')
    w1perm(48, 32)
    a('s_waitcnt vmcnt(4)')
    fix4(64, 104); perms64(64, 48)
    a(f'''v_mov_b32 v105, 1
          s_waitcnt vmcnt(0)
          s_mov_b64 exec, 1
          ds_add_u32 v0, v105 offset:{FC}
          s_mov_b64 exec, -1''')
    fix4(80, 108); perms64(80, 64)
    a('s_branch L_f_w\nL_f_nw:')
    ldswait('L_f_g2', FC, 3, 2, 104)
    a('L_f_w:')
    lanetag(5, 0)
    getside(104)
    a(f'''v_lshlrev_b32 v2, 11, v3
          v_lshl_add_u32 v2, v4, 4, v2
          v_lshl_add_u32 v4, v0, 3, s52
          s_add_u32 s40, s13, s48
          s_add_u32 s40, s40, {X4}
          s_add_u32 s41, s40, {1 << 14}
          s_add_u32 s42, s40, {2 << 14}
          s_add_u32 s43, s40, {3 << 14}
          s_lshl_b32 s52, s31, 3
          s_add_u32 s52, s52, {FST}
          v_lshrrev_b32 v1, 5, v0
          v_lshl_add_u32 v3, v1, 2, s52
          v_mov_b32 v1, {FST}
          s_mov_b32 s57, 0xffffff00''')
    x4l = [f'buffer_load_dwordx4 v[{80+4*s}:{83+4*s}], v2, s[44:47], s{40+s} offen sc1' for s in range(4)]
    setprio(2)
    stamp(7)
    def sum_hi(r, d):
        return f'''v_pk_add_f32 v[{d+2}:{d+3}], v[{r+2}:{r+3}], v[{r+6}:{r+7}]
                   v_pk_add_f32 v[{d}:{d+1}], v[{r+10}:{r+11}], v[{r+14}:{r+15}]
                   v_pk_add_f32 v[{d+2}:{d+3}], v[{d+2}:{d+3}], v[{d}:{d+1}]'''
    def sum_lo(r, d):
        for s in range(4): a(f'v_xor_b32 v{r+4*s}, v{r+4*s}, v5')
        pk('add', r, r, r + 4); pk('add', r + 8, r + 8, r + 12); pk('add', d, r, r + 8)
    gather('L_x4', x4l, 80, 4, 5, spec=sum_hi(80, 104), warm=(fX4, 9))
    stamp(8)
    sum_lo(80, 104)
    rscatter(104)
    rnd('v104', 'v104'); a('v_mul_f32 v104, v102, v104'); rnd('v104', 'v104'); a('v_add_f32 v104, v96, v104'); rnd('v105', 'v104')
    xs('x2')
    a(f'''v_mul_f32 v106, v105, v105
          v_mov_b32 v96, v105
          ds_write_b32 v103, v105 offset:{FX}
          v_permlane32_swap_b32 v105, v106
          v_add_f32 v105, v105, v106
          v_add_f32_dpp v105, v105, v105 row_ror:8 {DPPF}
          v_add_f32_dpp v105, v105, v105 row_ror:4 {DPPF}
          v_add_f32_dpp v105, v105, v105 row_ror:2 {DPPF}
          v_add_f32_dpp v105, v105, v105 row_ror:1 {DPPF}
          s_cmp_ge_u32 s31, 4
          v_add_f32_dpp v105, v105, v105 row_bcast:15 row_mask:0xa bank_mask:0xf
          s_mov_b32 exec_lo, 0x10000
          s_mov_b32 exec_hi, 0x10000
          ds_write_b32 v3, v105
          s_mov_b64 exec, -1''')
    fill(fB3p, 9)
    a('s_waitcnt lgkmcnt(0)')
    xs('preB3')
    a('s_barrier\ns_cbranch_scc1 L_fin5')
    xs('B3')
    a(f'''ds_read_b128 v[80:83], v1
          ds_read_b128 v[84:87], v1 offset:16
          ds_read_b128 v[88:91], v1 offset:32
          ds_read_b64 v[92:93], v1 offset:48
          ds_read_b32 v97, v103 offset:{FX+1024}
          s_cmp_eq_u32 s31, 3''')
    fill(fB3, 9)
    a(f's_waitcnt lgkmcnt({0 if (diag and only is None) else 3})')
    pk('add', 80, 80, 82); pk('add', 84, 84, 86)
    a(f's_waitcnt lgkmcnt({0 if (diag and only is None) else 1})')
    xs('st')
    pk('add', 88, 88, 90); pk('add', 80, 80, 84); pk('add', 88, 88, 92); pk('add', 80, 80, 88)
    a(f'''v_mul_f32 v84, v80, v80
          v_fma_f32 v85, v80, v80, -v84
          v_fma_f32 v84, v81, s59, -v84
          v_sub_f32 v84, v84, v85
          v_mul_f32 v84, {hex(f2u(1/448/448))}, v84
          v_max_f32 v84, 0, v84''')
    rnd('v84', 'v84')
    a(f'v_add_f32 v84, {hex(f2u(1e-5))}, v84')
    rnd('v84', 'v84')
    a(f'v_sqrt_f32 v84, v84\nv_mul_f32 v86, {hex(f2u(1/448))}, v80')
    rnd('v84', 'v84'); rnd('v86', 'v86')
    a('''v_rcp_f32 v84, v84
         s_waitcnt lgkmcnt(0)
         v_pk_add_f32 v[82:83], v[96:97], v[86:87] op_sel_hi:[1,0] neg_lo:[0,1] neg_hi:[0,1]''')
    rnd('v82', 'v82'); rnd('v83', 'v83')
    a('v_pk_mul_f32 v[82:83], v[82:83], v[84:85] op_sel_hi:[1,0]')
    rnd('v82', 'v82'); rnd('v83', 'v83')
    xs('ln')
    pk('mul', 82, 82, 100)
    rnd('v82', 'v82'); rnd('v83', 'v83')
    pk('add', 82, 82, 98)
    a('''v_cvt_pk_bf16_f32 v120, v82, v83
         ds_write_b16 v6, v120
         ds_write_b16_d16_hi v6, v120 offset:128''')
    for k in range(4): a(f'ds_read_b128 v[{80+4*k}:{83+4*k}], v8 offset:{64*k}')
    if fB4[0]: a.fill = 9; fill(8, 9)
    for k in range(4):
        if k == 2: a('s_cbranch_scc1 L_f_m1')
        a(f's_waitcnt lgkmcnt({0 if (diag and only is None) else 3-k})')
        for tau in range(2):
            d = 120 + 4 * tau; b = 16 + 8 * k + 4 * tau
            a(f'v_mfma_f32_16x16x32_bf16 v[{d}:{d+3}], v[{80+4*k}:{83+4*k}], v[{b}:{b+3}], ' + ('0' if k == 0 else f'v[{d}:{d+3}]'))
    a('L_f_m1:')
    stamp(11); xs('mm1')
    a(f'''s_mov_b64 exec, 0xffff
          ds_write2_b32 v4, v120, v124 offset0:0 offset1:1
          s_mov_b64 exec, -1''')
    a.fill = None
    fill(fB4[0], 9)
    a('s_waitcnt lgkmcnt(0)')
    xs('preB4')
    a('s_barrier')
    xs('B4')
    a(f'''ds_read2_b32 v[80:81], v14 offset0:0 offset1:32
          ds_read2_b32 v[82:83], v14 offset0:64 offset1:96''')
    fill(fB4[1], 9)
    a('s_waitcnt lgkmcnt(0)')
    xs('u')
    pk('add', 80, 80, 82)
    a('v_add_f32 v80, v80, v81')
    rnd('v80', 'v80')
    silu(80, 80, 81)
    a('ds_write_b16_d16_hi v15, v80')
    for tau in range(2): a(f'ds_read_b128 v[{84+4*tau}:{87+4*tau}], v{10+tau}')
    mma2(104, 84, 48)
    a('s_cbranch_scc1 L_f_m2')
    mma2(112, 84, 64, wait=False)
    xs('mm2')
    a('''s_mov_b32 exec_hi, 0
         v_and_or_b32 v106, v106, s57, v5
         buffer_store_dwordx4 v[106:109], v7, s[44:47], s12 offen sc1
         v_and_or_b32 v114, v114, s57, v5
         buffer_store_dwordx4 v[114:117], v7, s[44:47], s12 offen offset:1024 sc1
         L_f_m3:''')
    rare.append(lambda: a('''L_f_m2:
         s_mov_b32 exec_hi, 0
         v_and_or_b32 v106, v106, s57, v5
         buffer_store_dwordx4 v[106:109], v7, s[44:47], s12 offen sc1
         s_branch L_f_m3'''))
    stamp(9)
    a('s_barrier\nL_fin2:')
    fin()
    a('L_fin5:')
    if diag: a('s_barrier\ns_barrier')
    fin()
    for r in rare: r()
    rare.clear()
    a(f'''L_F7:
          v_mov_b32 v2, 0
          s_cmp_eq_u32 s31, 7
          s_cbranch_scc0 L_F8
          v_lshlrev_b32 v3, 2, v0
          ds_write_b32 v3, v2 offset:{FC & ~255}
          s_waitcnt lgkmcnt(0)
          s_load_dword s30, s[28:29], 0''')
    a(f'''s_barrier
          v_mov_b32 v4, 1
          s_waitcnt lgkmcnt(0)
          s_mov_b64 exec, 1
          ds_add_u32 v2, v4 offset:{FC+4}
          s_mov_b64 exec, -1''')
    dzero()
    ws_srd()
    ffn_id('L_fin3')
    if hintk:
        a(f'''s_mul_i32 s49, s32, {24*128}
              s_add_u32 s49, s49, {HINT}
              v_lshlrev_b32 v102, 7, v0''')
        if mxe:
            ldswait('L_7_t', FC + 4, 2, 4, 104)
            a('s_mov_b64 exec, 0xffffff\nbuffer_load_dword v103, v102, s[44:47], s49 offen sc1\ns_mov_b64 exec, -1')
    ldswait('L_7_q', FC + 16, 1, 4, 104)
    tags()
    if hintk:
        a(f'''s_mov_b64 exec, 0xffffff
              s_mov_b32 s62, 0
              L_f_h:
              s_sleep 2
              buffer_load_dword v103, v102, s[44:47], s49 offen sc1
              s_add_u32 s62, s62, {1 << (32 - fastbits)}
              s_waitcnt vmcnt(0)
              s_cbranch_scc1 L_f_hok
              v_cmp_eq_u32 vcc, s3, v103
              s_bcnt1_i32_b64 s53, vcc
              s_cmp_lt_u32 s53, {hintk}
              s_cbranch_scc1 L_f_h
              L_f_hok:
              s_mov_b64 exec, -1
              v_mov_b32 v103, 1
              ds_write_b32 v2, v103 offset:{FC+8}''')
    a(f'''s_mul_i32 s50, s50, s32
          s_add_u32 s50, s50, s33
          s_sub_u32 s50, s50, s51
          s_bitcmp1_b32 s50, 0
          s_cbranch_scc1 L_fin3
          v_lshrrev_b32 v4, 4, v0
          v_lshlrev_b32 v81, 14, v4
          v_bfe_u32 v6, v0, 2, 2
          v_lshl_add_u32 v81, v6, 11, v81
          v_and_b32 v6, 3, v0
          v_lshl_add_u32 v81, v6, 4, v81
          s_bfe_u32 s52, s50, 0x20001
          s_lshl_b32 s52, s52, 2
          s_lshl_b32 s20, 0x000f000f, s52
          s_mov_b32 s21, s20
          s_lshr_b32 s52, s50, 3
          s_lshl_b32 s53, s52, 8
          v_add_u32 v3, s53, v3
          s_lshl_b32 s52, s52, 7
          v_and_b32 v6, 7, v0
          v_lshlrev_b32 v6, 4, v6
          v_and_b32 v7, 8, v0
          v_lshl_add_u32 v7, v4, 1, v7
          v_add3_u32 v101, v6, v7, s52
          s_mov_b32 s36, s24
          s_mov_b32 s37, s25
          s_mov_b32 s38, 896
          s_mov_b32 s39, 0x20000''')
    lanetag(5, 0)
    x5l = [f'buffer_load_dwordx4 v[{36+4*s}:{39+4*s}], v81, s[44:47], s{40+s} offen sc1' for s in range(4)]
    a('v_mov_b32 v48, v5\nv_mov_b32 v49, 0\nv_mov_b32 v50, 0\nv_mov_b32 v51, 0')
    ldswait('L_7_g', FC, 2, 4, 102)
    getside(102)
    a(f'''s_lshl_b32 s40, s50, 5
          s_add_u32 s40, s40, s48
          s_add_u32 s40, s40, {X5}
          s_add_u32 s41, s40, {4 << 14}
          s_add_u32 s42, s40, {8 << 14}
          s_add_u32 s43, s40, {12 << 14}''')
    a('\n'.join(x5l[:3]) + f'''
          s_mov_b32 exec_hi, 0
          {x5l[3]}
          buffer_load_ushort v125, v101, s[36:39], 0 offen
          s_mov_b32 exec_hi, -1
          s_waitcnt vmcnt(0)''')
    setprio(3)
    a('s_barrier')
    if epe:
        a('''s_cmp_eq_u32 s50, 0
             s_cbranch_scc0 L_7_e
             s_mov_b64 exec, 1
             v_mov_b32 v6, s30
             buffer_store_dword v6, v2, s[44:47], 0 offen
             s_mov_b64 exec, -1
             L_7_e:''')
    a(f'''s_barrier
          ds_read_b32 v96, v3 offset:{FX}
          ds_read_b32 v100, v3 offset:{FG}
          s_barrier
          s_waitcnt lgkmcnt(0)''')
    gather('L_x5', x5l, 36, 4, 5, issued=True, spec=sum_hi(36, 32))
    stamp(12)
    sum_lo(36, 32)
    rscatter(32)
    a(f'''v_add_f32_dpp v32, v32, v32 row_ror:8 {DPPF}
          v_add_f32_dpp v32, v32, v32 row_ror:4 {DPPF}''')
    rnd('v32', 'v32'); a('v_mul_f32 v32, v100, v32'); rnd('v32', 'v32'); a('v_add_f32 v32, v96, v32\ns_mov_b64 exec, s[20:21]'); rnd('v32', 'v32')
    a('buffer_store_short_d16_hi v32, v101, s[36:39], 0 offen')
    if not epe:
        a('''s_cmp_eq_u32 s50, 0
             s_cbranch_scc0 L_fin4
             s_mov_b64 exec, 1
             v_mov_b32 v3, s30
             buffer_store_dword v3, v2, s[44:47], 0 offen sc1
             L_fin4:''')
    stamp(14)
    if lite: a('s_branch L_dump')
    a('L_fin3:')
    fin()
    for r in rare: r()
    rare.clear()
    a(f'''L_F8:
          s_cmp_eq_u32 s31, 8
          s_cbranch_scc0 L_end
          s_lshl_b32 s48, s2, 7
          s_add_u32 s48, s48, {PRB}
          s_add_u32 s49, s48, {SIDE}
          s_mov_b32 s52, -1
          s_mov_b32 s53, -1
          s_mov_b32 s54, 0
          s_waitcnt lgkmcnt(0)''')
    if tlb:
        a(f'''s_lshl_b32 s50, s32, 25
              s_add_u32 s50, s50, {WINOFF}
              s_mov_b32 s51, {4096*896-4}
              s_load_dword s56, s[8:9], s50
              s_load_dword s57, s[12:13], 0
              s_load_dword s58, s[12:13], s51
              s_load_dword s59, s[16:17], 0
              s_load_dword s60, s[18:19], 0
              s_load_dword s61, s[24:25], 0''')
    a('s_barrier')
    dzero()
    if fside is not None:
        a(f'''s_getreg_b32 s55, hwreg(HW_REG_XCC_ID)
              s_bfe_u32 s55, s55, 0x10002
              s_xor_b32 s55, s55, {fside}
              s_lshl_b32 s55, s55, 13
              v_mov_b32 v3, s55
              ds_write_b32 v2, v3 offset:{FC+12}''')
    else:
        a('s_load_dword s10, s[28:29], s48 glc\ns_load_dword s11, s[28:29], s49 glc\ns_waitcnt lgkmcnt(0)\nL_8_l:')
        for sd in range(2):
            a(f'''s_memtime s[4:5]
                  s_waitcnt lgkmcnt(0)
                  s_load_dword s10, s[28:29], s{48+sd} glc
                  s_waitcnt lgkmcnt(0)
                  s_memtime s[6:7]
                  s_lshr_b32 s8, s33, {sd}
                  s_add_u32 s8, s8, s54
                  s_bitcmp1_b32 s8, 0
                  s_waitcnt lgkmcnt(0)
                  s_cbranch_scc0 L_8_n{sd}
                  s_sleep 3
                  L_8_n{sd}:
                  s_sub_u32 s4, s6, s4
                  s_min_u32 s{52+sd}, s{52+sd}, s4''')
        a(f'''s_cmp_lt_u32 s53, s52
              s_cselect_b32 s55, {SIDE}, 0
              v_mov_b32 v3, s55
              ds_write_b32 v2, v3 offset:{FC+12}''')
        if diag:
            for k in (1, 2, 3, 4): a(f's_cmp_eq_u32 s54, {k-1}\ns_cbranch_scc0 L_8_d{k}\ns_memrealtime s[{64+2*k}:{65+2*k}]\ns_add_u32 s{64+2*(k+4)}, s55, 1\nL_8_d{k}:')
        a(f'''s_add_u32 s54, s54, 1
              s_cmp_lt_u32 s54, {nprb}
              s_cbranch_scc1 L_8_l''')
    if diag:
        a('s_add_u32 s90, s55, 1\ns_getreg_b32 s88, hwreg(HW_REG_XCC_ID)\ns_mov_b32 s86, s52\ns_mov_b32 s84, s53')
        fin()
    else: a('s_endpgm')
    if probe:
        a('L_probe:\ns_cmp_eq_u32 s68, 0\ns_cbranch_scc1 L_end')
        if len(probe) > 2 and probe[2] is not None: a(f's_cmp_eq_u32 s32, {probe[2]}\ns_cbranch_scc0 L_end')
        if len(probe) > 3 and probe[3] is not None: a(f's_cmp_eq_u32 s31, {probe[3]}\ns_cbranch_scc0 L_end')
        a('''s_setprio 0
             s_sleep 127
             s_sleep 127
             s_sleep 127
             s_sleep 127
             s_sleep 127
             L_probe_l:
             s_memrealtime s[66:67]
             s_waitcnt lgkmcnt(0)
             s_sub_u32 s66, s66, s64
             s_cmp_lt_u32 s66, 3000
             s_cbranch_scc1 L_probe_l
             s_endpgm''')
    if diag or lite:
        a(f'''L_dump:
              s_mov_b64 exec, -1
              s_waitcnt vmcnt(0) lgkmcnt(0)
              s_memrealtime s[94:95]
              s_lshl_b32 s48, s2, 4
              s_add_u32 s48, s48, s31
              s_lshl_b32 s48, s48, 6
              s_add_u32 s48, s48, {STAMP_OFF}
              v_mov_b32 v1, s48
              s_waitcnt lgkmcnt(0)''')
        for i in range(16): a(f'v_mov_b32 v{8+i}, s{64+2*i}')
        a('s_mov_b64 exec, 1')
        for i in range(4): a(f'global_store_dwordx4 v1, v[{8+4*i}:{11+4*i}], s[28:29] offset:{16*i}')
    a('L_end:\ns_endpgm\nL_code_end:')
    head = open('adaLN_cond__sliding_block_cached__dense_activation_silu__decode.s.ref').read().split('; Override launch')[0]
    return head + f'''; @launch grid=(256,1,1) block=(1024,1,1) lds={L_END}
.amdgcn_target "amdgcn-amd-amdhsa--gfx950"
.text
.globl {KN}
.p2align 8
.type {KN},@function
''' + a.text() + f'''.section .rodata,"a"
.p2align 6
.amdhsa_kernel {KN}
  .amdhsa_next_free_vgpr 128
  .amdhsa_next_free_sgpr 96
  .amdhsa_accum_offset 128
  .amdhsa_group_segment_fixed_size 0
  .amdhsa_kernarg_size 104
  .amdhsa_user_sgpr_count 2
  .amdhsa_user_sgpr_kernarg_segment_ptr 1
  .amdhsa_system_sgpr_workgroup_id_x 1
.end_amdhsa_kernel
'''

if __name__ == '__main__':
    out = sys.argv[1]
    kw = eval('dict(' + (sys.argv[2] if len(sys.argv) > 2 else '') + ')')
    open(out, 'w').write(gen(**kw))
```

```python
import sys, struct
sys.path.insert(0, 'work')
from asmlib import Asm

KN = 'adaLN_cond__sliding_block_cached__dense_activation_silu__decode_kernel'
X2, X2F, HINT, PRB, X1, X4, X5, X3, X3F, WSEND = 0x4000, 0x8000, 0xC000, 0x80000, 0x18000, 0x30000, 0x40000, 0xA0000, 0x100000, 0x160000
SIDE = 0x2000
STAMP_OFF = 0x180000
L_Q, L_M, L_C, L_L, L_Z, L_O, L_PRIV, L_P, L_END = 0x0, 0x800, 0x810, 0x840, 0x900, 0x1000, 0x5000, 0x5800, 0x6100
FM = 0x300
FZ, FC, FP, FP2, FST, FX, FG, FA, FH = 0x0, 0x240, 0x1000, 0x1800, 0x2000, 0x3000, 0x3800, 0x4000, 0x2100
WINOFF = (65536 - 4096) * 512
def f2u(x): return struct.unpack('<I', struct.pack('<f', x))[0]
LOG2E = 1.4426950408889634
DPPF = 'row_mask:0xf bank_mask:0xf'

def gen(W=5, WH=6, WK=3, WKH=4, N0=2, WE=7, NE=6, NL=4, adapt=True, diag=False, lite=False, probe=None, sleep=8, nt=' nt', w1nt='', wont='',
        rewarm=True, gaten=8, hintk=16, hintpos=7, touchpos=2, spinbits=17, fastbits=6, prio=True, pprio=3, nprb=5,
        fside=None, nob=False, fpf=8, tbl=1, only=None, lk=0, LW=(5, 6, 7, 6), WR=None, pf3=True, wolate=False, fdelay=0, wopf=0, wolanes=32, fB3=0, fB3p=0, fB4=(12, 12), fM=True, tlb=False, mxe=False, dirty=0, epe=True, wopf2=0, peel=False, nwo=42, nmid=48, ldef=True, est=False, al={}, pads='', paged=True, fX3=0, fX4=0, fA=(0, 0), half=True):
    a = Asm()
    rare = []
    STEP = 1 << (32 - spinbits)
    role = ['all']
    PH = {('att', 6), ('wo', 6), ('F', 8), ('F', 12)}
    def stamp(i):
        if (diag and (only is None or i == 0 or (role[0], i) in only)) or (lite and i in (0, 14)): a(f's_memrealtime s[{64+2*i}:{65+2*i}]')
        elif al and (role[0], i) in PH: a('s_mov_b32 s70, 0x10000')
        if probe and probe[0] == role[0] and probe[1] == i: a('s_memrealtime s[64:65]\ns_mov_b32 s68, 1')
    def xs(name):
        if diag and only and name in only: a('s_memrealtime s[84:85]')
        if diag and only and 'clk' in only and name in ('B3', 'mm2'):
            k = 1 if name == 'B3' else 3
            a(f's_memrealtime s[{64+2*k}:{65+2*k}]\ns_memtime s[{66+2*k}:{67+2*k}]')
            if name == 'B3': a('s_waitcnt lgkmcnt(0)')
    def align(k):
        if k in al:
            a('.p2align 6')
            for _ in range(al[k]): a('s_nop 0')
    npad = {}
    def pad(k, last=False):
        if k not in pads: return
        i = npad.get(k, 0); npad[k] = i + 1
        a(f'L_pad{k}{i}:\ns_cbranch_execz L_pad{k}' + ('r' if last else str(i + 1)))
    def hop(k):
        if k in pads: a(f's_mov_b64 exec, 0\ns_branch L_pad{k}0\nL_pad{k}r:\ns_mov_b64 exec, -1')
    def fill(n, r):
        if fM and r == 9:
            for _ in range((n + 2) // 4): a('v_mfma_f32_16x16x32_bf16 v[116:119], v[16:19], v[16:19], 0')
        else:
            for _ in range(n): a(f'v_mov_b32 v{r}, 0')
    def fin(): a('s_branch L_dump' if diag else 's_branch L_probe' if probe else 's_endpgm')
    def setprio(n):
        if prio: a(f's_setprio {n}')
    def tags():
        a('''s_add_u32 s30, s30, 1
             s_and_b32 s34, s30, 0x7f
             s_xor_b32 s35, s34, 0x5a
             s_lshl_b32 s3, s35, 8
             s_or_b32 s3, s3, s34''')
    def ws_srd():
        a(f'''s_mov_b32 s44, s28
              s_mov_b32 s45, s29
              s_mov_b32 s46, {WSEND}
              s_mov_b32 s47, 0x20000''')
    def lanetag(d, bit):
        a(f'''v_bfe_u32 v{d}, v0, {bit}, 1
              v_mul_u32_u24 v{d}, 0x5a, v{d}
              v_xor_b32 v{d}, s34, v{d}''')
    def rowtag(m, t):
        lanetag(t, 2)
        a(f'''v_and_b32 v{m}, 3, v0
              v_cmp_eq_u32 vcc, 0, v{m}
              v_mov_b32 v{m}, 0xffffff00
              v_cndmask_b32 v{t}, 0, v{t}, vcc
              v_cndmask_b32 v{m}, -1, v{m}, vcc''')
    def spin(loop, done):
        a(f'''s_cbranch_vccz {done}
              s_add_u32 s62, s62, {STEP}
              s_cbranch_scc0 {loop}
              {done}:''')
    def ldswait(lbl, off, n, sl, z=100):
        if not n: return
        a(f'v_mov_b32 v{z}, 0\ns_mov_b32 s62, 0\n{lbl}:')
        if sl: a(f's_sleep {sl}')
        a(f'''ds_read_b32 v{z+1}, v{z} offset:{off}
              s_waitcnt lgkmcnt(0)
              v_cmp_gt_u32 vcc, {n}, v{z+1}''')
        spin(lbl, lbl + 'ok')
    def gather(lbl, loads, raw, masks, vt, spec='', switch=None, nfast=0, issued=False, warm=None):
        n = len(loads)
        a('s_mov_b32 s62, 0')
        if switch: a(f's_mov_b32 s63, {(1 << 32) // nfast}')
        if issued:
            a(f's_branch {lbl}_w')
            if paged and lbl == 'L_x4': a('.p2align 12')
            align(lbl)
        else:
            for i in range(n): a(f's_mov_b64 s[{masks+2*i}:{masks+2*i+1}], -1')
        a(f'{lbl}:')
        for i, l in enumerate(loads): a(f's_wqm_b64 exec, s[{masks+2*i}:{masks+2*i+1}]\n{l}')
        a(f'''s_mov_b64 exec, -1
              s_add_u32 s62, s62, {'s63' if switch else STEP}
              s_cbranch_scc1 {lbl}_r''')
        if warm: fill(*warm)
        a(f'{lbl}_w:\ns_waitcnt vmcnt(0)')
        for i in range(n): a(f'v_cmp_ne_u32_sdwa s[{masks+2*i}:{masks+2*i+1}], v{raw+4*i}, v{vt} src0_sel:BYTE_0 src1_sel:DWORD')
        a(spec)
        a(f's_or_b64 vcc, s[{masks}:{masks+1}], s[{masks+2}:{masks+3}]')
        for i in range(2, n): a(f's_or_b64 vcc, vcc, s[{masks+2*i}:{masks+2*i+1}]')
        a(f's_cbranch_scc1 {lbl}\n{lbl}_ok:')
        def r():
            a(f'{lbl}_r:')
            if switch:
                a(f's_cmp_eq_u32 s63, {STEP}\ns_cbranch_scc1 {lbl}_x\ns_mov_b32 s63, {STEP}\n{switch}\ns_branch {lbl}_w\n{lbl}_x:')
            a(f's_waitcnt vmcnt(0)\ns_mov_b64 vcc, 0\ns_branch {lbl}_ok')
        rare.append(r)
    def poll4(lbl, loads, raw, t, sl=0, issued=False):
        a(f'''v_mov_b32 v{t+2}, 0
              ds_read_b32 v{t+3}, v{t+2} offset:{FC+12}
              s_and_b32 s4, s34, 15
              s_and_b32 s5, s35, 15
              s_mov_b32 s62, 0
              s_waitcnt lgkmcnt(0)''')
        if issued: a(f's_branch {lbl}_w')
        a(f'{lbl}:\nv_add_u32 v{t+1}, v7, v{t+3}')
        if sl: a(f's_sleep {sl}')
        for l in loads: a(l)
        a(f'ds_read_b32 v{t+3}, v{t+2} offset:{FC+12}\n{lbl}_w:\ns_waitcnt vmcnt(0) lgkmcnt(0)')
        n = 4 * len(loads)
        for k in range(n): a(f'v_xor_b32 v{raw+k}, s{4+(k&1)}, v{raw+k}')
        a(f'v_or_b32 v{t}, v{raw}, v{raw+1}')
        for k in range(2, n, 2): a(f'v_or3_b32 v{t}, v{t}, v{raw+k}, v{raw+k+1}')
        a(f'v_and_b32 v{t}, 15, v{t}\nv_cmp_ne_u32 vcc, 0, v{t}')
        spin(lbl, lbl + '_ok')
    def pk(op, d, x, y): a(f'v_pk_{op}_f32 v[{d}:{d+1}], v[{x}:{x+1}], v[{y}:{y+1}]')
    def rscatter(r):
        a(f'v_permlane32_swap_b32 v{r}, v{r+2}\nv_permlane32_swap_b32 v{r+1}, v{r+3}')
        pk('add', r, r, r + 2)
        a(f'v_permlane16_swap_b32 v{r}, v{r+1}\nv_add_f32 v{r}, v{r}, v{r+1}')
    def rnd(d, s): a(f'v_cvt_pk_bf16_f32 {d}, 0, {s}')
    def allred_rows(op, r, t):
        a(f'''v_mov_b32 v{t}, v{r}
              v_permlane32_swap_b32 v{r}, v{t}
              {op} v{r}, v{r}, v{t}
              v_mov_b32 v{t}, v{r}
              v_permlane16_swap_b32 v{r}, v{t}
              {op} v{r}, v{r}, v{t}''')
    def perm_sel(): a('s_mov_b32 s60, 0x05040100\ns_mov_b32 s61, 0x07060302')
    def perms64(raw, dst):
        for tau in range(4):
            for rho in range(4):
                a(f'v_perm_b32 v{dst+4*tau+rho}, v{raw+2*(2*rho+1)+(tau>>1)}, v{raw+2*(2*rho)+(tau>>1)}, s{60+(tau&1)}')
    def fix4(raw, t):
        for u0 in (0, 2):
            for i in range(2): a(f'v_pk_mov_b32 v[{t+2*i}:{t+2*i+1}], v[{raw+4*(u0+i)+2}:{raw+4*(u0+i)+3}], v[{raw+4*(u0+i)+2}:{raw+4*(u0+i)+3}] op_sel:[0,1]')
            rs = [raw + 4 * u + d for u in (u0, u0 + 1) for d in (0, 1)]
            for i, r in enumerate(rs): a(f'v_mov_b32_dpp v{r+2}, v{r} row_ror:8 row_mask:0xf bank_mask:0x3')
            for i, r in enumerate(rs): a(f'v_mov_b32_dpp v{r}, v{t+i} row_ror:8 row_mask:0xf bank_mask:0xc')
    def voff4(d, gstride, stride, t):
        a(f'''v_lshrrev_b32 v{t}, 4, v0
              v_mul_u32_u24 v{d}, {gstride}, v{t}
              v_bfe_u32 v{t}, v0, 3, 1
              v_mul_u32_u24 v{t}, {stride}, v{t}
              v_add_u32 v{d}, v{d}, v{t}
              v_and_b32 v{t}, 7, v0
              v_lshl_add_u32 v{d}, v{t}, 4, v{d}''')
    def maskaddr(dst, n, base, zero, t):
        a(f'''v_lshrrev_b32 v{t}, 4, v0
              v_lshlrev_b32 v{t}, 4, v{t}
              v_add_u32 v{t}, {base}, v{t}
              v_and_b32 v{t+1}, {n-1}, v0
              v_mov_b32 v{t+2}, {zero}''')
        for tau in range(n):
            a(f'v_cmp_eq_u32 vcc, {tau}, v{t+1}')
            a(f'v_cndmask_b32 v{dst+tau}, v{t+2}, v{t}, vcc')
    def silu(d, x, t, p=None):
        a(f'''v_mul_f32 v{t}, {hex(f2u(-LOG2E))}, v{x}
              v_exp_f32 v{t}, v{t}''')
        if p: pad(p)
        a(f'''v_add_f32 v{t}, 1.0, v{t}
              v_rcp_f32 v{t}, v{t}
              v_mul_f32 v{t}, v{x}, v{t}''')
        rnd(f'v{d}', f'v{t}')
    def ln_apply(s1, s2, x, t):
        a(f'''v_mul_f32 v{t}, v{s1}, v{s1}
              v_fma_f32 v{t+1}, v{s1}, v{s1}, -v{t}
              v_fma_f32 v{t}, v{s2}, s59, -v{t}
              v_sub_f32 v{t}, v{t}, v{t+1}
              v_mul_f32 v{t}, {hex(f2u(1/448/448))}, v{t}
              v_max_f32 v{t}, 0, v{t}''')
        rnd(f'v{t}', f'v{t}')
        a(f'v_add_f32 v{t}, {hex(f2u(1e-5))}, v{t}')
        rnd(f'v{t}', f'v{t}')
        a(f'v_sqrt_f32 v{t}, v{t}\nv_mul_f32 v{t+1}, {hex(f2u(1/448))}, v{s1}')
        rnd(f'v{t}', f'v{t}'); rnd(f'v{t+1}', f'v{t+1}')
        a(f'v_rcp_f32 v{t}, v{t}\nv_sub_f32 v{t+1}, v{x[1]}, v{t+1}')
        rnd(f'v{t+1}', f'v{t+1}')
        a(f'v_mul_f32 v{t+1}, v{t+1}, v{t}')
        rnd(f'v{x[0]}', f'v{t+1}')
    def mma(n, acc, A, B, left=0, first=True, wait=True):
        for i in range(n):
            if wait: a(f's_waitcnt lgkmcnt({0 if (diag and only is None) else n-1-i+left})')
            a(f'v_mfma_f32_16x16x32_bf16 v[{acc}:{acc+3}], v[{A+4*i}:{A+4*i+3}], v[{B+4*i}:{B+4*i+3}], ' + ('0' if i == 0 and first else f'v[{acc}:{acc+3}]'))
    def mma2(acc, A, B, left=0, first=True, wait=True):
        for par in range(2):
            if wait: a(f's_waitcnt lgkmcnt({0 if (diag and only is None) else 1-par+left})')
            for hi in range(2):
                d = acc + 4 * hi; b = B + 4 * (2 * hi + par)
                a(f'v_mfma_f32_16x16x32_bf16 v[{d}:{d+3}], v[{A+4*par}:{A+4*par+3}], v[{b}:{b+3}], ' + ('0' if par == 0 and first else f'v[{d}:{d+3}]'))
    def sumrows(n, ldsoff, va, first=None, shadow=None):
        o = ldsoff // 256
        for u in range(n // 2): a(f'ds_read2st64_b32 v[{16+2*u}:{17+2*u}], v{va} offset0:{o+2*u} offset1:{o+2*u+1}')
        if n & 1: a(f'ds_read_b32 v22, v{va} offset:{ldsoff+256*(n-1)}\nv_mov_b32 v23, 0')
        if shadow: a(shadow)
        a('s_waitcnt lgkmcnt(0)')
        if first: a(first)
        pk('add', 16, 16, 18); pk('add', 20, 20, 22); pk('add', 16, 16, 20)
        a('v_add_f32 v16, v16, v17')

    def getside(t):
        a(f'''v_mov_b32 v{t}, 0
              ds_read_b32 v{t}, v{t} offset:{FC+12}
              s_waitcnt lgkmcnt(0)
              v_readfirstlane_b32 s48, v{t}''')
    def dzero():
        if diag:
            for i in range(1, 16): a(f's_mov_b32 s{64+2*i}, 0')
    K0, V0 = 8, 56
    a(f'{KN}:')
    if probe: a('s_mov_b32 s68, 0')
    stamp(0)
    a(f'''s_load_dwordx16 s[4:19], s[0:1], 0
          s_load_dwordx8 s[20:27], s[0:1], 64
          s_load_dwordx2 s[28:29], s[0:1], 96
          v_readfirstlane_b32 s31, v0
          s_and_b32 s32, s2, 7
          s_lshr_b32 s33, s2, 3
          s_lshr_b32 s31, s31, 6
          s_sub_u32 s33, s33, 8
          s_cbranch_scc0 L_A''')
    a(f'''s_getpc_b64 s[48:49]
          L_pc:
          v_lshlrev_b32 v2, 7, v0
          v_min_u32 v2, L_code_end-L_pc-4, v2
          global_load_dword v127, v2, s[48:49]
          s_branch L_F
          L_A:
          s_cmp_ge_u32 s31, 8
          s_cbranch_scc1 L_Td
          s_cmp_ge_u32 s33, 17
          s_cbranch_scc1 L_a_u
          L_att:''')
    role[0] = 'att'
    if tbl < 2:
        ta, tb, tc, td = ((5, 16, 17, 42), (4, 13, 15, 43))[tbl]; bias = 0
        a(f'''s_mul_i32 s50, s33, {ta}
              s_add_u32 s51, s50, 6
              s_min_u32 s50, s50, {tb}
              s_min_u32 s51, s51, {tc}
              s_mul_i32 s49, s33, {td}
              L_att2:
              s_add_u32 s50, s50, s31''')
    else:
        bias = 14 * nwo - 1
        a(f'''s_sub_u32 s50, s33, 14
              s_cselect_b32 s51, {nwo - 40}, {nmid - 40}
              s_cselect_b32 s49, {nwo}, {nmid}
              s_mul_i32 s49, s49, s50
              L_att2:
              s_add_u32 s50, s31, 1''')
    a(f'''s_min_u32 s48, s50, s51
          s_add_u32 s48, s48, s49
          s_mul_i32 s49, s31, 5
          s_add_u32 s48, s48, s49
          s_lshl_b32 s49, s32, 14
          s_add_u32 s48, s48, s49
          s_addk_i32 s48, {WINOFF // 2048 + 2 + bias}
          s_lshl_b32 s48, s48, 11
          v_and_b32 v2, 12, v0
          v_and_b32 v3, 48, v0
          v_and_b32 v4, 3, v0
          v_lshlrev_b32 v6, 7, v2
          v_lshl_add_u32 v6, v3, 2, v6
          v_lshl_add_u32 v6, v4, 4, v6
          s_waitcnt lgkmcnt(0)
          s_add_u32 s36, s6, s48
          s_addc_u32 s37, s7, 0
          s_cmp_le_u32 s50, s51
          s_cbranch_scc0 L_a_k1''')
    cnt = [0]
    win = [W, WH, WE, NE]
    def kvload(srd, va, base, t, hf, late=False):
        W, WH, WE, NE = win
        w = WH if late else WK if (WK and srd == 36) else W
        if WKH and srd == 36: WH = WKH
        if WE and srd == 40 and 2 * (5 - t) + 1 - hf < NE: a(f's_waitcnt vmcnt({WE-1})')
        elif cnt[0] >= 2 + N0:
            if WH != w: a(f's_waitcnt vmcnt({WH-1})\ns_cbranch_vccnz L_w{cnt[0]}_\ns_waitcnt vmcnt({w-1})\nL_w{cnt[0]}_:')
            else: a(f's_waitcnt vmcnt({w-1})')
        cnt[0] += 1
        r = base + 8 * t + 4 * hf
        b = srd + 2 * (t // 4)
        a(f'global_load_dwordx4 v[{r}:{r+3}], v{va}, s[{b}:{b+1}] offset:{((t & 3) - 2) * 2048 + hf * 256}{nt}')
    kvload(36, 6, K0, 0, 0); kvload(36, 6, K0, 0, 1)
    a('L_a_k1:')
    kl = [(t, hf) for t in (1, 2, 3) for hf in range(2)]
    for t, hf in kl[:N0]: kvload(36, 6, K0, t, hf)
    a('s_branch L_a_c')
    a('''L_a_u:
         s_cmp_ge_u32 s33, 24
         s_cbranch_scc1 L_end
         s_barrier''')
    if tbl == 2:
        rest = 1024 - 14 * nwo - 3 * nmid; lo = rest // 7; ex = rest - 7 * lo
        assert 40 <= lo and lo + (ex > 0) <= 48
        a(f'''s_sub_u32 s50, s33, 17
              s_mul_i32 s49, s50, {lo}
              s_min_u32 s50, s50, {ex}
              s_cselect_b32 s51, {lo - 39}, {lo - 40}
              s_add_u32 s49, s49, s50
              s_add_u32 s49, s49, {3 * nmid}
              s_branch L_att2''')
    elif tbl: a('s_mov_b32 s50, 64\ns_mov_b32 s51, 63\ns_mul_i32 s49, s33, 40\ns_branch L_att2')
    else: a('s_branch L_att')
    a(f'''L_Td:
          s_cmp_ge_u32 s33, 24
          s_cbranch_scc1 L_end
          s_sub_u32 s50, s33, {14 if tbl == 2 else 0}
          s_cmp_ge_u32 s50, 3
          s_cselect_b32 s50, 9, 0
          s_cmp_eq_u32 s31, s50
          s_cbranch_scc1 L_mod''')
    a(f'''s_cmp_ge_u32 s31, 12
          s_cbranch_scc0 L_T0
          v_mov_b32 v8, {hex(f2u(-3e38))}
          v_cmp_eq_u32 vcc, {768 + L_M // 16}, v0
          v_lshlrev_b32 v2, 4, v0
          v_mov_b32 v9, 0
          v_cndmask_b32 v8, 0, v8, vcc
          v_mov_b32 v11, 0
          v_subrev_u32 v2, {768 * 16}, v2
          v_mov_b32 v10, v8
          ds_write_b128 v2, v[8:11]
          s_waitcnt lgkmcnt(0)''')
    if lk:
        a('''s_lshl_b32 s50, s33, 4
             s_add_u32 s50, s50, s31
             s_cmp_eq_u32 s50, 12
             s_cbranch_scc0 L_T0
             v_mov_b32 v8, 1
             s_mov_b64 exec, 1
             global_atomic_add v9, v8, s[26:27] sc1
             s_mov_b64 exec, -1''')
    a(f'''L_T0:
          s_barrier
          s_branch L_T
          L_mod:''')
    role[0] = 'mod'
    def tail_setup():
        a('s_load_dword s30, s[28:29], 0\ns_sub_u32 s49, s31, 8')
        ws_srd(); perm_sel()
        a(f's_lshl_b32 s56, s49, 8\ns_add_u32 s56, s56, {L_PRIV}')
    a('v_and_b32 v0, 63, v0')
    setprio(3)
    a(f'''s_cmp_ge_u32 s33, 17
          s_cselect_b32 s50, -17, {7 if tbl == 2 else 4}
          s_add_u32 s50, s50, s33
          s_lshl_b32 s50, s50, 3
          s_add_u32 s50, s50, s32
          s_and_b32 s51, s50, 3
          s_lshr_b32 s52, s50, 2
          s_mov_b32 s38, {448*5376}
          s_mov_b32 s39, 0x20000
          s_mov_b32 s42, 896
          s_mov_b32 s43, 0x20000
          s_mul_i32 s54, s51, {112*5376}
          s_lshl_b32 s55, s52, 7
          s_add_u32 s54, s54, s55
          s_mul_i32 s53, s51, 224
          v_lshlrev_b32 v2, 2, v0
          v_lshrrev_b32 v1, 3, v0
          v_mul_u32_u24 v3, {14*5376}, v1
          v_and_b32 v4, 7, v0
          v_lshl_add_u32 v3, v4, 4, v3
          s_waitcnt lgkmcnt(0)
          s_mov_b32 s36, s22
          s_mov_b32 s37, s23
          s_mov_b32 s40, s20
          s_mov_b32 s41, s21
          buffer_load_dword v8, v2, s[40:43], s53 offen''')
    for m in range(14):
        a(f'buffer_load_dwordx4 v[{72+4*m}:{75+4*m}], v3, s[36:39], s54 offen{nt}')
        if m < 13: a('s_add_u32 s54, s54, 5376')
    def fstart():
        a(f'''L_F:
              s_add_u32 s33, s33, 8
              v_and_b32 v0, 63, v0
              s_cmp_ge_u32 s31, 7
              s_cbranch_scc1 L_F7s
              s_lshl_b32 s48, s31, 19
              s_lshl_b32 s49, s32, 10
              s_add_u32 s48, s48, s49
              s_lshl_b32 s49, s33, 7
              s_add_u32 s48, s48, s49
              v_lshrrev_b32 v3, 4, v0
              v_lshlrev_b32 v2, 16, v3
              v_and_b32 v4, 8, v0
              v_lshl_add_u32 v2, v4, 10, v2
              v_and_b32 v5, 7, v0
              v_lshl_add_u32 v2, v5, 4, v2
              v_lshl_add_u32 v5, v5, 4, v4
              v_lshl_add_u32 v6, v3, 1, v5
              s_lshl_b32 s50, s31, 7
              v_add_u32 v101, s50, v6
              v_lshlrev_b32 v7, 4, v0
              s_mov_b32 s38, {448*8192}
              s_mov_b32 s39, 0x20000
              s_mov_b32 s42, 896
              s_mov_b32 s43, 0x20000
              s_waitcnt lgkmcnt(0)
              s_mov_b32 s36, s10
              s_mov_b32 s37, s11
              s_mov_b32 s40, s4
              s_mov_b32 s41, s5
              buffer_load_dwordx4 v[96:99], v7, s[40:43], 0 offen
              buffer_load_ushort v100, v101, s[40:43], 0 offen''')
        for u in range(2):
            for t in range(4):
                a(f'buffer_load_dwordx4 v[{32+16*u+4*t}:{35+16*u+4*t}], v2, s[36:39], s48 offen{nt}')
                if not (u == 1 and t == 3): a(f's_add_u32 s48, s48, {2*8192 if t < 3 else 26*8192}')
            if u == 0: a('s_barrier')
    a('s_barrier')
    if paged:
        a('s_branch L_mod2')
        fstart()
        a(f'''s_branch L_F2
              L_F7s:
              s_cmp_ge_u32 s31, 9
              s_cbranch_scc1 L_F9
              v_mov_b32 v2, 0
              v_lshlrev_b32 v3, 2, v0
              ds_write_b32 v3, v2 offset:{FC & ~255}
              s_waitcnt lgkmcnt(0)
              s_barrier
              s_branch L_F7
              L_F9:
              s_endpgm
              L_mod2:''')
    dzero(); stamp(1)
    tail_setup()
    a(f'''v_mul_u32_u24 v3, 37, v0
          v_lshrrev_b32 v3, 8, v3
          v_add_u32 v3, v3, v0
          v_lshl_add_u32 v3, v3, 2, s56
          v_lshl_add_u32 v1, v1, 5, s56
          v_and_b32 v9, 1, v0
          v_lshlrev_b32 v9, 4, v9
          v_mov_b32 v10, 0xffff
          v_lshlrev_b32 v9, v9, v10
          v_bfe_u32 v10, v0, 1, 2''')
    for rho in range(4):
        a(f'v_cmp_eq_u32 vcc, {rho}, v10')
        a(f'v_cndmask_b32 v{4+rho}, 0, v9, vcc')
    a('''s_mov_b32 s52, 0x01000100
         s_mov_b32 s53, 0x03020302
         s_waitcnt vmcnt(14)
         v_lshlrev_b32 v9, 16, v8
         v_and_b32 v10, 0xffff0000, v8''')
    silu(9, 9, 12); silu(10, 10, 13)
    a(f'''v_perm_b32 v9, v10, v9, s61
          s_mov_b32 exec_hi, 0xffffff
          ds_write_b32 v3, v9
          s_mov_b32 exec_hi, -1
          ds_read_b128 v[8:11], v1
          ds_read_b96 v[12:14], v1 offset:16
          s_lshr_b32 s51, s50, 5
          s_lshl_b32 s51, s51, 13
          s_lshl_b32 s50, s50, 8
          s_add_u32 s50, s50, s51
          s_add_u32 s50, s50, {X1}
          s_add_u32 s51, s50, {SIDE}
          v_lshrrev_b32 v2, 4, v0
          v_and_b32 v3, 7, v0
          v_lshlrev_b32 v3, 4, v3
          v_lshl_add_u32 v2, v2, 7, v3
          s_waitcnt lgkmcnt(0)''')
    tags()
    for m in range(14):
        a(f'v_perm_b32 v15, v{8+(m>>1)}, v{8+(m>>1)}, s{52+(m&1)}')
        for rho in range(4): a(f'v_and_b32 v{16+4*m+rho}, v15, v{4+rho}')
    a('v_and_b32_e64 v4, s34, 15\nv_and_b32_e64 v5, s35, 15')
    for m in range(14):
        a(f's_waitcnt vmcnt({13-m})')
        a(f'v_mfma_f32_16x16x32_bf16 v[8:11], v[{16+4*m}:{19+4*m}], v[{72+4*m}:{75+4*m}], ' + ('0' if m == 0 else 'v[8:11]'))
    a('''v_pk_mov_b32 v[12:13], v[8:9], v[8:9] op_sel:[0,1]
         v_pk_mov_b32 v[14:15], v[10:11], v[10:11] op_sel:[0,1]''')
    for i in range(4): a(f'v_permlane32_swap_b32 v{8+i}, v{12+i}')
    for i in range(4): a(f'v_add_f32_dpp v{8+i}, v{12+i}, v{8+i} row_ror:8 {DPPF}')
    a('s_mov_b64 exec, 0xff00ff')
    for i in range(4): a(f'v_and_or_b32 v{8+i}, v{8+i}, -16, v{4+(i&1)}')
    a('buffer_store_dwordx4 v[8:11], v2, s[44:47], s50 offen sc1\nbuffer_store_dwordx4 v[8:11], v2, s[44:47], s51 offen sc1\ns_mov_b64 exec, -1')
    stamp(2)
    setprio(0)
    a('s_cmp_lt_u32 s33, 14\ns_cbranch_scc1 L_t_go2')
    fin()
    role[0] = 'att'
    a('L_a_c:')
    def setup_att():
        dzero(); stamp(1)
        if lk: a('s_load_dword s56, s[26:27], 0')
        a(f'''s_load_dword s30, s[28:29], 0
              s_cmp_le_u32 s50, s51
              s_cselect_b32 s51, 1, 0
              s_add_u32 s38, s36, 8192
              s_addc_u32 s39, s37, 0
              s_add_u32 s40, s8, s48
              s_addc_u32 s41, s9, 0
              s_add_u32 s42, s40, 8192
              s_addc_u32 s43, s41, 0
              s_cmp_ge_u32 s33, 17
              s_cbranch_scc1 L_a_nb2
              s_barrier
              L_a_nb2:
              v_and_b32 v0, 63, v0
              v_and_b32 v5, 15, v0
              v_lshlrev_b32 v7, 5, v3
              v_lshl_add_u32 v7, v5, 4, v7
              v_bfe_u32 v2, v0, 3, 1
              v_lshlrev_b32 v1, 10, v2
              v_lshl_add_u32 v1, v3, 3, v1
              v_lshl_add_u32 v1, v4, 5, v1
              v_and_b32 v104, 1, v0
              v_lshlrev_b32 v104, 4, v104
              v_mov_b32 v105, 0xffff
              v_lshlrev_b32 v104, v104, v105
              v_bfe_u32 v105, v0, 1, 2''')
        for rho in range(4):
            a(f'v_cmp_eq_u32 vcc, {rho}, v105')
            a(f'v_cndmask_b32 v{2+rho}, 0, v104, vcc')
        ws_srd(); perm_sel()
        a(f'''s_mov_b32 s58, {hex(f2u(0.0625 * LOG2E))}
              s_bfe_u32 s57, s31, 0x10001
              s_lshl_b32 s49, s32, 1
              s_add_u32 s54, s57, s49
              s_mul_i32 s54, s54, 24
              s_add_u32 s54, s54, s33
              s_lshl_b32 s54, s54, 10
              s_lshr_b32 s49, s31, 2
              s_lshl_b32 s49, s49, 9
              s_add_u32 s54, s54, s49
              s_and_b32 s49, s31, 1
              s_lshl_b32 s49, s49, 8
              s_add_u32 s54, s54, s49
              s_add_u32 s55, s54, {X3F}
              s_add_u32 s54, s54, {X3}
              s_mul_i32 s59, s32, 24
              s_add_u32 s59, s59, s33
              s_lshl_b32 s59, s59, 7
              s_add_u32 s59, s59, {HINT}
              v_lshlrev_b32 v104, 2, v0
              s_mov_b32 s48, s51
              s_mov_b32 s49, 0
              s_mov_b64 vcc, s[48:49]''')
    setup_att()
    vl = [(t, hf) for t in range(1, 6) for hf in range(2)]
    late = vl[10 - NL:]
    assert 2 * (6 - touchpos) >= NL and NL <= 4 and hintpos == 7 and WE and NE >= NL and (not lk or LW[2] == WE)
    for t, hf in kl[N0:]: kvload(36, 6, K0, t, hf)
    a('s_waitcnt lgkmcnt(0)')
    tags()
    hop('a')
    def paced(x):
        for t in range(4, 6): kvload(36, 6, K0, t, 0); kvload(36, 6, K0, t, 1)
        stamp(2)
        a(f's_cmp_eq_u32 s51, 0\ns_cbranch_scc0 L_a_v0{x}')
        for i in range(4): a(f'v_mov_b32 v{K0+i}, {hex(f2u(-1e30))}')
        a(f's_branch L_a_v1{x}\nL_a_v0{x}:')
        kvload(40, 7, V0, 0, 0); kvload(40, 7, V0, 0, 1)
        a(f'L_a_v1{x}:')
        for t in range(1, 6):
            if t == touchpos:
                a('buffer_load_dword v6, v104, s[44:47], s55 offen sc1')
            for hf in range(2):
                if (t, hf) not in late: kvload(40, 7, V0, t, hf)
    if lk:
        if diag: a('s_add_u32 s82, s56, 1')
        a(f's_cmp_ge_u32 s56, {lk}\ns_cbranch_scc1 L_a_pl')
        def pl():
            keep = list(win); win[:] = LW
            a('L_a_pl:'); paced('l'); a('s_branch L_a_pd')
            win[:] = keep
        rare.append(pl)
    paced('')
    a('L_a_pd:')
    def count(off): a(f's_mov_b64 exec, 1\nds_inc_u32 v0, v2 offset:{off}\ns_mov_b64 exec, -1')
    def lateload(k):
        i = k - (4 - NL)
        if i < 0: return
        if adapt: a(f's_cmp_gt_u32 s63, {i}\ns_cbranch_scc1 L_a_l{i}')
        kvload(40, 7, V0, *late[i], late=True)
        if i == NL - 1: vdone('a')
        if adapt: a(f'L_a_l{i}:')
    def vdone(sfx):
        stamp(3); count(L_C)
        if hintpos == 7 and hintk:
            a(f'''s_cmp_eq_u32 s31, 0
                  s_cbranch_scc0 L_a_nh{sfx}
                  v_mov_b32 v114, s3
                  s_mov_b64 exec, 1
                  buffer_store_dword v114, v0, s[44:47], s59 offen
                  s_mov_b64 exec, -1
                  L_a_nh{sfx}:''')
    if not NL: vdone('a')
    a('s_mov_b32 s62, 0\ns_mov_b32 s63, 0')
    stamp(8)
    if paged: a('s_branch L_a_q0\n.p2align 12\nL_a_q0:')
    align('Q')
    setprio(2)
    a(f'''L_a_q:
          ds_read_b128 v[104:107], v1 offset:{L_Q}
          ds_read_b128 v[108:111], v1 offset:{L_Q+16}
          ds_read_b128 v[112:115], v1 offset:{L_Q+512}
          ds_read_b128 v[116:119], v1 offset:{L_Q+528}
          s_waitcnt lgkmcnt(0)
          v_bitop3_b32 v120, v104, v108, s3 bitop3:0x7e
          v_bitop3_b32 v121, v112, v116, s3 bitop3:0x7e
          v_or_b32 v121, v120, v121
          v_cmp_ne_u32_sdwa vcc, v121, 0 src0_sel:WORD_0 src1_sel:DWORD''')
    for i in range(8): a(f'v_perm_b32 v{120+i}, v{105+2*i}, v{104+2*i}, s61')
    a('s_cbranch_vccnz L_a_qr\nL_a_qok:')
    def qrare():
        a('L_a_qr:')
        if adapt:
            for i in range(NL):
                a(f's_cmp_eq_u32 s63, {i}\ns_cbranch_scc0 L_a_qr{i}')
                keep = win[2]; win[2] = WR or keep
                kvload(40, 7, V0, *late[i], late=True)
                win[2] = keep
                if i == NL - 1: vdone('b')
                a(f's_mov_b32 s63, {i+1}\ns_branch L_a_q\nL_a_qr{i}:')
        a(f'''s_sleep 1
              s_add_u32 s62, s62, {STEP}
              s_cbranch_scc0 L_a_q
              s_branch L_a_qok''')
    rare.append(qrare)
    stamp(4)
    def qk(t, hf):
        k = K0 + 8 * t; tmp = 104 + 4 * (t & 3)
        if hf == 0: a(f'v_mfma_f32_16x16x32_bf16 v[{tmp}:{tmp+3}], v[{k}:{k+3}], v[120:123], 0')
        else: a(f'v_mfma_f32_16x16x32_bf16 v[{k}:{k+3}], v[{k+4}:{k+7}], v[124:127], v[{tmp}:{tmp+3}]')
    def step(t, i):
        if t < 0 or t > 5: return
        k = K0 + 8 * t
        if i == 0: a(f'v_mov_b32_dpp v{k+4}, v{k} quad_perm:[0,0,0,0] {DPPF}')
        else: a(f'v_add_f32_dpp v{k+4}, v{k+i}, v{k+4} quad_perm:[{i},{i},{i},{i}] {DPPF}')
    lateload(0)
    if WE: a(f's_waitcnt vmcnt({11 - NL})')
    a('s_cmp_eq_u32 s51, 0\ns_cbranch_scc1 L_a_qk1')
    qk(0, 0); qk(0, 1)
    a('L_a_qk1:')
    fl = ['v_mov_b32 v1, 0', 's_mov_b32 s62, 0', 's_lshl_b32 s48, s57, 3', 's_lshl_b32 s49, s31, 2']
    for t in range(1, 6):
        qk(t, 0); step(t - 3, 0); step(t - 4, 2)
        if t < 3: a(fl.pop(0))
        qk(t, 1); step(t - 3, 1); step(t - 4, 3)
        if t < 3: a(fl.pop(0))
        if t == 3: lateload(1)
    lateload(2)
    step(2, 2); step(3, 0); step(4, 0); step(2, 3); step(3, 1); step(4, 1)
    S = [K0 + 8 * t + 4 for t in range(6)]
    rnd(f'v{S[0]}', f'v{S[0]}')
    if WE: a(f's_waitcnt vmcnt({2 * (6 - touchpos) - 1})')
    a('v_and_b32 v6, 8, v0')
    step(5, 0); step(3, 2); step(4, 2); step(5, 1); step(3, 3); step(4, 3); step(5, 2)
    rnd(f'v{S[1]}', f'v{S[1]}'); rnd(f'v{S[2]}', f'v{S[2]}')
    step(5, 3)
    rnd(f'v{S[3]}', f'v{S[3]}'); rnd(f'v{S[4]}', f'v{S[4]}')
    a(f'v_max3_f32 v112, v{S[0]}, v{S[1]}, v{S[2]}')
    rnd(f'v{S[5]}', f'v{S[5]}')
    a(f'''v_max3_f32 v112, v112, v{S[3]}, v{S[4]}
          s_mov_b32 exec_lo, 0x01010101
          s_mov_b32 exec_hi, 0x01010101
          v_max_f32 v112, v112, v{S[5]}
          ds_max_f32 v6, v112 offset:{L_M}
          s_mov_b64 exec, 1
          ds_inc_u32 v0, v2 offset:{L_C+4}
          s_mov_b64 exec, -1
          v_mov_b32 v117, s48''')
    lateload(3)
    a(f'''L_a_s1:
          ds_read_b32 v113, v1 offset:{L_C+4}
          ds_read_b32 v112, v6 offset:{L_M}
          ds_read_b32 v116, v117 offset:{L_M}
          s_waitcnt lgkmcnt(0)
          v_cmp_ne_u32 vcc, 8, v113
          v_mul_f32 v112, s58, v112''')
    order = [1, 0, 2, 3, 4, 5]
    for t in order: a(f'v_fma_f32 v{S[t]+2}, v{S[t]}, s58, -v112')
    a('s_cbranch_vccnz L_a_s1r\nL_a_s1ok:')
    rare.append(lambda: a(f'L_a_s1r:\ns_add_u32 s62, s62, {STEP}\ns_cbranch_scc0 L_a_s1\ns_branch L_a_s1ok'))
    stamp(5)
    for t in order: a(f'v_exp_f32 v{S[t]}, v{S[t]+2}')
    def abuild(t):
        k = K0 + 8 * t
        a(f'v_cvt_pk_bf16_f32 v{k+5}, v{k+4}, v{k+4}')
        for rho in range(4): a(f'v_and_b32 v{k+rho}, v{k+5}, v{2+rho}')
    def pv(t, hf, first=False):
        k = K0 + 8 * t; v = V0 + 8 * t + 4 * hf; acc = 104 + 4 * hf
        n = 2 * (5 - t) + 1 - hf
        if n < max(W, WH, WE or 0): a(f's_waitcnt vmcnt({n})')
        a(f'v_mfma_f32_16x16x32_bf16 v[{acc}:{acc+3}], v[{k}:{k+3}], v[{v}:{v+3}], ' + ('0' if first else f'v[{acc}:{acc+3}]'))
    abuild(1)
    a(f'v_add_f32 v113, v{S[0]}, v{S[1]}\nv_add_f32 v114, v{S[2]}, v{S[3]}')
    pv(1, 0, True); abuild(2); pv(1, 1, True)
    a('s_cmp_eq_u32 s51, 0\ns_cbranch_scc1 L_a_pv2')
    abuild(0); pv(0, 0); pv(0, 1)
    a('L_a_pv2:')
    for t in range(2, 6):
        pv(t, 0)
        if t < 5: abuild(t + 1)
        pv(t, 1)
        if t == 2:
            a(f'''v_add_f32 v115, v{S[4]}, v{S[5]}
                  v_add_f32 v113, v113, v114
                  v_lshl_add_u32 v6, v6, 2, s49
                  v_add_f32 v113, v113, v115''')
            allred_rows('v_add_f32', 113, 114)
            a(f'''s_mov_b64 exec, 0x101
                  ds_write_b32 v6, v113 offset:{L_L}
                  s_mov_b64 exec, -1''')
        if t == 3:
            a(f'''s_lshl_b32 s48, s31, 11
                  v_lshl_add_u32 v6, v0, 4, s48
                  v_bfe_u32 v119, v0, 2, 1
                  v_mul_u32_u24 v119, 0x5a, v119
                  v_and_b32 v120, 3, v0
                  v_cmp_eq_u32 vcc, 1, v120
                  v_bitop3_b32 v119, v119, v116, s34 bitop3:0xde
                  v_bfe_u32 v118, v0, 2, 2
                  v_cndmask_b32 v120, v120, v118, vcc
                  v_cndmask_b32_e64 v119, v119, 0, vcc
                  v_cndmask_b32_e64 v118, 0, -1, vcc
                  v_or_b32 v120, 0x07060500, v120
                  s_lshl_b32 s49, s31, 8
                  s_add_u32 s49, s49, {L_O}
                  v_lshlrev_b32 v121, 2, v0
                  v_add_u32 v122, s49, v121
                  v_lshlrev_b32 v117, 2, v117
                  s_mov_b32 s62, 0''')
    a(f'''ds_write_b128 v6, v[104:107] offset:{L_O}
          ds_write_b128 v6, v[108:111] offset:{L_O+1024}''')
    stamp(6)
    fill(fA[0], 123)
    a(f'''s_waitcnt lgkmcnt(0)
          s_barrier
          ds_read_b128 v[16:19], v117 offset:{L_L}
          ds_read_b128 v[20:23], v117 offset:{L_L+16}''')
    for u in range(4): a(f'ds_read2st64_b32 v[{8+2*u}:{9+2*u}], v122 offset0:{16*u} offset1:{16*u+8}')
    pad('a', True)
    a('s_waitcnt lgkmcnt(4)')
    pk('add', 16, 16, 18); pk('add', 20, 20, 22); pk('add', 16, 16, 20)
    a('v_add_f32 v16, v16, v17\nv_and_or_b32 v16, v16, v118, v119\ns_waitcnt lgkmcnt(0)')
    pk('add', 8, 8, 10); pk('add', 12, 12, 14); pk('add', 8, 8, 12)
    a('''v_add_f32 v8, v8, v9
         v_perm_b32 v8, v8, v16, v120
         buffer_store_dword v8, v121, s[44:47], s55 offen
         s_barrier''')
    stamp(7)
    setprio(0)
    if wopf2:
        a('s_cmp_lt_u32 s33, 14\ns_cbranch_scc0 L_a_p\ns_barrier\ns_sleep 3\nL_a_x:')
        def wp():
            a(f'''L_a_p:
                  s_lshl_b32 s48, s33, 3
                  s_add_u32 s48, s48, s31
                  s_sub_u32 s48, s48, 112
                  s_mul_i32 s49, s32, {512*896}''')
            for k in range(wopf2):
                if k: a('s_add_u32 s48, s48, 28')
                a(f'''s_cmp_ge_u32 s48, 56
                      s_cselect_b32 s50, 56, 0
                      s_sub_u32 s48, s48, s50
                      s_lshl_b32 s50, s48, 13
                      s_add_u32 s50, s50, s49
                      v_lshl_add_u32 v10, v0, 7, s50
                      global_load_dword v11, v10, s[12:13]''')
            a('s_branch L_a_x')
        rare.append(wp)
    else: a('s_cmp_lt_u32 s33, 14\ns_cbranch_scc0 L_a_x\ns_barrier\ns_sleep 3\nL_a_x:')
    if not nob: a('buffer_store_dword v8, v121, s[44:47], s54 offen sc1')
    if dirty:
        a(f's_add_u32 s28, s28, s55\ns_addc_u32 s29, s29, 0')
        for k in range(dirty): a(f's_add_u32 s28, s28, 0x100000\ns_addc_u32 s29, s29, 0\nglobal_store_dword v121, v8, s[28:29]')
    fin()
    for r in rare: r()
    rare.clear()

    role[0] = 'wo'
    a('L_T:\nv_and_b32 v0, 63, v0')
    if pf3:
        a(f'''s_cmp_eq_u32 s31, 13
              s_cbranch_scc0 L_T1
              s_mul_i32 s50, s33, 19
              s_lshl_b32 s51, s32, 10
              v_add_u32 v2, s50, v0
              v_min_u32 v2, 447, v2
              v_lshl_add_u32 v2, v2, 13, s51
              s_mov_b64 exec, 0x7ffff
              global_load_dword v127, v2, s[10:11] offset:384
              s_mov_b64 exec, -1
              L_T1:''')
    a('''s_cmp_lt_u32 s33, 14
         s_cbranch_scc1 L_t_go
         s_cmp_eq_u32 s31, 8
         s_cbranch_scc1 L_t_go''')
    if fpf:
        a(f'''s_cmp_lt_u32 s31, 10
              s_cbranch_scc1 L_end
              s_mul_i32 s50, s33, 6
              s_add_u32 s50, s50, s31
              s_sub_u32 s50, s50, 94
              s_cmp_lt_u32 s50, 56
              s_cbranch_scc0 L_end''')
        if fpf:
            a(f'''s_cmp_lt_u32 s32, 4
                  s_cselect_b32 s52, 6, 8
                  s_cselect_b32 s53, 0, 8
                  s_cselect_b32 s56, 0x77777777, -1
                  s_cselect_b32 s58, 21, 28
                  s_mul_i32 s52, s52, s32
                  s_sub_u32 s52, s52, s53
                  s_lshr_b32 s51, s50, 1
                  s_waitcnt lgkmcnt(0)
                  s_bitcmp1_b32 s50, 0
                  s_cbranch_scc1 L_pf_2
                  s_mul_i32 s54, s51, {16*3584}
                  s_lshl_b32 s52, s52, 6
                  s_add_u32 s54, s54, s52
                  v_lshrrev_b32 v4, 2, v0
                  v_mul_u32_u24 v4, 3584, v4
                  v_and_b32 v5, 3, v0
                  v_lshl_add_u32 v4, v5, 7, v4
                  v_add_u32 v4, s54, v4
                  s_branch L_pf_3
                  L_pf_2:
                  s_mul_i32 s52, s52, {32*896}
                  s_lshl_b32 s54, s51, 13
                  s_add_u32 s54, s54, s52
                  v_lshl_add_u32 v4, v0, 7, s54
                  s_mov_b64 s[16:17], s[18:19]
                  s_cmp_lt_u32 s51, s58
                  s_cselect_b32 s56, -1, 0
                  L_pf_3:
                  s_mov_b32 s57, s56''')
        if wopf:
            a(f'''s_lshl_b32 s52, s50, 13
                  s_mul_i32 s51, s32, {512*896}
                  s_add_u32 s52, s52, s51
                  v_lshl_add_u32 v2, v0, 7, s52''')
            ldswait('L_pf_g', L_C, wopf, 4)
            if wolanes < 64: a(f's_mov_b32 exec_hi, {(1 << (wolanes - 32)) - 1}')
            a('global_load_dword v3, v2, s[12:13]')
        a('s_barrier\ns_barrier')
        if fpf: a('s_mov_b64 exec, s[56:57]\ns_cbranch_execz L_end\nglobal_load_dword v6, v4, s[16:17]')
    a('''s_endpgm
         L_t_go:
         s_waitcnt lgkmcnt(0)''')
    dzero()
    a('L_t_go2:')
    tail_setup()
    a(f'''s_cmp_ge_u32 s33, 7
          s_cselect_b32 s50, 1, 0
          s_cselect_b32 s51, 7, 0
          s_sub_u32 s51, s33, s51
          s_lshl_b32 s52, s32, 1
          s_add_u32 s50, s50, s52
          s_lshl_b32 s52, s50, 8
          s_lshr_b32 s53, s49, 2
          s_lshl_b32 s53, s53, 7
          s_add_u32 s52, s52, s53
          s_and_b32 s53, s49, 1
          s_lshl_b32 s53, s53, 6
          s_add_u32 s52, s52, s53
          s_and_b32 s53, s49, 2
          s_lshl_b32 s53, s53, 1
          s_add_u32 s52, s52, s53
          s_mul_i32 s52, s52, 896
          s_lshl_b32 s53, s51, 7
          s_add_u32 s52, s52, s53
          s_add_u32 s53, s52, {8*896}
          s_mov_b32 s36, s12
          s_mov_b32 s37, s13
          s_mov_b32 s38, {4096*896}
          s_mov_b32 s39, 0x20000
          s_mul_i32 s40, s50, {24*1024}
          s_lshl_b32 s41, s49, 7
          s_add_u32 s40, s40, s41
          s_add_u32 s40, s40, {X3F}
          s_add_u32 s41, s40, 8192
          s_add_u32 s42, s40, 16384
          s_lshr_b32 s54, s50, 2
          s_lshl_b32 s54, s54, 13
          s_lshl_b32 s55, s50, 11
          s_add_u32 s54, s54, s55
          s_lshl_b32 s55, s51, 8
          s_add_u32 s54, s54, s55
          s_add_u32 s54, s54, {X4}
          s_add_u32 s55, s54, {SIDE}
          s_mov_b32 s43, 0
          s_mov_b32 s57, 0x04000c0c
          s_mov_b32 s58, {hex(f2u(0.0625 * LOG2E))}
          s_lshl_b32 s59, s49, 8
          s_add_u32 s59, s59, {L_P}
          v_lshrrev_b32 v12, 3, v0
          v_and_b32 v13, 7, v0
          v_lshlrev_b32 v3, 10, v12
          v_lshl_add_u32 v3, v13, 4, v3
          v_lshrrev_b32 v5, 4, v0
          v_lshl_add_u32 v5, v13, 2, v5
          v_lshl_add_u32 v5, v5, 1, s56
          v_lshl_add_u32 v6, v0, 4, s59
          v_lshlrev_b32 v4, 2, v0''')
    voff4(1, 16 * 896, 896, 12)
    def wold():
        stamp(3)
        for u in range(4):
            a(f'buffer_load_dwordx4 v[{80+4*u}:{83+4*u}], v1, s[36:39], s{52+(u>>1)} offen offset:{(u&1)*2*896}{wont}')
    maskaddr(8, 2, 's56', L_Z + 64, 12)
    a('s_waitcnt lgkmcnt(0)')
    tags()
    lanetag(7, 0); rowtag(98, 99)
    a('''v_and_b32 v10, 3, v0
         v_lshlrev_b32 v10, 3, v10
         v_lshlrev_b32_e64 v10, v10, 12
         v_xor_b32 v10, 0x0c0c0c0c, v10''')
    a(f'''s_cmp_eq_u32 s49, 0
          s_cbranch_scc0 L_wo
          v_lshlrev_b32 v2, 4, v0
          s_lshl_b32 s4, s32, 11
          s_add_u32 s4, s4, {X2F}
          s_mov_b32 m0, {L_Q}
          s_mov_b32 s62, 0
          s_setprio {pprio}
          L_p_loop:
          buffer_load_dwordx4 v2, s[44:47], s4 offen sc1 lds
          buffer_load_dwordx4 v2, s[44:47], s4 offen offset:1024 sc1 lds
          s_sleep {sleep}
          s_cmp_eq_u32 s62, {(1 << fastbits) * STEP}
          s_cselect_b32 s5, {X2F - X2}, 0
          s_sub_u32 s4, s4, s5
          ds_read2st64_b32 v[12:13], v2 offset0:{L_Q // 256} offset1:{L_Q // 256 + 4}
          s_waitcnt vmcnt(32) lgkmcnt(0)
          v_bitop3_b32 v12, v12, v13, s3 bitop3:0x7e
          v_cmp_ne_u32_sdwa vcc, v12, 0 src0_sel:WORD_0 src1_sel:DWORD''')
    spin('L_p_loop', 'L_p_ok')
    a('s_setprio 0')
    stamp(2)
    a('s_cmp_lt_u32 s33, 14\ns_cbranch_scc0 L_fin\nL_wo:')
    hop('w')
    if not wolate:
        ldswait('L_wo_g', L_C, gaten, 2)
        wold()
    else: a('v_mov_b32 v100, 0')
    setprio(3)
    a('s_barrier\ns_barrier')
    if wolate: wold()
    stamp(4)
    x3l = [f'buffer_load_dwordx4 v[{32+4*s}:{35+4*s}], v3, s[44:47], s{40+s} offen sc1' for s in range(3)]
    for l in x3l: a(l)
    if peel:
        a('s_waitcnt vmcnt(0)')
        for i in range(3): a(f'v_cmp_ne_u32_sdwa s[{4+2*i}:{5+2*i}], v{32+4*i}, v7 src0_sel:BYTE_0 src1_sel:DWORD')
        for i in range(3): a(f's_wqm_b64 exec, s[{4+2*i}:{5+2*i}]\n{x3l[i]}')
        a('s_mov_b64 exec, -1')
    else: a('s_waitcnt vmcnt(3)')
    fix4(80, 48); perms64(80, 16)
    stamp(5)
    gather('L_x3', x3l, 32, 4, 7, issued=True, nfast=2 << fastbits, warm=(fX3, 62),
           spec='\n'.join(f'v_perm_b32 v{48+2*s}, v{35+4*s}, v{34+4*s}, s57' for s in range(3)),
           switch='\n'.join(f's_sub_u32 s{40+s}, s{40+s}, {X3F - X3}' for s in range(3)) + '\ns_barrier\ns_mov_b32 s43, 1')
    stamp(6)
    a(f'''v_max3_f32 v54, v48, v50, v52
          v_xor_b32 v32, v32, v7
          v_xor_b32 v36, v36, v7
          v_max_f32_dpp v54, v54, v54 row_ror:8 {DPPF}
          v_mov_b32 v55, v54
          v_xor_b32 v40, v40, v7''')
    pad('w')
    a(f'''v_permlane32_swap_b32 v54, v55
          v_max_f32 v54, v54, v55
          v_mov_b32 v55, v54
          v_permlane16_swap_b32 v54, v55
          v_max_f32 v54, v54, v55''')
    a('v_mul_f32 v54, s58, v54')
    for s in range(3): a(f'v_fma_f32 v{56+2*s}, v{48+2*s}, s58, -v54')
    for s in range(3): a(f'v_exp_f32 v{56+2*s}, v{56+2*s}')
    a(f'''v_pk_mul_f32 v[44:45], v[32:33], v[56:57] op_sel_hi:[1,0]
          v_pk_mul_f32 v[46:47], v[34:35], v[56:57] op_sel_hi:[1,0]
          v_pk_fma_f32 v[44:45], v[36:37], v[58:59], v[44:45] op_sel_hi:[1,0,1]
          v_pk_fma_f32 v[46:47], v[38:39], v[58:59], v[46:47] op_sel_hi:[1,0,1]
          v_pk_fma_f32 v[44:45], v[40:41], v[60:61], v[44:45] op_sel_hi:[1,0,1]
          v_pk_fma_f32 v[46:47], v[42:43], v[60:61], v[46:47] op_sel_hi:[1,0,1]''')
    rscatter(44)
    a(f's_cmp_eq_u32 s49, 0\nv_add_f32_dpp v44, v44, v44 row_ror:8 {DPPF}')
    rnd('v44', 'v44')
    a('ds_write_b16_d16_hi v5, v44')
    for tau in range(2): a(f'ds_read_b128 v[{64+4*tau}:{67+4*tau}], v{8+tau}')
    a('s_cbranch_scc0 L_wo_nl')
    for s in range(3): a(f'v_perm_b32 v{48+s}, v{33+4*s}, v{33+4*s}, v10')
    for s in range(3): a(f'v_or_b32_dpp v{48+s}, v{48+s}, v{48+s} quad_perm:[1,0,3,2] {DPPF}')
    for s in range(3): a(f'v_or_b32_dpp v{48+s}, v{48+s}, v{48+s} quad_perm:[2,3,0,1] {DPPF}')
    a('''v_mul_f32 v54, v56, v48
         v_fmac_f32 v54, v58, v49
         v_fmac_f32 v54, v60, v50
         L_wo_nl:''')
    mma2(72, 64, 16)
    a(f'''s_cbranch_scc0 L_wo_nl2
          v_add_f32_dpp v54, v54, v54 row_ror:8 {DPPF}
          v_mov_b32 v55, v54
          v_permlane32_swap_b32 v54, v55
          v_add_f32 v54, v54, v55
          v_mov_b32 v55, v54
          L_wo_nl2:''')
    a(f'''s_mov_b32 s62, 0
          s_mov_b64 exec, 0xffff
          s_cmp_eq_u32 s43, 0''')
    pad('w')
    a(f'''ds_write_b128 v6, v[74:77]
          s_mov_b64 exec, 1
          ds_inc_u32 v0, v98 offset:{L_C+16}''')
    a('s_cbranch_scc0 L_wo_nb\ns_barrier\nL_wo_nb:')
    a(f'''s_mov_b64 exec, -1
          s_cmp_eq_u32 s49, 0
          s_cbranch_scc0 L_fin
          L_wo_s:
          ds_read_b32 v24, v100 offset:{L_C+16}''')
    sumrows(8, L_P, 4, 'v_cmp_ne_u32 vcc, 8, v24', 'v_mov_b32 v52, v54\nv_mov_b32 v53, v55\nv_permlane16_swap_b32 v52, v53\nv_add_f32 v52, v52, v53\nv_rcp_f32 v52, v52')
    rare.append(lambda: a(f'L_wo_sr:\ns_add_u32 s62, s62, {STEP}\ns_cbranch_scc0 L_wo_s\ns_branch L_wo_sok'))
    a('v_mul_f32 v16, v52, v16')
    a(f'''v_and_or_b32 v16, v16, v98, v99
          s_cbranch_vccnz L_wo_sr
          L_wo_sok:
          buffer_store_dword v16, v4, s[44:47], s54 offen sc1
          buffer_store_dword v16, v4, s[44:47], s55 offen sc1''')
    stamp(7)
    a('L_fin:')
    fin()
    for r in rare: r()
    rare.clear()

    role[0] = 'F'
    if paged: a('.p2align 12\nL_F2:')
    else: fstart()
    dzero(); stamp(1)
    a('s_load_dword s30, s[28:29], 0')
    ws_srd(); perm_sel()
    a(f'''s_lshl_b32 s52, s31, 8
          s_add_u32 s56, s52, 0x2400
          s_mov_b32 s59, {hex(f2u(448.0))}
          s_mov_b32 s58, 0x3f803f80
          v_mov_b32 v12, 0
          v_lshlrev_b32 v4, 2, v0
          ds_write_b32 v4, v12 offset:{FZ}
          v_add_u32 v6, s56, v6
          v_lshl_add_u32 v5, v5, 1, s52''')
    maskaddr(8, 2, 's56', FZ + 64, 12)
    a('''s_waitcnt vmcnt(8)
         v_dot2_f32_bf16 v102, v96, s58, 0
         v_dot2_f32_bf16 v103, v96, v96, 0''')
    for i in range(1, 4):
        a(f'v_dot2_f32_bf16 v102, v{96+i}, s58, v102')
        a(f'v_dot2_f32_bf16 v103, v{96+i}, v{96+i}, v103')
    for sh in (8, 4, 2, 1):
        a(f'v_add_f32_dpp v102, v102, v102 row_ror:{sh} {DPPF}')
        a(f'v_add_f32_dpp v103, v103, v103 row_ror:{sh} {DPPF}')
    allred_rows('v_add_f32', 102, 104); allred_rows('v_add_f32', 103, 104)
    a('v_lshlrev_b32 v96, 16, v100')
    ln_apply(102, 103, (100, 96), 104)
    a(f'''s_lshl_b32 s52, s32, 11
          s_lshl_b32 s53, s33, 8
          s_add_u32 s52, s52, s53
          s_add_u32 s53, s52, {X2F}
          s_add_u32 s52, s52, {X2}
          s_waitcnt lgkmcnt(0)''')
    tags()
    a('s_waitcnt vmcnt(4)')
    fix4(32, 104); perms64(32, 64)
    a(f'''s_mov_b32 s49, {X1}
          s_add_u32 s50, s31, 0
          s_lshr_b32 s63, s50, 3
          s_lshl_b32 s63, s63, 13
          s_lshl_b32 s50, s50, 10
          s_add_u32 s50, s50, s63
          s_add_u32 s50, s50, s49
          s_add_u32 s51, s31, 7
          s_lshr_b32 s63, s51, 3
          s_lshl_b32 s63, s63, 13
          s_lshl_b32 s51, s51, 10
          s_add_u32 s51, s51, s63
          s_add_u32 s51, s51, s49
          s_waitcnt vmcnt(0)''')
    fix4(48, 104); perms64(48, 80)
    a('''s_add_u32 s8, s31, 14
          s_lshr_b32 s63, s8, 3
          s_lshl_b32 s63, s63, 13
          s_lshl_b32 s8, s8, 10
          s_add_u32 s8, s8, s63
          s_add_u32 s8, s8, s49
          s_add_u32 s9, s31, 21
          s_lshr_b32 s63, s9, 3
          s_lshl_b32 s63, s63, 13
          s_lshl_b32 s9, s9, 10
          s_add_u32 s9, s9, s63
          s_add_u32 s9, s9, s49
          s_add_u32 s10, s31, 28
          s_lshr_b32 s63, s10, 3
          s_lshl_b32 s63, s63, 13
          s_lshl_b32 s10, s10, 10
          s_add_u32 s10, s10, s63
          s_add_u32 s10, s10, s49
          s_add_u32 s11, s31, 35
          s_lshr_b32 s63, s11, 3
          s_lshl_b32 s63, s63, 13
          s_lshl_b32 s11, s11, 10
          s_add_u32 s11, s11, s63
          s_add_u32 s11, s11, s49''')
    stamp(2)
    poll4('L_q_x1', [f'buffer_load_dwordx4 v[{32+4*s}:{35+4*s}], v41, s[44:47], s{50+s} offen sc1' for s in range(2)], 32, 40)
    stamp(3)
    if mxe:
        for s in range(4): a(f'buffer_load_dwordx4 v[{104+4*s}:{107+4*s}], v41, s[44:47], s{8+s} offen sc1')
    rscatter(36); rscatter(32)
    rnd('v36', 'v36'); rnd('v32', 'v32')
    a('v_add_f32 v36, 1.0, v36'); rnd('v36', 'v36')
    a('v_mul_f32 v36, v100, v36'); rnd('v36', 'v36')
    a('v_add_f32 v36, v36, v32'); rnd('v36', 'v36')
    a('ds_write_b16_d16_hi v6, v36')
    for u in range(2):
        for tau in range(2): a(f'ds_read_b128 v[{32+8*u+4*tau}:{35+8*u+4*tau}], v{8+tau} offset:{64*u}')
    mma2(48, 32, 64, left=2); mma2(48, 40, 80, first=False)
    a(f'''v_mov_b32 v24, 1
          s_mov_b32 s62, 0
          s_mov_b64 exec, 0xffff
          s_cmp_eq_u32 s31, 0
          ds_write_b128 v5, v[50:53] offset:{FP}
          s_mov_b64 exec, 1
          ds_add_u32 v0, v24 offset:{FC+4}
          s_mov_b64 exec, -1
          s_cbranch_scc0 L_q_done
          v_mov_b32 v25, 0
          L_q_s:
          ds_read_b32 v24, v25 offset:{FC+4}''')
    sumrows(7, FP, 4, 'v_cmp_ne_u32 vcc, 8, v24')
    rnd('v16', 'v16')
    rare.append(lambda: a(f'L_q_sr:\ns_add_u32 s62, s62, {STEP}\ns_cbranch_scc0 L_q_s\ns_branch L_q_sok'))
    a('''v_or_b32 v16, s3, v16
         s_cbranch_vccnz L_q_sr
         L_q_sok:
         buffer_store_dword v16, v4, s[44:47], s53 offen
         buffer_store_dword v16, v4, s[44:47], s52 offen sc1''')
    a(f'ds_write_b32 v25, v24 offset:{FC+16}')
    if rewarm:
        a(f'''s_cmp_eq_u32 s33, 7
              s_cbranch_scc0 L_q_done
              s_getpc_b64 s[4:5]
              L_pc2:
              s_sub_u32 s4, s4, L_pc2-L_pc
              s_subb_u32 s5, s5, 0
              v_lshlrev_b32 v102, 7, v0
              v_add_u32 v103, 0x2000, v102
              v_min_u32 v103, L_code_end-L_pc-4, v103
              global_load_dword v127, v102, s[4:5] sc1
              global_load_dword v127, v103, s[4:5] sc1''')
    a('L_q_done:')
    stamp(4)
    def ffn_id(skip):
        a(f'''s_cmp_lt_u32 s32, 4
              s_cselect_b32 s50, 6, 8
              s_cselect_b32 s51, 0, 8
              s_cmp_lt_u32 s33, s50
              s_cbranch_scc0 {skip}''')
    ffn_id('L_fin2')
    a(f'''s_mul_i32 s50, s50, s32
          s_add_u32 s50, s50, s33
          s_sub_u32 s50, s50, s51
          s_mov_b32 s36, s16
          s_mov_b32 s37, s17
          s_mov_b32 s38, {448*3584}
          s_mov_b32 s40, s18
          s_mov_b32 s41, s19
          s_mov_b32 s42, {1792*896}
          s_mul_i32 s52, s31, {64*3584}
          s_lshl_b32 s53, s50, 6
          s_add_u32 s52, s52, s53
          s_mul_i32 s54, s50, {32*896}
          s_lshl_b32 s55, s31, 7
          s_add_u32 s54, s54, s55
          s_add_u32 s55, s54, {4*896}
          v_and_b32 v4, 15, v0
          v_mul_u32_u24 v2, {8*3584}, v3
          v_lshl_add_u32 v2, v4, 2, v2''')
    voff4(1, 8 * 896, 896, 102)
    if not mxe or not hintk: ldswait('L_f_q', FC + 16, 1, 1, 102)
    poll4('L_f_mx', [f'buffer_load_dwordx4 v[{104+4*s}:{107+4*s}], v121, s[44:47], s{8+s} offen sc1' for s in range(4)], 104, 120, 0, mxe)
    for s in range(4): rscatter(104 + 4 * s)
    rnd('v102', 'v104'); rnd('v98', 'v108'); rnd('v100', 'v112'); rnd('v116', 'v116')
    a('v_add_f32 v100, 1.0, v100\ns_lshl_b32 s13, s31, 8\nv_lshl_add_u32 v103, v0, 2, s13')
    rnd('v100', 'v100')
    a(f'''ds_write_b32 v103, v116 offset:{FG}
          ds_write_b16_d16_hi v6, v100
          ds_write_b16_d16_hi v6, v98 offset:128''')
    hop('f')
    if hintk: ldswait('L_f_g', FC + 8, 1, 1, 104)
    stamp(5)
    for i in range(16):
        a(f'buffer_load_dword v{32+i}, v2, s[36:39], s52 offen offset:{3584*(i&1)}{w1nt}')
        if i & 1: a(f's_add_u32 s52, s52, {2*3584 if i != 7 else 26*3584}')
    for u in range(4):
        a(f'buffer_load_dwordx4 v[{48+4*u}:{51+4*u}], v1, s[40:43], s{54+(u>>1)} offen offset:{(u&1)*2*896}{nt}')
    maskaddr(10, 2, FH, FZ + 64, 104)
    lanetag(5, 0)
    getside(104)
    a(f'''s_lshr_b32 s12, s50, 2
          s_lshl_b32 s12, s12, 13
          s_lshl_b32 s14, s50, 11
          s_add_u32 s12, s12, s14
          s_add_u32 s12, s12, s13
          s_add_u32 s12, s12, {X5}
          v_and_b32 v7, 1, v3
          v_lshlrev_b32 v7, 13, v7
          v_lshl_add_u32 v7, v4, 4, v7
          v_and_b32 v8, 1, v0
          v_lshlrev_b32 v8, 7, v8
          v_lshl_add_u32 v8, v3, 4, v8
          v_add_u32 v8, s56, v8
          v_lshlrev_b32 v2, 11, v3
          v_lshl_add_u32 v2, v4, 4, v2
          s_add_u32 s52, s13, {FA}
          v_lshl_add_u32 v9, v0, 3, s52
          s_lshl_b32 s52, s31, 7
          s_add_u32 s52, s52, {FP2}
          v_lshl_add_u32 v4, v0, 3, s52
          s_add_u32 s40, s13, s48
          s_add_u32 s40, s40, {X4}
          s_add_u32 s41, s40, {1 << 14}
          s_add_u32 s42, s40, {2 << 14}
          s_add_u32 s43, s40, {3 << 14}
          s_lshl_b32 s52, s31, 3
          s_add_u32 s52, s52, {FST}
          v_lshrrev_b32 v1, 5, v0
          v_lshl_add_u32 v3, v1, 2, s52
          s_mov_b32 s57, 0xffffff00
          s_mov_b32 s16, 0x10000
          s_mov_b32 s17, 0x10000
          ds_read_b128 v[80:83], v8
          ds_read_b128 v[84:87], v8 offset:64
          v_mov_b32 v12, 0
          v_mov_b32 v13, 1
          v_mov_b32 v120, 1''')
    x4l = [f'buffer_load_dwordx4 v[{104+4*s}:{107+4*s}], v2, s[44:47], s{40+s} offen sc1' for s in range(4)]
    def w1mma(k):
        for tau in range(2):
            d = 88 + 4 * tau; b = 16 + 8 * k + 4 * tau
            a(f'v_mfma_f32_16x16x32_bf16 v[{d}:{d+3}], v[{80+4*k}:{83+4*k}], v[{b}:{b+3}], ' + ('0' if k == 0 else f'v[{d}:{d+3}]'))
    stamp(6)
    a('s_waitcnt vmcnt(4) lgkmcnt(0)')
    for l in x4l: a(l)
    for aa in range(2):
        for tau in range(2):
            for rho in range(4):
                a(f'v_perm_b32 v{16+8*aa+4*tau+rho}, v{32+8*aa+2*rho+1}, v{32+8*aa+2*rho}, s{60+tau}')
    w1mma(0); w1mma(1)
    a(f'''s_mov_b64 exec, 0xffff
          ds_write2_b32 v9, v88, v92 offset0:0 offset1:1
          ds_write2_b32 v9, v89, v93 offset0:32 offset1:33
          s_mov_b64 exec, 1
          ds_add_u32 v0, v120 offset:{FC}
          s_mov_b64 exec, -1
          s_waitcnt vmcnt(4)''')
    fix4(48, 124); perms64(48, 64)
    setprio(2)
    stamp(7)
    def sum_hi(r, d):
        return f'''v_pk_add_f32 v[{d+2}:{d+3}], v[{r+2}:{r+3}], v[{r+6}:{r+7}]
                   v_pk_add_f32 v[{d}:{d+1}], v[{r+10}:{r+11}], v[{r+14}:{r+15}]
                   v_pk_add_f32 v[{d+2}:{d+3}], v[{d+2}:{d+3}], v[{d}:{d+1}]'''
    def sum_lo(r, d):
        for s in range(4): a(f'v_xor_b32 v{r+4*s}, v{r+4*s}, v5')
        pk('add', r, r, r + 4); pk('add', r + 8, r + 8, r + 12); pk('add', d, r, r + 8)
    gather('L_x4', x4l, 104, 4, 5, spec=sum_hi(104, 120), issued=True)
    stamp(8)
    sum_lo(104, 120)
    pad('f')
    rscatter(120)
    rnd('v120', 'v120'); a('v_mul_f32 v120, v102, v120'); rnd('v120', 'v120'); a('v_add_f32 v120, v96, v120'); rnd('v121', 'v120')
    xs('x2')
    a(f'''v_mul_f32 v123, v121, v100
          v_mul_f32 v122, v121, v121
          v_cvt_pk_bf16_f32 v124, 0, v123
          v_sub_f32 v124, v123, v124
          v_cvt_pk_bf16_f32 v123, v124, v123
          ds_write_b16_d16_hi v6, v123
          ds_write_b16 v6, v123 offset:128
          ds_read_b128 v[80:83], v8
          ds_read_b128 v[84:87], v8 offset:64
          ds_write_b32 v103, v121 offset:{FX}
          v_permlane32_swap_b32 v121, v122
          v_add_f32 v121, v121, v122''')
    pad('f')
    a(f'''v_add_f32_dpp v121, v121, v121 row_ror:8 {DPPF}
          v_add_f32_dpp v121, v121, v121 row_ror:4 {DPPF}
          v_add_f32_dpp v121, v121, v121 row_ror:2 {DPPF}
          s_waitcnt lgkmcnt({0 if (diag and only is None) else 2})''')
    w1mma(0)
    a(f'''v_add_f32_dpp v121, v121, v121 row_ror:1 {DPPF}
          s_waitcnt lgkmcnt({0 if (diag and only is None) else 1})''')
    w1mma(1)
    a(f'''v_add_f32_dpp v121, v121, v121 row_bcast:15 row_mask:0xa bank_mask:0xf
          s_mov_b64 exec, s[16:17]
          ds_write_b32 v3, v121''')
    if est: a(f'ds_add_u32 v12, v13 offset:{FC+20}')
    a('s_mov_b64 exec, 0xffff')
    pad('f')
    a(f'''v_add_f32 v88, v88, v89
          v_add_f32 v92, v92, v93
          ds_write2_b32 v4, v88, v92 offset0:0 offset1:1
          s_mov_b64 exec, -1
          s_waitcnt lgkmcnt(0)''')
    stamp(11); xs('preB3')
    a('s_barrier')
    xs('B3')
    a('s_barrier')
    xs('B4')
    for tau in range(2): a(f'ds_read_b128 v[{80+4*tau}:{83+4*tau}], v{10+tau}')
    mma2(32, 80, 64)
    xs('mm2')
    pad('f', True)
    a('''s_mov_b32 exec_hi, 0
         v_and_or_b32 v34, v34, s57, v5
         buffer_store_dwordx4 v[34:37], v7, s[44:47], s12 offen sc1''')
    stamp(9)
    a('s_barrier\nL_fin2:')
    fin()
    for r in rare: r()
    rare.clear()
    if not paged: a(f'''L_F7s:
              s_cmp_ge_u32 s31, 9
              s_cbranch_scc1 L_F9
              v_mov_b32 v2, 0
              v_lshlrev_b32 v3, 2, v0
              ds_write_b32 v3, v2 offset:{FC & ~255}
              s_waitcnt lgkmcnt(0)
              s_barrier
              s_branch L_F7
              L_F9:
              s_endpgm''')
    a(f'''L_F7:
          s_cmp_eq_u32 s31, 7
          s_cbranch_scc0 L_F8
          s_load_dword s30, s[28:29], 0
          v_mov_b32 v4, 1
          s_waitcnt lgkmcnt(0)
          s_mov_b64 exec, 1
          ds_add_u32 v2, v4 offset:{FC+4}
          s_mov_b64 exec, -1''')
    dzero()
    ws_srd()
    ffn_id('L_fin3')
    if hintk:
        a(f'''s_mul_i32 s49, s32, {24*128}
              s_add_u32 s49, s49, {HINT}
              v_lshlrev_b32 v102, 7, v0''')
        if mxe:
            ldswait('L_7_t', FC + 4, 2, 4, 104)
            a('s_mov_b64 exec, 0xffffff\nbuffer_load_dword v103, v102, s[44:47], s49 offen sc1\ns_mov_b64 exec, -1')
    ldswait('L_7_q', FC + 16, 1, 4, 104)
    tags()
    if hintk:
        a(f'''s_mov_b64 exec, 0xffffff
              s_mov_b32 s62, 0
              L_f_h:
              s_sleep 2
              buffer_load_dword v103, v102, s[44:47], s49 offen sc1
              s_add_u32 s62, s62, {1 << (32 - fastbits)}
              s_waitcnt vmcnt(0)
              s_cbranch_scc1 L_f_hok
              v_cmp_eq_u32 vcc, s3, v103
              s_bcnt1_i32_b64 s53, vcc
              s_cmp_lt_u32 s53, {hintk}
              s_cbranch_scc1 L_f_h
              L_f_hok:
              s_mov_b64 exec, -1
              v_mov_b32 v103, 1
              ds_write_b32 v2, v103 offset:{FC+8}''')
    a(f'''s_mul_i32 s50, s50, s32
          s_add_u32 s50, s50, s33
          s_sub_u32 s50, s50, s51
          v_mov_b32 v9, v3
          v_lshrrev_b32 v4, 4, v0
          v_lshlrev_b32 v81, 14, v4
          v_bfe_u32 v6, v0, 2, 2
          v_lshl_add_u32 v81, v6, 11, v81
          v_and_b32 v6, 3, v0
          v_lshl_add_u32 v81, v6, 4, v81
          s_bfe_u32 s52, s50, 0x20001
          s_lshl_b32 s52, s52, 2
          s_lshl_b32 s20, 0x000f000f, s52
          s_mov_b32 s21, s20
          s_lshr_b32 s52, s50, 3
          s_lshl_b32 s53, s52, 8
          v_add_u32 v3, s53, v3
          s_lshl_b32 s52, s52, 7
          v_and_b32 v6, 7, v0
          v_lshlrev_b32 v6, 4, v6
          v_and_b32 v7, 8, v0
          v_lshl_add_u32 v7, v4, 1, v7
          v_add3_u32 v101, v6, v7, s52
          s_mov_b32 s36, s24
          s_mov_b32 s37, s25
          s_mov_b32 s38, 896
          s_mov_b32 s39, 0x20000''')
    lanetag(5, 0)
    x5l = [f'buffer_load_dwordx4 v[{36+4*s}:{39+4*s}], v81, s[44:47], s{40+s} offen sc1' for s in range(4)]
    a('v_mov_b32 v48, v5\nv_mov_b32 v49, 0\nv_mov_b32 v50, 0\nv_mov_b32 v51, 0')
    hop('s')
    ldswait('L_7_g', FC, 2, 4, 102)
    getside(102)
    a(f'''s_lshl_b32 s40, s50, 5
          s_add_u32 s40, s40, s48
          s_add_u32 s40, s40, {X5}
          s_add_u32 s41, s40, {4 << 14}
          s_add_u32 s42, s40, {8 << 14}
          s_add_u32 s43, s40, {12 << 14}''')
    a('s_bitcmp1_b32 s50, 0\ns_cbranch_scc1 L_7_o\n' + '\n'.join(x5l[:3]) + f'''
          s_mov_b32 exec_hi, 0
          {x5l[3]}
          buffer_load_ushort v125, v101, s[36:39], 0 offen
          s_mov_b32 exec_hi, -1
          L_7_o:''')
    ldswait('L_7_a', FC, 7, 1, 102)
    sumrows(7, FA, 9)
    a(f'''v_mov_b32 v17, v16
          v_and_b32 v14, 31, v0
          v_lshlrev_b32 v15, 1, v14
          v_permlane32_swap_b32 v16, v17
          v_lshlrev_b32 v14, 2, v14
          v_add_u32 v14, {FP2}, v14
          v_mov_b32 v1, {FST}
          v_mov_b32 v31, 0
          s_mov_b32 s59, {hex(f2u(448.0))}''')
    align('S')
    setprio(3)
    cw = lambda n: f's_waitcnt lgkmcnt({0 if (diag and only is None) else n})'
    if est:
        a(f'''s_mov_b32 s62, 0
              L_7_s:
              ds_read_b32 v70, v31 offset:{FC+20}
              ds_read_b128 v[56:59], v1
              ds_read_b128 v[60:63], v1 offset:16
              ds_read_b128 v[64:67], v1 offset:32
              ds_read_b64 v[68:69], v1 offset:48
              s_add_u32 s62, s62, {STEP >> 2}
              s_cbranch_scc1 L_7_sok
              {cw(4)}
              v_cmp_ne_u32 vcc, 14, v70
              s_cbranch_vccnz L_7_s
              L_7_sok:
              s_waitcnt lgkmcnt(0)''')
        pk('add', 56, 56, 58); pk('add', 60, 60, 62)
        pk('add', 64, 64, 66); pk('add', 56, 56, 60); pk('add', 64, 64, 68); pk('add', 56, 56, 64)
        a(f'''s_barrier
              ds_read2_b32 v[24:25], v14 offset0:0 offset1:32
              ds_read2_b32 v[26:27], v14 offset0:64 offset1:96
              ds_read2_b32 v[28:29], v14 offset0:128 offset1:160
              ds_read_b32 v30, v14 offset:768''')
        a(f'''v_mul_f32 v60, v56, v56
              v_fma_f32 v61, v56, v56, -v60
              v_fma_f32 v60, v57, s59, -v60
              v_sub_f32 v60, v60, v61
              v_mul_f32 v60, {hex(f2u(1/448/448))}, v60
              v_max_f32 v60, 0, v60''')
        rnd('v60', 'v60')
        a(f'v_add_f32 v60, {hex(f2u(1e-5))}, v60')
        rnd('v60', 'v60')
        a(f'v_sqrt_f32 v60, v60\nv_mul_f32 v62, {hex(f2u(1/448))}, v56')
        rnd('v60', 'v60')
        a('s_waitcnt lgkmcnt(0)\nv_rcp_f32 v60, v60')
        pk('add', 24, 24, 26); pk('add', 28, 28, 30)
        rnd('v62', 'v62')
        pk('add', 24, 24, 28)
        a('''v_fma_f32 v24, -v62, v16, v24
             v_add_f32 v24, v24, v25
             v_fma_f32 v24, v24, v60, v17''')
    else:
        a(f'''s_barrier
              ds_read_b128 v[56:59], v1
              ds_read_b128 v[60:63], v1 offset:16
              ds_read_b128 v[64:67], v1 offset:32
              ds_read_b64 v[68:69], v1 offset:48
              ds_read2_b32 v[24:25], v14 offset0:0 offset1:32
              ds_read2_b32 v[26:27], v14 offset0:64 offset1:96
              ds_read2_b32 v[28:29], v14 offset0:128 offset1:160
              ds_read_b32 v30, v14 offset:768''')
        pad('s')
        a(cw(6))
        pk('add', 56, 56, 58); pk('add', 60, 60, 62)
        a(cw(4))
        pk('add', 64, 64, 66); pk('add', 56, 56, 60); pk('add', 64, 64, 68); pk('add', 56, 56, 64)
        a(f'''v_mul_f32 v60, v56, v56
              v_fma_f32 v61, v56, v56, -v60
              v_fma_f32 v60, v57, s59, -v60
              v_sub_f32 v60, v60, v61
              v_mul_f32 v60, {hex(f2u(1/448/448))}, v60
              v_max_f32 v60, 0, v60''')
        rnd('v60', 'v60')
        a(f'v_add_f32 v60, {hex(f2u(1e-5))}, v60')
        rnd('v60', 'v60')
        a(f'v_sqrt_f32 v60, v60\nv_mul_f32 v62, {hex(f2u(1/448))}, v56')
        rnd('v60', 'v60')
        a('s_waitcnt lgkmcnt(0)\nv_rcp_f32 v60, v60')
        pk('add', 24, 24, 26); pk('add', 28, 28, 30)
        rnd('v62', 'v62')
        pk('add', 24, 24, 28)
        a('''v_fma_f32 v24, -v62, v16, v24
             v_add_f32 v24, v24, v25
             v_fma_f32 v24, v24, v60, v17''')
    rnd('v24', 'v24')
    silu(24, 24, 25, 's')
    a(f'''ds_write_b16_d16_hi v15, v24 offset:{FH}
          s_bitcmp1_b32 s50, 0
          s_waitcnt lgkmcnt(0)
          s_barrier
          s_cbranch_scc1 L_fin3''')
    a(f'''ds_read_b32 v96, v3 offset:{FX}
          ds_read_b32 v100, v3 offset:{FG}
          s_cmp_eq_u32 s50, 0
          s_cbranch_scc0 L_7_e
          s_mov_b64 exec, 1
          v_mov_b32 v6, s30
          buffer_store_dword v6, v2, s[44:47], 0 offen
          s_mov_b64 exec, -1
          L_7_e:''')
    pad('s')
    a('s_barrier\ns_waitcnt lgkmcnt(0)')
    gather('L_x5', x5l, 36, 4, 5, issued=True, spec=sum_hi(36, 32))
    stamp(12)
    sum_lo(36, 32)
    pad('s')
    rscatter(32)
    a(f'v_add_f32_dpp v32, v32, v32 row_ror:8 {DPPF}')
    pad('s', True)
    a(f'v_add_f32_dpp v32, v32, v32 row_ror:4 {DPPF}')
    rnd('v32', 'v32'); a('v_mul_f32 v32, v100, v32'); rnd('v32', 'v32'); a('v_add_f32 v32, v96, v32\ns_mov_b64 exec, s[20:21]'); rnd('v32', 'v32')
    a('buffer_store_short_d16_hi v32, v101, s[36:39], 0 offen')
    stamp(14)
    if lite: a('s_branch L_dump')
    a('L_fin3:')
    fin()
    for r in rare: r()
    rare.clear()
    a(f'''L_F8:
          s_lshl_b32 s48, s2, 7
          s_add_u32 s48, s48, {PRB}
          s_add_u32 s49, s48, {SIDE}
          s_mov_b32 s52, -1
          s_mov_b32 s53, -1
          s_mov_b32 s54, 0
          s_waitcnt lgkmcnt(0)''')
    if tlb:
        a(f'''s_lshl_b32 s50, s32, 25
              s_add_u32 s50, s50, {WINOFF}
              s_mov_b32 s51, {4096*896-4}
              s_load_dword s56, s[8:9], s50
              s_load_dword s57, s[12:13], 0
              s_load_dword s58, s[12:13], s51
              s_load_dword s59, s[16:17], 0
              s_load_dword s60, s[18:19], 0
              s_load_dword s61, s[24:25], 0''')
    dzero()
    if fside is not None:
        a(f'''s_getreg_b32 s55, hwreg(HW_REG_XCC_ID)
              s_bfe_u32 s55, s55, 0x10002
              s_xor_b32 s55, s55, {fside}
              s_lshl_b32 s55, s55, 13
              v_mov_b32 v3, s55
              ds_write_b32 v2, v3 offset:{FC+12}''')
    else:
        a('s_load_dword s10, s[28:29], s48 glc\ns_load_dword s11, s[28:29], s49 glc\ns_waitcnt lgkmcnt(0)\nL_8_l:')
        for sd in range(2):
            a(f'''s_memtime s[4:5]
                  s_waitcnt lgkmcnt(0)
                  s_load_dword s10, s[28:29], s{48+sd} glc
                  s_waitcnt lgkmcnt(0)
                  s_memtime s[6:7]
                  s_lshr_b32 s8, s33, {sd}
                  s_add_u32 s8, s8, s54
                  s_bitcmp1_b32 s8, 0
                  s_waitcnt lgkmcnt(0)
                  s_cbranch_scc0 L_8_n{sd}
                  s_sleep 3
                  L_8_n{sd}:
                  s_sub_u32 s4, s6, s4
                  s_min_u32 s{52+sd}, s{52+sd}, s4''')
        a(f'''s_cmp_lt_u32 s53, s52
              s_cselect_b32 s55, {SIDE}, 0
              v_mov_b32 v3, s55
              ds_write_b32 v2, v3 offset:{FC+12}''')
        if diag:
            for k in (1, 2, 3, 4): a(f's_cmp_eq_u32 s54, {k-1}\ns_cbranch_scc0 L_8_d{k}\ns_memrealtime s[{64+2*k}:{65+2*k}]\ns_add_u32 s{64+2*(k+4)}, s55, 1\nL_8_d{k}:')
        a(f'''s_add_u32 s54, s54, 1
              s_cmp_lt_u32 s54, {nprb}
              s_cbranch_scc1 L_8_l''')
    if diag:
        a('s_add_u32 s90, s55, 1\ns_getreg_b32 s88, hwreg(HW_REG_XCC_ID)\ns_mov_b32 s86, s52\ns_mov_b32 s84, s53')
        fin()
    else: a('s_endpgm')
    if probe:
        a('L_probe:\ns_cmp_eq_u32 s68, 0\ns_cbranch_scc1 L_end')
        if len(probe) > 2 and probe[2] is not None: a(f's_cmp_eq_u32 s32, {probe[2]}\ns_cbranch_scc0 L_end')
        if len(probe) > 3 and probe[3] is not None: a(f's_cmp_eq_u32 s31, {probe[3]}\ns_cbranch_scc0 L_end')
        a('''s_setprio 0
             s_sleep 127
             s_sleep 127
             s_sleep 127
             s_sleep 127
             s_sleep 127
             L_probe_l:
             s_memrealtime s[66:67]
             s_waitcnt lgkmcnt(0)
             s_sub_u32 s66, s66, s64
             s_cmp_lt_u32 s66, 3000
             s_cbranch_scc1 L_probe_l
             s_endpgm''')
    if diag or lite:
        a(f'''L_dump:
              s_mov_b64 exec, -1
              s_waitcnt vmcnt(0) lgkmcnt(0)
              s_memrealtime s[94:95]
              s_lshl_b32 s48, s2, 4
              s_add_u32 s48, s48, s31
              s_lshl_b32 s48, s48, 6
              s_add_u32 s48, s48, {STAMP_OFF}
              v_mov_b32 v1, s48
              s_waitcnt lgkmcnt(0)''')
        for i in range(16): a(f'v_mov_b32 v{8+i}, s{64+2*i}')
        a('s_mov_b64 exec, 1')
        for i in range(4): a(f'global_store_dwordx4 v1, v[{8+4*i}:{11+4*i}], s[28:29] offset:{16*i}')
    a('L_end:\ns_endpgm\nL_code_end:')
    head = open('adaLN_cond__sliding_block_cached__dense_activation_silu__decode.s.ref').read().split('; Override launch')[0]
    return head + f'''; @launch grid=(256,1,1) block=(1024,1,1) lds={L_END}
.amdgcn_target "amdgcn-amd-amdhsa--gfx950"
.text
.globl {KN}
{'.p2align 12' if paged else ''}
.p2align 8
.type {KN},@function
''' + a.text() + f'''.section .rodata,"a"
.p2align 6
.amdhsa_kernel {KN}
  .amdhsa_next_free_vgpr 128
  .amdhsa_next_free_sgpr 96
  .amdhsa_accum_offset 128
  .amdhsa_group_segment_fixed_size 0
  .amdhsa_kernarg_size 104
  .amdhsa_user_sgpr_count 2
  .amdhsa_user_sgpr_kernarg_segment_ptr 1
  .amdhsa_system_sgpr_workgroup_id_x 1
.end_amdhsa_kernel
'''

if __name__ == '__main__':
    out = sys.argv[1]
    kw = eval('dict(' + (sys.argv[2] if len(sys.argv) > 2 else '') + ')')
    open(out, 'w').write(gen(**kw))
```

```python
import sys, struct
sys.path.insert(0, 'work')
from asmlib import Asm

KN = 'adaLN_cond__sliding_block_cached__dense_activation_silu__decode_kernel'
X2, X2F, HINT, PRB, X1, X4, X5, X3, X3F, WSEND = 0x4000, 0x8000, 0xC000, 0x80000, 0x18000, 0x30000, 0x40000, 0xA0000, 0x100000, 0x160000
SIDE = 0x2000
STAMP_OFF = 0x180000
L_Q, L_M, L_C, L_L, L_Z, L_O, L_PRIV, L_P, L_END = 0x0, 0x800, 0x810, 0x840, 0x900, 0x1000, 0x5000, 0x5800, 0x6100
FM = 0x300
FZ, FC, FP, FP2, FST, FX, FG, FA, FH = 0x0, 0x240, 0x1000, 0x1800, 0x2000, 0x3000, 0x3800, 0x4000, 0x2100
WINOFF = (65536 - 4096) * 512

DOC = """;
"""
def f2u(x): return struct.unpack('<I', struct.pack('<f', x))[0]
LOG2E = 1.4426950408889634
DPPF = 'row_mask:0xf bank_mask:0xf'

CM = {'L_A': 'attention CUs: waves 0..7 start their K loads inside the first fetched lines', 'L_a_u': 'CUs whose modulation task is on the path to q let its loads go first', 'L_Td': 'waves 8..15 of the attention CUs; waves 12..15 clear the first 4 KB of LDS (q slot, max, counters, zero rows)', 'L_mod': 'modulation task: 112 rows x 64 columns of w_mod, raw rows as B operand, silu(c) on a diagonal A operand', 'L_F': 'front CUs: wq loads', 'L_a_c': 'attention: lane constants, then the paced K and V loads', 'L_a_q': 'attention: wait for q in LDS, scores (diagonal blocks of K x q), CU-wide max, exp, P x V, combine the waves, publish', 'L_T': 'tail waves: set-up, q poller (wave 8)', 'L_wo': 'wo block: weights after the V loads, gather the 24 partials of the head, rescale, multiply, publish', 'L_F2': 'front CUs: LayerNorm(x), gather shift / scale, h, q', 'L_q_done': 'FFN block: remaining modulation values, weights, constant products c1 @ w1 and sb @ w1', 'L_x4': 'FFN: gather the 16 head products, residual, (x2 * c1) @ w1 and statistics, then h1 @ w2', 'L_F7': 'wave 7 of the front CUs: weight gate, LayerNorm + SiLU between the products, final reduction', 'L_F8': 'wave 8 of the front CUs: which memory side answers faster', 'L_pf': 'idle waves of CUs without a wo block pull the FFN weights into L2'}
def annotate(t):
    return ''.join((f'; ---- {CM[l[:-1]]}\n' if l[:-1] in CM else '') + l + '\n' for l in t.rstrip('\n').split('\n'))

def gen(W=5, WH=6, WK=3, WKH=4, N0=2, WE=7, NE=6, NL=4, adapt=True, diag=False, lite=False, probe=None, sleep=8, nt=' nt', w1nt='', wont=' nt',
        rewarm=True, gaten=8, hintk=16, hintpos=7, touchpos=2, spinbits=20, fastbits=6, prio=True, pprio=3, nprb=5,
        fside=None, nob=False, fpf=8, tbl=1, only=None, lk=0, LW=(5, 6, 7, 6), WR=None, pf3=True, wolate=False, fdelay=0, wopf=0, wolanes=32, fB3=0, fB3p=0, fB4=(12, 12), fM=True, tlb=False, mxe=False, dirty=0, epe=True, wopf2=0, peel=False, nwo=42, nmid=48, ldef=True, est=False, al={'L_x3': 3, 'L_x5': 4}, pads='', paged=True, pvf=True, wopf3=0, vpf=0, vpfk=8, vpffl='', hk3=4, nw3=True, nw4=True, nw2=False, pfnt='', gsl=0, w2nt=' nt', fX3=0, fX4=0, fA=(0, 0), half=True):
    a = Asm()
    rare = []
    STEP = 1 << (32 - spinbits)
    role = ['all']
    PH = {('att', 6), ('wo', 6), ('F', 8), ('F', 12)}
    def stamp(i):
        if (diag and (only is None or i == 0 or (role[0], i) in only)) or (lite and i in (0, 14)): a(f's_memrealtime s[{64+2*i}:{65+2*i}]')
        if probe and probe[0] == role[0] and probe[1] == i: a('s_memrealtime s[64:65]\ns_mov_b32 s68, 1')
    def xs(name):
        if diag and only and name in only: a('s_memrealtime s[84:85]')
        if diag and only and 'clk' in only and name in ('B3', 'mm2'):
            k = 1 if name == 'B3' else 3
            a(f's_memrealtime s[{64+2*k}:{65+2*k}]\ns_memtime s[{66+2*k}:{67+2*k}]')
            if name == 'B3': a('s_waitcnt lgkmcnt(0)')
    def align(k):
        if k in al:
            a('.p2align 6')
            for _ in range(al[k] + (2 if k != 'S' and not diag else 0)): a('s_nop 0')
    npad = {}
    def pad(k, last=False):
        if k not in pads: return
        i = npad.get(k, 0); npad[k] = i + 1
        a(f'L_pad{k}{i}:\ns_cbranch_execz L_pad{k}' + ('r' if last else str(i + 1)))
    def hop(k):
        if k in pads: a(f's_mov_b64 exec, 0\ns_branch L_pad{k}0\nL_pad{k}r:\ns_mov_b64 exec, -1')
    def fill(n, r):
        if r == 62:
            for _ in range(n): a('v_mfma_f32_16x16x32_bf16 v[72:75], v[16:19], v[16:19], 0')
        elif r == 63:
            for _ in range(n): a('v_mfma_f32_16x16x32_bf16 v[88:91], v[16:19], v[16:19], 0')
        elif fM and r == 9:
            for _ in range((n + 2) // 4): a('v_mfma_f32_16x16x32_bf16 v[116:119], v[16:19], v[16:19], 0')
        else:
            for _ in range(n): a(f'v_mov_b32 v{r}, 0')
    def fin(): a('s_branch L_dump' if diag else 's_branch L_probe' if probe else 's_endpgm')
    def setprio(n):
        if prio: a(f's_setprio {n}')
    def tags():
        a('''s_add_u32 s30, s30, 1
             s_and_b32 s34, s30, 0x7f
             s_xor_b32 s35, s34, 0x5a
             s_lshl_b32 s3, s35, 8
             s_or_b32 s3, s3, s34''')
    def ws_srd():
        a(f'''s_mov_b32 s44, s28
              s_mov_b32 s45, s29
              s_mov_b32 s46, {WSEND}
              s_mov_b32 s47, 0x20000''')
    def lanetag(d, bit):
        a(f'''v_bfe_u32 v{d}, v0, {bit}, 1
              v_mul_u32_u24 v{d}, 0x5a, v{d}
              v_xor_b32 v{d}, s34, v{d}''')
    def rowtag(m, t):
        lanetag(t, 2)
        a(f'''v_and_b32 v{m}, 3, v0
              v_cmp_eq_u32 vcc, 0, v{m}
              v_mov_b32 v{m}, 0xffffff00
              v_cndmask_b32 v{t}, 0, v{t}, vcc
              v_cndmask_b32 v{m}, -1, v{m}, vcc''')
    def spin(loop, done):
        a(f'''s_cbranch_vccz {done}
              s_add_u32 s62, s62, {STEP}
              s_cbranch_scc0 {loop}
              {done}:''')
    def ldswait(lbl, off, n, sl, z=100):
        if not n: return
        a(f'v_mov_b32 v{z}, 0\ns_mov_b32 s62, 0\n{lbl}:')
        if sl: a(f's_sleep {sl}')
        a(f'''ds_read_b32 v{z+1}, v{z} offset:{off}
              s_waitcnt lgkmcnt(0)
              v_cmp_gt_u32 vcc, {n}, v{z+1}''')
        spin(lbl, lbl + 'ok')
    def gather(lbl, loads, raw, masks, vt, spec='', switch=None, nfast=0, issued=False, warm=None):
        n = len(loads)
        a('s_mov_b32 s62, 0')
        if switch: a(f's_mov_b32 s63, {(1 << 32) // nfast}')
        if issued:
            a(f's_branch {lbl}_w')
            if paged and lbl == 'L_x4': a('.p2align 12')
            align(lbl)
        else:
            for i in range(n): a(f's_mov_b64 s[{masks+2*i}:{masks+2*i+1}], -1')
        a(f'{lbl}:')
        for i, l in enumerate(loads): a(f's_wqm_b64 exec, s[{masks+2*i}:{masks+2*i+1}]\n{l}')
        a(f'''s_mov_b64 exec, -1
              s_add_u32 s62, s62, {'s63' if switch else STEP}
              s_cbranch_scc1 {lbl}_r''')
        if warm: fill(*warm)
        a(f'{lbl}_w:\ns_waitcnt vmcnt(0)')
        for i in range(n): a(f'v_cmp_ne_u32_sdwa s[{masks+2*i}:{masks+2*i+1}], v{raw+4*i}, v{vt} src0_sel:BYTE_0 src1_sel:DWORD')
        a(spec)
        a(f's_or_b64 vcc, s[{masks}:{masks+1}], s[{masks+2}:{masks+3}]')
        for i in range(2, n): a(f's_or_b64 vcc, vcc, s[{masks+2*i}:{masks+2*i+1}]')
        a(f's_cbranch_scc1 {lbl}\n{lbl}_ok:')
        def r():
            a(f'{lbl}_r:')
            if switch:
                a(f's_cmp_eq_u32 s63, {STEP}\ns_cbranch_scc1 {lbl}_x\ns_mov_b32 s63, {STEP}\n{switch}\ns_branch {lbl}_w\n{lbl}_x:')
            a(f's_waitcnt vmcnt(0)\ns_mov_b64 vcc, 0\ns_branch {lbl}_ok')
        rare.append(r)
    def poll4(lbl, loads, raw, t, sl=0, issued=False):
        a(f'''v_mov_b32 v{t+2}, 0
              ds_read_b32 v{t+3}, v{t+2} offset:{FC+12}
              s_and_b32 s4, s34, 3
              s_and_b32 s5, s35, 3
              s_mov_b32 s62, 0
              s_waitcnt lgkmcnt(0)''')
        if issued: a(f's_branch {lbl}_w')
        a(f'{lbl}:\nv_add_u32 v{t+1}, v7, v{t+3}')
        if sl: a(f's_sleep {sl}')
        for l in loads: a(l)
        a(f'ds_read_b32 v{t+3}, v{t+2} offset:{FC+12}\n{lbl}_w:\ns_waitcnt vmcnt(0) lgkmcnt(0)')
        n = 4 * len(loads)
        for k in range(n): a(f'v_xor_b32 v{raw+k}, s{4+(k&1)}, v{raw+k}')
        a(f'v_or_b32 v{t}, v{raw}, v{raw+1}')
        for k in range(2, n, 2): a(f'v_or3_b32 v{t}, v{t}, v{raw+k}, v{raw+k+1}')
        a(f'v_and_b32 v{t}, 3, v{t}\nv_cmp_ne_u32 vcc, 0, v{t}')
        spin(lbl, lbl + '_ok')
    def pk(op, d, x, y): a(f'v_pk_{op}_f32 v[{d}:{d+1}], v[{x}:{x+1}], v[{y}:{y+1}]')
    def rscatter(r):
        a(f'v_permlane32_swap_b32 v{r}, v{r+2}\nv_permlane32_swap_b32 v{r+1}, v{r+3}')
        pk('add', r, r, r + 2)
        a(f'v_permlane16_swap_b32 v{r}, v{r+1}\nv_add_f32 v{r}, v{r}, v{r+1}')
    def rnd(d, s): a(f'v_cvt_pk_bf16_f32 {d}, 0, {s}')
    def allred_rows(op, r, t):
        a(f'''v_mov_b32 v{t}, v{r}
              v_permlane32_swap_b32 v{r}, v{t}
              {op} v{r}, v{r}, v{t}
              v_mov_b32 v{t}, v{r}
              v_permlane16_swap_b32 v{r}, v{t}
              {op} v{r}, v{r}, v{t}''')
    def perm_sel(): a('s_mov_b32 s60, 0x05040100\ns_mov_b32 s61, 0x07060302')
    def perms64(raw, dst):
        for tau in range(4):
            for rho in range(4):
                a(f'v_perm_b32 v{dst+4*tau+rho}, v{raw+2*(2*rho+1)+(tau>>1)}, v{raw+2*(2*rho)+(tau>>1)}, s{60+(tau&1)}')
    def fix4(raw, t):
        for u0 in (0, 2):
            for i in range(2): a(f'v_pk_mov_b32 v[{t+2*i}:{t+2*i+1}], v[{raw+4*(u0+i)+2}:{raw+4*(u0+i)+3}], v[{raw+4*(u0+i)+2}:{raw+4*(u0+i)+3}] op_sel:[0,1]')
            rs = [raw + 4 * u + d for u in (u0, u0 + 1) for d in (0, 1)]
            for i, r in enumerate(rs): a(f'v_mov_b32_dpp v{r+2}, v{r} row_ror:8 row_mask:0xf bank_mask:0x3')
            for i, r in enumerate(rs): a(f'v_mov_b32_dpp v{r}, v{t+i} row_ror:8 row_mask:0xf bank_mask:0xc')
    def voff4(d, gstride, stride, t):
        a(f'''v_lshrrev_b32 v{t}, 4, v0
              v_mul_u32_u24 v{d}, {gstride}, v{t}
              v_bfe_u32 v{t}, v0, 3, 1
              v_mul_u32_u24 v{t}, {stride}, v{t}
              v_add_u32 v{d}, v{d}, v{t}
              v_and_b32 v{t}, 7, v0
              v_lshl_add_u32 v{d}, v{t}, 4, v{d}''')
    def maskaddr(dst, n, base, zero, t):
        a(f'''v_lshrrev_b32 v{t}, 4, v0
              v_lshlrev_b32 v{t}, 4, v{t}
              v_add_u32 v{t}, {base}, v{t}
              v_and_b32 v{t+1}, {n-1}, v0
              v_mov_b32 v{t+2}, {zero}''')
        for tau in range(n):
            a(f'v_cmp_eq_u32 vcc, {tau}, v{t+1}')
            a(f'v_cndmask_b32 v{dst+tau}, v{t+2}, v{t}, vcc')
    def silu(d, x, t, p=None):
        a(f'''v_mul_f32 v{t}, {hex(f2u(-LOG2E))}, v{x}
              v_exp_f32 v{t}, v{t}''')
        if p: pad(p)
        a(f'''v_add_f32 v{t}, 1.0, v{t}
              v_rcp_f32 v{t}, v{t}
              v_mul_f32 v{t}, v{x}, v{t}''')
        rnd(f'v{d}', f'v{t}')
    def silu_fine(d, x, t):
        L = struct.unpack('<f', struct.pack('<f', -LOG2E))[0]
        a(f'''s_mov_b32 s58, {hex(f2u(L))}
              v_mul_f32 v{t}, s58, v{x}
              v_fma_f32 v{t+1}, v{x}, s58, -v{t}
              v_fmac_f32 v{t+1}, {hex(f2u(-LOG2E - L))}, v{x}
              v_min_f32 v{t}, 0x42fc0000, v{t}
              v_exp_f32 v{t}, v{t}
              v_mul_f32 v{t+1}, {hex(f2u(0.6931471805599453))}, v{t+1}
              v_fmac_f32 v{t}, v{t}, v{t+1}
              v_add_f32 v{t}, 1.0, v{t}
              v_rcp_f32 v{t+1}, v{t}
              v_mul_f32 v{t+2}, v{x}, v{t+1}
              v_fma_f32 v{t}, -v{t+2}, v{t}, v{x}
              v_fmac_f32 v{t+2}, v{t}, v{t+1}''')
        rnd(f'v{d}', f'v{t+2}')
    def ln_apply(s1, s2, x, t):
        a(f'''v_mul_f32 v{t}, v{s1}, v{s1}
              v_fma_f32 v{t+1}, v{s1}, v{s1}, -v{t}
              v_fma_f32 v{t}, v{s2}, s59, -v{t}
              v_sub_f32 v{t}, v{t}, v{t+1}
              v_mul_f32 v{t}, {hex(f2u(1/448/448))}, v{t}
              v_max_f32 v{t}, 0, v{t}''')
        rnd(f'v{t}', f'v{t}')
        a(f'v_add_f32 v{t}, {hex(f2u(1e-5))}, v{t}')
        rnd(f'v{t}', f'v{t}')
        a(f'v_sqrt_f32 v{t}, v{t}\nv_mul_f32 v{t+1}, {hex(f2u(1/448))}, v{s1}')
        rnd(f'v{t}', f'v{t}'); rnd(f'v{t+1}', f'v{t+1}')
        a(f'v_rcp_f32 v{t+2}, v{t}\nv_sub_f32 v{t+1}, v{x[1]}, v{t+1}')
        rnd(f'v{t+1}', f'v{t+1}')
        a(f'''v_mul_f32 v{t+3}, v{t+1}, v{t+2}
              v_fma_f32 v{t}, -v{t+3}, v{t}, v{t+1}
              v_fmac_f32 v{t+3}, v{t}, v{t+2}''')
        rnd(f'v{x[0]}', f'v{t+3}')
    def mma(n, acc, A, B, left=0, first=True, wait=True):
        for i in range(n):
            if wait: a(f's_waitcnt lgkmcnt({0 if (diag and only is None) else n-1-i+left})')
            a(f'v_mfma_f32_16x16x32_bf16 v[{acc}:{acc+3}], v[{A+4*i}:{A+4*i+3}], v[{B+4*i}:{B+4*i+3}], ' + ('0' if i == 0 and first else f'v[{acc}:{acc+3}]'))
    def mma2(acc, A, B, left=0, first=True, wait=True, mid=None):
        for par in range(2):
            if wait: a(f's_waitcnt lgkmcnt({0 if (diag and only is None) else 1-par+left})')
            for hi in range(2):
                d = acc + 4 * hi; b = B + 4 * (2 * hi + par)
                a(f'v_mfma_f32_16x16x32_bf16 v[{d}:{d+3}], v[{A+4*par}:{A+4*par+3}], v[{b}:{b+3}], ' + ('0' if par == 0 and first else f'v[{d}:{d+3}]'))
                if mid and par == 0 and hi == 0: a(mid)
    def sumrows(n, ldsoff, va, first=None, shadow=None):
        o = ldsoff // 256
        for u in range(n // 2): a(f'ds_read2st64_b32 v[{16+2*u}:{17+2*u}], v{va} offset0:{o+2*u} offset1:{o+2*u+1}')
        if n & 1: a(f'ds_read_b32 v22, v{va} offset:{ldsoff+256*(n-1)}\nv_mov_b32 v23, 0')
        if shadow: a(shadow)
        a('s_waitcnt lgkmcnt(0)')
        if first: a(first)
        pk('add', 16, 16, 18); pk('add', 20, 20, 22); pk('add', 16, 16, 20)
        a('v_add_f32 v16, v16, v17')

    def getside(t):
        a(f'''v_mov_b32 v{t}, 0
              ds_read_b32 v{t}, v{t} offset:{FC+12}
              s_waitcnt lgkmcnt(0)
              v_readfirstlane_b32 s48, v{t}''')
    def dzero():
        if diag:
            for i in range(1, 16): a(f's_mov_b32 s{64+2*i}, 0')
    K0, V0 = 8, 56
    a(f'{KN}:')
    if probe: a('s_mov_b32 s68, 0')
    stamp(0)
    a(f'''s_load_dwordx16 s[4:19], s[0:1], 0
          s_load_dwordx8 s[20:27], s[0:1], 64
          s_load_dwordx2 s[28:29], s[0:1], 96
          v_readfirstlane_b32 s31, v0
          s_and_b32 s32, s2, 7
          s_lshr_b32 s33, s2, 3
          s_lshr_b32 s31, s31, 6
          s_sub_u32 s33, s33, 8
          s_cbranch_scc0 L_A''')
    a(f'''s_getpc_b64 s[48:49]
          L_pc:
          v_lshlrev_b32 v2, 7, v0
          v_min_u32 v2, L_code_end-L_pc-4, v2
          global_load_dword v127, v2, s[48:49]
          s_branch L_F
          L_A:
          s_cmp_ge_u32 s31, 8
          s_cbranch_scc1 L_Td
          s_cmp_ge_u32 s33, 17
          s_cbranch_scc1 L_a_u
          L_att:''')
    role[0] = 'att'
    if tbl < 2:
        ta, tb, tc, td = ((5, 16, 17, 42), (4, 13, 15, 43))[tbl]; bias = 0
        a(f'''s_mul_i32 s50, s33, {ta}
              s_add_u32 s51, s50, 6
              s_min_u32 s50, s50, {tb}
              s_min_u32 s51, s51, {tc}
              s_mul_i32 s49, s33, {td}
              L_att2:
              s_add_u32 s50, s50, s31''')
    else:
        bias = 14 * nwo - 1
        a(f'''s_sub_u32 s50, s33, 14
              s_cselect_b32 s51, {nwo - 40}, {nmid - 40}
              s_cselect_b32 s49, {nwo}, {nmid}
              s_mul_i32 s49, s49, s50
              L_att2:
              s_add_u32 s50, s31, 1''')
    a(f'''s_min_u32 s48, s50, s51
          s_add_u32 s48, s48, s49
          s_mul_i32 s49, s31, 5
          s_add_u32 s48, s48, s49
          s_lshl_b32 s49, s32, 14
          s_add_u32 s48, s48, s49
          s_addk_i32 s48, {WINOFF // 2048 + 2 + bias}
          s_lshl_b32 s48, s48, 11
          v_and_b32 v2, 12, v0
          v_and_b32 v3, 48, v0
          v_and_b32 v4, 3, v0
          v_lshlrev_b32 v6, 7, v2
          v_lshl_add_u32 v6, v3, 2, v6
          v_lshl_add_u32 v6, v4, 4, v6
          s_waitcnt lgkmcnt(0)
          s_add_u32 s36, s6, s48
          s_addc_u32 s37, s7, 0
          s_cmp_le_u32 s50, s51
          s_cbranch_scc0 L_a_k1''')
    cnt = [0]
    win = [W, WH, WE, NE]
    def kvload(srd, va, base, t, hf, late=False):
        W, WH, WE, NE = win
        w = WH if late else WK if (WK and srd == 36) else W
        if WKH and srd == 36: WH = WKH
        if WE and srd == 40 and 2 * (5 - t) + 1 - hf < NE: a(f's_waitcnt vmcnt({WE-1})')
        elif cnt[0] >= 2 + N0:
            if WH != w: a(f's_waitcnt vmcnt({WH-1})\ns_cbranch_vccnz L_w{cnt[0]}_\ns_waitcnt vmcnt({w-1})\nL_w{cnt[0]}_:')
            else: a(f's_waitcnt vmcnt({w-1})')
        cnt[0] += 1
        r = base + 8 * t + 4 * hf
        b = srd + 2 * (t // 4)
        a(f'global_load_dwordx4 v[{r}:{r+3}], v{va}, s[{b}:{b+1}] offset:{((t & 3) - 2) * 2048 + hf * 256}{nt}')
    kvload(36, 6, K0, 0, 0); kvload(36, 6, K0, 0, 1)
    a('L_a_k1:')
    kl = [(t, hf) for t in (1, 2, 3) for hf in range(2)]
    for t, hf in kl[:N0]: kvload(36, 6, K0, t, hf)
    a('s_branch L_a_c')
    a('''L_a_u:
         s_cmp_ge_u32 s33, 24
         s_cbranch_scc1 L_end
         s_barrier''')
    if tbl == 2:
        rest = 1024 - 14 * nwo - 3 * nmid; lo = rest // 7; ex = rest - 7 * lo
        assert 40 <= lo and lo + (ex > 0) <= 48
        a(f'''s_sub_u32 s50, s33, 17
              s_mul_i32 s49, s50, {lo}
              s_min_u32 s50, s50, {ex}
              s_cselect_b32 s51, {lo - 39}, {lo - 40}
              s_add_u32 s49, s49, s50
              s_add_u32 s49, s49, {3 * nmid}
              s_branch L_att2''')
    elif tbl: a('s_mov_b32 s50, 64\ns_mov_b32 s51, 63\ns_mul_i32 s49, s33, 40\ns_branch L_att2')
    else: a('s_branch L_att')
    a(f'''L_Td:
          s_cmp_ge_u32 s33, 24
          s_cbranch_scc1 L_end
          s_sub_u32 s50, s33, {14 if tbl == 2 else 0}
          s_cmp_ge_u32 s50, 3
          s_cselect_b32 s50, 9, 0
          s_cmp_eq_u32 s31, s50
          s_cbranch_scc1 L_mod''')
    a(f'''s_cmp_ge_u32 s31, 12
          s_cbranch_scc0 L_T0
          v_mov_b32 v8, {hex(f2u(-3e38))}
          v_cmp_eq_u32 vcc, {768 + L_M // 16}, v0
          v_lshlrev_b32 v2, 4, v0
          v_mov_b32 v9, 0
          v_cndmask_b32 v8, 0, v8, vcc
          v_mov_b32 v11, 0
          v_subrev_u32 v2, {768 * 16}, v2
          v_mov_b32 v10, v8
          ds_write_b128 v2, v[8:11]
          s_waitcnt lgkmcnt(0)''')
    if lk:
        a('''s_lshl_b32 s50, s33, 4
             s_add_u32 s50, s50, s31
             s_cmp_eq_u32 s50, 12
             s_cbranch_scc0 L_T0
             v_mov_b32 v8, 1
             s_mov_b64 exec, 1
             global_atomic_add v9, v8, s[26:27] sc1
             s_mov_b64 exec, -1''')
    a(f'''L_T0:
          s_barrier
          s_branch L_T
          L_mod:''')
    role[0] = 'mod'
    def tail_setup():
        a('s_load_dword s30, s[28:29], 0\ns_sub_u32 s49, s31, 8')
        ws_srd(); perm_sel()
        a(f's_lshl_b32 s56, s49, 8\ns_add_u32 s56, s56, {L_PRIV}')
    a('v_and_b32 v0, 63, v0')
    setprio(3)
    a(f'''s_cmp_ge_u32 s33, 17
          s_cselect_b32 s50, -17, {7 if tbl == 2 else 4}
          s_add_u32 s50, s50, s33
          s_lshl_b32 s50, s50, 3
          s_add_u32 s50, s50, s32
          s_and_b32 s51, s50, 3
          s_lshr_b32 s52, s50, 2
          s_mov_b32 s38, {448*5376}
          s_mov_b32 s39, 0x20000
          s_mov_b32 s42, 896
          s_mov_b32 s43, 0x20000
          s_mul_i32 s54, s51, {112*5376}
          s_lshl_b32 s55, s52, 7
          s_add_u32 s54, s54, s55
          s_mul_i32 s53, s51, 224
          v_lshlrev_b32 v2, 2, v0
          v_lshrrev_b32 v1, 3, v0
          v_mul_u32_u24 v3, {14*5376}, v1
          v_and_b32 v4, 7, v0
          v_lshl_add_u32 v3, v4, 4, v3
          s_waitcnt lgkmcnt(0)
          s_mov_b32 s36, s22
          s_mov_b32 s37, s23
          s_mov_b32 s40, s20
          s_mov_b32 s41, s21
          buffer_load_dword v8, v2, s[40:43], s53 offen''')
    for m in range(14):
        a(f'buffer_load_dwordx4 v[{72+4*m}:{75+4*m}], v3, s[36:39], s54 offen{nt}')
        if m < 13: a('s_add_u32 s54, s54, 5376')
    def fstart():
        a(f'''L_F:
              s_add_u32 s33, s33, 8
              v_and_b32 v0, 63, v0
              s_cmp_ge_u32 s31, 7
              s_cbranch_scc1 L_F7s
              s_lshl_b32 s48, s31, 19
              s_lshl_b32 s49, s32, 10
              s_add_u32 s48, s48, s49
              s_lshl_b32 s49, s33, 7
              s_add_u32 s48, s48, s49
              v_lshrrev_b32 v3, 4, v0
              v_lshlrev_b32 v2, 16, v3
              v_and_b32 v4, 8, v0
              v_lshl_add_u32 v2, v4, 10, v2
              v_and_b32 v5, 7, v0
              v_lshl_add_u32 v2, v5, 4, v2
              v_lshl_add_u32 v5, v5, 4, v4
              v_lshl_add_u32 v6, v3, 1, v5
              s_lshl_b32 s50, s31, 7
              v_add_u32 v101, s50, v6
              v_lshlrev_b32 v7, 4, v0
              s_mov_b32 s38, {448*8192}
              s_mov_b32 s39, 0x20000
              s_mov_b32 s42, 896
              s_mov_b32 s43, 0x20000
              s_waitcnt lgkmcnt(0)
              s_mov_b32 s36, s10
              s_mov_b32 s37, s11
              s_mov_b32 s40, s4
              s_mov_b32 s41, s5
              buffer_load_dwordx4 v[96:99], v7, s[40:43], 0 offen
              buffer_load_ushort v100, v101, s[40:43], 0 offen''')
        for u in range(2):
            for t in range(4):
                a(f'buffer_load_dwordx4 v[{32+16*u+4*t}:{35+16*u+4*t}], v2, s[36:39], s48 offen{nt}')
                if not (u == 1 and t == 3): a(f's_add_u32 s48, s48, {2*8192 if t < 3 else 26*8192}')
            if u == 0: a('s_barrier')
    a('s_barrier')
    if paged:
        a('s_branch L_mod2')
        fstart()
        a(f'''s_branch L_F2
              L_F7s:
              s_cmp_ge_u32 s31, 9
              s_cbranch_scc1 L_F9
              v_mov_b32 v2, 0
              v_lshlrev_b32 v3, 2, v0
              ds_write_b32 v3, v2 offset:{FC & ~255}
              s_waitcnt lgkmcnt(0)
              s_barrier
              s_branch L_F7
              L_F9:
              s_endpgm
              L_mod2:''')
    dzero(); stamp(1)
    tail_setup()
    a(f'''v_mul_u32_u24 v3, 37, v0
          v_lshrrev_b32 v3, 8, v3
          v_add_u32 v3, v3, v0
          v_lshl_add_u32 v3, v3, 2, s56
          v_lshl_add_u32 v1, v1, 5, s56
          v_and_b32 v9, 1, v0
          v_lshlrev_b32 v9, 4, v9
          v_mov_b32 v10, 0xffff
          v_lshlrev_b32 v9, v9, v10
          v_bfe_u32 v10, v0, 1, 2''')
    for rho in range(4):
        a(f'v_cmp_eq_u32 vcc, {rho}, v10')
        a(f'v_cndmask_b32 v{4+rho}, 0, v9, vcc')
    a('''s_mov_b32 s52, 0x01000100
         s_mov_b32 s53, 0x03020302
         s_waitcnt vmcnt(14)
         v_lshlrev_b32 v9, 16, v8
         v_and_b32 v10, 0xffff0000, v8''')
    silu_fine(9, 9, 12); silu_fine(10, 10, 12)
    a(f'''v_perm_b32 v9, v10, v9, s61
          s_mov_b32 exec_hi, 0xffffff
          ds_write_b32 v3, v9
          s_mov_b32 exec_hi, -1
          ds_read_b128 v[8:11], v1
          ds_read_b96 v[12:14], v1 offset:16
          s_lshr_b32 s51, s50, 5
          s_lshl_b32 s51, s51, 13
          s_lshl_b32 s50, s50, 8
          s_add_u32 s50, s50, s51
          s_add_u32 s50, s50, {X1}
          s_add_u32 s51, s50, {SIDE}
          v_lshrrev_b32 v2, 4, v0
          v_and_b32 v3, 7, v0
          v_lshlrev_b32 v3, 4, v3
          v_lshl_add_u32 v2, v2, 7, v3
          s_waitcnt lgkmcnt(0)''')
    tags()
    for m in range(14):
        a(f'v_perm_b32 v15, v{8+(m>>1)}, v{8+(m>>1)}, s{52+(m&1)}')
        for rho in range(4): a(f'v_and_b32 v{16+4*m+rho}, v15, v{4+rho}')
    a('v_and_b32_e64 v4, s34, 3\nv_and_b32_e64 v5, s35, 3')
    for m in range(14):
        a(f's_waitcnt vmcnt({13-m})')
        a(f'v_mfma_f32_16x16x32_bf16 v[8:11], v[{16+4*m}:{19+4*m}], v[{72+4*m}:{75+4*m}], ' + ('0' if m == 0 else 'v[8:11]'))
    a('''v_pk_mov_b32 v[12:13], v[8:9], v[8:9] op_sel:[0,1]
         v_pk_mov_b32 v[14:15], v[10:11], v[10:11] op_sel:[0,1]''')
    for i in range(4): a(f'v_permlane32_swap_b32 v{8+i}, v{12+i}')
    for i in range(4): a(f'v_add_f32_dpp v{8+i}, v{12+i}, v{8+i} row_ror:8 {DPPF}')
    a('s_mov_b64 exec, 0xff00ff')
    for i in range(4): a(f'v_add_u32 v{8+i}, 2, v{8+i}')
    for i in range(4): a(f'v_and_or_b32 v{8+i}, v{8+i}, -4, v{4+(i&1)}')
    a('buffer_store_dwordx4 v[8:11], v2, s[44:47], s50 offen sc1\nbuffer_store_dwordx4 v[8:11], v2, s[44:47], s51 offen sc1\ns_mov_b64 exec, -1')
    stamp(2)
    setprio(0)
    a('s_cmp_lt_u32 s33, 14\ns_cbranch_scc1 L_t_go2')
    fin()
    role[0] = 'att'
    a('L_a_c:')
    def setup_att():
        dzero(); stamp(1)
        if lk: a('s_load_dword s56, s[26:27], 0')
        a(f'''s_load_dword s30, s[28:29], 0
              s_cmp_le_u32 s50, s51
              s_cselect_b32 s51, 1, 0
              s_add_u32 s38, s36, 8192
              s_addc_u32 s39, s37, 0
              s_add_u32 s40, s8, s48
              s_addc_u32 s41, s9, 0
              s_add_u32 s42, s40, 8192
              s_addc_u32 s43, s41, 0
              s_cmp_ge_u32 s33, 17
              s_cbranch_scc1 L_a_nb2
              s_barrier
              L_a_nb2:
              v_and_b32 v0, 63, v0
              v_and_b32 v5, 15, v0
              v_lshlrev_b32 v7, 5, v3
              v_lshl_add_u32 v7, v5, 4, v7
              v_bfe_u32 v2, v0, 3, 1
              v_lshlrev_b32 v1, 10, v2
              v_lshl_add_u32 v1, v3, 3, v1
              v_lshl_add_u32 v1, v4, 5, v1
              v_and_b32 v104, 1, v0
              v_lshlrev_b32 v104, 4, v104
              v_mov_b32 v105, 0xffff
              v_lshlrev_b32 v104, v104, v105
              v_bfe_u32 v105, v0, 1, 2''')
        for rho in range(4):
            a(f'v_cmp_eq_u32 vcc, {rho}, v105')
            a(f'v_cndmask_b32 v{2+rho}, 0, v104, vcc')
        ws_srd(); perm_sel()
        a(f'''s_mov_b32 s58, {hex(f2u(0.0625 * LOG2E))}
              s_bfe_u32 s57, s31, 0x10001
              s_lshl_b32 s49, s32, 1
              s_add_u32 s54, s57, s49
              s_mul_i32 s54, s54, 24
              s_add_u32 s54, s54, s33
              s_lshl_b32 s54, s54, 10
              s_lshr_b32 s49, s31, 2
              s_lshl_b32 s49, s49, 9
              s_add_u32 s54, s54, s49
              s_and_b32 s49, s31, 1
              s_lshl_b32 s49, s49, 8
              s_add_u32 s54, s54, s49
              s_add_u32 s55, s54, {X3F}
              s_add_u32 s54, s54, {X3}
              s_mul_i32 s59, s32, 24
              s_add_u32 s59, s59, s33
              s_lshl_b32 s59, s59, 7
              s_add_u32 s59, s59, {HINT}
              v_lshlrev_b32 v104, 2, v0
              s_mov_b32 s48, s51
              s_mov_b32 s49, 0
              s_mov_b64 vcc, s[48:49]''')
    setup_att()
    vl = [(t, hf) for t in range(1, 6) for hf in range(2)]
    late = vl[10 - NL:]
    assert 2 * (6 - touchpos) >= NL and NL <= 4 and hintpos == 7 and WE and NE >= NL and (not lk or LW[2] == WE)
    for t, hf in kl[N0:]: kvload(36, 6, K0, t, hf)
    a('s_waitcnt lgkmcnt(0)')
    tags()
    hop('a')
    def paced(x):
        for t in range(4, 6): kvload(36, 6, K0, t, 0); kvload(36, 6, K0, t, 1)
        stamp(2)
        a(f's_cmp_eq_u32 s51, 0\ns_cbranch_scc0 L_a_v0{x}')
        for i in range(4): a(f'v_mov_b32 v{K0+i}, {hex(f2u(-1e30))}')
        a(f's_branch L_a_v1{x}\nL_a_v0{x}:')
        kvload(40, 7, V0, 0, 0); kvload(40, 7, V0, 0, 1)
        a(f'L_a_v1{x}:')
        for t in range(1, 6):
            if t == touchpos:
                a('buffer_load_dword v6, v104, s[44:47], s55 offen sc1')
            for hf in range(2):
                if (t, hf) not in late: kvload(40, 7, V0, t, hf)
    if lk:
        if diag: a('s_add_u32 s82, s56, 1')
        a(f's_cmp_ge_u32 s56, {lk}\ns_cbranch_scc1 L_a_pl')
        def pl():
            keep = list(win); win[:] = LW
            a('L_a_pl:'); paced('l'); a('s_branch L_a_pd')
            win[:] = keep
        rare.append(pl)
    paced('')
    a('L_a_pd:')
    def count(off): a(f's_mov_b64 exec, 1\nds_inc_u32 v0, v2 offset:{off}\ns_mov_b64 exec, -1')
    def lateload(k):
        i = k - (4 - NL)
        if i < 0: return
        if adapt: a(f's_cmp_gt_u32 s63, {i}\ns_cbranch_scc1 L_a_l{i}')
        kvload(40, 7, V0, *late[i], late=True)
        if i == NL - 1: vdone('a')
        if adapt: a(f'L_a_l{i}:')
    def vdone(sfx):
        stamp(3); count(L_C)
        if hintpos == 7 and hintk:
            a(f'''s_cmp_eq_u32 s31, 0
                  s_cbranch_scc0 L_a_nh{sfx}
                  v_mov_b32 v114, s3
                  s_mov_b64 exec, 1
                  buffer_store_dword v114, v0, s[44:47], s59 offen
                  s_mov_b64 exec, -1
                  L_a_nh{sfx}:''')
    if not NL: vdone('a')
    a('s_mov_b32 s62, 0\ns_mov_b32 s63, 0')
    stamp(8)
    if paged: a('s_branch L_a_q0\n.p2align 12\nL_a_q0:')
    align('Q')
    setprio(2)
    a(f'''L_a_q:
          ds_read_b128 v[104:107], v1 offset:{L_Q}
          ds_read_b128 v[108:111], v1 offset:{L_Q+16}
          ds_read_b128 v[112:115], v1 offset:{L_Q+512}
          ds_read_b128 v[116:119], v1 offset:{L_Q+528}
          s_waitcnt lgkmcnt(0)
          v_bitop3_b32 v120, v104, v108, s3 bitop3:0x7e
          v_bitop3_b32 v121, v112, v116, s3 bitop3:0x7e
          v_or_b32 v121, v120, v121
          v_cmp_ne_u32_sdwa vcc, v121, 0 src0_sel:WORD_0 src1_sel:DWORD''')
    for i in range(8): a(f'v_perm_b32 v{120+i}, v{105+2*i}, v{104+2*i}, s61')
    a('s_cbranch_vccnz L_a_qr\nL_a_qok:')
    def qrare():
        a('L_a_qr:')
        if adapt:
            for i in range(NL):
                a(f's_cmp_eq_u32 s63, {i}\ns_cbranch_scc0 L_a_qr{i}')
                keep = win[2]; win[2] = WR or keep
                kvload(40, 7, V0, *late[i], late=True)
                win[2] = keep
                if i == NL - 1: vdone('b')
                a(f's_mov_b32 s63, {i+1}\ns_branch L_a_q\nL_a_qr{i}:')
        a(f'''s_sleep 1
              s_add_u32 s62, s62, {STEP}
              s_cbranch_scc0 L_a_q
              s_branch L_a_qok''')
    rare.append(qrare)
    stamp(4)
    def qk(t, hf):
        k = K0 + 8 * t; tmp = 104 + 4 * (t & 3)
        if hf == 0: a(f'v_mfma_f32_16x16x32_bf16 v[{tmp}:{tmp+3}], v[{k}:{k+3}], v[120:123], 0')
        else: a(f'v_mfma_f32_16x16x32_bf16 v[{k}:{k+3}], v[{k+4}:{k+7}], v[124:127], v[{tmp}:{tmp+3}]')
    def step(t, i):
        if t < 0 or t > 5: return
        k = K0 + 8 * t
        if i == 0: a(f'v_mov_b32_dpp v{k+4}, v{k} quad_perm:[0,0,0,0] {DPPF}')
        else: a(f'v_add_f32_dpp v{k+4}, v{k+i}, v{k+4} quad_perm:[{i},{i},{i},{i}] {DPPF}')
    lateload(0)
    if WE: a(f's_waitcnt vmcnt({11 - NL})')
    a('s_cmp_eq_u32 s51, 0\ns_cbranch_scc1 L_a_qk1')
    qk(0, 0); qk(0, 1)
    a('L_a_qk1:')
    fl = ['v_mov_b32 v1, 0', 's_mov_b32 s62, 0', 's_lshl_b32 s48, s57, 3', 's_lshl_b32 s49, s31, 2']
    for t in range(1, 6):
        qk(t, 0); step(t - 3, 0); step(t - 4, 2)
        if t < 3: a(fl.pop(0))
        qk(t, 1); step(t - 3, 1); step(t - 4, 3)
        if t < 3: a(fl.pop(0))
        if t == 3: lateload(1)
    lateload(2)
    step(2, 2); step(3, 0); step(4, 0); step(2, 3); step(3, 1); step(4, 1)
    S = [K0 + 8 * t + 4 for t in range(6)]
    rnd(f'v{S[0]}', f'v{S[0]}')
    if WE: a(f's_waitcnt vmcnt({2 * (6 - touchpos) - 1})')
    a('v_and_b32 v6, 8, v0')
    step(5, 0); step(3, 2); step(4, 2); step(5, 1); step(3, 3); step(4, 3); step(5, 2)
    rnd(f'v{S[1]}', f'v{S[1]}'); rnd(f'v{S[2]}', f'v{S[2]}')
    step(5, 3)
    rnd(f'v{S[3]}', f'v{S[3]}'); rnd(f'v{S[4]}', f'v{S[4]}')
    a(f'v_max3_f32 v112, v{S[0]}, v{S[1]}, v{S[2]}')
    rnd(f'v{S[5]}', f'v{S[5]}')
    a(f'''v_max3_f32 v112, v112, v{S[3]}, v{S[4]}
          s_mov_b32 exec_lo, 0x01010101
          s_mov_b32 exec_hi, 0x01010101
          v_max_f32 v112, v112, v{S[5]}
          ds_max_f32 v6, v112 offset:{L_M}
          s_mov_b64 exec, 1
          ds_inc_u32 v0, v2 offset:{L_C+4}
          s_mov_b64 exec, -1
          v_mov_b32 v117, s48''')
    lateload(3)
    a(f'''L_a_s1:
          ds_read_b32 v113, v1 offset:{L_C+4}
          ds_read_b32 v112, v6 offset:{L_M}
          ds_read_b32 v116, v117 offset:{L_M}
          s_waitcnt lgkmcnt(0)
          v_cmp_ne_u32 vcc, 8, v113
          v_mul_f32 v112, s58, v112''')
    order = [1, 0, 2, 3, 4, 5]
    for t in order: a(f'v_fma_f32 v{S[t]+2}, v{S[t]}, s58, -v112')
    a('s_cbranch_vccnz L_a_s1r\nL_a_s1ok:')
    rare.append(lambda: a(f'L_a_s1r:\ns_add_u32 s62, s62, {STEP}\ns_cbranch_scc0 L_a_s1\ns_branch L_a_s1ok'))
    stamp(5)
    for t in order: a(f'v_exp_f32 v{S[t]}, v{S[t]+2}')
    def abuild(t):
        k = K0 + 8 * t
        a(f'v_cvt_pk_bf16_f32 v{k+5}, v{k+4}, v{k+4}')
        for rho in range(4): a(f'v_and_b32 v{k+rho}, v{k+5}, v{2+rho}')
    def pv(t, hf, first=False):
        k = K0 + 8 * t; v = V0 + 8 * t + 4 * hf; acc = 104 + 4 * hf
        n = 2 * (5 - t) + 1 - hf
        if n < max(W, WH, WE or 0): a(f's_waitcnt vmcnt({n})')
        a(f'v_mfma_f32_16x16x32_bf16 v[{acc}:{acc+3}], v[{k}:{k+3}], v[{v}:{v+3}], ' + ('0' if first else f'v[{acc}:{acc+3}]'))
    abuild(1)
    a(f'v_add_f32 v113, v{S[0]}, v{S[1]}\nv_add_f32 v114, v{S[2]}, v{S[3]}')
    pv(1, 0, True); abuild(2); pv(1, 1, True)
    a('s_cmp_eq_u32 s51, 0\ns_cbranch_scc1 L_a_pv2')
    abuild(0); pv(0, 0); pv(0, 1)
    a('L_a_pv2:')
    def lsum():
        a(f'''v_add_f32 v115, v{S[4]}, v{S[5]}
              v_add_f32 v113, v113, v114
              v_lshl_add_u32 v6, v6, 2, s49
              v_add_f32 v113, v113, v115''')
        allred_rows('v_add_f32', 113, 114)
        a(f'''s_mov_b64 exec, 0x101
              ds_write_b32 v6, v113 offset:{L_L}
              s_mov_b64 exec, -1''')
    def cst():
        a(f'''s_lshl_b32 s48, s31, 11
              v_lshl_add_u32 v6, v0, 4, s48
              v_bfe_u32 v119, v0, 2, 1
              v_mul_u32_u24 v119, 0x5a, v119
              v_and_b32 v120, 3, v0
              v_cmp_eq_u32 vcc, 1, v120
              v_bitop3_b32 v119, v119, v116, s34 bitop3:0xde
              v_bfe_u32 v118, v0, 2, 2
              v_cndmask_b32 v120, v120, v118, vcc
              v_cndmask_b32_e64 v119, v119, 0, vcc
              v_cndmask_b32_e64 v118, 0, -1, vcc
              v_or_b32 v120, 0x07060500, v120
              s_lshl_b32 s49, s31, 8
              s_add_u32 s49, s49, {L_O}
              v_lshlrev_b32 v121, 2, v0
              v_add_u32 v122, s49, v121
              v_lshlrev_b32 v117, 2, v117
              s_mov_b32 s62, 0''')
    if pvf:
        abuild(3); pv(2, 0); abuild(4); abuild(5); lsum(); cst()
        a('s_and_b32 s48, s31, 5')
        pv(2, 1)
        for t in range(3, 6): pv(t, 0); pv(t, 1)
    else:
        for t in range(2, 6):
            pv(t, 0)
            if t < 5: abuild(t + 1)
            pv(t, 1)
            if t == 2: lsum()
            if t == 3: cst()
    a(f'''ds_write_b128 v6, v[104:107] offset:{L_O}
          ds_write_b128 v6, v[108:111] offset:{L_O+1024}''')
    stamp(6)
    if nw2: a(f's_mov_b64 exec, 1\nds_inc_u32 v0, v2 offset:{L_C+8}\ns_barrier\ns_mov_b64 exec, -1\nL_a_s2:\nds_read_b32 v24, v1 offset:{L_C+8}')
    else: a('s_waitcnt lgkmcnt(0)\ns_barrier')
    if pvf:
        for u in range(4): a(f'ds_read2st64_b32 v[{8+2*u}:{9+2*u}], v122 offset0:{16*u} offset1:{16*u+8}')
        a(f'''s_cbranch_scc1 L_a_nl
              ds_read_b128 v[16:19], v117 offset:{L_L}
              ds_read_b128 v[20:23], v117 offset:{L_L+16}
              s_waitcnt lgkmcnt(0)''')
        pk('add', 16, 16, 18); pk('add', 20, 20, 22); pk('add', 16, 16, 20)
        a('v_add_f32 v16, v16, v17\nv_bfi_b32 v119, v118, v16, v119\nL_a_nl:\ns_waitcnt lgkmcnt(0)')
        if nw2: a('v_cmp_ne_u32 vcc, 8, v24')
    else:
        a(f'''ds_read_b128 v[16:19], v117 offset:{L_L}
              ds_read_b128 v[20:23], v117 offset:{L_L+16}''')
        for u in range(4): a(f'ds_read2st64_b32 v[{8+2*u}:{9+2*u}], v122 offset0:{16*u} offset1:{16*u+8}')
        pad('a', True)
        a('s_waitcnt lgkmcnt(4)')
        pk('add', 16, 16, 18); pk('add', 20, 20, 22); pk('add', 16, 16, 20)
        a('v_add_f32 v16, v16, v17\nv_and_or_b32 v119, v16, v118, v119\ns_waitcnt lgkmcnt(0)')
    pk('add', 8, 8, 10); pk('add', 12, 12, 14); pk('add', 8, 8, 12)
    a('''v_add_f32 v8, v8, v9
         v_perm_b32 v8, v8, v119, v120''')
    if nw2:
        a('s_cbranch_vccnz L_a_s2r\nL_a_s2ok:')
        rare.append(lambda: a(f'L_a_s2r:\ns_add_u32 s62, s62, {STEP}\ns_cbranch_scc1 L_a_s2ok\ns_and_b32 s48, s31, 5\ns_branch L_a_s2'))
    a('''buffer_store_dword v8, v121, s[44:47], s55 offen
         s_barrier''')
    stamp(7)
    setprio(0)
    if wopf2:
        a('s_cmp_lt_u32 s33, 14\ns_cbranch_scc0 L_a_p\ns_barrier\ns_sleep 3\nL_a_x:')
        def wp():
            a(f'''L_a_p:
                  s_lshl_b32 s48, s33, 3
                  s_add_u32 s48, s48, s31
                  s_sub_u32 s48, s48, 112
                  s_mul_i32 s49, s32, {512*896}''')
            for k in range(wopf2):
                if k: a('s_add_u32 s48, s48, 28')
                a(f'''s_cmp_ge_u32 s48, 56
                      s_cselect_b32 s50, 56, 0
                      s_sub_u32 s48, s48, s50
                      s_lshl_b32 s50, s48, 13
                      s_add_u32 s50, s50, s49
                      v_lshl_add_u32 v10, v0, 7, s50
                      global_load_dword v11, v10, s[12:13]''')
            a('s_branch L_a_x')
        rare.append(wp)
    else: a('s_cmp_lt_u32 s33, 14\ns_cbranch_scc0 L_a_x\ns_barrier\ns_sleep 3\nL_a_x:')
    if not nob: a('buffer_store_dword v8, v121, s[44:47], s54 offen sc1')
    if dirty:
        a(f's_add_u32 s28, s28, s55\ns_addc_u32 s29, s29, 0')
        for k in range(dirty): a(f's_add_u32 s28, s28, 0x100000\ns_addc_u32 s29, s29, 0\nglobal_store_dword v121, v8, s[28:29]')
    fin()
    for r in rare: r()
    rare.clear()

    role[0] = 'wo'
    a('L_T:\nv_and_b32 v0, 63, v0')
    if pf3:
        a(f'''s_cmp_eq_u32 s31, 13
              s_cbranch_scc0 L_T1
              s_mul_i32 s50, s33, 19
              s_lshl_b32 s51, s32, 10
              v_add_u32 v2, s50, v0
              v_min_u32 v2, 447, v2
              v_lshl_add_u32 v2, v2, 13, s51
              s_mov_b64 exec, 0x7ffff
              global_load_dword v127, v2, s[10:11] offset:384
              s_mov_b64 exec, -1
              L_T1:''')
    a('''s_cmp_lt_u32 s33, 14
         s_cbranch_scc1 L_t_go
         s_cmp_eq_u32 s31, 8
         s_cbranch_scc1 L_t_go''')
    def pfcode():
        a('L_pf:')
        if fpf:
            a(f'''s_cmp_lt_u32 s31, 10
                  s_cbranch_scc1 L_end
                  s_mul_i32 s50, s33, 6
                  s_add_u32 s50, s50, s31
                  s_sub_u32 s50, s50, 94
                  s_cmp_lt_u32 s50, 56
                  s_cbranch_scc0 L_end''')
            if fpf:
                a(f'''s_cmp_lt_u32 s32, 4
                      s_cselect_b32 s52, 6, 8
                      s_cselect_b32 s53, 0, 8
                      s_cselect_b32 s56, 0x77777777, -1
                      s_cselect_b32 s58, 21, 28
                      s_mul_i32 s52, s52, s32
                      s_sub_u32 s52, s52, s53
                      s_lshr_b32 s51, s50, 1
                      s_waitcnt lgkmcnt(0)
                      s_bitcmp1_b32 s50, 0
                      s_cbranch_scc1 L_pf_2
                      s_mul_i32 s54, s51, {16*3584}
                      s_lshl_b32 s52, s52, 6
                      s_add_u32 s54, s54, s52
                      v_lshrrev_b32 v4, 2, v0
                      v_mul_u32_u24 v4, 3584, v4
                      v_and_b32 v5, 3, v0
                      v_lshl_add_u32 v4, v5, 7, v4
                      v_add_u32 v4, s54, v4
                      s_branch L_pf_3
                      L_pf_2:
                      s_mul_i32 s52, s52, {32*896}
                      s_lshl_b32 s54, s51, 13
                      s_add_u32 s54, s54, s52
                      v_lshl_add_u32 v4, v0, 7, s54
                      s_mov_b64 s[16:17], s[18:19]
                      s_cmp_lt_u32 s51, s58
                      s_cselect_b32 s56, -1, 0
                      L_pf_3:
                      s_mov_b32 s57, s56''')
            if wopf:
                a(f'''s_lshl_b32 s52, s50, 13
                      s_mul_i32 s51, s32, {512*896}
                      s_add_u32 s52, s52, s51
                      v_lshl_add_u32 v2, v0, 7, s52''')
                ldswait('L_pf_g', L_C, wopf, 4)
                if wolanes < 64: a(f's_mov_b32 exec_hi, {(1 << (wolanes - 32)) - 1}')
                a('global_load_dword v3, v2, s[12:13]')
            a('s_barrier\ns_barrier')
            if fpf: a('s_mov_b64 exec, s[56:57]\ns_cbranch_execz L_end\nglobal_load_dword v6, v4, s[16:17]' + pfnt)
        a('s_endpgm')
    a('''s_branch L_pf
         L_t_go:
         s_waitcnt lgkmcnt(0)''')
    dzero()
    a('L_t_go2:')
    tail_setup()
    a(f'''s_cmp_ge_u32 s33, 7
          s_cselect_b32 s50, 1, 0
          s_cselect_b32 s51, 7, 0
          s_sub_u32 s51, s33, s51
          s_lshl_b32 s52, s32, 1
          s_add_u32 s50, s50, s52
          s_lshl_b32 s52, s50, 8
          s_lshr_b32 s53, s49, 2
          s_lshl_b32 s53, s53, 7
          s_add_u32 s52, s52, s53
          s_and_b32 s53, s49, 1
          s_lshl_b32 s53, s53, 6
          s_add_u32 s52, s52, s53
          s_and_b32 s53, s49, 2
          s_lshl_b32 s53, s53, 1
          s_add_u32 s52, s52, s53
          s_mul_i32 s52, s52, 896
          s_lshl_b32 s53, s51, 7
          s_add_u32 s52, s52, s53
          s_add_u32 s53, s52, {8*896}
          s_mov_b32 s36, s12
          s_mov_b32 s37, s13
          s_mov_b32 s38, {4096*896}
          s_mov_b32 s39, 0x20000
          s_mul_i32 s40, s50, {24*1024}
          s_lshl_b32 s41, s49, 7
          s_add_u32 s40, s40, s41
          s_add_u32 s40, s40, {X3F}
          s_add_u32 s41, s40, 8192
          s_add_u32 s42, s40, 16384
          s_lshr_b32 s54, s50, 2
          s_lshl_b32 s54, s54, 13
          s_lshl_b32 s55, s50, 11
          s_add_u32 s54, s54, s55
          s_lshl_b32 s55, s51, 8
          s_add_u32 s54, s54, s55
          s_add_u32 s54, s54, {X4}
          s_add_u32 s55, s54, {SIDE}
          s_mov_b32 s43, 0
          s_mov_b32 s57, 0x04000c0c
          s_mov_b32 s58, {hex(f2u(0.0625 * LOG2E))}
          s_lshl_b32 s59, s49, 8
          s_add_u32 s59, s59, {L_P}
          v_lshrrev_b32 v12, 3, v0
          v_and_b32 v13, 7, v0
          v_lshlrev_b32 v3, 10, v12
          v_lshl_add_u32 v3, v13, 4, v3
          v_lshrrev_b32 v5, 4, v0
          v_lshl_add_u32 v5, v13, 2, v5
          v_lshl_add_u32 v5, v5, 1, s56
          v_lshl_add_u32 v6, v0, 4, s59
          v_lshlrev_b32 v4, 2, v0''')
    voff4(1, 16 * 896, 896, 12)
    def wold():
        stamp(3)
        for u in range(4):
            a(f'buffer_load_dwordx4 v[{80+4*u}:{83+4*u}], v1, s[36:39], s{52+(u>>1)} offen offset:{(u&1)*2*896}{wont}')
    maskaddr(8, 2, 's56', L_Z + 64, 12)
    a('s_waitcnt lgkmcnt(0)')
    tags()
    lanetag(7, 0); rowtag(98, 99)
    a('''v_and_b32 v10, 3, v0
         v_lshlrev_b32 v10, 3, v10
         v_lshlrev_b32_e64 v10, v10, 12
         v_xor_b32 v10, 0x0c0c0c0c, v10''')
    a(f'''s_cmp_eq_u32 s49, 0
          s_cbranch_scc0 L_wo
          v_lshlrev_b32 v2, 4, v0
          s_lshl_b32 s4, s32, 11
          s_add_u32 s4, s4, {X2F}
          s_mov_b32 m0, {L_Q}
          s_mov_b32 s62, 0
          s_setprio {pprio}
          L_p_loop:
          buffer_load_dwordx4 v2, s[44:47], s4 offen sc1 lds
          buffer_load_dwordx4 v2, s[44:47], s4 offen offset:1024 sc1 lds
          s_sleep {sleep}
          s_cmp_eq_u32 s62, {(1 << fastbits) * STEP}
          s_cselect_b32 s5, {X2F - X2}, 0
          s_sub_u32 s4, s4, s5
          ds_read2st64_b32 v[12:13], v2 offset0:{L_Q // 256} offset1:{L_Q // 256 + 4}
          s_waitcnt vmcnt(32) lgkmcnt(0)
          v_bitop3_b32 v12, v12, v13, s3 bitop3:0x7e
          v_cmp_ne_u32_sdwa vcc, v12, 0 src0_sel:WORD_0 src1_sel:DWORD''')
    spin('L_p_loop', 'L_p_ok')
    a('s_setprio 0')
    stamp(2)
    a('s_cmp_lt_u32 s33, 14\ns_cbranch_scc0 L_fin\nL_wo:')
    hop('w')
    if not wolate:
        ldswait('L_wo_g', L_C, gaten, 2)
        if gsl: a(f's_sleep {gsl}')
        wold()
    else: a('v_mov_b32 v100, 0')
    setprio(3)
    a('s_barrier\ns_barrier')
    if wolate: wold()
    stamp(4)
    x3l = [f'buffer_load_dwordx4 v[{32+4*s}:{35+4*s}], v3, s[44:47], s{40+s} offen sc1' for s in range(3)]
    for l in x3l: a(l)
    if peel:
        a('s_waitcnt vmcnt(0)')
        for i in range(3): a(f'v_cmp_ne_u32_sdwa s[{4+2*i}:{5+2*i}], v{32+4*i}, v7 src0_sel:BYTE_0 src1_sel:DWORD')
        for i in range(3): a(f's_wqm_b64 exec, s[{4+2*i}:{5+2*i}]\n{x3l[i]}')
        a('s_mov_b64 exec, -1')
    else: a('s_waitcnt vmcnt(3)')
    fix4(80, 48); perms64(80, 16)
    stamp(5)
    gather('L_x3', x3l, 32, 4, 7, issued=True, nfast=2 << fastbits, warm=(fX3, 62),
           spec='\n'.join(f'v_perm_b32 v{48+2*s}, v{35+4*s}, v{34+4*s}, s57' for s in range(3)),
           switch='\n'.join(f's_sub_u32 s{40+s}, s{40+s}, {X3F - X3}' for s in range(3)) + '\ns_barrier\ns_mov_b32 s43, 1')
    stamp(6)
    a(f'''v_max3_f32 v54, v48, v50, v52
          v_xor_b32 v32, v32, v7
          v_xor_b32 v36, v36, v7
          v_max_f32_dpp v54, v54, v54 row_ror:8 {DPPF}
          v_mov_b32 v55, v54
          v_xor_b32 v40, v40, v7''')
    pad('w')
    a(f'''v_permlane32_swap_b32 v54, v55
          v_max_f32 v54, v54, v55
          v_mov_b32 v55, v54
          v_permlane16_swap_b32 v54, v55
          v_max_f32 v54, v54, v55''')
    a('v_mul_f32 v54, s58, v54')
    for s in range(3): a(f'v_fma_f32 v{56+2*s}, v{48+2*s}, s58, -v54')
    for s in range(3): a(f'v_exp_f32 v{56+2*s}, v{56+2*s}')
    a(f'''v_pk_mul_f32 v[44:45], v[32:33], v[56:57] op_sel_hi:[1,0]
          v_pk_mul_f32 v[46:47], v[34:35], v[56:57] op_sel_hi:[1,0]
          v_pk_fma_f32 v[44:45], v[36:37], v[58:59], v[44:45] op_sel_hi:[1,0,1]
          v_pk_fma_f32 v[46:47], v[38:39], v[58:59], v[46:47] op_sel_hi:[1,0,1]
          v_pk_fma_f32 v[44:45], v[40:41], v[60:61], v[44:45] op_sel_hi:[1,0,1]
          v_pk_fma_f32 v[46:47], v[42:43], v[60:61], v[46:47] op_sel_hi:[1,0,1]''')
    rscatter(44)
    a(f's_cmp_eq_u32 s49, 0\nv_add_f32_dpp v44, v44, v44 row_ror:8 {DPPF}')
    rnd('v44', 'v44')
    a('ds_write_b16_d16_hi v5, v44')
    for tau in range(2): a(f'ds_read_b128 v[{64+4*tau}:{67+4*tau}], v{8+tau}')
    a('s_cbranch_scc0 L_wo_nl')
    for s in range(3): a(f'v_perm_b32 v{48+s}, v{33+4*s}, v{33+4*s}, v10')
    for s in range(3): a(f'v_or_b32_dpp v{48+s}, v{48+s}, v{48+s} quad_perm:[1,0,3,2] {DPPF}')
    for s in range(3): a(f'v_or_b32_dpp v{48+s}, v{48+s}, v{48+s} quad_perm:[2,3,0,1] {DPPF}')
    a('''v_mul_f32 v54, v56, v48
         v_fmac_f32 v54, v58, v49
         v_fmac_f32 v54, v60, v50
         L_wo_nl:''')
    mma2(72, 64, 16)
    a(f'''s_cbranch_scc0 L_wo_nl2
          v_add_f32_dpp v54, v54, v54 row_ror:8 {DPPF}
          v_mov_b32 v55, v54
          v_permlane32_swap_b32 v54, v55
          v_add_f32 v54, v54, v55
          v_mov_b32 v55, v54
          L_wo_nl2:''')
    a(f'''s_mov_b32 s62, 0
          s_mov_b64 exec, 0xffff
          s_cmp_eq_u32 s43, 0''')
    pad('w')
    a(f'''ds_write_b128 v6, v[74:77]
          s_mov_b64 exec, 1
          ds_inc_u32 v0, v98 offset:{L_C+16}''')
    a('s_cbranch_scc0 L_wo_nb\ns_barrier\nL_wo_nb:')
    a(f'''s_mov_b64 exec, -1
          s_cmp_eq_u32 s49, 0
          s_cbranch_scc0 L_fin
          L_wo_s:
          ds_read_b32 v24, v100 offset:{L_C+16}''')
    sumrows(8, L_P, 4, 'v_cmp_ne_u32 vcc, 8, v24', 'v_mov_b32 v52, v54\nv_mov_b32 v53, v55\nv_permlane16_swap_b32 v52, v53\nv_add_f32 v52, v52, v53\nv_rcp_f32 v52, v52')
    rare.append(lambda: a(f'L_wo_sr:\ns_add_u32 s62, s62, {STEP}\ns_cbranch_scc0 L_wo_s\ns_branch L_wo_sok'))
    a('v_mul_f32 v16, v52, v16')
    a(f'''v_and_or_b32 v16, v16, v98, v99
          s_cbranch_vccnz L_wo_sr
          L_wo_sok:
          buffer_store_dword v16, v4, s[44:47], s54 offen sc1
          buffer_store_dword v16, v4, s[44:47], s55 offen sc1''')
    stamp(7)
    a('L_fin:')
    fin()
    for r in rare: r()
    rare.clear()

    role[0] = 'F'
    if paged: a('.p2align 12\nL_F2:')
    else: fstart()
    dzero(); stamp(1)
    a('s_load_dword s30, s[28:29], 0')
    ws_srd(); perm_sel()
    a(f'''s_lshl_b32 s52, s31, 8
          s_add_u32 s56, s52, 0x2400
          s_mov_b32 s59, {hex(f2u(448.0))}
          s_mov_b32 s58, 0x3f803f80
          v_mov_b32 v12, 0
          v_lshlrev_b32 v4, 2, v0
          ds_write_b32 v4, v12 offset:{FZ}
          v_add_u32 v6, s56, v6
          v_lshl_add_u32 v5, v5, 1, s52''')
    maskaddr(8, 2, 's56', FZ + 64, 12)
    a('''s_waitcnt vmcnt(8)
         v_dot2_f32_bf16 v102, v96, s58, 0
         v_dot2_f32_bf16 v103, v96, v96, 0''')
    for i in range(1, 4):
        a(f'v_dot2_f32_bf16 v102, v{96+i}, s58, v102')
        a(f'v_dot2_f32_bf16 v103, v{96+i}, v{96+i}, v103')
    for sh in (8, 4, 2, 1):
        a(f'v_add_f32_dpp v102, v102, v102 row_ror:{sh} {DPPF}')
        a(f'v_add_f32_dpp v103, v103, v103 row_ror:{sh} {DPPF}')
    allred_rows('v_add_f32', 102, 104); allred_rows('v_add_f32', 103, 104)
    a('v_lshlrev_b32 v96, 16, v100')
    ln_apply(102, 103, (100, 96), 104)
    a(f'''s_lshl_b32 s52, s32, 11
          s_lshl_b32 s53, s33, 8
          s_add_u32 s52, s52, s53
          s_add_u32 s53, s52, {X2F}
          s_add_u32 s52, s52, {X2}
          s_waitcnt lgkmcnt(0)''')
    tags()
    a('s_waitcnt vmcnt(4)')
    fix4(32, 104); perms64(32, 64)
    a(f'''s_mov_b32 s49, {X1}
          s_add_u32 s50, s31, 0
          s_lshr_b32 s63, s50, 3
          s_lshl_b32 s63, s63, 13
          s_lshl_b32 s50, s50, 10
          s_add_u32 s50, s50, s63
          s_add_u32 s50, s50, s49
          s_add_u32 s51, s31, 7
          s_lshr_b32 s63, s51, 3
          s_lshl_b32 s63, s63, 13
          s_lshl_b32 s51, s51, 10
          s_add_u32 s51, s51, s63
          s_add_u32 s51, s51, s49
          s_waitcnt vmcnt(0)''')
    fix4(48, 104); perms64(48, 80)
    a('''s_add_u32 s8, s31, 14
          s_lshr_b32 s63, s8, 3
          s_lshl_b32 s63, s63, 13
          s_lshl_b32 s8, s8, 10
          s_add_u32 s8, s8, s63
          s_add_u32 s8, s8, s49
          s_add_u32 s9, s31, 21
          s_lshr_b32 s63, s9, 3
          s_lshl_b32 s63, s63, 13
          s_lshl_b32 s9, s9, 10
          s_add_u32 s9, s9, s63
          s_add_u32 s9, s9, s49
          s_add_u32 s10, s31, 28
          s_lshr_b32 s63, s10, 3
          s_lshl_b32 s63, s63, 13
          s_lshl_b32 s10, s10, 10
          s_add_u32 s10, s10, s63
          s_add_u32 s10, s10, s49
          s_add_u32 s11, s31, 35
          s_lshr_b32 s63, s11, 3
          s_lshl_b32 s63, s63, 13
          s_lshl_b32 s11, s11, 10
          s_add_u32 s11, s11, s63
          s_add_u32 s11, s11, s49''')
    stamp(2)
    poll4('L_q_x1', [f'buffer_load_dwordx4 v[{32+4*s}:{35+4*s}], v41, s[44:47], s{50+s} offen sc1' for s in range(2)], 32, 40)
    stamp(3)
    if mxe:
        for s in range(4): a(f'buffer_load_dwordx4 v[{104+4*s}:{107+4*s}], v41, s[44:47], s{8+s} offen sc1')
    rscatter(36); rscatter(32)
    rnd('v36', 'v36'); rnd('v32', 'v32')
    a('v_add_f32 v36, 1.0, v36'); rnd('v36', 'v36')
    a('v_mul_f32 v36, v100, v36'); rnd('v36', 'v36')
    a('v_add_f32 v36, v36, v32'); rnd('v36', 'v36')
    a('ds_write_b16_d16_hi v6, v36')
    for u in range(2):
        for tau in range(2): a(f'ds_read_b128 v[{32+8*u+4*tau}:{35+8*u+4*tau}], v{8+tau} offset:{64*u}')
    mma2(48, 32, 64, left=2); mma2(48, 40, 80, first=False)
    a(f'''v_mov_b32 v24, 1
          s_mov_b32 s62, 0
          s_mov_b64 exec, 0xffff
          s_cmp_eq_u32 s31, 0
          ds_write_b128 v5, v[50:53] offset:{FP}
          s_mov_b64 exec, 1
          ds_add_u32 v0, v24 offset:{FC+4}
          s_mov_b64 exec, -1
          s_cbranch_scc0 L_q_done
          v_mov_b32 v25, 0
          L_q_s:
          ds_read_b32 v24, v25 offset:{FC+4}''')
    sumrows(7, FP, 4, 'v_cmp_ne_u32 vcc, 8, v24')
    rnd('v16', 'v16')
    rare.append(lambda: a(f'L_q_sr:\ns_add_u32 s62, s62, {STEP}\ns_cbranch_scc0 L_q_s\ns_branch L_q_sok'))
    a('''v_or_b32 v16, s3, v16
         s_cbranch_vccnz L_q_sr
         L_q_sok:
         buffer_store_dword v16, v4, s[44:47], s53 offen
         buffer_store_dword v16, v4, s[44:47], s52 offen sc1''')
    a(f'ds_write_b32 v25, v24 offset:{FC+16}')
    if rewarm:
        a(f'''s_cmp_eq_u32 s33, 7
              s_cbranch_scc0 L_q_done
              s_getpc_b64 s[4:5]
              L_pc2:
              s_sub_u32 s4, s4, L_pc2-L_pc
              s_subb_u32 s5, s5, 0
              v_lshlrev_b32 v102, 7, v0
              v_add_u32 v103, 0x2000, v102
              v_min_u32 v103, L_code_end-L_pc-4, v103
              global_load_dword v127, v102, s[4:5] sc1
              global_load_dword v127, v103, s[4:5] sc1''')
    a('L_q_done:')
    stamp(4)
    def ffn_id(skip):
        a(f'''s_cmp_lt_u32 s32, 4
              s_cselect_b32 s50, 6, 8
              s_cselect_b32 s51, 0, 8
              s_cmp_lt_u32 s33, s50
              s_cbranch_scc0 {skip}''')
    def wp3():
        a(f'''s_mul_i32 s14, s33, 7
              s_add_u32 s14, s14, s31
              s_lshl_b32 s14, s14, 13
              s_mul_i32 s15, s32, {512*896}
              s_add_u32 s14, s14, s15
              v_lshl_add_u32 v126, v0, 7, s14
              global_load_dword v127, v126, s[12:13]''')
    if vpf:
        assert tbl == 1
        a(f'''s_cmp_lt_u32 s31, 6
              s_cbranch_scc0 L_f_nv
              s_load_dwordx2 s[6:7], s[0:1], 16
              s_mul_i32 s52, s33, 6
              s_add_u32 s52, s52, s31
              s_lshl_b32 s52, s52, 2
              s_lshr_b32 s53, s52, 3
                      s_and_b32 s52, s52, 7
                      s_lshl_b32 s54, s53, 2
                      s_add_u32 s55, s54, 6
                      s_min_u32 s54, s54, 13
                      s_min_u32 s55, s55, 15
                      s_mul_i32 s15, s53, 43
                      s_cmp_ge_u32 s53, 17
                      s_cselect_b32 s54, 64, s54
                      s_cselect_b32 s55, 63, s55
                      s_mul_i32 s53, s53, 40
                      s_cselect_b32 s15, s53, s15
                      s_lshl_b32 s53, s32, 14
                      s_add_u32 s15, s15, s53
                      s_add_u32 s15, s15, {WINOFF // 2048 + 5}
                      v_lshrrev_b32 v124, 4, v0
                      v_add_u32 v124, s52, v124
                      v_add_u32 v125, s54, v124
                      v_min_u32 v125, s55, v125
                      v_mad_u32_u24 v124, v124, 5, v125
                      v_add_u32 v124, s15, v124
                      v_and_b32 v125, 15, v0
                      v_lshlrev_b32 v125, 7, v125
                      v_lshl_add_u32 v124, v124, 11, v125''')
        ldswait('L_f_qv', FC + 16, 1, 1, 102)
        for k in range(vpf): a(f'global_load_dword v127, v124, s[6:7] offset:{-2048 * (vpf - 1 - k)}{vpffl}')
        a('L_f_nv:')
    if wopf3:
        ldswait('L_f_q3', FC + 16, 1, 1, 102)
        if wopf3 > 1: a(f's_sleep {wopf3}')
        wp3()
    ffn_id('L_fin2')
    a(f'''s_mul_i32 s50, s50, s32
          s_add_u32 s50, s50, s33
          s_sub_u32 s50, s50, s51
          s_mov_b32 s36, s16
          s_mov_b32 s37, s17
          s_mov_b32 s38, {448*3584}
          s_mov_b32 s40, s18
          s_mov_b32 s41, s19
          s_mov_b32 s42, {1792*896}
          s_mul_i32 s52, s31, {64*3584}
          s_lshl_b32 s53, s50, 6
          s_add_u32 s52, s52, s53
          s_mul_i32 s54, s50, {32*896}
          s_lshl_b32 s55, s31, 7
          s_add_u32 s54, s54, s55
          s_add_u32 s55, s54, {4*896}
          v_and_b32 v4, 15, v0
          v_mul_u32_u24 v2, {8*3584}, v3
          v_lshl_add_u32 v2, v4, 2, v2''')
    voff4(1, 8 * 896, 896, 102)
    if not mxe or not hintk: ldswait('L_f_q', FC + 16, 1, 1, 102)
    poll4('L_f_mx', [f'buffer_load_dwordx4 v[{104+4*s}:{107+4*s}], v121, s[44:47], s{8+s} offen sc1' for s in range(4)], 104, 120, 0, mxe)
    for s in range(4): rscatter(104 + 4 * s)
    rnd('v102', 'v104'); rnd('v98', 'v108'); rnd('v100', 'v112'); rnd('v116', 'v116')
    a('v_add_f32 v100, 1.0, v100\ns_lshl_b32 s13, s31, 8\nv_lshl_add_u32 v103, v0, 2, s13')
    rnd('v100', 'v100')
    a(f'''ds_write_b32 v103, v116 offset:{FG}
          ds_write_b16_d16_hi v6, v100
          ds_write_b16_d16_hi v6, v98 offset:128''')
    hop('f')
    if hintk: ldswait('L_f_g', FC + 8, 1, 1, 104)
    stamp(5)
    for i in range(16):
        a(f'buffer_load_dword v{32+i}, v2, s[36:39], s52 offen offset:{3584*(i&1)}{w1nt}')
        if i & 1: a(f's_add_u32 s52, s52, {2*3584 if i != 7 else 26*3584}')
    for u in range(4):
        a(f'buffer_load_dwordx4 v[{48+4*u}:{51+4*u}], v1, s[40:43], s{54+(u>>1)} offen offset:{(u&1)*2*896}{w2nt}')
    maskaddr(10, 2, FH, FZ + 64, 104)
    lanetag(5, 0)
    getside(104)
    a(f'''s_lshr_b32 s12, s50, 2
          s_lshl_b32 s12, s12, 13
          s_lshl_b32 s14, s50, 11
          s_add_u32 s12, s12, s14
          s_add_u32 s12, s12, s13
          s_add_u32 s12, s12, {X5}
          v_and_b32 v7, 1, v3
          v_lshlrev_b32 v7, 13, v7
          v_lshl_add_u32 v7, v4, 4, v7
          v_and_b32 v8, 1, v0
          v_lshlrev_b32 v8, 7, v8
          v_lshl_add_u32 v8, v3, 4, v8
          v_add_u32 v8, s56, v8
          v_lshlrev_b32 v2, 11, v3
          v_lshl_add_u32 v2, v4, 4, v2
          s_add_u32 s52, s13, {FA}
          v_lshl_add_u32 v9, v0, 3, s52
          s_lshl_b32 s52, s31, 7
          s_add_u32 s52, s52, {FP2}
          v_lshl_add_u32 v4, v0, 3, s52
          s_add_u32 s40, s13, s48
          s_add_u32 s40, s40, {X4}
          s_add_u32 s41, s40, {1 << 14}
          s_add_u32 s42, s40, {2 << 14}
          s_add_u32 s43, s40, {3 << 14}
          s_lshl_b32 s52, s31, 3
          s_add_u32 s52, s52, {FST}
          v_lshrrev_b32 v1, 5, v0
          v_lshl_add_u32 v3, v1, 2, s52
          s_mov_b32 s57, 0xffffff00
          s_mov_b32 s16, 0x10000
          s_mov_b32 s17, 0x10000
          ds_read_b128 v[80:83], v8
          ds_read_b128 v[84:87], v8 offset:64
          v_mov_b32 v12, 0
          v_mov_b32 v13, 1
          v_mov_b32 v120, 1''')
    x4l = [f'buffer_load_dwordx4 v[{104+4*s}:{107+4*s}], v2, s[44:47], s{40+s} offen sc1' for s in range(4)]
    def w1mma(k):
        for tau in range(2):
            d = 88 + 4 * tau; b = 16 + 8 * k + 4 * tau
            a(f'v_mfma_f32_16x16x32_bf16 v[{d}:{d+3}], v[{80+4*k}:{83+4*k}], v[{b}:{b+3}], ' + ('0' if k == 0 else f'v[{d}:{d+3}]'))
    stamp(6)
    a('s_waitcnt vmcnt(4) lgkmcnt(0)')
    for l in x4l: a(l)
    for aa in range(2):
        for tau in range(2):
            for rho in range(4):
                a(f'v_perm_b32 v{16+8*aa+4*tau+rho}, v{32+8*aa+2*rho+1}, v{32+8*aa+2*rho}, s{60+tau}')
    w1mma(0); w1mma(1)
    a(f'''s_mov_b64 exec, 0xffff
          ds_write2_b32 v9, v88, v92 offset0:0 offset1:1
          ds_write2_b32 v9, v89, v93 offset0:32 offset1:33
          s_mov_b64 exec, 1
          ds_add_u32 v0, v120 offset:{FC}
          s_mov_b64 exec, -1
          s_waitcnt vmcnt(4)''')
    fix4(48, 124); perms64(48, 64)
    setprio(2)
    stamp(7)
    def sum_hi(r, d):
        return f'''v_pk_add_f32 v[{d+2}:{d+3}], v[{r+2}:{r+3}], v[{r+6}:{r+7}]
                   v_pk_add_f32 v[{d}:{d+1}], v[{r+10}:{r+11}], v[{r+14}:{r+15}]
                   v_pk_add_f32 v[{d+2}:{d+3}], v[{d+2}:{d+3}], v[{d}:{d+1}]'''
    def sum_lo(r, d):
        for s in range(4): a(f'v_xor_b32 v{r+4*s}, v{r+4*s}, v5')
        pk('add', r, r, r + 4); pk('add', r + 8, r + 8, r + 12); pk('add', d, r, r + 8)
    gather('L_x4', x4l, 104, 4, 5, spec=sum_hi(104, 120), issued=True, warm=(fX4, 63))
    stamp(8)
    sum_lo(104, 120)
    pad('f')
    rscatter(120)
    rnd('v120', 'v120'); a('v_mul_f32 v120, v102, v120'); rnd('v120', 'v120'); a('v_add_f32 v120, v96, v120'); rnd('v121', 'v120')
    xs('x2')
    a(f'''v_mul_f32 v123, v121, v100
          v_mul_f32 v122, v121, v121
          v_cvt_pk_bf16_f32 v124, 0, v123
          v_sub_f32 v124, v123, v124
          v_cvt_pk_bf16_f32 v123, v124, v123
          ds_write_b16_d16_hi v6, v123
          ds_write_b16 v6, v123 offset:128
          ds_read_b128 v[80:83], v8
          ds_read_b128 v[84:87], v8 offset:64
          ds_write_b32 v103, v121 offset:{FX}
          v_permlane32_swap_b32 v121, v122
          v_add_f32 v121, v121, v122''')
    pad('f')
    a(f'''v_add_f32_dpp v121, v121, v121 row_ror:8 {DPPF}
          v_add_f32_dpp v121, v121, v121 row_ror:4 {DPPF}
          v_add_f32_dpp v121, v121, v121 row_ror:2 {DPPF}
          s_waitcnt lgkmcnt({0 if (diag and only is None) else 2})''')
    w1mma(0)
    a(f'''v_add_f32_dpp v121, v121, v121 row_ror:1 {DPPF}
          s_waitcnt lgkmcnt({0 if (diag and only is None) else 1})''')
    w1mma(1)
    a(f'''v_add_f32_dpp v121, v121, v121 row_bcast:15 row_mask:0xa bank_mask:0xf
          s_mov_b64 exec, s[16:17]
          ds_write_b32 v3, v121''')
    if est: a(f'ds_add_u32 v12, v13 offset:{FC+20}')
    a('s_mov_b64 exec, 0xffff')
    pad('f')
    a(f'''v_add_f32 v88, v88, v89
          v_add_f32 v92, v92, v93
          ds_write2_b32 v4, v88, v92 offset0:0 offset1:1''')
    if nw3: a(f's_mov_b64 exec, 1\nds_add_u32 v12, v13 offset:{FC+24}')
    else: a('s_waitcnt lgkmcnt(0)')
    stamp(11); xs('preB3')
    a('s_barrier\ns_mov_b64 exec, -1\ns_mov_b32 s62, 0')
    xs('B3')
    a('s_barrier')
    xs('B4')
    a('L_f_h1:')
    if nw4: a(f'ds_read_b32 v14, v12 offset:{FC+28}')
    for tau in range(2): a(f'ds_read_b128 v[{80+4*tau}:{83+4*tau}], v{10+tau}')
    mma2(32, 80, 64, mid='v_cmp_eq_u32 vcc, 0, v14' if nw4 else None)
    if nw4:
        a('s_cbranch_vccnz L_f_h1r\nL_f_h1ok:')
        rare.append(lambda: a(f'L_f_h1r:\ns_add_u32 s62, s62, {STEP}\ns_cbranch_scc0 L_f_h1\ns_branch L_f_h1ok'))
    xs('mm2')
    pad('f', True)
    a('''s_mov_b32 exec_hi, 0
         v_and_or_b32 v34, v34, s57, v5
         buffer_store_dwordx4 v[34:37], v7, s[44:47], s12 offen sc1''')
    stamp(9)
    a('s_barrier\nL_fin2:')
    fin()
    for r in rare: r()
    rare.clear()
    if not paged: a(f'''L_F7s:
              s_cmp_ge_u32 s31, 9
              s_cbranch_scc1 L_F9
              v_mov_b32 v2, 0
              v_lshlrev_b32 v3, 2, v0
              ds_write_b32 v3, v2 offset:{FC & ~255}
              s_waitcnt lgkmcnt(0)
              s_barrier
              s_branch L_F7
              L_F9:
              s_endpgm''')
    a(f'''L_F7:
          s_cmp_eq_u32 s31, 7
          s_cbranch_scc0 L_F8
          s_load_dword s30, s[28:29], 0
          v_mov_b32 v4, 1
          s_waitcnt lgkmcnt(0)
          s_mov_b64 exec, 1
          ds_add_u32 v2, v4 offset:{FC+4}
          s_mov_b64 exec, -1''')
    dzero()
    ws_srd()
    ffn_id('L_fin3')
    if hintk:
        a(f'''s_mul_i32 s49, s32, {24*128}
              s_add_u32 s49, s49, {HINT}
              v_lshlrev_b32 v102, 7, v0''')
        if mxe:
            ldswait('L_7_t', FC + 4, 2, 4, 104)
            a('s_mov_b64 exec, 0xffffff\nbuffer_load_dword v103, v102, s[44:47], s49 offen sc1\ns_mov_b64 exec, -1')
    ldswait('L_7_q', FC + 16, 1, 4, 104)
    tags()
    if hintk:
        a(f'''s_mul_i32 s54, s50, s32
              s_add_u32 s54, s54, s33
              s_and_b32 s54, s54, 6
              s_cmp_eq_u32 s54, 6
              s_cselect_b32 s54, {hintk if hk3 is None else hk3}, {hintk}
              s_mov_b64 exec, 0xffffff
              s_mov_b32 s62, 0
              L_f_h:
              s_sleep 2
              buffer_load_dword v103, v102, s[44:47], s49 offen sc1
              s_add_u32 s62, s62, {1 << (32 - fastbits)}
              s_waitcnt vmcnt(0)
              s_cbranch_scc1 L_f_hok
              v_cmp_eq_u32 vcc, s3, v103
              s_bcnt1_i32_b64 s53, vcc
              s_cmp_lt_u32 s53, s54
              s_cbranch_scc1 L_f_h
              L_f_hok:
              s_mov_b64 exec, -1
              v_mov_b32 v103, 1
              ds_write_b32 v2, v103 offset:{FC+8}''')
    a(f'''s_mul_i32 s50, s50, s32
          s_add_u32 s50, s50, s33
          s_sub_u32 s50, s50, s51
          v_mov_b32 v9, v3
          v_lshrrev_b32 v4, 4, v0
          v_lshlrev_b32 v81, 14, v4
          v_bfe_u32 v6, v0, 2, 2
          v_lshl_add_u32 v81, v6, 11, v81
          v_and_b32 v6, 3, v0
          v_lshl_add_u32 v81, v6, 4, v81
          s_bfe_u32 s52, s50, 0x20001
          s_lshl_b32 s52, s52, 2
          s_lshl_b32 s20, 0x000f000f, s52
          s_mov_b32 s21, s20
          s_lshr_b32 s52, s50, 3
          s_lshl_b32 s53, s52, 8
          v_add_u32 v3, s53, v3
          s_lshl_b32 s52, s52, 7
          v_and_b32 v6, 7, v0
          v_lshlrev_b32 v6, 4, v6
          v_and_b32 v7, 8, v0
          v_lshl_add_u32 v7, v4, 1, v7
          v_add3_u32 v101, v6, v7, s52
          s_mov_b32 s36, s24
          s_mov_b32 s37, s25
          s_mov_b32 s38, 896
          s_mov_b32 s39, 0x20000''')
    lanetag(5, 0)
    x5l = [f'buffer_load_dwordx4 v[{36+4*s}:{39+4*s}], v81, s[44:47], s{40+s} offen sc1' for s in range(4)]
    a('v_mov_b32 v48, v5\nv_mov_b32 v49, 0\nv_mov_b32 v50, 0\nv_mov_b32 v51, 0')
    hop('s')
    ldswait('L_7_g', FC, 2, 4, 102)
    getside(102)
    a(f'''s_lshl_b32 s40, s50, 5
          s_add_u32 s40, s40, s48
          s_add_u32 s40, s40, {X5}
          s_add_u32 s41, s40, {4 << 14}
          s_add_u32 s42, s40, {8 << 14}
          s_add_u32 s43, s40, {12 << 14}''')
    a('s_bitcmp1_b32 s50, 0\ns_cbranch_scc1 L_7_o\n' + '\n'.join(x5l[:3]) + f'''
          s_mov_b32 exec_hi, 0
          {x5l[3]}
          buffer_load_ushort v125, v101, s[36:39], 0 offen
          s_mov_b32 exec_hi, -1
          L_7_o:''')
    ldswait('L_7_a', FC, 7, 1, 102)
    sumrows(7, FA, 9)
    a(f'''v_mov_b32 v17, v16
          v_and_b32 v14, 31, v0
          v_lshlrev_b32 v15, 1, v14
          v_permlane32_swap_b32 v16, v17
          v_lshlrev_b32 v14, 2, v14
          v_add_u32 v14, {FP2}, v14
          v_mov_b32 v1, {FST}
          v_mov_b32 v31, 0
          s_mov_b32 s59, {hex(f2u(448.0))}''')
    align('S')
    setprio(3)
    cw = lambda n: f's_waitcnt lgkmcnt({0 if (diag and only is None) else n})'
    if est:
        a(f'''s_mov_b32 s62, 0
              L_7_s:
              ds_read_b32 v70, v31 offset:{FC+20}
              ds_read_b128 v[56:59], v1
              ds_read_b128 v[60:63], v1 offset:16
              ds_read_b128 v[64:67], v1 offset:32
              ds_read_b64 v[68:69], v1 offset:48
              s_add_u32 s62, s62, {STEP >> 2}
              s_cbranch_scc1 L_7_sok
              {cw(4)}
              v_cmp_ne_u32 vcc, 14, v70
              s_cbranch_vccnz L_7_s
              L_7_sok:
              s_waitcnt lgkmcnt(0)''')
        pk('add', 56, 56, 58); pk('add', 60, 60, 62)
        pk('add', 64, 64, 66); pk('add', 56, 56, 60); pk('add', 64, 64, 68); pk('add', 56, 56, 64)
        a(f'''s_barrier
              ds_read2_b32 v[24:25], v14 offset0:0 offset1:32
              ds_read2_b32 v[26:27], v14 offset0:64 offset1:96
              ds_read2_b32 v[28:29], v14 offset0:128 offset1:160
              ds_read_b32 v30, v14 offset:768''')
        a(f'''v_mul_f32 v60, v56, v56
              v_fma_f32 v61, v56, v56, -v60
              v_fma_f32 v60, v57, s59, -v60
              v_sub_f32 v60, v60, v61
              v_mul_f32 v60, {hex(f2u(1/448/448))}, v60
              v_max_f32 v60, 0, v60''')
        rnd('v60', 'v60')
        a(f'v_add_f32 v60, {hex(f2u(1e-5))}, v60')
        rnd('v60', 'v60')
        a(f'v_sqrt_f32 v60, v60\nv_mul_f32 v62, {hex(f2u(1/448))}, v56')
        rnd('v60', 'v60')
        a('s_waitcnt lgkmcnt(0)\nv_rcp_f32 v60, v60')
        pk('add', 24, 24, 26); pk('add', 28, 28, 30)
        rnd('v62', 'v62')
        pk('add', 24, 24, 28)
        a('''v_fma_f32 v24, -v62, v16, v24
             v_add_f32 v24, v24, v25
             v_fma_f32 v24, v24, v60, v17''')
    else:
        a('s_mov_b32 s62, 0\ns_barrier\nL_7_t:')
        if nw3: a(f'ds_read_b32 v70, v31 offset:{FC+24}')
        a(f'''ds_read_b128 v[56:59], v1
              ds_read_b128 v[60:63], v1 offset:16
              ds_read_b128 v[64:67], v1 offset:32
              ds_read_b64 v[68:69], v1 offset:48
              ds_read2_b32 v[24:25], v14 offset0:0 offset1:32
              ds_read2_b32 v[26:27], v14 offset0:64 offset1:96
              ds_read2_b32 v[28:29], v14 offset0:128 offset1:160
              ds_read_b32 v30, v14 offset:768''')
        a(cw(6))
        if nw3: a('v_cmp_ne_u32 vcc, 7, v70')
        pk('add', 56, 56, 58); pk('add', 60, 60, 62)
        a(cw(4))
        pk('add', 64, 64, 66); pk('add', 56, 56, 60); pk('add', 64, 64, 68); pk('add', 56, 56, 64)
        a(f'''v_mul_f32 v60, v56, v56
              v_fma_f32 v61, v56, v56, -v60
              v_fma_f32 v60, v57, s59, -v60
              v_sub_f32 v60, v60, v61
              v_mul_f32 v60, {hex(f2u(1/448/448))}, v60
              v_max_f32 v60, 0, v60''')
        rnd('v60', 'v60')
        a(f'v_add_f32 v60, {hex(f2u(1e-5))}, v60')
        rnd('v60', 'v60')
        a(f'v_sqrt_f32 v60, v60\nv_mul_f32 v62, {hex(f2u(1/448))}, v56')
        rnd('v60', 'v60')
        a('s_waitcnt lgkmcnt(0)\nv_rcp_f32 v60, v60')
        pk('add', 24, 24, 26); pk('add', 28, 28, 30)
        rnd('v62', 'v62')
        pk('add', 24, 24, 28)
        a('''v_fma_f32 v24, -v62, v16, v24
             v_add_f32 v24, v24, v25
             v_fma_f32 v24, v24, v60, v17''')
    rnd('v24', 'v24')
    silu(24, 24, 25, 's')
    if nw3:
        a('s_cbranch_vccnz L_7_tr\nL_7_tok:')
        rare.append(lambda: a(f'L_7_tr:\ns_add_u32 s62, s62, {STEP}\ns_cbranch_scc0 L_7_t\ns_branch L_7_tok'))
    a(f'ds_write_b16_d16_hi v15, v24 offset:{FH}')
    a(f'ds_write_b32 v31, v1 offset:{FC+28}' if nw4 else 's_waitcnt lgkmcnt(0)')
    a('''s_barrier
         s_bitcmp1_b32 s50, 0
         s_cbranch_scc1 L_fin3''')
    a(f'''ds_read_b32 v96, v3 offset:{FX}
          ds_read_b32 v100, v3 offset:{FG}
          s_cmp_eq_u32 s50, 0
          s_cbranch_scc0 L_7_e
          s_mov_b64 exec, 1
          v_mov_b32 v6, s30
          buffer_store_dword v6, v2, s[44:47], 0 offen
          s_mov_b64 exec, -1
          L_7_e:''')
    pad('s')
    a('s_barrier\ns_waitcnt lgkmcnt(0)')
    gather('L_x5', x5l, 36, 4, 5, issued=True, spec=sum_hi(36, 32))
    stamp(12)
    sum_lo(36, 32)
    pad('s')
    rscatter(32)
    a(f'v_add_f32_dpp v32, v32, v32 row_ror:8 {DPPF}')
    pad('s', True)
    a(f'v_add_f32_dpp v32, v32, v32 row_ror:4 {DPPF}')
    rnd('v32', 'v32'); a('v_mul_f32 v32, v100, v32'); rnd('v32', 'v32'); a('v_add_f32 v32, v96, v32\ns_mov_b64 exec, s[20:21]'); rnd('v32', 'v32')
    a('buffer_store_short_d16_hi v32, v101, s[36:39], 0 offen')
    stamp(14)
    if lite: a('s_branch L_dump')
    a('L_fin3:')
    fin()
    for r in rare: r()
    rare.clear()
    a(f'''L_F8:
          s_lshl_b32 s48, s2, 7
          s_add_u32 s48, s48, {PRB}
          s_add_u32 s49, s48, {SIDE}
          s_mov_b32 s52, -1
          s_mov_b32 s53, -1
          s_mov_b32 s54, 0
          s_waitcnt lgkmcnt(0)''')
    if tlb:
        a(f'''s_lshl_b32 s50, s32, 25
              s_add_u32 s50, s50, {WINOFF}
              s_mov_b32 s51, {4096*896-4}
              s_load_dword s56, s[8:9], s50
              s_load_dword s57, s[12:13], 0
              s_load_dword s58, s[12:13], s51
              s_load_dword s59, s[16:17], 0
              s_load_dword s60, s[18:19], 0
              s_load_dword s61, s[24:25], 0''')
    dzero()
    if fside is not None:
        a(f'''s_getreg_b32 s55, hwreg(HW_REG_XCC_ID)
              s_bfe_u32 s55, s55, 0x10002
              s_xor_b32 s55, s55, {fside}
              s_lshl_b32 s55, s55, 13
              v_mov_b32 v3, s55
              ds_write_b32 v2, v3 offset:{FC+12}''')
    else:
        a('s_load_dword s10, s[28:29], s48 glc\ns_load_dword s11, s[28:29], s49 glc\ns_waitcnt lgkmcnt(0)\nL_8_l:')
        for sd in range(2):
            a(f'''s_memtime s[4:5]
                  s_waitcnt lgkmcnt(0)
                  s_load_dword s10, s[28:29], s{48+sd} glc
                  s_waitcnt lgkmcnt(0)
                  s_memtime s[6:7]
                  s_lshr_b32 s8, s33, {sd}
                  s_add_u32 s8, s8, s54
                  s_bitcmp1_b32 s8, 0
                  s_waitcnt lgkmcnt(0)
                  s_cbranch_scc0 L_8_n{sd}
                  s_sleep 3
                  L_8_n{sd}:
                  s_sub_u32 s4, s6, s4
                  s_min_u32 s{52+sd}, s{52+sd}, s4''')
        a(f'''s_cmp_lt_u32 s53, s52
              s_cselect_b32 s55, {SIDE}, 0
              v_mov_b32 v3, s55
              ds_write_b32 v2, v3 offset:{FC+12}''')
        if diag:
            for k in (1, 2, 3, 4): a(f's_cmp_eq_u32 s54, {k-1}\ns_cbranch_scc0 L_8_d{k}\ns_memrealtime s[{64+2*k}:{65+2*k}]\ns_add_u32 s{64+2*(k+4)}, s55, 1\nL_8_d{k}:')
        a(f'''s_add_u32 s54, s54, 1
              s_cmp_lt_u32 s54, {nprb}
              s_cbranch_scc1 L_8_l''')
    if diag:
        a('s_add_u32 s90, s55, 1\ns_getreg_b32 s88, hwreg(HW_REG_XCC_ID)\ns_mov_b32 s86, s52\ns_mov_b32 s84, s53')
        fin()
    else: a('s_endpgm')
    pfcode()
    if probe:
        a('L_probe:\ns_cmp_eq_u32 s68, 0\ns_cbranch_scc1 L_end')
        if len(probe) > 2 and probe[2] is not None: a(f's_cmp_eq_u32 s32, {probe[2]}\ns_cbranch_scc0 L_end')
        if len(probe) > 3 and probe[3] is not None: a(f's_cmp_eq_u32 s31, {probe[3]}\ns_cbranch_scc0 L_end')
        a('''s_setprio 0
             s_sleep 127
             s_sleep 127
             s_sleep 127
             s_sleep 127
             s_sleep 127
             L_probe_l:
             s_memrealtime s[66:67]
             s_waitcnt lgkmcnt(0)
             s_sub_u32 s66, s66, s64
             s_cmp_lt_u32 s66, 3000
             s_cbranch_scc1 L_probe_l
             s_endpgm''')
    if diag or lite:
        a(f'''L_dump:
              s_mov_b64 exec, -1
              s_waitcnt vmcnt(0) lgkmcnt(0)
              s_memrealtime s[94:95]
              s_lshl_b32 s48, s2, 4
              s_add_u32 s48, s48, s31
              s_lshl_b32 s48, s48, 6
              s_add_u32 s48, s48, {STAMP_OFF}
              v_mov_b32 v1, s48
              s_waitcnt lgkmcnt(0)''')
        for i in range(16): a(f'v_mov_b32 v{8+i}, s{64+2*i}')
        a('s_mov_b64 exec, 1')
        for i in range(4): a(f'global_store_dwordx4 v1, v[{8+4*i}:{11+4*i}], s[28:29] offset:{16*i}')
    a('L_end:\ns_endpgm\nL_code_end:')
    head = open('adaLN_cond__sliding_block_cached__dense_activation_silu__decode.s.ref').read().split('; Override launch')[0]
    return head + f'''; @launch grid=(256,1,1) block=(1024,1,1) lds={L_END}
{DOC.rstrip()}
.amdgcn_target "amdgcn-amd-amdhsa--gfx950"
.text
.globl {KN}
{'.p2align 12' if paged else ''}
.p2align 8
.type {KN},@function
''' + annotate(a.text()) + f'''.section .rodata,"a"
.p2align 6
.amdhsa_kernel {KN}
  .amdhsa_next_free_vgpr 128
  .amdhsa_next_free_sgpr 96
  .amdhsa_accum_offset 128
  .amdhsa_group_segment_fixed_size 0
  .amdhsa_kernarg_size 104
  .amdhsa_user_sgpr_count 2
  .amdhsa_user_sgpr_kernarg_segment_ptr 1
  .amdhsa_system_sgpr_workgroup_id_x 1
.end_amdhsa_kernel
'''

if __name__ == '__main__':
    out = sys.argv[1]
    kw = eval('dict(' + (sys.argv[2] if len(sys.argv) > 2 else '') + ')')
    open(out, 'w').write(gen(**kw))
```

```python
import sys, struct
sys.path.insert(0, 'work')
from asmlib import Asm

KN = 'adaLN_cond__sliding_block_cached__dense_activation_silu__decode_kernel'
X2, X2F, HINT, PRB, X1, X4, X5, X3, X3F, WSEND = 0x4000, 0x8000, 0xC000, 0x80000, 0x18000, 0x30000, 0x40000, 0xA0000, 0x100000, 0x160000
SIDE = 0x2000
STAMP_OFF = 0x180000
L_Q, L_M, L_C, L_L, L_Z, L_O, L_PRIV, L_P, L_END = 0x0, 0x800, 0x810, 0x840, 0x900, 0x1000, 0x5000, 0x5800, 0x6100
FM = 0x300
FZ, FC, FP, FP2, FST, FX, FG, FA, FH = 0x0, 0x240, 0x1000, 0x1800, 0x2000, 0x3000, 0x3800, 0x4000, 0x2100
WINOFF = (65536 - 4096) * 512

DOC = """;
"""
def f2u(x): return struct.unpack('<I', struct.pack('<f', x))[0]
LOG2E = 1.4426950408889634
DPPF = 'row_mask:0xf bank_mask:0xf'

CM = {'L_A': 'attention CUs: waves 0..7 start their K loads inside the first fetched lines', 'L_a_u': 'CUs whose modulation task is on the path to q let its loads go first', 'L_Td': 'waves 8..15 of the attention CUs; waves 12..15 clear the first 4 KB of LDS (q slot, max, counters, zero rows)', 'L_mod': 'modulation task: 112 rows x 64 columns of w_mod, raw rows as B operand, silu(c) on a diagonal A operand', 'L_F': 'front CUs: wq loads', 'L_a_c': 'attention: lane constants, then the paced K and V loads', 'L_a_q': 'attention: wait for q in LDS, scores (diagonal blocks of K x q), CU-wide max, exp, P x V, combine the waves, publish', 'L_T': 'tail waves: set-up, q poller (wave 8)', 'L_wo': 'wo block: weights after the V loads, gather the 24 partials of the head, rescale, multiply, publish', 'L_F2': 'front CUs: LayerNorm(x), gather shift / scale, h, q', 'L_q_done': 'FFN block: remaining modulation values, weights, constant products c1 @ w1 and sb @ w1', 'L_x4': 'FFN: gather the 16 head products, residual, (x2 * c1) @ w1 and statistics, then h1 @ w2', 'L_F7': 'wave 7 of the front CUs: weight gate, LayerNorm + SiLU between the products, final reduction', 'L_F8': 'wave 8 of the front CUs: which memory side answers faster', 'L_pf': 'idle waves of CUs without a wo block pull the FFN weights into L2'}
def annotate(t):
    return ''.join((f'; ---- {CM[l[:-1]]}\n' if l[:-1] in CM else '') + l + '\n' for l in t.rstrip('\n').split('\n'))

def gen(W=5, WH=6, WK=3, WKH=4, N0=2, WE=7, NE=6, NL=4, adapt=True, diag=False, lite=False, probe=None, sleep=8, nt=' nt', w1nt='', wont=' nt',
        rewarm=True, gaten=8, hintk=16, hintpos=7, touchpos=2, spinbits=20, fastbits=6, prio=True, pprio=3, nprb=5,
        fside=None, nob=False, fpf=8, tbl=1, only=None, lk=0, LW=(5, 6, 7, 6), WR=None, pf3=True, wolate=False, fdelay=0, wopf=0, wolanes=32, fB3=0, fB3p=0, fB4=(12, 12), fM=True, tlb=False, mxe=False, dirty=0, epe=True, wopf2=0, peel=False, nwo=42, nmid=48, ldef=True, est=False, al={'L_x3': 0, 'L_x4': 2, 'L_x5': 3}, pads='', paged=True, pvf=True, wopf3=0, vpf=0, vpfk=8, vpffl='', hk3=4, nw3=True, nw4=True, nw2=False, pfnt='', gsl=0, w2nt=' nt', x5o=0, d5=9, pt5=True, lsl={}, bsl=24, bsn=-1, dbl={}, skz=('L_x3', 'L_x4', 'L_x5'), fX3=0, fX4=0, fA=(0, 0), half=True):
    a = Asm()
    rare = []
    STEP = 1 << (32 - spinbits)
    role = ['all']
    PH = {('att', 6), ('wo', 6), ('F', 8), ('F', 12)}
    def stamp(i):
        if (diag and (only is None or i == 0 or (role[0], i) in only)) or (lite and i in (0, 14)): a(f's_memrealtime s[{64+2*i}:{65+2*i}]')
        if probe and probe[0] == role[0] and probe[1] == i: a('s_memrealtime s[64:65]\ns_mov_b32 s68, 1')
    def xs(name):
        if diag and only and name in only: a('s_memrealtime s[84:85]')
        if diag and only and 'clk' in only and name in ('B3', 'mm2'):
            k = 1 if name == 'B3' else 3
            a(f's_memrealtime s[{64+2*k}:{65+2*k}]\ns_memtime s[{66+2*k}:{67+2*k}]')
            if name == 'B3': a('s_waitcnt lgkmcnt(0)')
    def align(k):
        if k in al:
            a('.p2align 6')
            for _ in range(al[k] + (2 if k != 'S' and not diag else 0)): a('s_nop 0')
    npad = {}
    def pad(k, last=False):
        if k not in pads: return
        i = npad.get(k, 0); npad[k] = i + 1
        a(f'L_pad{k}{i}:\ns_cbranch_execz L_pad{k}' + ('r' if last else str(i + 1)))
    def hop(k):
        if k in pads: a(f's_mov_b64 exec, 0\ns_branch L_pad{k}0\nL_pad{k}r:\ns_mov_b64 exec, -1')
    def fill(n, r):
        if r == 62:
            for _ in range(n): a('v_mfma_f32_16x16x32_bf16 v[72:75], v[16:19], v[16:19], 0')
        elif r == 63:
            for _ in range(n): a('v_mfma_f32_16x16x32_bf16 v[88:91], v[16:19], v[16:19], 0')
        elif fM and r == 9:
            for _ in range((n + 2) // 4): a('v_mfma_f32_16x16x32_bf16 v[116:119], v[16:19], v[16:19], 0')
        else:
            for _ in range(n): a(f'v_mov_b32 v{r}, 0')
    def fin(): a('s_branch L_dump' if diag else 's_branch L_probe' if probe else 's_endpgm')
    def setprio(n):
        if prio: a(f's_setprio {n}')
    def tags():
        a('''s_add_u32 s30, s30, 1
             s_and_b32 s34, s30, 0x7f
             s_xor_b32 s35, s34, 0x5a
             s_lshl_b32 s3, s35, 8
             s_or_b32 s3, s3, s34''')
    def ws_srd():
        a(f'''s_mov_b32 s44, s28
              s_mov_b32 s45, s29
              s_mov_b32 s46, {WSEND}
              s_mov_b32 s47, 0x20000''')
    def lanetag(d, bit):
        a(f'''v_bfe_u32 v{d}, v0, {bit}, 1
              v_mul_u32_u24 v{d}, 0x5a, v{d}
              v_xor_b32 v{d}, s34, v{d}''')
    def rowtag(m, t):
        lanetag(t, 2)
        a(f'''v_and_b32 v{m}, 3, v0
              v_cmp_eq_u32 vcc, 0, v{m}
              v_mov_b32 v{m}, 0xffffff00
              v_cndmask_b32 v{t}, 0, v{t}, vcc
              v_cndmask_b32 v{m}, -1, v{m}, vcc''')
    def spin(loop, done):
        a(f'''s_cbranch_vccz {done}
              s_add_u32 s62, s62, {STEP}
              s_cbranch_scc0 {loop}
              {done}:''')
    def ldswait(lbl, off, n, sl, z=100):
        if not n: return
        a(f'v_mov_b32 v{z}, 0\ns_mov_b32 s62, 0\n{lbl}:')
        if sl: a(f's_sleep {sl}')
        a(f'''ds_read_b32 v{z+1}, v{z} offset:{off}
              s_waitcnt lgkmcnt(0)
              v_cmp_gt_u32 vcc, {n}, v{z+1}''')
        spin(lbl, lbl + 'ok')
    def gather(lbl, loads, raw, masks, vt, spec='', switch=None, nfast=0, issued=False, warm=None):
        n = len(loads)
        a('s_mov_b32 s62, 0')
        if switch: a(f's_mov_b32 s63, {(1 << 32) // nfast}')
        if issued:
            a(f's_branch {lbl}_w')
            if paged and lbl == 'L_x4': a('.p2align 12')
            align(lbl)
        else:
            for i in range(n): a(f's_mov_b64 s[{masks+2*i}:{masks+2*i+1}], -1')
        a(f'{lbl}:')
        if lbl in lsl: a(f's_sleep {lsl[lbl]}')
        for i, l in enumerate(loads):
            if lbl in skz: a(f's_wqm_b64 exec, s[{masks+2*i}:{masks+2*i+1}]\ns_cbranch_scc0 {lbl}_z{i}\n{l}\n{lbl}_z{i}:')
            else: a(f's_wqm_b64 exec, s[{masks+2*i}:{masks+2*i+1}]\n{l}')
        for sl in dbl.get(lbl, ()):
            a(f's_sleep {sl}')
            for i, l in enumerate(loads): a(f's_wqm_b64 exec, s[{masks+2*i}:{masks+2*i+1}]\n{l}')
        a(f'''s_mov_b64 exec, -1
              s_add_u32 s62, s62, {'s63' if switch else STEP}
              s_cbranch_scc1 {lbl}_r''')
        if warm: fill(*warm)
        a(f'{lbl}_w:\ns_waitcnt vmcnt(0)')
        for i in range(n): a(f'v_cmp_ne_u32_sdwa s[{masks+2*i}:{masks+2*i+1}], v{raw+4*i}, v{vt} src0_sel:BYTE_0 src1_sel:DWORD')
        a(spec)
        a(f's_or_b64 vcc, s[{masks}:{masks+1}], s[{masks+2}:{masks+3}]')
        for i in range(2, n): a(f's_or_b64 vcc, vcc, s[{masks+2*i}:{masks+2*i+1}]')
        a(f's_cbranch_scc1 {lbl}\n{lbl}_ok:')
        def r():
            a(f'{lbl}_r:')
            if switch:
                a(f's_cmp_eq_u32 s63, {STEP}\ns_cbranch_scc1 {lbl}_x\ns_mov_b32 s63, {STEP}\n{switch}\ns_branch {lbl}_w\n{lbl}_x:')
            a(f's_waitcnt vmcnt(0)\ns_mov_b64 vcc, 0\ns_branch {lbl}_ok')
        rare.append(r)
    def poll4(lbl, loads, raw, t, sl=0, issued=False):
        a(f'''v_mov_b32 v{t+2}, 0
              ds_read_b32 v{t+3}, v{t+2} offset:{FC+12}
              s_and_b32 s4, s34, 3
              s_and_b32 s5, s35, 3
              s_mov_b32 s62, 0
              s_waitcnt lgkmcnt(0)''')
        if issued: a(f's_branch {lbl}_w')
        a(f'{lbl}:\nv_add_u32 v{t+1}, v7, v{t+3}')
        if sl: a(f's_sleep {sl}')
        for l in loads: a(l)
        a(f'ds_read_b32 v{t+3}, v{t+2} offset:{FC+12}\n{lbl}_w:\ns_waitcnt vmcnt(0) lgkmcnt(0)')
        n = 4 * len(loads)
        for k in range(n): a(f'v_xor_b32 v{raw+k}, s{4+(k&1)}, v{raw+k}')
        a(f'v_or_b32 v{t}, v{raw}, v{raw+1}')
        for k in range(2, n, 2): a(f'v_or3_b32 v{t}, v{t}, v{raw+k}, v{raw+k+1}')
        a(f'v_and_b32 v{t}, 3, v{t}\nv_cmp_ne_u32 vcc, 0, v{t}')
        spin(lbl, lbl + '_ok')
    def pk(op, d, x, y): a(f'v_pk_{op}_f32 v[{d}:{d+1}], v[{x}:{x+1}], v[{y}:{y+1}]')
    def rscatter(r):
        a(f'v_permlane32_swap_b32 v{r}, v{r+2}\nv_permlane32_swap_b32 v{r+1}, v{r+3}')
        pk('add', r, r, r + 2)
        a(f'v_permlane16_swap_b32 v{r}, v{r+1}\nv_add_f32 v{r}, v{r}, v{r+1}')
    def rnd(d, s): a(f'v_cvt_pk_bf16_f32 {d}, 0, {s}')
    def allred_rows(op, r, t):
        a(f'''v_mov_b32 v{t}, v{r}
              v_permlane32_swap_b32 v{r}, v{t}
              {op} v{r}, v{r}, v{t}
              v_mov_b32 v{t}, v{r}
              v_permlane16_swap_b32 v{r}, v{t}
              {op} v{r}, v{r}, v{t}''')
    def perm_sel(): a('s_mov_b32 s60, 0x05040100\ns_mov_b32 s61, 0x07060302')
    def perms64(raw, dst):
        for tau in range(4):
            for rho in range(4):
                a(f'v_perm_b32 v{dst+4*tau+rho}, v{raw+2*(2*rho+1)+(tau>>1)}, v{raw+2*(2*rho)+(tau>>1)}, s{60+(tau&1)}')
    def fix4(raw, t):
        for u0 in (0, 2):
            for i in range(2): a(f'v_pk_mov_b32 v[{t+2*i}:{t+2*i+1}], v[{raw+4*(u0+i)+2}:{raw+4*(u0+i)+3}], v[{raw+4*(u0+i)+2}:{raw+4*(u0+i)+3}] op_sel:[0,1]')
            rs = [raw + 4 * u + d for u in (u0, u0 + 1) for d in (0, 1)]
            for i, r in enumerate(rs): a(f'v_mov_b32_dpp v{r+2}, v{r} row_ror:8 row_mask:0xf bank_mask:0x3')
            for i, r in enumerate(rs): a(f'v_mov_b32_dpp v{r}, v{t+i} row_ror:8 row_mask:0xf bank_mask:0xc')
    def voff4(d, gstride, stride, t):
        a(f'''v_lshrrev_b32 v{t}, 4, v0
              v_mul_u32_u24 v{d}, {gstride}, v{t}
              v_bfe_u32 v{t}, v0, 3, 1
              v_mul_u32_u24 v{t}, {stride}, v{t}
              v_add_u32 v{d}, v{d}, v{t}
              v_and_b32 v{t}, 7, v0
              v_lshl_add_u32 v{d}, v{t}, 4, v{d}''')
    def maskaddr(dst, n, base, zero, t):
        a(f'''v_lshrrev_b32 v{t}, 4, v0
              v_lshlrev_b32 v{t}, 4, v{t}
              v_add_u32 v{t}, {base}, v{t}
              v_and_b32 v{t+1}, {n-1}, v0
              v_mov_b32 v{t+2}, {zero}''')
        for tau in range(n):
            a(f'v_cmp_eq_u32 vcc, {tau}, v{t+1}')
            a(f'v_cndmask_b32 v{dst+tau}, v{t+2}, v{t}, vcc')
    def silu(d, x, t, p=None):
        a(f'''v_mul_f32 v{t}, {hex(f2u(-LOG2E))}, v{x}
              v_exp_f32 v{t}, v{t}''')
        if p: pad(p)
        a(f'''v_add_f32 v{t}, 1.0, v{t}
              v_rcp_f32 v{t}, v{t}
              v_mul_f32 v{t}, v{x}, v{t}''')
        rnd(f'v{d}', f'v{t}')
    def silu_fine(d, x, t):
        L = struct.unpack('<f', struct.pack('<f', -LOG2E))[0]
        a(f'''s_mov_b32 s58, {hex(f2u(L))}
              v_mul_f32 v{t}, s58, v{x}
              v_fma_f32 v{t+1}, v{x}, s58, -v{t}
              v_fmac_f32 v{t+1}, {hex(f2u(-LOG2E - L))}, v{x}
              v_min_f32 v{t}, 0x42fc0000, v{t}
              v_exp_f32 v{t}, v{t}
              v_mul_f32 v{t+1}, {hex(f2u(0.6931471805599453))}, v{t+1}
              v_fmac_f32 v{t}, v{t}, v{t+1}
              v_add_f32 v{t}, 1.0, v{t}
              v_rcp_f32 v{t+1}, v{t}
              v_mul_f32 v{t+2}, v{x}, v{t+1}
              v_fma_f32 v{t}, -v{t+2}, v{t}, v{x}
              v_fmac_f32 v{t+2}, v{t}, v{t+1}''')
        rnd(f'v{d}', f'v{t+2}')
    def ln_apply(s1, s2, x, t):
        a(f'''v_mul_f32 v{t}, v{s1}, v{s1}
              v_fma_f32 v{t+1}, v{s1}, v{s1}, -v{t}
              v_fma_f32 v{t}, v{s2}, s59, -v{t}
              v_sub_f32 v{t}, v{t}, v{t+1}
              v_mul_f32 v{t}, {hex(f2u(1/448/448))}, v{t}
              v_max_f32 v{t}, 0, v{t}''')
        rnd(f'v{t}', f'v{t}')
        a(f'v_add_f32 v{t}, {hex(f2u(1e-5))}, v{t}')
        rnd(f'v{t}', f'v{t}')
        a(f'v_sqrt_f32 v{t}, v{t}\nv_mul_f32 v{t+1}, {hex(f2u(1/448))}, v{s1}')
        rnd(f'v{t}', f'v{t}'); rnd(f'v{t+1}', f'v{t+1}')
        a(f'v_rcp_f32 v{t+2}, v{t}\nv_sub_f32 v{t+1}, v{x[1]}, v{t+1}')
        rnd(f'v{t+1}', f'v{t+1}')
        a(f'''v_mul_f32 v{t+3}, v{t+1}, v{t+2}
              v_fma_f32 v{t}, -v{t+3}, v{t}, v{t+1}
              v_fmac_f32 v{t+3}, v{t}, v{t+2}''')
        rnd(f'v{x[0]}', f'v{t+3}')
    def mma(n, acc, A, B, left=0, first=True, wait=True):
        for i in range(n):
            if wait: a(f's_waitcnt lgkmcnt({0 if (diag and only is None) else n-1-i+left})')
            a(f'v_mfma_f32_16x16x32_bf16 v[{acc}:{acc+3}], v[{A+4*i}:{A+4*i+3}], v[{B+4*i}:{B+4*i+3}], ' + ('0' if i == 0 and first else f'v[{acc}:{acc+3}]'))
    def mma2(acc, A, B, left=0, first=True, wait=True, mid=None):
        for par in range(2):
            if wait: a(f's_waitcnt lgkmcnt({0 if (diag and only is None) else 1-par+left})')
            for hi in range(2):
                d = acc + 4 * hi; b = B + 4 * (2 * hi + par)
                a(f'v_mfma_f32_16x16x32_bf16 v[{d}:{d+3}], v[{A+4*par}:{A+4*par+3}], v[{b}:{b+3}], ' + ('0' if par == 0 and first else f'v[{d}:{d+3}]'))
                if mid and par == 0 and hi == 0: a(mid)
    def sumrows(n, ldsoff, va, first=None, shadow=None):
        o = ldsoff // 256
        for u in range(n // 2): a(f'ds_read2st64_b32 v[{16+2*u}:{17+2*u}], v{va} offset0:{o+2*u} offset1:{o+2*u+1}')
        if n & 1: a(f'ds_read_b32 v22, v{va} offset:{ldsoff+256*(n-1)}\nv_mov_b32 v23, 0')
        if shadow: a(shadow)
        a('s_waitcnt lgkmcnt(0)')
        if first: a(first)
        pk('add', 16, 16, 18); pk('add', 20, 20, 22); pk('add', 16, 16, 20)
        a('v_add_f32 v16, v16, v17')

    def getside(t):
        a(f'''v_mov_b32 v{t}, 0
              ds_read_b32 v{t}, v{t} offset:{FC+12}
              s_waitcnt lgkmcnt(0)
              v_readfirstlane_b32 s48, v{t}''')
    def dzero():
        if diag:
            for i in range(1, 16): a(f's_mov_b32 s{64+2*i}, 0')
    K0, V0 = 8, 56
    a(f'{KN}:')
    if probe: a('s_mov_b32 s68, 0')
    stamp(0)
    a(f'''s_load_dwordx16 s[4:19], s[0:1], 0
          s_load_dwordx8 s[20:27], s[0:1], 64
          s_load_dwordx2 s[28:29], s[0:1], 96
          v_readfirstlane_b32 s31, v0
          s_and_b32 s32, s2, 7
          s_lshr_b32 s33, s2, 3
          s_lshr_b32 s31, s31, 6
          s_sub_u32 s33, s33, 8
          s_cbranch_scc0 L_A''')
    a(f'''s_getpc_b64 s[48:49]
          L_pc:
          v_lshlrev_b32 v2, 7, v0
          v_min_u32 v2, L_code_end-L_pc-4, v2
          global_load_dword v127, v2, s[48:49]
          s_branch L_F
          L_A:
          s_cmp_ge_u32 s31, 8
          s_cbranch_scc1 L_Td
          s_cmp_ge_u32 s33, 17
          s_cbranch_scc1 L_a_u
          L_att:''')
    role[0] = 'att'
    if tbl < 2:
        ta, tb, tc, td = ((5, 16, 17, 42), (4, 13, 15, 43))[tbl]; bias = 0
        a(f'''s_mul_i32 s50, s33, {ta}
              s_add_u32 s51, s50, 6
              s_min_u32 s50, s50, {tb}
              s_min_u32 s51, s51, {tc}
              s_mul_i32 s49, s33, {td}
              L_att2:
              s_add_u32 s50, s50, s31''')
    else:
        bias = 14 * nwo - 1
        a(f'''s_sub_u32 s50, s33, 14
              s_cselect_b32 s51, {nwo - 40}, {nmid - 40}
              s_cselect_b32 s49, {nwo}, {nmid}
              s_mul_i32 s49, s49, s50
              L_att2:
              s_add_u32 s50, s31, 1''')
    a(f'''s_min_u32 s48, s50, s51
          s_add_u32 s48, s48, s49
          s_mul_i32 s49, s31, 5
          s_add_u32 s48, s48, s49
          s_lshl_b32 s49, s32, 14
          s_add_u32 s48, s48, s49
          s_addk_i32 s48, {WINOFF // 2048 + 2 + bias}
          s_lshl_b32 s48, s48, 11
          v_and_b32 v2, 12, v0
          v_and_b32 v3, 48, v0
          v_and_b32 v4, 3, v0
          v_lshlrev_b32 v6, 7, v2
          v_lshl_add_u32 v6, v3, 2, v6
          v_lshl_add_u32 v6, v4, 4, v6
          s_waitcnt lgkmcnt(0)
          s_add_u32 s36, s6, s48
          s_addc_u32 s37, s7, 0
          s_cmp_le_u32 s50, s51
          s_cbranch_scc0 L_a_k1''')
    cnt = [0]
    win = [W, WH, WE, NE]
    def kvload(srd, va, base, t, hf, late=False):
        W, WH, WE, NE = win
        w = WH if late else WK if (WK and srd == 36) else W
        if WKH and srd == 36: WH = WKH
        if WE and srd == 40 and 2 * (5 - t) + 1 - hf < NE: a(f's_waitcnt vmcnt({WE-1})')
        elif cnt[0] >= 2 + N0:
            if WH != w: a(f's_waitcnt vmcnt({WH-1})\ns_cbranch_vccnz L_w{cnt[0]}_\ns_waitcnt vmcnt({w-1})\nL_w{cnt[0]}_:')
            else: a(f's_waitcnt vmcnt({w-1})')
        cnt[0] += 1
        r = base + 8 * t + 4 * hf
        b = srd + 2 * (t // 4)
        a(f'global_load_dwordx4 v[{r}:{r+3}], v{va}, s[{b}:{b+1}] offset:{((t & 3) - 2) * 2048 + hf * 256}{nt}')
    kvload(36, 6, K0, 0, 0); kvload(36, 6, K0, 0, 1)
    a('L_a_k1:')
    kl = [(t, hf) for t in (1, 2, 3) for hf in range(2)]
    for t, hf in kl[:N0]: kvload(36, 6, K0, t, hf)
    a('s_branch L_a_c')
    a('''L_a_u:
         s_cmp_ge_u32 s33, 24
         s_cbranch_scc1 L_end
         s_barrier''')
    if tbl == 2:
        rest = 1024 - 14 * nwo - 3 * nmid; lo = rest // 7; ex = rest - 7 * lo
        assert 40 <= lo and lo + (ex > 0) <= 48
        a(f'''s_sub_u32 s50, s33, 17
              s_mul_i32 s49, s50, {lo}
              s_min_u32 s50, s50, {ex}
              s_cselect_b32 s51, {lo - 39}, {lo - 40}
              s_add_u32 s49, s49, s50
              s_add_u32 s49, s49, {3 * nmid}
              s_branch L_att2''')
    elif tbl: a('s_mov_b32 s50, 64\ns_mov_b32 s51, 63\ns_mul_i32 s49, s33, 40\ns_branch L_att2')
    else: a('s_branch L_att')
    a(f'''L_Td:
          s_cmp_ge_u32 s33, 24
          s_cbranch_scc1 L_end
          s_sub_u32 s50, s33, {14 if tbl == 2 else 0}
          s_cmp_ge_u32 s50, 3
          s_cselect_b32 s50, 9, 0
          s_cmp_eq_u32 s31, s50
          s_cbranch_scc1 L_mod''')
    a(f'''s_cmp_ge_u32 s31, 12
          s_cbranch_scc0 L_T0
          v_mov_b32 v8, {hex(f2u(-3e38))}
          v_cmp_eq_u32 vcc, {768 + L_M // 16}, v0
          v_lshlrev_b32 v2, 4, v0
          v_mov_b32 v9, 0
          v_cndmask_b32 v8, 0, v8, vcc
          v_mov_b32 v11, 0
          v_subrev_u32 v2, {768 * 16}, v2
          v_mov_b32 v10, v8
          ds_write_b128 v2, v[8:11]
          s_waitcnt lgkmcnt(0)''')
    if lk:
        a('''s_lshl_b32 s50, s33, 4
             s_add_u32 s50, s50, s31
             s_cmp_eq_u32 s50, 12
             s_cbranch_scc0 L_T0
             v_mov_b32 v8, 1
             s_mov_b64 exec, 1
             global_atomic_add v9, v8, s[26:27] sc1
             s_mov_b64 exec, -1''')
    a(f'''L_T0:
          s_barrier
          s_branch L_T
          L_mod:''')
    role[0] = 'mod'
    def tail_setup():
        a('s_load_dword s30, s[28:29], 0\ns_sub_u32 s49, s31, 8')
        ws_srd(); perm_sel()
        a(f's_lshl_b32 s56, s49, 8\ns_add_u32 s56, s56, {L_PRIV}')
    a('v_and_b32 v0, 63, v0')
    setprio(3)
    a(f'''s_cmp_ge_u32 s33, 17
          s_cselect_b32 s50, -17, {7 if tbl == 2 else 4}
          s_add_u32 s50, s50, s33
          s_lshl_b32 s50, s50, 3
          s_add_u32 s50, s50, s32
          s_and_b32 s51, s50, 3
          s_lshr_b32 s52, s50, 2
          s_mov_b32 s38, {448*5376}
          s_mov_b32 s39, 0x20000
          s_mov_b32 s42, 896
          s_mov_b32 s43, 0x20000
          s_mul_i32 s54, s51, {112*5376}
          s_lshl_b32 s55, s52, 7
          s_add_u32 s54, s54, s55
          s_mul_i32 s53, s51, 224
          v_lshlrev_b32 v2, 2, v0
          v_lshrrev_b32 v1, 3, v0
          v_mul_u32_u24 v3, {14*5376}, v1
          v_and_b32 v4, 7, v0
          v_lshl_add_u32 v3, v4, 4, v3
          s_waitcnt lgkmcnt(0)
          s_mov_b32 s36, s22
          s_mov_b32 s37, s23
          s_mov_b32 s40, s20
          s_mov_b32 s41, s21
          buffer_load_dword v8, v2, s[40:43], s53 offen''')
    for m in range(14):
        a(f'buffer_load_dwordx4 v[{72+4*m}:{75+4*m}], v3, s[36:39], s54 offen{nt}')
        if m < 13: a('s_add_u32 s54, s54, 5376')
    def fstart():
        a(f'''L_F:
              s_add_u32 s33, s33, 8
              v_and_b32 v0, 63, v0
              s_cmp_ge_u32 s31, 7
              s_cbranch_scc1 L_F7s
              s_lshl_b32 s48, s31, 19
              s_lshl_b32 s49, s32, 10
              s_add_u32 s48, s48, s49
              s_lshl_b32 s49, s33, 7
              s_add_u32 s48, s48, s49
              v_lshrrev_b32 v3, 4, v0
              v_lshlrev_b32 v2, 16, v3
              v_and_b32 v4, 8, v0
              v_lshl_add_u32 v2, v4, 10, v2
              v_and_b32 v5, 7, v0
              v_lshl_add_u32 v2, v5, 4, v2
              v_lshl_add_u32 v5, v5, 4, v4
              v_lshl_add_u32 v6, v3, 1, v5
              s_lshl_b32 s50, s31, 7
              v_add_u32 v101, s50, v6
              v_lshlrev_b32 v7, 4, v0
              s_mov_b32 s38, {448*8192}
              s_mov_b32 s39, 0x20000
              s_mov_b32 s42, 896
              s_mov_b32 s43, 0x20000
              s_waitcnt lgkmcnt(0)
              s_mov_b32 s36, s10
              s_mov_b32 s37, s11
              s_mov_b32 s40, s4
              s_mov_b32 s41, s5
              buffer_load_dwordx4 v[96:99], v7, s[40:43], 0 offen
              buffer_load_ushort v100, v101, s[40:43], 0 offen''')
        for u in range(2):
            for t in range(4):
                a(f'buffer_load_dwordx4 v[{32+16*u+4*t}:{35+16*u+4*t}], v2, s[36:39], s48 offen{nt}')
                if not (u == 1 and t == 3): a(f's_add_u32 s48, s48, {2*8192 if t < 3 else 26*8192}')
            if u == 0: a('s_barrier')
    a('s_barrier')
    if paged:
        a('s_branch L_mod2')
        fstart()
        a(f'''s_branch L_F2
              L_F7s:
              s_cmp_ge_u32 s31, 9
              s_cbranch_scc1 L_F9
              v_mov_b32 v2, 0
              v_lshlrev_b32 v3, 2, v0
              ds_write_b32 v3, v2 offset:{FC & ~255}
              s_waitcnt lgkmcnt(0)
              s_barrier
              s_branch L_F7
              L_F9:
              s_endpgm
              L_mod2:''')
    dzero(); stamp(1)
    tail_setup()
    a(f'''v_mul_u32_u24 v3, 37, v0
          v_lshrrev_b32 v3, 8, v3
          v_add_u32 v3, v3, v0
          v_lshl_add_u32 v3, v3, 2, s56
          v_lshl_add_u32 v1, v1, 5, s56
          v_and_b32 v9, 1, v0
          v_lshlrev_b32 v9, 4, v9
          v_mov_b32 v10, 0xffff
          v_lshlrev_b32 v9, v9, v10
          v_bfe_u32 v10, v0, 1, 2''')
    for rho in range(4):
        a(f'v_cmp_eq_u32 vcc, {rho}, v10')
        a(f'v_cndmask_b32 v{4+rho}, 0, v9, vcc')
    a('''s_mov_b32 s52, 0x01000100
         s_mov_b32 s53, 0x03020302
         s_waitcnt vmcnt(14)
         v_lshlrev_b32 v9, 16, v8
         v_and_b32 v10, 0xffff0000, v8''')
    silu_fine(9, 9, 12); silu_fine(10, 10, 12)
    a(f'''v_perm_b32 v9, v10, v9, s61
          s_mov_b32 exec_hi, 0xffffff
          ds_write_b32 v3, v9
          s_mov_b32 exec_hi, -1
          ds_read_b128 v[8:11], v1
          ds_read_b96 v[12:14], v1 offset:16
          s_lshr_b32 s51, s50, 5
          s_lshl_b32 s51, s51, 13
          s_lshl_b32 s50, s50, 8
          s_add_u32 s50, s50, s51
          s_add_u32 s50, s50, {X1}
          s_add_u32 s51, s50, {SIDE}
          v_lshrrev_b32 v2, 4, v0
          v_and_b32 v3, 7, v0
          v_lshlrev_b32 v3, 4, v3
          v_lshl_add_u32 v2, v2, 7, v3
          s_waitcnt lgkmcnt(0)''')
    tags()
    for m in range(14):
        a(f'v_perm_b32 v15, v{8+(m>>1)}, v{8+(m>>1)}, s{52+(m&1)}')
        for rho in range(4): a(f'v_and_b32 v{16+4*m+rho}, v15, v{4+rho}')
    a('v_and_b32_e64 v4, s34, 3\nv_and_b32_e64 v5, s35, 3')
    for m in range(14):
        a(f's_waitcnt vmcnt({13-m})')
        a(f'v_mfma_f32_16x16x32_bf16 v[8:11], v[{16+4*m}:{19+4*m}], v[{72+4*m}:{75+4*m}], ' + ('0' if m == 0 else 'v[8:11]'))
    a('''v_pk_mov_b32 v[12:13], v[8:9], v[8:9] op_sel:[0,1]
         v_pk_mov_b32 v[14:15], v[10:11], v[10:11] op_sel:[0,1]''')
    for i in range(4): a(f'v_permlane32_swap_b32 v{8+i}, v{12+i}')
    for i in range(4): a(f'v_add_f32_dpp v{8+i}, v{12+i}, v{8+i} row_ror:8 {DPPF}')
    a('s_mov_b64 exec, 0xff00ff')
    for i in range(4): a(f'v_add_u32 v{8+i}, 2, v{8+i}')
    for i in range(4): a(f'v_and_or_b32 v{8+i}, v{8+i}, -4, v{4+(i&1)}')
    a('buffer_store_dwordx4 v[8:11], v2, s[44:47], s50 offen sc1\nbuffer_store_dwordx4 v[8:11], v2, s[44:47], s51 offen sc1\ns_mov_b64 exec, -1')
    stamp(2)
    setprio(0)
    a('s_cmp_lt_u32 s33, 14\ns_cbranch_scc1 L_t_go2')
    fin()
    role[0] = 'att'
    a('L_a_c:')
    def setup_att():
        dzero(); stamp(1)
        if lk: a('s_load_dword s56, s[26:27], 0')
        a(f'''s_load_dword s30, s[28:29], 0
              s_cmp_le_u32 s50, s51
              s_cselect_b32 s51, 1, 0
              s_add_u32 s38, s36, 8192
              s_addc_u32 s39, s37, 0
              s_add_u32 s40, s8, s48
              s_addc_u32 s41, s9, 0
              s_add_u32 s42, s40, 8192
              s_addc_u32 s43, s41, 0
              s_cmp_ge_u32 s33, 17
              s_cbranch_scc1 L_a_nb2
              s_barrier
              L_a_nb2:
              v_and_b32 v0, 63, v0
              v_and_b32 v5, 15, v0
              v_lshlrev_b32 v7, 5, v3
              v_lshl_add_u32 v7, v5, 4, v7
              v_bfe_u32 v2, v0, 3, 1
              v_lshlrev_b32 v1, 10, v2
              v_lshl_add_u32 v1, v3, 3, v1
              v_lshl_add_u32 v1, v4, 5, v1
              v_and_b32 v104, 1, v0
              v_lshlrev_b32 v104, 4, v104
              v_mov_b32 v105, 0xffff
              v_lshlrev_b32 v104, v104, v105
              v_bfe_u32 v105, v0, 1, 2''')
        for rho in range(4):
            a(f'v_cmp_eq_u32 vcc, {rho}, v105')
            a(f'v_cndmask_b32 v{2+rho}, 0, v104, vcc')
        ws_srd(); perm_sel()
        a(f'''s_mov_b32 s58, {hex(f2u(0.0625 * LOG2E))}
              s_bfe_u32 s57, s31, 0x10001
              s_lshl_b32 s49, s32, 1
              s_add_u32 s54, s57, s49
              s_mul_i32 s54, s54, 24
              s_add_u32 s54, s54, s33
              s_lshl_b32 s54, s54, 10
              s_lshr_b32 s49, s31, 2
              s_lshl_b32 s49, s49, 9
              s_add_u32 s54, s54, s49
              s_and_b32 s49, s31, 1
              s_lshl_b32 s49, s49, 8
              s_add_u32 s54, s54, s49
              s_add_u32 s55, s54, {X3F}
              s_add_u32 s54, s54, {X3}
              s_mul_i32 s59, s32, 24
              s_add_u32 s59, s59, s33
              s_lshl_b32 s59, s59, 7
              s_add_u32 s59, s59, {HINT}
              v_lshlrev_b32 v104, 2, v0
              s_mov_b32 s48, s51
              s_mov_b32 s49, 0
              s_mov_b64 vcc, s[48:49]''')
    setup_att()
    vl = [(t, hf) for t in range(1, 6) for hf in range(2)]
    late = vl[10 - NL:]
    assert 2 * (6 - touchpos) >= NL and NL <= 4 and hintpos == 7 and WE and NE >= NL and (not lk or LW[2] == WE)
    for t, hf in kl[N0:]: kvload(36, 6, K0, t, hf)
    a('s_waitcnt lgkmcnt(0)')
    tags()
    hop('a')
    def paced(x):
        for t in range(4, 6): kvload(36, 6, K0, t, 0); kvload(36, 6, K0, t, 1)
        stamp(2)
        a(f's_cmp_eq_u32 s51, 0\ns_cbranch_scc0 L_a_v0{x}')
        for i in range(4): a(f'v_mov_b32 v{K0+i}, {hex(f2u(-1e30))}')
        a(f's_branch L_a_v1{x}\nL_a_v0{x}:')
        kvload(40, 7, V0, 0, 0); kvload(40, 7, V0, 0, 1)
        a(f'L_a_v1{x}:')
        for t in range(1, 6):
            if t == touchpos:
                a('buffer_load_dword v6, v104, s[44:47], s55 offen sc1')
            for hf in range(2):
                if (t, hf) not in late: kvload(40, 7, V0, t, hf)
    if lk:
        if diag: a('s_add_u32 s82, s56, 1')
        a(f's_cmp_ge_u32 s56, {lk}\ns_cbranch_scc1 L_a_pl')
        def pl():
            keep = list(win); win[:] = LW
            a('L_a_pl:'); paced('l'); a('s_branch L_a_pd')
            win[:] = keep
        rare.append(pl)
    paced('')
    a('L_a_pd:')
    def count(off): a(f's_mov_b64 exec, 1\nds_inc_u32 v0, v2 offset:{off}\ns_mov_b64 exec, -1')
    def lateload(k):
        i = k - (4 - NL)
        if i < 0: return
        if adapt: a(f's_cmp_gt_u32 s63, {i}\ns_cbranch_scc1 L_a_l{i}')
        kvload(40, 7, V0, *late[i], late=True)
        if i == NL - 1: vdone('a')
        if adapt: a(f'L_a_l{i}:')
    def vdone(sfx):
        stamp(3); count(L_C)
        if hintpos == 7 and hintk:
            a(f'''s_cmp_eq_u32 s31, 0
                  s_cbranch_scc0 L_a_nh{sfx}
                  v_mov_b32 v114, s3
                  s_mov_b64 exec, 1
                  buffer_store_dword v114, v0, s[44:47], s59 offen
                  s_mov_b64 exec, -1
                  L_a_nh{sfx}:''')
    if not NL: vdone('a')
    a('s_mov_b32 s62, 0\ns_mov_b32 s63, 0')
    stamp(8)
    if paged: a('s_branch L_a_q0\n.p2align 12\nL_a_q0:')
    align('Q')
    setprio(2)
    a(f'''L_a_q:
          ds_read_b128 v[104:107], v1 offset:{L_Q}
          ds_read_b128 v[108:111], v1 offset:{L_Q+16}
          ds_read_b128 v[112:115], v1 offset:{L_Q+512}
          ds_read_b128 v[116:119], v1 offset:{L_Q+528}
          s_waitcnt lgkmcnt(0)
          v_bitop3_b32 v120, v104, v108, s3 bitop3:0x7e
          v_bitop3_b32 v121, v112, v116, s3 bitop3:0x7e
          v_or_b32 v121, v120, v121
          v_cmp_ne_u32_sdwa vcc, v121, 0 src0_sel:WORD_0 src1_sel:DWORD''')
    for i in range(8): a(f'v_perm_b32 v{120+i}, v{105+2*i}, v{104+2*i}, s61')
    a('s_cbranch_vccnz L_a_qr\nL_a_qok:')
    def qrare():
        a('L_a_qr:')
        if adapt:
            for i in range(NL):
                a(f's_cmp_eq_u32 s63, {i}\ns_cbranch_scc0 L_a_qr{i}')
                keep = win[2]; win[2] = WR or keep
                kvload(40, 7, V0, *late[i], late=True)
                win[2] = keep
                if i == NL - 1: vdone('b')
                a(f's_mov_b32 s63, {i+1}\ns_branch L_a_q\nL_a_qr{i}:')
        a(f'''s_sleep 1
              s_add_u32 s62, s62, {STEP}
              s_cbranch_scc0 L_a_q
              s_branch L_a_qok''')
    rare.append(qrare)
    stamp(4)
    def qk(t, hf):
        k = K0 + 8 * t; tmp = 104 + 4 * (t & 3)
        if hf == 0: a(f'v_mfma_f32_16x16x32_bf16 v[{tmp}:{tmp+3}], v[{k}:{k+3}], v[120:123], 0')
        else: a(f'v_mfma_f32_16x16x32_bf16 v[{k}:{k+3}], v[{k+4}:{k+7}], v[124:127], v[{tmp}:{tmp+3}]')
    def step(t, i):
        if t < 0 or t > 5: return
        k = K0 + 8 * t
        if i == 0: a(f'v_mov_b32_dpp v{k+4}, v{k} quad_perm:[0,0,0,0] {DPPF}')
        else: a(f'v_add_f32_dpp v{k+4}, v{k+i}, v{k+4} quad_perm:[{i},{i},{i},{i}] {DPPF}')
    lateload(0)
    if WE: a(f's_waitcnt vmcnt({11 - NL})')
    a('s_cmp_eq_u32 s51, 0\ns_cbranch_scc1 L_a_qk1')
    qk(0, 0); qk(0, 1)
    a('L_a_qk1:')
    fl = ['v_mov_b32 v1, 0', 's_mov_b32 s62, 0', 's_lshl_b32 s48, s57, 3', 's_lshl_b32 s49, s31, 2']
    for t in range(1, 6):
        qk(t, 0); step(t - 3, 0); step(t - 4, 2)
        if t < 3: a(fl.pop(0))
        qk(t, 1); step(t - 3, 1); step(t - 4, 3)
        if t < 3: a(fl.pop(0))
        if t == 3: lateload(1)
    lateload(2)
    step(2, 2); step(3, 0); step(4, 0); step(2, 3); step(3, 1); step(4, 1)
    S = [K0 + 8 * t + 4 for t in range(6)]
    rnd(f'v{S[0]}', f'v{S[0]}')
    if WE: a(f's_waitcnt vmcnt({2 * (6 - touchpos) - 1})')
    a('v_and_b32 v6, 8, v0')
    step(5, 0); step(3, 2); step(4, 2); step(5, 1); step(3, 3); step(4, 3); step(5, 2)
    rnd(f'v{S[1]}', f'v{S[1]}'); rnd(f'v{S[2]}', f'v{S[2]}')
    step(5, 3)
    rnd(f'v{S[3]}', f'v{S[3]}'); rnd(f'v{S[4]}', f'v{S[4]}')
    a(f'v_max3_f32 v112, v{S[0]}, v{S[1]}, v{S[2]}')
    rnd(f'v{S[5]}', f'v{S[5]}')
    a(f'''v_max3_f32 v112, v112, v{S[3]}, v{S[4]}
          s_mov_b32 exec_lo, 0x01010101
          s_mov_b32 exec_hi, 0x01010101
          v_max_f32 v112, v112, v{S[5]}
          ds_max_f32 v6, v112 offset:{L_M}
          s_mov_b64 exec, 1
          ds_inc_u32 v0, v2 offset:{L_C+4}
          s_mov_b64 exec, -1
          v_mov_b32 v117, s48''')
    lateload(3)
    a(f'''L_a_s1:
          ds_read_b32 v113, v1 offset:{L_C+4}
          ds_read_b32 v112, v6 offset:{L_M}
          ds_read_b32 v116, v117 offset:{L_M}
          s_waitcnt lgkmcnt(0)
          v_cmp_ne_u32 vcc, 8, v113
          v_mul_f32 v112, s58, v112''')
    order = [1, 0, 2, 3, 4, 5]
    for t in order: a(f'v_fma_f32 v{S[t]+2}, v{S[t]}, s58, -v112')
    a('s_cbranch_vccnz L_a_s1r\nL_a_s1ok:')
    rare.append(lambda: a(f'L_a_s1r:\ns_add_u32 s62, s62, {STEP}\ns_cbranch_scc0 L_a_s1\ns_branch L_a_s1ok'))
    stamp(5)
    for t in order: a(f'v_exp_f32 v{S[t]}, v{S[t]+2}')
    def abuild(t):
        k = K0 + 8 * t
        a(f'v_cvt_pk_bf16_f32 v{k+5}, v{k+4}, v{k+4}')
        for rho in range(4): a(f'v_and_b32 v{k+rho}, v{k+5}, v{2+rho}')
    def pv(t, hf, first=False):
        k = K0 + 8 * t; v = V0 + 8 * t + 4 * hf; acc = 104 + 4 * hf
        n = 2 * (5 - t) + 1 - hf
        if n < max(W, WH, WE or 0): a(f's_waitcnt vmcnt({n})')
        a(f'v_mfma_f32_16x16x32_bf16 v[{acc}:{acc+3}], v[{k}:{k+3}], v[{v}:{v+3}], ' + ('0' if first else f'v[{acc}:{acc+3}]'))
    abuild(1)
    a(f'v_add_f32 v113, v{S[0]}, v{S[1]}\nv_add_f32 v114, v{S[2]}, v{S[3]}')
    pv(1, 0, True); abuild(2); pv(1, 1, True)
    a('s_cmp_eq_u32 s51, 0\ns_cbranch_scc1 L_a_pv2')
    abuild(0); pv(0, 0); pv(0, 1)
    a('L_a_pv2:')
    def lsum():
        a(f'''v_add_f32 v115, v{S[4]}, v{S[5]}
              v_add_f32 v113, v113, v114
              v_lshl_add_u32 v6, v6, 2, s49
              v_add_f32 v113, v113, v115''')
        allred_rows('v_add_f32', 113, 114)
        a(f'''s_mov_b64 exec, 0x101
              ds_write_b32 v6, v113 offset:{L_L}
              s_mov_b64 exec, -1''')
    def cst():
        a(f'''s_lshl_b32 s48, s31, 11
              v_lshl_add_u32 v6, v0, 4, s48
              v_bfe_u32 v119, v0, 2, 1
              v_mul_u32_u24 v119, 0x5a, v119
              v_and_b32 v120, 3, v0
              v_cmp_eq_u32 vcc, 1, v120
              v_bitop3_b32 v119, v119, v116, s34 bitop3:0xde
              v_bfe_u32 v118, v0, 2, 2
              v_cndmask_b32 v120, v120, v118, vcc
              v_cndmask_b32_e64 v119, v119, 0, vcc
              v_cndmask_b32_e64 v118, 0, -1, vcc
              v_or_b32 v120, 0x07060500, v120
              s_lshl_b32 s49, s31, 8
              s_add_u32 s49, s49, {L_O}
              v_lshlrev_b32 v121, 2, v0
              v_add_u32 v122, s49, v121
              v_lshlrev_b32 v117, 2, v117
              s_mov_b32 s62, 0''')
    if pvf:
        abuild(3); pv(2, 0); abuild(4); abuild(5); lsum(); cst()
        a('s_and_b32 s48, s31, 5')
        pv(2, 1)
        for t in range(3, 6): pv(t, 0); pv(t, 1)
    else:
        for t in range(2, 6):
            pv(t, 0)
            if t < 5: abuild(t + 1)
            pv(t, 1)
            if t == 2: lsum()
            if t == 3: cst()
    a(f'''ds_write_b128 v6, v[104:107] offset:{L_O}
          ds_write_b128 v6, v[108:111] offset:{L_O+1024}''')
    stamp(6)
    if nw2: a(f's_mov_b64 exec, 1\nds_inc_u32 v0, v2 offset:{L_C+8}\ns_barrier\ns_mov_b64 exec, -1\nL_a_s2:\nds_read_b32 v24, v1 offset:{L_C+8}')
    else: a('s_waitcnt lgkmcnt(0)\ns_barrier')
    if pvf:
        for u in range(4): a(f'ds_read2st64_b32 v[{8+2*u}:{9+2*u}], v122 offset0:{16*u} offset1:{16*u+8}')
        a(f'''s_cbranch_scc1 L_a_nl
              ds_read_b128 v[16:19], v117 offset:{L_L}
              ds_read_b128 v[20:23], v117 offset:{L_L+16}
              s_waitcnt lgkmcnt(0)''')
        pk('add', 16, 16, 18); pk('add', 20, 20, 22); pk('add', 16, 16, 20)
        a('v_add_f32 v16, v16, v17\nv_bfi_b32 v119, v118, v16, v119\nL_a_nl:\ns_waitcnt lgkmcnt(0)')
        if nw2: a('v_cmp_ne_u32 vcc, 8, v24')
    else:
        a(f'''ds_read_b128 v[16:19], v117 offset:{L_L}
              ds_read_b128 v[20:23], v117 offset:{L_L+16}''')
        for u in range(4): a(f'ds_read2st64_b32 v[{8+2*u}:{9+2*u}], v122 offset0:{16*u} offset1:{16*u+8}')
        pad('a', True)
        a('s_waitcnt lgkmcnt(4)')
        pk('add', 16, 16, 18); pk('add', 20, 20, 22); pk('add', 16, 16, 20)
        a('v_add_f32 v16, v16, v17\nv_and_or_b32 v119, v16, v118, v119\ns_waitcnt lgkmcnt(0)')
    pk('add', 8, 8, 10); pk('add', 12, 12, 14); pk('add', 8, 8, 12)
    a('''v_add_f32 v8, v8, v9
         v_perm_b32 v8, v8, v119, v120''')
    if nw2:
        a('s_cbranch_vccnz L_a_s2r\nL_a_s2ok:')
        rare.append(lambda: a(f'L_a_s2r:\ns_add_u32 s62, s62, {STEP}\ns_cbranch_scc1 L_a_s2ok\ns_and_b32 s48, s31, 5\ns_branch L_a_s2'))
    a('''buffer_store_dword v8, v121, s[44:47], s55 offen
         s_barrier''')
    stamp(7)
    setprio(0)
    if wopf2:
        a('s_cmp_lt_u32 s33, 14\ns_cbranch_scc0 L_a_p\ns_barrier\ns_sleep 3\nL_a_x:')
        def wp():
            a(f'''L_a_p:
                  s_lshl_b32 s48, s33, 3
                  s_add_u32 s48, s48, s31
                  s_sub_u32 s48, s48, 112
                  s_mul_i32 s49, s32, {512*896}''')
            for k in range(wopf2):
                if k: a('s_add_u32 s48, s48, 28')
                a(f'''s_cmp_ge_u32 s48, 56
                      s_cselect_b32 s50, 56, 0
                      s_sub_u32 s48, s48, s50
                      s_lshl_b32 s50, s48, 13
                      s_add_u32 s50, s50, s49
                      v_lshl_add_u32 v10, v0, 7, s50
                      global_load_dword v11, v10, s[12:13]''')
            a('s_branch L_a_x')
        rare.append(wp)
    elif bsn < 0:
        a('; the write-through copy is only needed under another placement: keep it out of the way of the wo stage / the prefetch (barrier) and of X4')
        a(f's_barrier\ns_sleep {bsl}\nL_a_x:')
    elif bsn: a(f's_cmp_lt_u32 s33, 14\ns_cbranch_scc1 L_a_y\ns_sleep {bsn}\ns_branch L_a_x\nL_a_y:\ns_barrier\ns_sleep {bsl}\nL_a_x:')
    else: a(f's_cmp_lt_u32 s33, 14\ns_cbranch_scc0 L_a_x\ns_barrier\ns_sleep {bsl}\nL_a_x:')
    if not nob: a('buffer_store_dword v8, v121, s[44:47], s54 offen sc1')
    if dirty:
        a(f's_add_u32 s28, s28, s55\ns_addc_u32 s29, s29, 0')
        for k in range(dirty): a(f's_add_u32 s28, s28, 0x100000\ns_addc_u32 s29, s29, 0\nglobal_store_dword v121, v8, s[28:29]')
    fin()
    for r in rare: r()
    rare.clear()

    role[0] = 'wo'
    a('L_T:\nv_and_b32 v0, 63, v0')
    if pf3:
        a(f'''s_cmp_eq_u32 s31, 13
              s_cbranch_scc0 L_T1
              s_mul_i32 s50, s33, 19
              s_lshl_b32 s51, s32, 10
              v_add_u32 v2, s50, v0
              v_min_u32 v2, 447, v2
              v_lshl_add_u32 v2, v2, 13, s51
              s_mov_b64 exec, 0x7ffff
              global_load_dword v127, v2, s[10:11] offset:384
              s_mov_b64 exec, -1
              L_T1:''')
    a('''s_cmp_lt_u32 s33, 14
         s_cbranch_scc1 L_t_go
         s_cmp_eq_u32 s31, 8
         s_cbranch_scc1 L_t_go''')
    def pfcode():
        a('L_pf:')
        if fpf:
            a(f'''s_cmp_lt_u32 s31, 10
                  s_cbranch_scc1 L_end
                  s_mul_i32 s50, s33, 6
                  s_add_u32 s50, s50, s31
                  s_sub_u32 s50, s50, 94
                  s_cmp_lt_u32 s50, 56
                  s_cbranch_scc0 L_end''')
            if fpf:
                a(f'''s_cmp_lt_u32 s32, 4
                      s_cselect_b32 s52, 6, 8
                      s_cselect_b32 s53, 0, 8
                      s_cselect_b32 s56, 0x77777777, -1
                      s_cselect_b32 s58, 21, 28
                      s_mul_i32 s52, s52, s32
                      s_sub_u32 s52, s52, s53
                      s_lshr_b32 s51, s50, 1
                      s_waitcnt lgkmcnt(0)
                      s_bitcmp1_b32 s50, 0
                      s_cbranch_scc1 L_pf_2
                      s_mul_i32 s54, s51, {16*3584}
                      s_lshl_b32 s52, s52, 6
                      s_add_u32 s54, s54, s52
                      v_lshrrev_b32 v4, 2, v0
                      v_mul_u32_u24 v4, 3584, v4
                      v_and_b32 v5, 3, v0
                      v_lshl_add_u32 v4, v5, 7, v4
                      v_add_u32 v4, s54, v4
                      s_branch L_pf_3
                      L_pf_2:
                      s_mul_i32 s52, s52, {32*896}
                      s_lshl_b32 s54, s51, 13
                      s_add_u32 s54, s54, s52
                      v_lshl_add_u32 v4, v0, 7, s54
                      s_mov_b64 s[16:17], s[18:19]
                      s_cmp_lt_u32 s51, s58
                      s_cselect_b32 s56, -1, 0
                      L_pf_3:
                      s_mov_b32 s57, s56''')
            if wopf:
                a(f'''s_lshl_b32 s52, s50, 13
                      s_mul_i32 s51, s32, {512*896}
                      s_add_u32 s52, s52, s51
                      v_lshl_add_u32 v2, v0, 7, s52''')
                ldswait('L_pf_g', L_C, wopf, 4)
                if wolanes < 64: a(f's_mov_b32 exec_hi, {(1 << (wolanes - 32)) - 1}')
                a('global_load_dword v3, v2, s[12:13]')
            a('s_barrier\ns_barrier')
            if fpf: a('s_mov_b64 exec, s[56:57]\ns_cbranch_execz L_end\nglobal_load_dword v6, v4, s[16:17]' + pfnt)
        a('s_endpgm')
    a('''s_branch L_pf
         L_t_go:
         s_waitcnt lgkmcnt(0)''')
    dzero()
    a('L_t_go2:')
    tail_setup()
    a(f'''s_cmp_ge_u32 s33, 7
          s_cselect_b32 s50, 1, 0
          s_cselect_b32 s51, 7, 0
          s_sub_u32 s51, s33, s51
          s_lshl_b32 s52, s32, 1
          s_add_u32 s50, s50, s52
          s_lshl_b32 s52, s50, 8
          s_lshr_b32 s53, s49, 2
          s_lshl_b32 s53, s53, 7
          s_add_u32 s52, s52, s53
          s_and_b32 s53, s49, 1
          s_lshl_b32 s53, s53, 6
          s_add_u32 s52, s52, s53
          s_and_b32 s53, s49, 2
          s_lshl_b32 s53, s53, 1
          s_add_u32 s52, s52, s53
          s_mul_i32 s52, s52, 896
          s_lshl_b32 s53, s51, 7
          s_add_u32 s52, s52, s53
          s_add_u32 s53, s52, {8*896}
          s_mov_b32 s36, s12
          s_mov_b32 s37, s13
          s_mov_b32 s38, {4096*896}
          s_mov_b32 s39, 0x20000
          s_mul_i32 s40, s50, {24*1024}
          s_lshl_b32 s41, s49, 7
          s_add_u32 s40, s40, s41
          s_add_u32 s40, s40, {X3F}
          s_add_u32 s41, s40, 8192
          s_add_u32 s42, s40, 16384
          s_lshr_b32 s54, s50, 2
          s_lshl_b32 s54, s54, 13
          s_lshl_b32 s55, s50, 11
          s_add_u32 s54, s54, s55
          s_lshl_b32 s55, s51, 8
          s_add_u32 s54, s54, s55
          s_add_u32 s54, s54, {X4}
          s_add_u32 s55, s54, {SIDE}
          s_mov_b32 s43, 0
          s_mov_b32 s57, 0x04000c0c
          s_mov_b32 s58, {hex(f2u(0.0625 * LOG2E))}
          s_lshl_b32 s59, s49, 8
          s_add_u32 s59, s59, {L_P}
          v_lshrrev_b32 v12, 3, v0
          v_and_b32 v13, 7, v0
          v_lshlrev_b32 v3, 10, v12
          v_lshl_add_u32 v3, v13, 4, v3
          v_lshrrev_b32 v5, 4, v0
          v_lshl_add_u32 v5, v13, 2, v5
          v_lshl_add_u32 v5, v5, 1, s56
          v_lshl_add_u32 v6, v0, 4, s59
          v_lshlrev_b32 v4, 2, v0''')
    voff4(1, 16 * 896, 896, 12)
    def wold():
        stamp(3)
        for u in range(4):
            a(f'buffer_load_dwordx4 v[{80+4*u}:{83+4*u}], v1, s[36:39], s{52+(u>>1)} offen offset:{(u&1)*2*896}{wont}')
    maskaddr(8, 2, 's56', L_Z + 64, 12)
    a('s_waitcnt lgkmcnt(0)')
    tags()
    lanetag(7, 0); rowtag(98, 99)
    a('''v_and_b32 v10, 3, v0
         v_lshlrev_b32 v10, 3, v10
         v_lshlrev_b32_e64 v10, v10, 12
         v_xor_b32 v10, 0x0c0c0c0c, v10''')
    a(f'''s_cmp_eq_u32 s49, 0
          s_cbranch_scc0 L_wo
          v_lshlrev_b32 v2, 4, v0
          s_lshl_b32 s4, s32, 11
          s_add_u32 s4, s4, {X2F}
          s_mov_b32 m0, {L_Q}
          s_mov_b32 s62, 0
          s_setprio {pprio}
          L_p_loop:
          buffer_load_dwordx4 v2, s[44:47], s4 offen sc1 lds
          buffer_load_dwordx4 v2, s[44:47], s4 offen offset:1024 sc1 lds
          s_sleep {sleep}
          s_cmp_eq_u32 s62, {(1 << fastbits) * STEP}
          s_cselect_b32 s5, {X2F - X2}, 0
          s_sub_u32 s4, s4, s5
          ds_read2st64_b32 v[12:13], v2 offset0:{L_Q // 256} offset1:{L_Q // 256 + 4}
          s_waitcnt vmcnt(32) lgkmcnt(0)
          v_bitop3_b32 v12, v12, v13, s3 bitop3:0x7e
          v_cmp_ne_u32_sdwa vcc, v12, 0 src0_sel:WORD_0 src1_sel:DWORD''')
    spin('L_p_loop', 'L_p_ok')
    a('s_setprio 0')
    stamp(2)
    a('s_cmp_lt_u32 s33, 14\ns_cbranch_scc0 L_fin\nL_wo:')
    hop('w')
    if not wolate:
        ldswait('L_wo_g', L_C, gaten, 2)
        if gsl: a(f's_sleep {gsl}')
        wold()
    else: a('v_mov_b32 v100, 0')
    setprio(3)
    a('s_barrier\ns_barrier')
    if wolate: wold()
    stamp(4)
    x3l = [f'buffer_load_dwordx4 v[{32+4*s}:{35+4*s}], v3, s[44:47], s{40+s} offen sc1' for s in range(3)]
    for l in x3l: a(l)
    if peel:
        a('s_waitcnt vmcnt(0)')
        for i in range(3): a(f'v_cmp_ne_u32_sdwa s[{4+2*i}:{5+2*i}], v{32+4*i}, v7 src0_sel:BYTE_0 src1_sel:DWORD')
        for i in range(3): a(f's_wqm_b64 exec, s[{4+2*i}:{5+2*i}]\n{x3l[i]}')
        a('s_mov_b64 exec, -1')
    else: a('s_waitcnt vmcnt(3)')
    fix4(80, 48); perms64(80, 16)
    stamp(5)
    gather('L_x3', x3l, 32, 4, 7, issued=True, nfast=2 << fastbits, warm=(fX3, 62),
           spec='\n'.join(f'v_perm_b32 v{48+2*s}, v{35+4*s}, v{34+4*s}, s57' for s in range(3)),
           switch='\n'.join(f's_sub_u32 s{40+s}, s{40+s}, {X3F - X3}' for s in range(3)) + '\ns_barrier\ns_mov_b32 s43, 1')
    stamp(6)
    a(f'''v_max3_f32 v54, v48, v50, v52
          v_xor_b32 v32, v32, v7
          v_xor_b32 v36, v36, v7
          v_max_f32_dpp v54, v54, v54 row_ror:8 {DPPF}
          v_mov_b32 v55, v54
          v_xor_b32 v40, v40, v7''')
    pad('w')
    a(f'''v_permlane32_swap_b32 v54, v55
          v_max_f32 v54, v54, v55
          v_mov_b32 v55, v54
          v_permlane16_swap_b32 v54, v55
          v_max_f32 v54, v54, v55''')
    a('v_mul_f32 v54, s58, v54')
    for s in range(3): a(f'v_fma_f32 v{56+2*s}, v{48+2*s}, s58, -v54')
    for s in range(3): a(f'v_exp_f32 v{56+2*s}, v{56+2*s}')
    xs('w_exp')
    a(f'''v_pk_mul_f32 v[44:45], v[32:33], v[56:57] op_sel_hi:[1,0]
          v_pk_mul_f32 v[46:47], v[34:35], v[56:57] op_sel_hi:[1,0]
          v_pk_fma_f32 v[44:45], v[36:37], v[58:59], v[44:45] op_sel_hi:[1,0,1]
          v_pk_fma_f32 v[46:47], v[38:39], v[58:59], v[46:47] op_sel_hi:[1,0,1]
          v_pk_fma_f32 v[44:45], v[40:41], v[60:61], v[44:45] op_sel_hi:[1,0,1]
          v_pk_fma_f32 v[46:47], v[42:43], v[60:61], v[46:47] op_sel_hi:[1,0,1]''')
    rscatter(44)
    a(f's_cmp_eq_u32 s49, 0\nv_add_f32_dpp v44, v44, v44 row_ror:8 {DPPF}')
    rnd('v44', 'v44')
    xs('w_o')
    a('ds_write_b16_d16_hi v5, v44')
    for tau in range(2): a(f'ds_read_b128 v[{64+4*tau}:{67+4*tau}], v{8+tau}')
    def wo_out(x):
        a(f'''s_mov_b64 exec, 0xffff
              ds_write_b128 v6, v[74:77]
              s_mov_b64 exec, 1
              ds_inc_u32 v0, v98 offset:{L_C+16}''')
        if x:
            a('s_mov_b64 exec, -1')
            allred_rows('v_add_f32', 54, 55)
            a('v_rcp_f32 v52, v54')
        xs('w_pre')
        a(f's_cbranch_scc0 L_wo_nb{x}\ns_barrier\nL_wo_nb{x}:')
        xs('w_bar')
    a('s_cbranch_scc1 L_wo_0\ns_cmp_eq_u32 s43, 0')
    mma2(72, 64, 16)
    xs('w_mm')
    wo_out('')
    fin()
    a('L_wo_0:')
    for s in range(3): a(f'v_perm_b32 v{48+s}, v{33+4*s}, v{33+4*s}, v10')
    for s in range(3): a(f'v_or_b32_dpp v{48+s}, v{48+s}, v{48+s} quad_perm:[1,0,3,2] {DPPF}')
    a('s_cmp_eq_u32 s43, 0')
    mma2(72, 64, 16, mid='\n'.join(f'v_or_b32_dpp v{48+s}, v{48+s}, v{48+s} quad_perm:[2,3,0,1] {DPPF}' for s in range(3)))
    xs('w_mm')
    a(f'''v_mul_f32 v54, v56, v48
          v_fmac_f32 v54, v58, v49
          v_fmac_f32 v54, v60, v50
          s_mov_b32 s62, 0
          v_add_f32_dpp v54, v54, v54 row_ror:8 {DPPF}''')
    wo_out('0')
    a(f'L_wo_s:\nds_read_b32 v24, v100 offset:{L_C+16}')
    sumrows(8, L_P, 4, None, f's_waitcnt lgkmcnt({0 if (diag and only is None) else 4})\nv_cmp_ne_u32 vcc, 8, v24')
    rare.append(lambda: a(f'L_wo_sr:\ns_add_u32 s62, s62, {STEP}\ns_cbranch_scc0 L_wo_s\ns_branch L_wo_sok'))
    a('v_mul_f32 v16, v52, v16')
    a(f'''v_and_or_b32 v16, v16, v98, v99
          s_cbranch_vccnz L_wo_sr
          L_wo_sok:
          buffer_store_dword v16, v4, s[44:47], s54 offen sc1
          buffer_store_dword v16, v4, s[44:47], s55 offen sc1''')
    stamp(7)
    a('L_fin:')
    fin()
    for r in rare: r()
    rare.clear()

    role[0] = 'F'
    if paged: a('.p2align 12\nL_F2:')
    else: fstart()
    dzero(); stamp(1)
    a('s_load_dword s30, s[28:29], 0')
    ws_srd(); perm_sel()
    a(f'''s_lshl_b32 s52, s31, 8
          s_add_u32 s56, s52, 0x2400
          s_mov_b32 s59, {hex(f2u(448.0))}
          s_mov_b32 s58, 0x3f803f80
          v_mov_b32 v12, 0
          v_lshlrev_b32 v4, 2, v0
          ds_write_b32 v4, v12 offset:{FZ}
          v_add_u32 v6, s56, v6
          v_lshl_add_u32 v5, v5, 1, s52''')
    maskaddr(8, 2, 's56', FZ + 64, 12)
    a('''s_waitcnt vmcnt(8)
         v_dot2_f32_bf16 v102, v96, s58, 0
         v_dot2_f32_bf16 v103, v96, v96, 0''')
    for i in range(1, 4):
        a(f'v_dot2_f32_bf16 v102, v{96+i}, s58, v102')
        a(f'v_dot2_f32_bf16 v103, v{96+i}, v{96+i}, v103')
    for sh in (8, 4, 2, 1):
        a(f'v_add_f32_dpp v102, v102, v102 row_ror:{sh} {DPPF}')
        a(f'v_add_f32_dpp v103, v103, v103 row_ror:{sh} {DPPF}')
    allred_rows('v_add_f32', 102, 104); allred_rows('v_add_f32', 103, 104)
    a('v_lshlrev_b32 v96, 16, v100')
    ln_apply(102, 103, (100, 96), 104)
    a(f'''s_lshl_b32 s52, s32, 11
          s_lshl_b32 s53, s33, 8
          s_add_u32 s52, s52, s53
          s_add_u32 s53, s52, {X2F}
          s_add_u32 s52, s52, {X2}
          s_waitcnt lgkmcnt(0)''')
    tags()
    a('s_waitcnt vmcnt(4)')
    fix4(32, 104); perms64(32, 64)
    a(f'''s_mov_b32 s49, {X1}
          s_add_u32 s50, s31, 0
          s_lshr_b32 s63, s50, 3
          s_lshl_b32 s63, s63, 13
          s_lshl_b32 s50, s50, 10
          s_add_u32 s50, s50, s63
          s_add_u32 s50, s50, s49
          s_add_u32 s51, s31, 7
          s_lshr_b32 s63, s51, 3
          s_lshl_b32 s63, s63, 13
          s_lshl_b32 s51, s51, 10
          s_add_u32 s51, s51, s63
          s_add_u32 s51, s51, s49
          s_waitcnt vmcnt(0)''')
    fix4(48, 104); perms64(48, 80)
    a('''s_add_u32 s8, s31, 14
          s_lshr_b32 s63, s8, 3
          s_lshl_b32 s63, s63, 13
          s_lshl_b32 s8, s8, 10
          s_add_u32 s8, s8, s63
          s_add_u32 s8, s8, s49
          s_add_u32 s9, s31, 21
          s_lshr_b32 s63, s9, 3
          s_lshl_b32 s63, s63, 13
          s_lshl_b32 s9, s9, 10
          s_add_u32 s9, s9, s63
          s_add_u32 s9, s9, s49
          s_add_u32 s10, s31, 28
          s_lshr_b32 s63, s10, 3
          s_lshl_b32 s63, s63, 13
          s_lshl_b32 s10, s10, 10
          s_add_u32 s10, s10, s63
          s_add_u32 s10, s10, s49
          s_add_u32 s11, s31, 35
          s_lshr_b32 s63, s11, 3
          s_lshl_b32 s63, s63, 13
          s_lshl_b32 s11, s11, 10
          s_add_u32 s11, s11, s63
          s_add_u32 s11, s11, s49''')
    stamp(2)
    poll4('L_q_x1', [f'buffer_load_dwordx4 v[{32+4*s}:{35+4*s}], v41, s[44:47], s{50+s} offen sc1' for s in range(2)], 32, 40)
    stamp(3)
    if mxe:
        for s in range(4): a(f'buffer_load_dwordx4 v[{104+4*s}:{107+4*s}], v41, s[44:47], s{8+s} offen sc1')
    rscatter(36); rscatter(32)
    rnd('v36', 'v36'); rnd('v32', 'v32')
    a('v_add_f32 v36, 1.0, v36'); rnd('v36', 'v36')
    a('v_mul_f32 v36, v100, v36'); rnd('v36', 'v36')
    a('v_add_f32 v36, v36, v32'); rnd('v36', 'v36')
    a('ds_write_b16_d16_hi v6, v36')
    for u in range(2):
        for tau in range(2): a(f'ds_read_b128 v[{32+8*u+4*tau}:{35+8*u+4*tau}], v{8+tau} offset:{64*u}')
    mma2(48, 32, 64, left=2); mma2(48, 40, 80, first=False)
    a(f'''v_mov_b32 v24, 1
          s_mov_b32 s62, 0
          s_mov_b64 exec, 0xffff
          s_cmp_eq_u32 s31, 0
          ds_write_b128 v5, v[50:53] offset:{FP}
          s_mov_b64 exec, 1
          ds_add_u32 v0, v24 offset:{FC+4}
          s_mov_b64 exec, -1
          s_cbranch_scc0 L_q_done
          v_mov_b32 v25, 0
          L_q_s:
          ds_read_b32 v24, v25 offset:{FC+4}''')
    sumrows(7, FP, 4, 'v_cmp_ne_u32 vcc, 8, v24')
    rnd('v16', 'v16')
    rare.append(lambda: a(f'L_q_sr:\ns_add_u32 s62, s62, {STEP}\ns_cbranch_scc0 L_q_s\ns_branch L_q_sok'))
    a('''v_or_b32 v16, s3, v16
         s_cbranch_vccnz L_q_sr
         L_q_sok:
         buffer_store_dword v16, v4, s[44:47], s53 offen
         buffer_store_dword v16, v4, s[44:47], s52 offen sc1''')
    a(f'ds_write_b32 v25, v24 offset:{FC+16}')
    if rewarm:
        a(f'''s_cmp_eq_u32 s33, 7
              s_cbranch_scc0 L_q_done
              s_getpc_b64 s[4:5]
              L_pc2:
              s_sub_u32 s4, s4, L_pc2-L_pc
              s_subb_u32 s5, s5, 0
              v_lshlrev_b32 v102, 7, v0
              v_add_u32 v103, 0x2000, v102
              v_min_u32 v103, L_code_end-L_pc-4, v103
              global_load_dword v127, v102, s[4:5] sc1
              global_load_dword v127, v103, s[4:5] sc1''')
    a('L_q_done:')
    stamp(4)
    def ffn_id(skip):
        a(f'''s_cmp_lt_u32 s32, 4
              s_cselect_b32 s50, 6, 8
              s_cselect_b32 s51, 0, 8
              s_cmp_lt_u32 s33, s50
              s_cbranch_scc0 {skip}''')
    def wp3():
        a(f'''s_mul_i32 s14, s33, 7
              s_add_u32 s14, s14, s31
              s_lshl_b32 s14, s14, 13
              s_mul_i32 s15, s32, {512*896}
              s_add_u32 s14, s14, s15
              v_lshl_add_u32 v126, v0, 7, s14
              global_load_dword v127, v126, s[12:13]''')
    if vpf:
        assert tbl == 1
        a(f'''s_cmp_lt_u32 s31, 6
              s_cbranch_scc0 L_f_nv
              s_load_dwordx2 s[6:7], s[0:1], 16
              s_mul_i32 s52, s33, 6
              s_add_u32 s52, s52, s31
              s_lshl_b32 s52, s52, 2
              s_lshr_b32 s53, s52, 3
                      s_and_b32 s52, s52, 7
                      s_lshl_b32 s54, s53, 2
                      s_add_u32 s55, s54, 6
                      s_min_u32 s54, s54, 13
                      s_min_u32 s55, s55, 15
                      s_mul_i32 s15, s53, 43
                      s_cmp_ge_u32 s53, 17
                      s_cselect_b32 s54, 64, s54
                      s_cselect_b32 s55, 63, s55
                      s_mul_i32 s53, s53, 40
                      s_cselect_b32 s15, s53, s15
                      s_lshl_b32 s53, s32, 14
                      s_add_u32 s15, s15, s53
                      s_add_u32 s15, s15, {WINOFF // 2048 + 5}
                      v_lshrrev_b32 v124, 4, v0
                      v_add_u32 v124, s52, v124
                      v_add_u32 v125, s54, v124
                      v_min_u32 v125, s55, v125
                      v_mad_u32_u24 v124, v124, 5, v125
                      v_add_u32 v124, s15, v124
                      v_and_b32 v125, 15, v0
                      v_lshlrev_b32 v125, 7, v125
                      v_lshl_add_u32 v124, v124, 11, v125''')
        ldswait('L_f_qv', FC + 16, 1, 1, 102)
        for k in range(vpf): a(f'global_load_dword v127, v124, s[6:7] offset:{-2048 * (vpf - 1 - k)}{vpffl}')
        a('L_f_nv:')
    if wopf3:
        ldswait('L_f_q3', FC + 16, 1, 1, 102)
        if wopf3 > 1: a(f's_sleep {wopf3}')
        wp3()
    ffn_id('L_fin2')
    a(f'''s_mul_i32 s50, s50, s32
          s_add_u32 s50, s50, s33
          s_sub_u32 s50, s50, s51
          s_mov_b32 s36, s16
          s_mov_b32 s37, s17
          s_mov_b32 s38, {448*3584}
          s_mov_b32 s40, s18
          s_mov_b32 s41, s19
          s_mov_b32 s42, {1792*896}
          s_mul_i32 s52, s31, {64*3584}
          s_lshl_b32 s53, s50, 6
          s_add_u32 s52, s52, s53
          s_mul_i32 s54, s50, {32*896}
          s_lshl_b32 s55, s31, 7
          s_add_u32 s54, s54, s55
          s_add_u32 s55, s54, {4*896}
          v_and_b32 v4, 15, v0
          v_mul_u32_u24 v2, {8*3584}, v3
          v_lshl_add_u32 v2, v4, 2, v2''')
    voff4(1, 8 * 896, 896, 102)
    if not mxe or not hintk: ldswait('L_f_q', FC + 16, 1, 1, 102)
    poll4('L_f_mx', [f'buffer_load_dwordx4 v[{104+4*s}:{107+4*s}], v121, s[44:47], s{8+s} offen sc1' for s in range(4)], 104, 120, 0, mxe)
    for s in range(4): rscatter(104 + 4 * s)
    rnd('v102', 'v104'); rnd('v98', 'v108'); rnd('v100', 'v112'); rnd('v116', 'v116')
    a('v_add_f32 v100, 1.0, v100\ns_lshl_b32 s13, s31, 8\nv_lshl_add_u32 v103, v0, 2, s13')
    rnd('v100', 'v100')
    a(f'''ds_write_b32 v103, v116 offset:{FG}
          ds_write_b16_d16_hi v6, v100
          ds_write_b16_d16_hi v6, v98 offset:128''')
    hop('f')
    if hintk: ldswait('L_f_g', FC + 8, 1, 1, 104)
    stamp(5)
    for i in range(16):
        a(f'buffer_load_dword v{32+i}, v2, s[36:39], s52 offen offset:{3584*(i&1)}{w1nt}')
        if i & 1: a(f's_add_u32 s52, s52, {2*3584 if i != 7 else 26*3584}')
    for u in range(4):
        a(f'buffer_load_dwordx4 v[{48+4*u}:{51+4*u}], v1, s[40:43], s{54+(u>>1)} offen offset:{(u&1)*2*896}{w2nt}')
    maskaddr(10, 2, FH, FZ + 64, 104)
    lanetag(5, 0)
    getside(104)
    a(f'''s_lshr_b32 s12, s50, 2
          s_lshl_b32 s12, s12, 13
          s_lshl_b32 s14, s50, 11
          s_add_u32 s12, s12, s14
          s_add_u32 s12, s12, s13
          s_add_u32 s12, s12, {X5}
          v_and_b32 v7, 1, v3
          v_lshlrev_b32 v7, 13, v7
          v_lshl_add_u32 v7, v4, 4, v7''')
    if x5o:
        a(f'''s_cmp_ge_u32 s31, 3
              s_cselect_b32 s14, 4, 0
              s_xor_b32 s14, s14, s32
              s_lshr_b32 s14, s14, 2
              s_lshl_b32 s14, s14, 13
              s_xor_b32 s14, s14, s48
              v_xor_b32 v7, s14, v7''')
    a(f'''v_and_b32 v8, 1, v0
          v_lshlrev_b32 v8, 7, v8
          v_lshl_add_u32 v8, v3, 4, v8
          v_add_u32 v8, s56, v8
          v_lshlrev_b32 v2, 11, v3
          v_lshl_add_u32 v2, v4, 4, v2
          s_add_u32 s52, s13, {FA}
          v_lshl_add_u32 v9, v0, 3, s52
          s_lshl_b32 s52, s31, 7
          s_add_u32 s52, s52, {FP2}
          v_lshl_add_u32 v4, v0, 3, s52
          s_add_u32 s40, s13, s48
          s_add_u32 s40, s40, {X4}
          s_add_u32 s41, s40, {1 << 14}
          s_add_u32 s42, s40, {2 << 14}
          s_add_u32 s43, s40, {3 << 14}
          s_lshl_b32 s52, s31, 3
          s_add_u32 s52, s52, {FST}
          v_lshrrev_b32 v1, 5, v0
          v_lshl_add_u32 v3, v1, 2, s52
          s_mov_b32 s57, 0xffffff00
          s_mov_b32 s16, 0x10000
          s_mov_b32 s17, 0x10000
          ds_read_b128 v[80:83], v8
          ds_read_b128 v[84:87], v8 offset:64
          v_mov_b32 v12, 0
          v_mov_b32 v13, 1
          v_mov_b32 v120, 1''')
    x4l = [f'buffer_load_dwordx4 v[{104+4*s}:{107+4*s}], v2, s[44:47], s{40+s} offen sc1' for s in range(4)]
    def w1mma(k):
        for tau in range(2):
            d = 88 + 4 * tau; b = 16 + 8 * k + 4 * tau
            a(f'v_mfma_f32_16x16x32_bf16 v[{d}:{d+3}], v[{80+4*k}:{83+4*k}], v[{b}:{b+3}], ' + ('0' if k == 0 else f'v[{d}:{d+3}]'))
    stamp(6)
    a('s_waitcnt vmcnt(4) lgkmcnt(0)')
    for l in x4l: a(l)
    for aa in range(2):
        for tau in range(2):
            for rho in range(4):
                a(f'v_perm_b32 v{16+8*aa+4*tau+rho}, v{32+8*aa+2*rho+1}, v{32+8*aa+2*rho}, s{60+tau}')
    w1mma(0); w1mma(1)
    a(f'''s_mov_b64 exec, 0xffff
          ds_write2_b32 v9, v88, v92 offset0:0 offset1:1
          ds_write2_b32 v9, v89, v93 offset0:32 offset1:33
          s_mov_b64 exec, 1
          ds_add_u32 v0, v120 offset:{FC}
          s_mov_b64 exec, -1
          s_waitcnt vmcnt(4)''')
    fix4(48, 124); perms64(48, 64)
    setprio(2)
    stamp(7)
    def sum_hi(r, d):
        return f'''v_pk_add_f32 v[{d+2}:{d+3}], v[{r+2}:{r+3}], v[{r+6}:{r+7}]
                   v_pk_add_f32 v[{d}:{d+1}], v[{r+10}:{r+11}], v[{r+14}:{r+15}]
                   v_pk_add_f32 v[{d+2}:{d+3}], v[{d+2}:{d+3}], v[{d}:{d+1}]'''
    def sum_lo(r, d):
        for s in range(4): a(f'v_xor_b32 v{r+4*s}, v{r+4*s}, v5')
        pk('add', r, r, r + 4); pk('add', r + 8, r + 8, r + 12); pk('add', d, r, r + 8)
    gather('L_x4', x4l, 104, 4, 5, spec=sum_hi(104, 120), issued=True, warm=(fX4, 63))
    stamp(8)
    sum_lo(104, 120)
    pad('f')
    rscatter(120)
    rnd('v120', 'v120'); a('v_mul_f32 v120, v102, v120'); rnd('v120', 'v120'); a('v_add_f32 v120, v96, v120'); rnd('v121', 'v120')
    xs('x2')
    a(f'''v_mul_f32 v123, v121, v100
          v_mul_f32 v122, v121, v121
          v_cvt_pk_bf16_f32 v124, 0, v123
          v_sub_f32 v124, v123, v124
          v_cvt_pk_bf16_f32 v123, v124, v123
          ds_write_b16_d16_hi v6, v123
          ds_write_b16 v6, v123 offset:128
          ds_read_b128 v[80:83], v8
          ds_read_b128 v[84:87], v8 offset:64
          ds_write_b32 v103, v121 offset:{FX}
          v_permlane32_swap_b32 v121, v122
          v_add_f32 v121, v121, v122''')
    pad('f')
    a(f'''v_add_f32_dpp v121, v121, v121 row_ror:8 {DPPF}
          v_add_f32_dpp v121, v121, v121 row_ror:4 {DPPF}
          v_add_f32_dpp v121, v121, v121 row_ror:2 {DPPF}
          s_waitcnt lgkmcnt({0 if (diag and only is None) else 2})''')
    w1mma(0)
    a(f'''v_add_f32_dpp v121, v121, v121 row_ror:1 {DPPF}
          s_waitcnt lgkmcnt({0 if (diag and only is None) else 1})''')
    w1mma(1)
    a(f'''v_add_f32_dpp v121, v121, v121 row_bcast:15 row_mask:0xa bank_mask:0xf
          s_mov_b64 exec, s[16:17]
          ds_write_b32 v3, v121''')
    if est: a(f'ds_add_u32 v12, v13 offset:{FC+20}')
    a('s_mov_b64 exec, 0xffff')
    pad('f')
    a(f'''v_add_f32 v88, v88, v89
          v_add_f32 v92, v92, v93
          ds_write2_b32 v4, v88, v92 offset0:0 offset1:1''')
    if nw3: a(f's_mov_b64 exec, 1\nds_add_u32 v12, v13 offset:{FC+24}')
    else: a('s_waitcnt lgkmcnt(0)')
    stamp(11); xs('preB3')
    a('s_barrier\ns_mov_b64 exec, -1\ns_mov_b32 s62, 0')
    xs('B3')
    a('s_barrier')
    xs('B4')
    a('L_f_h1:')
    if nw4: a(f'ds_read_b32 v14, v12 offset:{FC+28}')
    for tau in range(2): a(f'ds_read_b128 v[{80+4*tau}:{83+4*tau}], v{10+tau}')
    mma2(32, 80, 64, mid='v_cmp_eq_u32 vcc, 0, v14' if nw4 else None)
    if nw4:
        a('s_cbranch_vccnz L_f_h1r\nL_f_h1ok:')
        rare.append(lambda: a(f'L_f_h1r:\ns_add_u32 s62, s62, {STEP}\ns_cbranch_scc0 L_f_h1\ns_branch L_f_h1ok'))
    xs('mm2')
    pad('f', True)
    if x5o == 2:
        a('''s_mov_b64 exec, 0xffff
             v_and_or_b32 v34, v34, s57, v5
             buffer_store_dwordx4 v[34:37], v7, s[44:47], s12 offen sc1''')
        stamp(9)
        a(f'''s_barrier
              v_xor_b32 v7, {SIDE}, v7
              s_waitcnt vmcnt(0)
              buffer_store_dwordx4 v[34:37], v7, s[44:47], s12 offen sc1
              L_fin2:''')
    else:
        a('''s_mov_b32 exec_hi, 0
             v_and_or_b32 v34, v34, s57, v5
             buffer_store_dwordx4 v[34:37], v7, s[44:47], s12 offen sc1''')
        stamp(9)
        a('s_barrier\nL_fin2:')
    fin()
    for r in rare: r()
    rare.clear()
    if not paged: a(f'''L_F7s:
              s_cmp_ge_u32 s31, 9
              s_cbranch_scc1 L_F9
              v_mov_b32 v2, 0
              v_lshlrev_b32 v3, 2, v0
              ds_write_b32 v3, v2 offset:{FC & ~255}
              s_waitcnt lgkmcnt(0)
              s_barrier
              s_branch L_F7
              L_F9:
              s_endpgm''')
    a(f'''L_F7:
          s_cmp_eq_u32 s31, 7
          s_cbranch_scc0 L_F8
          s_load_dword s30, s[28:29], 0
          v_mov_b32 v4, 1
          s_waitcnt lgkmcnt(0)
          s_mov_b64 exec, 1
          ds_add_u32 v2, v4 offset:{FC+4}
          s_mov_b64 exec, -1''')
    dzero()
    ws_srd()
    ffn_id('L_fin3')
    if hintk:
        a(f'''s_mul_i32 s49, s32, {24*128}
              s_add_u32 s49, s49, {HINT}
              v_lshlrev_b32 v102, 7, v0''')
        if mxe:
            ldswait('L_7_t', FC + 4, 2, 4, 104)
            a('s_mov_b64 exec, 0xffffff\nbuffer_load_dword v103, v102, s[44:47], s49 offen sc1\ns_mov_b64 exec, -1')
    ldswait('L_7_q', FC + 16, 1, 4, 104)
    tags()
    if hintk:
        a(f'''s_mul_i32 s54, s50, s32
              s_add_u32 s54, s54, s33
              s_and_b32 s54, s54, 6
              s_cmp_eq_u32 s54, 6
              s_cselect_b32 s54, {hintk if hk3 is None else hk3}, {hintk}
              s_mov_b64 exec, 0xffffff
              s_mov_b32 s62, 0
              L_f_h:
              s_sleep 2
              buffer_load_dword v103, v102, s[44:47], s49 offen sc1
              s_add_u32 s62, s62, {1 << (32 - fastbits)}
              s_waitcnt vmcnt(0)
              s_cbranch_scc1 L_f_hok
              v_cmp_eq_u32 vcc, s3, v103
              s_bcnt1_i32_b64 s53, vcc
              s_cmp_lt_u32 s53, s54
              s_cbranch_scc1 L_f_h
              L_f_hok:
              s_mov_b64 exec, -1
              v_mov_b32 v103, 1
              ds_write_b32 v2, v103 offset:{FC+8}''')
    a(f'''s_mul_i32 s50, s50, s32
          s_add_u32 s50, s50, s33
          s_sub_u32 s50, s50, s51
          v_mov_b32 v9, v3
          v_lshrrev_b32 v4, 4, v0
          v_lshlrev_b32 v81, 14, v4
          v_bfe_u32 v6, v0, 2, 2
          v_lshl_add_u32 v81, v6, 11, v81
          v_and_b32 v6, 3, v0
          v_lshl_add_u32 v81, v6, 4, v81
          s_bfe_u32 s52, s50, 0x20001
          s_lshl_b32 s52, s52, 2
          s_lshl_b32 s20, 0x000f000f, s52
          s_mov_b32 s21, s20
          s_lshr_b32 s52, s50, 3
          s_lshl_b32 s53, s52, 8
          v_add_u32 v3, s53, v3
          s_lshl_b32 s52, s52, 7
          v_and_b32 v6, 7, v0
          v_lshlrev_b32 v6, 4, v6
          v_and_b32 v7, 8, v0
          v_lshl_add_u32 v7, v4, 1, v7
          v_add3_u32 v101, v6, v7, s52
          s_mov_b32 s36, s24
          s_mov_b32 s37, s25
          s_mov_b32 s38, 896
          s_mov_b32 s39, 0x20000''')
    lanetag(5, 0)
    x5l = [f'buffer_load_dwordx4 v[{36+4*s}:{39+4*s}], v81, s[44:47], s{40+s} offen sc1' for s in range(4)]
    a('v_mov_b32 v48, v5\nv_mov_b32 v49, 0\nv_mov_b32 v50, 0\nv_mov_b32 v51, 0')
    hop('s')
    ldswait('L_7_g', FC, 2, 4, 102)
    getside(102)
    a(f'''s_lshl_b32 s40, s50, 5
          s_add_u32 s40, s40, s48
          s_add_u32 s40, s40, {X5}
          s_add_u32 s41, s40, {4 << 14}
          s_add_u32 s42, s40, {8 << 14}
          s_add_u32 s43, s40, {12 << 14}''')
    a('s_bitcmp1_b32 s50, 0\ns_cbranch_scc1 L_7_o\n' + '\n'.join(x5l[:3] if pt5 else [f'v_mov_b32 v{36+4*k}, 0xff' for k in range(3)]) + f'''
          s_mov_b32 exec_hi, 0
          {x5l[3] if pt5 else 'v_mov_b32 v48, 0xff'}
          buffer_load_ushort v125, v101, s[36:39], 0 offen
          s_mov_b32 exec_hi, -1
          L_7_o:''')
    ldswait('L_7_a', FC, 7, 1, 102)
    sumrows(7, FA, 9)
    a(f'''v_mov_b32 v17, v16
          v_and_b32 v14, 31, v0
          v_lshlrev_b32 v15, 1, v14
          v_permlane32_swap_b32 v16, v17
          v_lshlrev_b32 v14, 2, v14
          v_add_u32 v14, {FP2}, v14
          v_mov_b32 v1, {FST}
          v_mov_b32 v31, 0
          s_mov_b32 s59, {hex(f2u(448.0))}''')
    align('S')
    setprio(3)
    cw = lambda n: f's_waitcnt lgkmcnt({0 if (diag and only is None) else n})'
    if est:
        a(f'''s_mov_b32 s62, 0
              L_7_s:
              ds_read_b32 v70, v31 offset:{FC+20}
              ds_read_b128 v[56:59], v1
              ds_read_b128 v[60:63], v1 offset:16
              ds_read_b128 v[64:67], v1 offset:32
              ds_read_b64 v[68:69], v1 offset:48
              s_add_u32 s62, s62, {STEP >> 2}
              s_cbranch_scc1 L_7_sok
              {cw(4)}
              v_cmp_ne_u32 vcc, 14, v70
              s_cbranch_vccnz L_7_s
              L_7_sok:
              s_waitcnt lgkmcnt(0)''')
        pk('add', 56, 56, 58); pk('add', 60, 60, 62)
        pk('add', 64, 64, 66); pk('add', 56, 56, 60); pk('add', 64, 64, 68); pk('add', 56, 56, 64)
        a(f'''s_barrier
              ds_read2_b32 v[24:25], v14 offset0:0 offset1:32
              ds_read2_b32 v[26:27], v14 offset0:64 offset1:96
              ds_read2_b32 v[28:29], v14 offset0:128 offset1:160
              ds_read_b32 v30, v14 offset:768''')
        a(f'''v_mul_f32 v60, v56, v56
              v_fma_f32 v61, v56, v56, -v60
              v_fma_f32 v60, v57, s59, -v60
              v_sub_f32 v60, v60, v61
              v_mul_f32 v60, {hex(f2u(1/448/448))}, v60
              v_max_f32 v60, 0, v60''')
        rnd('v60', 'v60')
        a(f'v_add_f32 v60, {hex(f2u(1e-5))}, v60')
        rnd('v60', 'v60')
        a(f'v_sqrt_f32 v60, v60\nv_mul_f32 v62, {hex(f2u(1/448))}, v56')
        rnd('v60', 'v60')
        a('s_waitcnt lgkmcnt(0)\nv_rcp_f32 v60, v60')
        pk('add', 24, 24, 26); pk('add', 28, 28, 30)
        rnd('v62', 'v62')
        pk('add', 24, 24, 28)
        a('''v_fma_f32 v24, -v62, v16, v24
             v_add_f32 v24, v24, v25
             v_fma_f32 v24, v24, v60, v17''')
    else:
        a('s_mov_b32 s62, 0\ns_barrier\nL_7_t:')
        if nw3: a(f'ds_read_b32 v70, v31 offset:{FC+24}')
        a(f'''ds_read_b128 v[56:59], v1
              ds_read_b128 v[60:63], v1 offset:16
              ds_read_b128 v[64:67], v1 offset:32
              ds_read_b64 v[68:69], v1 offset:48
              ds_read2_b32 v[24:25], v14 offset0:0 offset1:32
              ds_read2_b32 v[26:27], v14 offset0:64 offset1:96
              ds_read2_b32 v[28:29], v14 offset0:128 offset1:160
              ds_read_b32 v30, v14 offset:768''')
        a(cw(6))
        if nw3: a('v_cmp_ne_u32 vcc, 7, v70')
        pk('add', 56, 56, 58); pk('add', 60, 60, 62)
        a(cw(4))
        pk('add', 64, 64, 66); pk('add', 56, 56, 60); pk('add', 64, 64, 68); pk('add', 56, 56, 64)
        a(f'''v_mul_f32 v60, v56, v56
              v_fma_f32 v61, v56, v56, -v60
              v_fma_f32 v60, v57, s59, -v60
              v_sub_f32 v60, v60, v61
              v_mul_f32 v60, {hex(f2u(1/448/448))}, v60
              v_max_f32 v60, 0, v60''')
        rnd('v60', 'v60')
        a(f'v_add_f32 v60, {hex(f2u(1e-5))}, v60')
        rnd('v60', 'v60')
        a(f'v_sqrt_f32 v60, v60\nv_mul_f32 v62, {hex(f2u(1/448))}, v56')
        rnd('v60', 'v60')
        a('s_waitcnt lgkmcnt(0)\nv_rcp_f32 v60, v60')
        pk('add', 24, 24, 26); pk('add', 28, 28, 30)
        rnd('v62', 'v62')
        pk('add', 24, 24, 28)
        a('''v_fma_f32 v24, -v62, v16, v24
             v_add_f32 v24, v24, v25
             v_fma_f32 v24, v24, v60, v17''')
    rnd('v24', 'v24')
    silu(24, 24, 25, 's')
    if nw3:
        a('s_cbranch_vccnz L_7_tr\nL_7_tok:')
        rare.append(lambda: a(f'L_7_tr:\ns_add_u32 s62, s62, {STEP}\ns_cbranch_scc0 L_7_t\ns_branch L_7_tok'))
    a(f'ds_write_b16_d16_hi v15, v24 offset:{FH}')
    a(f'ds_write_b32 v31, v1 offset:{FC+28}' if nw4 else 's_waitcnt lgkmcnt(0)')
    a('''s_barrier
         s_bitcmp1_b32 s50, 0
         s_cbranch_scc1 L_fin3''')
    a(f'''ds_read_b32 v96, v3 offset:{FX}
          ds_read_b32 v100, v3 offset:{FG}
          s_cmp_eq_u32 s50, 0
          s_cbranch_scc0 L_7_e
          s_mov_b64 exec, 1
          v_mov_b32 v6, s30
          buffer_store_dword v6, v2, s[44:47], 0 offen
          s_mov_b64 exec, -1
          L_7_e:''')
    pad('s')
    a('s_barrier\ns_waitcnt lgkmcnt(0)')
    if d5: a(f'; back off one flight time: nothing can have arrived yet, and a read that is too early costs a whole round trip\ns_sleep {d5}')
    gather('L_x5', x5l, 36, 4, 5, issued=True, spec=sum_hi(36, 32))
    stamp(12)
    sum_lo(36, 32)
    pad('s')
    rscatter(32)
    a(f'v_add_f32_dpp v32, v32, v32 row_ror:8 {DPPF}')
    pad('s', True)
    a(f'v_add_f32_dpp v32, v32, v32 row_ror:4 {DPPF}')
    rnd('v32', 'v32'); a('v_mul_f32 v32, v100, v32'); rnd('v32', 'v32'); a('v_add_f32 v32, v96, v32\ns_mov_b64 exec, s[20:21]'); rnd('v32', 'v32')
    a('buffer_store_short_d16_hi v32, v101, s[36:39], 0 offen')
    stamp(14)
    if lite: a('s_branch L_dump')
    a('L_fin3:')
    fin()
    for r in rare: r()
    rare.clear()
    a(f'''L_F8:
          s_lshl_b32 s48, s2, 7
          s_add_u32 s48, s48, {PRB}
          s_add_u32 s49, s48, {SIDE}
          s_mov_b32 s52, -1
          s_mov_b32 s53, -1
          s_mov_b32 s54, 0
          s_waitcnt lgkmcnt(0)''')
    if tlb:
        a(f'''s_lshl_b32 s50, s32, 25
              s_add_u32 s50, s50, {WINOFF}
              s_mov_b32 s51, {4096*896-4}
              s_load_dword s56, s[8:9], s50
              s_load_dword s57, s[12:13], 0
              s_load_dword s58, s[12:13], s51
              s_load_dword s59, s[16:17], 0
              s_load_dword s60, s[18:19], 0
              s_load_dword s61, s[24:25], 0''')
    dzero()
    if fside is not None:
        a(f'''s_getreg_b32 s55, hwreg(HW_REG_XCC_ID)
              s_bfe_u32 s55, s55, 0x10002
              s_xor_b32 s55, s55, {fside}
              s_lshl_b32 s55, s55, 13
              v_mov_b32 v3, s55
              ds_write_b32 v2, v3 offset:{FC+12}''')
    else:
        a('s_load_dword s10, s[28:29], s48 glc\ns_load_dword s11, s[28:29], s49 glc\ns_waitcnt lgkmcnt(0)\nL_8_l:')
        for sd in range(2):
            a(f'''s_memtime s[4:5]
                  s_waitcnt lgkmcnt(0)
                  s_load_dword s10, s[28:29], s{48+sd} glc
                  s_waitcnt lgkmcnt(0)
                  s_memtime s[6:7]
                  s_lshr_b32 s8, s33, {sd}
                  s_add_u32 s8, s8, s54
                  s_bitcmp1_b32 s8, 0
                  s_waitcnt lgkmcnt(0)
                  s_cbranch_scc0 L_8_n{sd}
                  s_sleep 3
                  L_8_n{sd}:
                  s_sub_u32 s4, s6, s4
                  s_min_u32 s{52+sd}, s{52+sd}, s4''')
        a(f'''s_cmp_lt_u32 s53, s52
              s_cselect_b32 s55, {SIDE}, 0
              v_mov_b32 v3, s55
              ds_write_b32 v2, v3 offset:{FC+12}''')
        if diag:
            for k in (1, 2, 3, 4): a(f's_cmp_eq_u32 s54, {k-1}\ns_cbranch_scc0 L_8_d{k}\ns_memrealtime s[{64+2*k}:{65+2*k}]\ns_add_u32 s{64+2*(k+4)}, s55, 1\nL_8_d{k}:')
        a(f'''s_add_u32 s54, s54, 1
              s_cmp_lt_u32 s54, {nprb}
              s_cbranch_scc1 L_8_l''')
    if diag:
        a('s_add_u32 s90, s55, 1\ns_getreg_b32 s88, hwreg(HW_REG_XCC_ID)\ns_mov_b32 s86, s52\ns_mov_b32 s84, s53')
        fin()
    else: a('s_endpgm')
    pfcode()
    if probe:
        a('L_probe:\ns_cmp_eq_u32 s68, 0\ns_cbranch_scc1 L_end')
        if len(probe) > 2 and probe[2] is not None: a(f's_cmp_eq_u32 s32, {probe[2]}\ns_cbranch_scc0 L_end')
        if len(probe) > 3 and probe[3] is not None: a(f's_cmp_eq_u32 s31, {probe[3]}\ns_cbranch_scc0 L_end')
        a('''s_setprio 0
             s_sleep 127
             s_sleep 127
             s_sleep 127
             s_sleep 127
             s_sleep 127
             L_probe_l:
             s_memrealtime s[66:67]
             s_waitcnt lgkmcnt(0)
             s_sub_u32 s66, s66, s64
             s_cmp_lt_u32 s66, 3000
             s_cbranch_scc1 L_probe_l
             s_endpgm''')
    if diag or lite:
        a(f'''L_dump:
              s_mov_b64 exec, -1
              s_waitcnt vmcnt(0) lgkmcnt(0)
              s_memrealtime s[94:95]
              s_lshl_b32 s48, s2, 4
              s_add_u32 s48, s48, s31
              s_lshl_b32 s48, s48, 6
              s_add_u32 s48, s48, {STAMP_OFF}
              v_mov_b32 v1, s48
              s_waitcnt lgkmcnt(0)''')
        for i in range(16): a(f'v_mov_b32 v{8+i}, s{64+2*i}')
        a('s_mov_b64 exec, 1')
        for i in range(4): a(f'global_store_dwordx4 v1, v[{8+4*i}:{11+4*i}], s[28:29] offset:{16*i}')
    a('L_end:\ns_endpgm\nL_code_end:')
    head = open('adaLN_cond__sliding_block_cached__dense_activation_silu__decode.s.ref').read().split('; Override launch')[0]
    return head + f'''; @launch grid=(256,1,1) block=(1024,1,1) lds={L_END}
{DOC.rstrip()}
.amdgcn_target "amdgcn-amd-amdhsa--gfx950"
.text
.globl {KN}
{'.p2align 12' if paged else ''}
.p2align 8
.type {KN},@function
''' + annotate(a.text()) + f'''.section .rodata,"a"
.p2align 6
.amdhsa_kernel {KN}
  .amdhsa_next_free_vgpr 128
  .amdhsa_next_free_sgpr 96
  .amdhsa_accum_offset 128
  .amdhsa_group_segment_fixed_size 0
  .amdhsa_kernarg_size 104
  .amdhsa_user_sgpr_count 2
  .amdhsa_user_sgpr_kernarg_segment_ptr 1
  .amdhsa_system_sgpr_workgroup_id_x 1
.end_amdhsa_kernel
'''

if __name__ == '__main__':
    out = sys.argv[1]
    kw = eval('dict(' + (sys.argv[2] if len(sys.argv) > 2 else '') + ')')
    open(out, 'w').write(gen(**kw))
```

```python
import sys, struct
sys.path.insert(0, 'work')
from asmlib import Asm

KN = 'adaLN_cond__sliding_block_cached__dense_activation_silu__decode_kernel'
X2, X2F, HINT, PRB, X1, X4, X5, X3, X3F, WSEND = 0x4000, 0x8000, 0xC000, 0x80000, 0x18000, 0x30000, 0x40000, 0xA0000, 0x100000, 0x160000
SIDE = 0x2000
STAMP_OFF = 0x180000
L_Q, L_M, L_C, L_L, L_Z, L_O, L_PRIV, L_P, L_END = 0x0, 0x800, 0x810, 0x840, 0x900, 0x1000, 0x5000, 0x5800, 0x6100
FM = 0x300
FZ, FC, FP, FP2, FST, FX, FG, FA, FH = 0x0, 0x240, 0x1000, 0x1800, 0x2000, 0x3000, 0x3800, 0x4000, 0x2100
WINOFF = (65536 - 4096) * 512

DOC = """;
"""
def f2u(x): return struct.unpack('<I', struct.pack('<f', x))[0]
LOG2E = 1.4426950408889634
DPPF = 'row_mask:0xf bank_mask:0xf'

CM = {'L_A': 'attention CUs: waves 0..7 start their K loads inside the first fetched lines', 'L_a_u': 'CUs whose modulation task is on the path to q let its loads go first', 'L_Td': 'waves 8..15 of the attention CUs; waves 12..15 clear the first 4 KB of LDS (q slot, max, counters, zero rows)', 'L_mod': 'modulation task: 112 rows x 64 columns of w_mod, raw rows as B operand, silu(c) on a diagonal A operand', 'L_F': 'front CUs: wq loads', 'L_a_c': 'attention: lane constants, then the paced K and V loads', 'L_a_q': 'attention: wait for q in LDS, scores (diagonal blocks of K x q), CU-wide max, exp, P x V, combine the waves, publish', 'L_T': 'tail waves: set-up, q poller (wave 8)', 'L_wo': 'wo block: weights after the V loads, gather the 24 partials of the head, rescale, multiply, publish', 'L_F2': 'front CUs: LayerNorm(x), gather shift / scale, h, q', 'L_q_done': 'FFN block: remaining modulation values, weights, constant products c1 @ w1 and sb @ w1', 'L_x4': 'FFN: gather the 16 head products, residual, (x2 * c1) @ w1 and statistics, then h1 @ w2', 'L_F7': 'wave 7 of the front CUs: weight gate, LayerNorm + SiLU between the products, final reduction', 'L_F8': 'wave 8 of the front CUs: which memory side answers faster', 'L_pf': 'idle waves of CUs without a wo block pull the FFN weights into L2'}
def annotate(t):
    return ''.join((f'; ---- {CM[l[:-1]]}\n' if l[:-1] in CM else '') + l + '\n' for l in t.rstrip('\n').split('\n'))

def gen(W=5, WH=6, WK=3, WKH=4, N0=2, WE=7, NE=6, NL=4, adapt=True, diag=False, lite=False, probe=None, sleep=8, nt=' nt', w1nt='', wont=' nt',
        rewarm=True, gaten=8, hintk=16, hintpos=7, touchpos=2, spinbits=20, fastbits=6, prio=True, pprio=3, nprb=5,
        fside=None, nob=False, fpf=8, tbl=1, only=None, lk=0, LW=(5, 6, 7, 6), WR=None, pf3=True, wolate=False, fdelay=0, wopf=0, wolanes=32, fB3=0, fB3p=0, fB4=(12, 12), fM=True, tlb=False, mxe=False, dirty=0, epe=True, wopf2=0, peel=False, nwo=42, nmid=48, ldef=True, est=False, al={'L_x3': 0, 'L_x4': 2, 'L_x5': 3}, pads='', paged=True, pvf=True, wopf3=0, vpf=0, vpfk=8, vpffl='', hk3=4, nw3=True, nw4=True, nw2=False, pfnt='', gsl=0, w2nt=' nt', x5o=0, d5=9, pt5=True, lsl={}, bo={}, ofl='', opt=True, bev=4, bsl=24, bsn=-1, dbl={}, skz=('L_x3', 'L_x4', 'L_x5'), fX3=0, fX4=0, fA=(0, 0), half=True):
    a = Asm()
    rare = []
    STEP = 1 << (32 - spinbits)
    role = ['all']
    PH = {('att', 6), ('wo', 6), ('F', 8), ('F', 12)}
    def stamp(i):
        if (diag and (only is None or i == 0 or (role[0], i) in only)) or (lite and i in (0, 14)): a(f's_memrealtime s[{64+2*i}:{65+2*i}]')
        if probe and probe[0] == role[0] and probe[1] == i: a('s_memrealtime s[64:65]\ns_mov_b32 s68, 1')
    def xs(name):
        if diag and only and name in only: a('s_memrealtime s[84:85]')
        if diag and only and 'clk' in only and name in ('B3', 'mm2'):
            k = 1 if name == 'B3' else 3
            a(f's_memrealtime s[{64+2*k}:{65+2*k}]\ns_memtime s[{66+2*k}:{67+2*k}]')
            if name == 'B3': a('s_waitcnt lgkmcnt(0)')
    def align(k):
        if k in al:
            a('.p2align 6')
            for _ in range(al[k] + (2 if k != 'S' and not diag else 0)): a('s_nop 0')
    npad = {}
    def pad(k, last=False):
        if k not in pads: return
        i = npad.get(k, 0); npad[k] = i + 1
        a(f'L_pad{k}{i}:\ns_cbranch_execz L_pad{k}' + ('r' if last else str(i + 1)))
    def hop(k):
        if k in pads: a(f's_mov_b64 exec, 0\ns_branch L_pad{k}0\nL_pad{k}r:\ns_mov_b64 exec, -1')
    def fill(n, r):
        if r == 62:
            for _ in range(n): a('v_mfma_f32_16x16x32_bf16 v[72:75], v[16:19], v[16:19], 0')
        elif r == 63:
            for _ in range(n): a('v_mfma_f32_16x16x32_bf16 v[88:91], v[16:19], v[16:19], 0')
        elif fM and r == 9:
            for _ in range((n + 2) // 4): a('v_mfma_f32_16x16x32_bf16 v[116:119], v[16:19], v[16:19], 0')
        else:
            for _ in range(n): a(f'v_mov_b32 v{r}, 0')
    def fin(): a('s_branch L_dump' if diag else 's_branch L_probe' if probe else 's_endpgm')
    def setprio(n):
        if prio: a(f's_setprio {n}')
    def tags():
        a('''s_add_u32 s30, s30, 1
             s_and_b32 s34, s30, 0x7f
             s_xor_b32 s35, s34, 0x5a
             s_lshl_b32 s3, s35, 8
             s_or_b32 s3, s3, s34''')
    def ws_srd():
        a(f'''s_mov_b32 s44, s28
              s_mov_b32 s45, s29
              s_mov_b32 s46, {WSEND}
              s_mov_b32 s47, 0x20000''')
    def lanetag(d, bit):
        a(f'''v_bfe_u32 v{d}, v0, {bit}, 1
              v_mul_u32_u24 v{d}, 0x5a, v{d}
              v_xor_b32 v{d}, s34, v{d}''')
    def rowtag(m, t):
        lanetag(t, 2)
        a(f'''v_and_b32 v{m}, 3, v0
              v_cmp_eq_u32 vcc, 0, v{m}
              v_mov_b32 v{m}, 0xffffff00
              v_cndmask_b32 v{t}, 0, v{t}, vcc
              v_cndmask_b32 v{m}, -1, v{m}, vcc''')
    def spin(loop, done):
        a(f'''s_cbranch_vccz {done}
              s_add_u32 s62, s62, {STEP}
              s_cbranch_scc0 {loop}
              {done}:''')
    def ldswait(lbl, off, n, sl, z=100):
        if not n: return
        a(f'v_mov_b32 v{z}, 0\ns_mov_b32 s62, 0\n{lbl}:')
        if sl: a(f's_sleep {sl}')
        a(f'''ds_read_b32 v{z+1}, v{z} offset:{off}
              s_waitcnt lgkmcnt(0)
              v_cmp_gt_u32 vcc, {n}, v{z+1}''')
        spin(lbl, lbl + 'ok')
    def gather(lbl, loads, raw, masks, vt, spec='', switch=None, nfast=0, issued=False, warm=None):
        n = len(loads)
        a('s_mov_b32 s62, 0')
        if switch: a(f's_mov_b32 s63, {(1 << 32) // nfast}')
        if issued:
            a(f's_branch {lbl}_w')
            if paged and lbl == 'L_x4': a('.p2align 12')
            align(lbl)
        else:
            for i in range(n): a(f's_mov_b64 s[{masks+2*i}:{masks+2*i+1}], -1')
        a(f'{lbl}:')
        if lbl in lsl: a(f's_sleep {lsl[lbl]}')
        for i, l in enumerate(loads):
            if lbl in skz: a(f's_wqm_b64 exec, s[{masks+2*i}:{masks+2*i+1}]\ns_cbranch_scc0 {lbl}_z{i}\n{l}\n{lbl}_z{i}:')
            else: a(f's_wqm_b64 exec, s[{masks+2*i}:{masks+2*i+1}]\n{l}')
        for sl in dbl.get(lbl, ()):
            a(f's_sleep {sl}')
            for i, l in enumerate(loads): a(f's_wqm_b64 exec, s[{masks+2*i}:{masks+2*i+1}]\n{l}')
        a(f'''s_mov_b64 exec, -1
              s_add_u32 s62, s62, {'s63' if switch else STEP}
              s_cbranch_scc1 {lbl}_r''')
        if lbl in bo:
            T, k = bo[lbl]
            a(f's_bcnt1_i32_b64 s26, s[{masks}:{masks+1}]')
            for i in range(1, n): a(f's_bcnt1_i32_b64 s27, s[{masks+2*i}:{masks+2*i+1}]\ns_add_u32 s26, s26, s27')
            a(f's_cmp_gt_u32 s26, {T}\ns_cbranch_scc0 {lbl}_w\ns_sleep {k}')
        if warm: fill(*warm)
        a(f'{lbl}_w:\ns_waitcnt vmcnt(0)')
        for i in range(n): a(f'v_cmp_ne_u32_sdwa s[{masks+2*i}:{masks+2*i+1}], v{raw+4*i}, v{vt} src0_sel:BYTE_0 src1_sel:DWORD')
        a(spec)
        a(f's_or_b64 vcc, s[{masks}:{masks+1}], s[{masks+2}:{masks+3}]')
        for i in range(2, n): a(f's_or_b64 vcc, vcc, s[{masks+2*i}:{masks+2*i+1}]')
        a(f's_cbranch_scc1 {lbl}\n{lbl}_ok:')
        def r():
            a(f'{lbl}_r:')
            if switch:
                a(f's_cmp_eq_u32 s63, {STEP}\ns_cbranch_scc1 {lbl}_x\ns_mov_b32 s63, {STEP}\n{switch}\ns_branch {lbl}_w\n{lbl}_x:')
            a(f's_waitcnt vmcnt(0)\ns_mov_b64 vcc, 0\ns_branch {lbl}_ok')
        rare.append(r)
    def poll4(lbl, loads, raw, t, sl=0, issued=False):
        a(f'''v_mov_b32 v{t+2}, 0
              ds_read_b32 v{t+3}, v{t+2} offset:{FC+12}
              s_and_b32 s4, s34, 3
              s_and_b32 s5, s35, 3
              s_mov_b32 s62, 0
              s_waitcnt lgkmcnt(0)''')
        if issued: a(f's_branch {lbl}_w')
        a(f'{lbl}:\nv_add_u32 v{t+1}, v7, v{t+3}')
        if sl: a(f's_sleep {sl}')
        for l in loads: a(l)
        a(f'ds_read_b32 v{t+3}, v{t+2} offset:{FC+12}\n{lbl}_w:\ns_waitcnt vmcnt(0) lgkmcnt(0)')
        n = 4 * len(loads)
        for k in range(n): a(f'v_xor_b32 v{raw+k}, s{4+(k&1)}, v{raw+k}')
        a(f'v_or_b32 v{t}, v{raw}, v{raw+1}')
        for k in range(2, n, 2): a(f'v_or3_b32 v{t}, v{t}, v{raw+k}, v{raw+k+1}')
        a(f'v_and_b32 v{t}, 3, v{t}\nv_cmp_ne_u32 vcc, 0, v{t}')
        spin(lbl, lbl + '_ok')
    def pk(op, d, x, y): a(f'v_pk_{op}_f32 v[{d}:{d+1}], v[{x}:{x+1}], v[{y}:{y+1}]')
    def rscatter(r):
        a(f'v_permlane32_swap_b32 v{r}, v{r+2}\nv_permlane32_swap_b32 v{r+1}, v{r+3}')
        pk('add', r, r, r + 2)
        a(f'v_permlane16_swap_b32 v{r}, v{r+1}\nv_add_f32 v{r}, v{r}, v{r+1}')
    def rnd(d, s): a(f'v_cvt_pk_bf16_f32 {d}, 0, {s}')
    def allred_rows(op, r, t):
        a(f'''v_mov_b32 v{t}, v{r}
              v_permlane32_swap_b32 v{r}, v{t}
              {op} v{r}, v{r}, v{t}
              v_mov_b32 v{t}, v{r}
              v_permlane16_swap_b32 v{r}, v{t}
              {op} v{r}, v{r}, v{t}''')
    def perm_sel(): a('s_mov_b32 s60, 0x05040100\ns_mov_b32 s61, 0x07060302')
    def perms64(raw, dst):
        for tau in range(4):
            for rho in range(4):
                a(f'v_perm_b32 v{dst+4*tau+rho}, v{raw+2*(2*rho+1)+(tau>>1)}, v{raw+2*(2*rho)+(tau>>1)}, s{60+(tau&1)}')
    def fix4(raw, t):
        for u0 in (0, 2):
            for i in range(2): a(f'v_pk_mov_b32 v[{t+2*i}:{t+2*i+1}], v[{raw+4*(u0+i)+2}:{raw+4*(u0+i)+3}], v[{raw+4*(u0+i)+2}:{raw+4*(u0+i)+3}] op_sel:[0,1]')
            rs = [raw + 4 * u + d for u in (u0, u0 + 1) for d in (0, 1)]
            for i, r in enumerate(rs): a(f'v_mov_b32_dpp v{r+2}, v{r} row_ror:8 row_mask:0xf bank_mask:0x3')
            for i, r in enumerate(rs): a(f'v_mov_b32_dpp v{r}, v{t+i} row_ror:8 row_mask:0xf bank_mask:0xc')
    def voff4(d, gstride, stride, t):
        a(f'''v_lshrrev_b32 v{t}, 4, v0
              v_mul_u32_u24 v{d}, {gstride}, v{t}
              v_bfe_u32 v{t}, v0, 3, 1
              v_mul_u32_u24 v{t}, {stride}, v{t}
              v_add_u32 v{d}, v{d}, v{t}
              v_and_b32 v{t}, 7, v0
              v_lshl_add_u32 v{d}, v{t}, 4, v{d}''')
    def maskaddr(dst, n, base, zero, t):
        a(f'''v_lshrrev_b32 v{t}, 4, v0
              v_lshlrev_b32 v{t}, 4, v{t}
              v_add_u32 v{t}, {base}, v{t}
              v_and_b32 v{t+1}, {n-1}, v0
              v_mov_b32 v{t+2}, {zero}''')
        for tau in range(n):
            a(f'v_cmp_eq_u32 vcc, {tau}, v{t+1}')
            a(f'v_cndmask_b32 v{dst+tau}, v{t+2}, v{t}, vcc')
    def silu(d, x, t, p=None):
        a(f'''v_mul_f32 v{t}, {hex(f2u(-LOG2E))}, v{x}
              v_exp_f32 v{t}, v{t}''')
        if p: pad(p)
        a(f'''v_add_f32 v{t}, 1.0, v{t}
              v_rcp_f32 v{t}, v{t}
              v_mul_f32 v{t}, v{x}, v{t}''')
        rnd(f'v{d}', f'v{t}')
    def silu_fine(d, x, t):
        L = struct.unpack('<f', struct.pack('<f', -LOG2E))[0]
        a(f'''s_mov_b32 s58, {hex(f2u(L))}
              v_mul_f32 v{t}, s58, v{x}
              v_fma_f32 v{t+1}, v{x}, s58, -v{t}
              v_fmac_f32 v{t+1}, {hex(f2u(-LOG2E - L))}, v{x}
              v_min_f32 v{t}, 0x42fc0000, v{t}
              v_exp_f32 v{t}, v{t}
              v_mul_f32 v{t+1}, {hex(f2u(0.6931471805599453))}, v{t+1}
              v_fmac_f32 v{t}, v{t}, v{t+1}
              v_add_f32 v{t}, 1.0, v{t}
              v_rcp_f32 v{t+1}, v{t}
              v_mul_f32 v{t+2}, v{x}, v{t+1}
              v_fma_f32 v{t}, -v{t+2}, v{t}, v{x}
              v_fmac_f32 v{t+2}, v{t}, v{t+1}''')
        rnd(f'v{d}', f'v{t+2}')
    def ln_apply(s1, s2, x, t):
        a(f'''v_mul_f32 v{t}, v{s1}, v{s1}
              v_fma_f32 v{t+1}, v{s1}, v{s1}, -v{t}
              v_fma_f32 v{t}, v{s2}, s59, -v{t}
              v_sub_f32 v{t}, v{t}, v{t+1}
              v_mul_f32 v{t}, {hex(f2u(1/448/448))}, v{t}
              v_max_f32 v{t}, 0, v{t}''')
        rnd(f'v{t}', f'v{t}')
        a(f'v_add_f32 v{t}, {hex(f2u(1e-5))}, v{t}')
        rnd(f'v{t}', f'v{t}')
        a(f'v_sqrt_f32 v{t}, v{t}\nv_mul_f32 v{t+1}, {hex(f2u(1/448))}, v{s1}')
        rnd(f'v{t}', f'v{t}'); rnd(f'v{t+1}', f'v{t+1}')
        a(f'v_rcp_f32 v{t+2}, v{t}\nv_sub_f32 v{t+1}, v{x[1]}, v{t+1}')
        rnd(f'v{t+1}', f'v{t+1}')
        a(f'''v_mul_f32 v{t+3}, v{t+1}, v{t+2}
              v_fma_f32 v{t}, -v{t+3}, v{t}, v{t+1}
              v_fmac_f32 v{t+3}, v{t}, v{t+2}''')
        rnd(f'v{x[0]}', f'v{t+3}')
    def mma(n, acc, A, B, left=0, first=True, wait=True):
        for i in range(n):
            if wait: a(f's_waitcnt lgkmcnt({0 if (diag and only is None) else n-1-i+left})')
            a(f'v_mfma_f32_16x16x32_bf16 v[{acc}:{acc+3}], v[{A+4*i}:{A+4*i+3}], v[{B+4*i}:{B+4*i+3}], ' + ('0' if i == 0 and first else f'v[{acc}:{acc+3}]'))
    def mma2(acc, A, B, left=0, first=True, wait=True, mid=None):
        for par in range(2):
            if wait: a(f's_waitcnt lgkmcnt({0 if (diag and only is None) else 1-par+left})')
            for hi in range(2):
                d = acc + 4 * hi; b = B + 4 * (2 * hi + par)
                a(f'v_mfma_f32_16x16x32_bf16 v[{d}:{d+3}], v[{A+4*par}:{A+4*par+3}], v[{b}:{b+3}], ' + ('0' if par == 0 and first else f'v[{d}:{d+3}]'))
                if mid and par == 0 and hi == 0: a(mid)
    def sumrows(n, ldsoff, va, first=None, shadow=None):
        o = ldsoff // 256
        for u in range(n // 2): a(f'ds_read2st64_b32 v[{16+2*u}:{17+2*u}], v{va} offset0:{o+2*u} offset1:{o+2*u+1}')
        if n & 1: a(f'ds_read_b32 v22, v{va} offset:{ldsoff+256*(n-1)}\nv_mov_b32 v23, 0')
        if shadow: a(shadow)
        a('s_waitcnt lgkmcnt(0)')
        if first: a(first)
        pk('add', 16, 16, 18); pk('add', 20, 20, 22); pk('add', 16, 16, 20)
        a('v_add_f32 v16, v16, v17')

    def getside(t):
        a(f'''v_mov_b32 v{t}, 0
              ds_read_b32 v{t}, v{t} offset:{FC+12}
              s_waitcnt lgkmcnt(0)
              v_readfirstlane_b32 s48, v{t}''')
    def dzero():
        if diag:
            for i in range(1, 16): a(f's_mov_b32 s{64+2*i}, 0')
    K0, V0 = 8, 56
    a(f'{KN}:')
    if probe: a('s_mov_b32 s68, 0')
    stamp(0)
    a(f'''s_load_dwordx16 s[4:19], s[0:1], 0
          s_load_dwordx8 s[20:27], s[0:1], 64
          s_load_dwordx2 s[28:29], s[0:1], 96
          v_readfirstlane_b32 s31, v0
          s_and_b32 s32, s2, 7
          s_lshr_b32 s33, s2, 3
          s_lshr_b32 s31, s31, 6
          s_sub_u32 s33, s33, 8
          s_cbranch_scc0 L_A''')
    a(f'''s_getpc_b64 s[48:49]
          L_pc:
          v_lshlrev_b32 v2, 7, v0
          v_min_u32 v2, L_code_end-L_pc-4, v2
          global_load_dword v127, v2, s[48:49]
          s_branch L_F
          L_A:
          s_cmp_ge_u32 s31, 8
          s_cbranch_scc1 L_Td
          s_cmp_ge_u32 s33, 17
          s_cbranch_scc1 L_a_u
          L_att:''')
    role[0] = 'att'
    if tbl < 2:
        ta, tb, tc, td = ((5, 16, 17, 42), (4, 13, 15, 43))[tbl]; bias = 0
        a(f'''s_mul_i32 s50, s33, {ta}
              s_add_u32 s51, s50, 6
              s_min_u32 s50, s50, {tb}
              s_min_u32 s51, s51, {tc}
              s_mul_i32 s49, s33, {td}
              L_att2:
              s_add_u32 s50, s50, s31''')
    else:
        bias = 14 * nwo - 1
        a(f'''s_sub_u32 s50, s33, 14
              s_cselect_b32 s51, {nwo - 40}, {nmid - 40}
              s_cselect_b32 s49, {nwo}, {nmid}
              s_mul_i32 s49, s49, s50
              L_att2:
              s_add_u32 s50, s31, 1''')
    a(f'''s_min_u32 s48, s50, s51
          s_add_u32 s48, s48, s49
          s_mul_i32 s49, s31, 5
          s_add_u32 s48, s48, s49
          s_lshl_b32 s49, s32, 14
          s_add_u32 s48, s48, s49
          s_addk_i32 s48, {WINOFF // 2048 + 2 + bias}
          s_lshl_b32 s48, s48, 11
          v_and_b32 v2, 12, v0
          v_and_b32 v3, 48, v0
          v_and_b32 v4, 3, v0
          v_lshlrev_b32 v6, 7, v2
          v_lshl_add_u32 v6, v3, 2, v6
          v_lshl_add_u32 v6, v4, 4, v6
          s_waitcnt lgkmcnt(0)
          s_add_u32 s36, s6, s48
          s_addc_u32 s37, s7, 0
          s_cmp_le_u32 s50, s51
          s_cbranch_scc0 L_a_k1''')
    cnt = [0]
    win = [W, WH, WE, NE]
    def kvload(srd, va, base, t, hf, late=False):
        W, WH, WE, NE = win[:4]
        wk, wkh = win[4:] if len(win) > 4 else (WK, WKH)
        w = WH if late else wk if (wk and srd == 36) else W
        if wkh and srd == 36: WH = wkh
        if WE and srd == 40 and 2 * (5 - t) + 1 - hf < NE: a(f's_waitcnt vmcnt({WE-1})')
        elif cnt[0] >= 2 + N0:
            if WH != w: a(f's_waitcnt vmcnt({WH-1})\ns_cbranch_vccnz L_w{cnt[0]}_\ns_waitcnt vmcnt({w-1})\nL_w{cnt[0]}_:')
            else: a(f's_waitcnt vmcnt({w-1})')
        cnt[0] += 1
        r = base + 8 * t + 4 * hf
        b = srd + 2 * (t // 4)
        a(f'global_load_dwordx4 v[{r}:{r+3}], v{va}, s[{b}:{b+1}] offset:{((t & 3) - 2) * 2048 + hf * 256}{nt}')
    kvload(36, 6, K0, 0, 0); kvload(36, 6, K0, 0, 1)
    a('L_a_k1:')
    kl = [(t, hf) for t in (1, 2, 3) for hf in range(2)]
    for t, hf in kl[:N0]: kvload(36, 6, K0, t, hf)
    a('s_branch L_a_c')
    a('''L_a_u:
         s_cmp_ge_u32 s33, 24
         s_cbranch_scc1 L_end
         s_barrier''')
    if tbl == 2:
        rest = 1024 - 14 * nwo - 3 * nmid; lo = rest // 7; ex = rest - 7 * lo
        assert 40 <= lo and lo + (ex > 0) <= 48
        a(f'''s_sub_u32 s50, s33, 17
              s_mul_i32 s49, s50, {lo}
              s_min_u32 s50, s50, {ex}
              s_cselect_b32 s51, {lo - 39}, {lo - 40}
              s_add_u32 s49, s49, s50
              s_add_u32 s49, s49, {3 * nmid}
              s_branch L_att2''')
    elif tbl: a('s_mov_b32 s50, 64\ns_mov_b32 s51, 63\ns_mul_i32 s49, s33, 40\ns_branch L_att2')
    else: a('s_branch L_att')
    a(f'''L_Td:
          s_cmp_ge_u32 s33, 24
          s_cbranch_scc1 L_end
          s_sub_u32 s50, s33, {14 if tbl == 2 else 0}
          s_cmp_ge_u32 s50, 3
          s_cselect_b32 s50, 9, 0
          s_cmp_eq_u32 s31, s50
          s_cbranch_scc1 L_mod''')
    a(f'''s_cmp_ge_u32 s31, 12
          s_cbranch_scc0 L_T0
          v_mov_b32 v8, {hex(f2u(-3e38))}
          v_cmp_eq_u32 vcc, {768 + L_M // 16}, v0
          v_lshlrev_b32 v2, 4, v0
          v_mov_b32 v9, 0
          v_cndmask_b32 v8, 0, v8, vcc
          v_mov_b32 v11, 0
          v_subrev_u32 v2, {768 * 16}, v2
          v_mov_b32 v10, v8
          ds_write_b128 v2, v[8:11]
          s_waitcnt lgkmcnt(0)''')
    if lk:
        a('''s_lshl_b32 s50, s33, 4
             s_add_u32 s50, s50, s31
             s_cmp_eq_u32 s50, 12
             s_cbranch_scc0 L_T0
             v_mov_b32 v8, 1
             s_mov_b64 exec, 1
             global_atomic_add v9, v8, s[26:27] sc1
             s_mov_b64 exec, -1''')
    a(f'''L_T0:
          s_barrier
          s_branch L_T
          L_mod:''')
    role[0] = 'mod'
    def tail_setup():
        a('s_load_dword s30, s[28:29], 0\ns_sub_u32 s49, s31, 8')
        ws_srd(); perm_sel()
        a(f's_lshl_b32 s56, s49, 8\ns_add_u32 s56, s56, {L_PRIV}')
    a('v_and_b32 v0, 63, v0')
    setprio(3)
    a(f'''s_cmp_ge_u32 s33, 17
          s_cselect_b32 s50, -17, {7 if tbl == 2 else 4}
          s_add_u32 s50, s50, s33
          s_lshl_b32 s50, s50, 3
          s_add_u32 s50, s50, s32
          s_and_b32 s51, s50, 3
          s_lshr_b32 s52, s50, 2
          s_mov_b32 s38, {448*5376}
          s_mov_b32 s39, 0x20000
          s_mov_b32 s42, 896
          s_mov_b32 s43, 0x20000
          s_mul_i32 s54, s51, {112*5376}
          s_lshl_b32 s55, s52, 7
          s_add_u32 s54, s54, s55
          s_mul_i32 s53, s51, 224
          v_lshlrev_b32 v2, 2, v0
          v_lshrrev_b32 v1, 3, v0
          v_mul_u32_u24 v3, {14*5376}, v1
          v_and_b32 v4, 7, v0
          v_lshl_add_u32 v3, v4, 4, v3
          s_waitcnt lgkmcnt(0)
          s_mov_b32 s36, s22
          s_mov_b32 s37, s23
          s_mov_b32 s40, s20
          s_mov_b32 s41, s21
          buffer_load_dword v8, v2, s[40:43], s53 offen''')
    for m in range(14):
        a(f'buffer_load_dwordx4 v[{72+4*m}:{75+4*m}], v3, s[36:39], s54 offen{nt}')
        if m < 13: a('s_add_u32 s54, s54, 5376')
    def fstart():
        a(f'''L_F:
              s_add_u32 s33, s33, 8
              v_and_b32 v0, 63, v0
              s_cmp_ge_u32 s31, 7
              s_cbranch_scc1 L_F7s
              s_lshl_b32 s48, s31, 19
              s_lshl_b32 s49, s32, 10
              s_add_u32 s48, s48, s49
              s_lshl_b32 s49, s33, 7
              s_add_u32 s48, s48, s49
              v_lshrrev_b32 v3, 4, v0
              v_lshlrev_b32 v2, 16, v3
              v_and_b32 v4, 8, v0
              v_lshl_add_u32 v2, v4, 10, v2
              v_and_b32 v5, 7, v0
              v_lshl_add_u32 v2, v5, 4, v2
              v_lshl_add_u32 v5, v5, 4, v4
              v_lshl_add_u32 v6, v3, 1, v5
              s_lshl_b32 s50, s31, 7
              v_add_u32 v101, s50, v6
              v_lshlrev_b32 v7, 4, v0
              s_mov_b32 s38, {448*8192}
              s_mov_b32 s39, 0x20000
              s_mov_b32 s42, 896
              s_mov_b32 s43, 0x20000
              s_waitcnt lgkmcnt(0)
              s_mov_b32 s36, s10
              s_mov_b32 s37, s11
              s_mov_b32 s40, s4
              s_mov_b32 s41, s5
              buffer_load_dwordx4 v[96:99], v7, s[40:43], 0 offen
              buffer_load_ushort v100, v101, s[40:43], 0 offen''')
        for u in range(2):
            for t in range(4):
                a(f'buffer_load_dwordx4 v[{32+16*u+4*t}:{35+16*u+4*t}], v2, s[36:39], s48 offen{nt}')
                if not (u == 1 and t == 3): a(f's_add_u32 s48, s48, {2*8192 if t < 3 else 26*8192}')
            if u == 0: a('s_barrier')
    a('s_barrier')
    if paged:
        a('s_branch L_mod2')
        fstart()
        a(f'''s_branch L_F2
              L_F7s:
              s_cmp_ge_u32 s31, 9
              s_cbranch_scc1 L_F9
              v_mov_b32 v2, 0
              v_lshlrev_b32 v3, 2, v0
              ds_write_b32 v3, v2 offset:{FC & ~255}
              s_waitcnt lgkmcnt(0)
              s_barrier
              s_branch L_F7
              L_F9:
              s_endpgm
              L_mod2:''')
    dzero(); stamp(1)
    tail_setup()
    a(f'''v_mul_u32_u24 v3, 37, v0
          v_lshrrev_b32 v3, 8, v3
          v_add_u32 v3, v3, v0
          v_lshl_add_u32 v3, v3, 2, s56
          v_lshl_add_u32 v1, v1, 5, s56
          v_and_b32 v9, 1, v0
          v_lshlrev_b32 v9, 4, v9
          v_mov_b32 v10, 0xffff
          v_lshlrev_b32 v9, v9, v10
          v_bfe_u32 v10, v0, 1, 2''')
    for rho in range(4):
        a(f'v_cmp_eq_u32 vcc, {rho}, v10')
        a(f'v_cndmask_b32 v{4+rho}, 0, v9, vcc')
    a('''s_mov_b32 s52, 0x01000100
         s_mov_b32 s53, 0x03020302
         s_waitcnt vmcnt(14)
         v_lshlrev_b32 v9, 16, v8
         v_and_b32 v10, 0xffff0000, v8''')
    silu_fine(9, 9, 12); silu_fine(10, 10, 12)
    a(f'''v_perm_b32 v9, v10, v9, s61
          s_mov_b32 exec_hi, 0xffffff
          ds_write_b32 v3, v9
          s_mov_b32 exec_hi, -1
          ds_read_b128 v[8:11], v1
          ds_read_b96 v[12:14], v1 offset:16
          s_lshr_b32 s51, s50, 5
          s_lshl_b32 s51, s51, 13
          s_lshl_b32 s50, s50, 8
          s_add_u32 s50, s50, s51
          s_add_u32 s50, s50, {X1}
          s_add_u32 s51, s50, {SIDE}
          v_lshrrev_b32 v2, 4, v0
          v_and_b32 v3, 7, v0
          v_lshlrev_b32 v3, 4, v3
          v_lshl_add_u32 v2, v2, 7, v3
          s_waitcnt lgkmcnt(0)''')
    tags()
    for m in range(14):
        a(f'v_perm_b32 v15, v{8+(m>>1)}, v{8+(m>>1)}, s{52+(m&1)}')
        for rho in range(4): a(f'v_and_b32 v{16+4*m+rho}, v15, v{4+rho}')
    a('v_and_b32_e64 v4, s34, 3\nv_and_b32_e64 v5, s35, 3')
    for m in range(14):
        a(f's_waitcnt vmcnt({13-m})')
        a(f'v_mfma_f32_16x16x32_bf16 v[8:11], v[{16+4*m}:{19+4*m}], v[{72+4*m}:{75+4*m}], ' + ('0' if m == 0 else 'v[8:11]'))
    a('''v_pk_mov_b32 v[12:13], v[8:9], v[8:9] op_sel:[0,1]
         v_pk_mov_b32 v[14:15], v[10:11], v[10:11] op_sel:[0,1]''')
    for i in range(4): a(f'v_permlane32_swap_b32 v{8+i}, v{12+i}')
    for i in range(4): a(f'v_add_f32_dpp v{8+i}, v{12+i}, v{8+i} row_ror:8 {DPPF}')
    a('s_mov_b64 exec, 0xff00ff')
    for i in range(4): a(f'v_add_u32 v{8+i}, 2, v{8+i}')
    for i in range(4): a(f'v_and_or_b32 v{8+i}, v{8+i}, -4, v{4+(i&1)}')
    a('buffer_store_dwordx4 v[8:11], v2, s[44:47], s50 offen sc1\nbuffer_store_dwordx4 v[8:11], v2, s[44:47], s51 offen sc1\ns_mov_b64 exec, -1')
    stamp(2)
    setprio(0)
    a('s_cmp_lt_u32 s33, 14\ns_cbranch_scc1 L_t_go2')
    fin()
    role[0] = 'att'
    a('L_a_c:')
    def setup_att():
        dzero(); stamp(1)
        if lk: a('s_load_dword s56, s[26:27], 0')
        a(f'''s_load_dword s30, s[28:29], 0
              s_cmp_le_u32 s50, s51
              s_cselect_b32 s51, 1, 0
              s_add_u32 s38, s36, 8192
              s_addc_u32 s39, s37, 0
              s_add_u32 s40, s8, s48
              s_addc_u32 s41, s9, 0
              s_add_u32 s42, s40, 8192
              s_addc_u32 s43, s41, 0
              s_cmp_ge_u32 s33, 17
              s_cbranch_scc1 L_a_nb2
              s_barrier
              L_a_nb2:
              v_and_b32 v0, 63, v0
              v_and_b32 v5, 15, v0
              v_lshlrev_b32 v7, 5, v3
              v_lshl_add_u32 v7, v5, 4, v7
              v_bfe_u32 v2, v0, 3, 1
              v_lshlrev_b32 v1, 10, v2
              v_lshl_add_u32 v1, v3, 3, v1
              v_lshl_add_u32 v1, v4, 5, v1
              v_and_b32 v104, 1, v0
              v_lshlrev_b32 v104, 4, v104
              v_mov_b32 v105, 0xffff
              v_lshlrev_b32 v104, v104, v105
              v_bfe_u32 v105, v0, 1, 2''')
        for rho in range(4):
            a(f'v_cmp_eq_u32 vcc, {rho}, v105')
            a(f'v_cndmask_b32 v{2+rho}, 0, v104, vcc')
        ws_srd(); perm_sel()
        a(f'''s_mov_b32 s58, {hex(f2u(0.0625 * LOG2E))}
              s_bfe_u32 s57, s31, 0x10001
              s_lshl_b32 s49, s32, 1
              s_add_u32 s54, s57, s49
              s_mul_i32 s54, s54, 24
              s_add_u32 s54, s54, s33
              s_lshl_b32 s54, s54, 10
              s_lshr_b32 s49, s31, 2
              s_lshl_b32 s49, s49, 9
              s_add_u32 s54, s54, s49
              s_and_b32 s49, s31, 1
              s_lshl_b32 s49, s49, 8
              s_add_u32 s54, s54, s49
              s_add_u32 s55, s54, {X3F}
              s_add_u32 s54, s54, {X3}
              s_mul_i32 s59, s32, 24
              s_add_u32 s59, s59, s33
              s_lshl_b32 s59, s59, 7
              s_add_u32 s59, s59, {HINT}
              v_lshlrev_b32 v104, 2, v0
              s_mov_b32 s48, s51
              s_mov_b32 s49, 0
              s_mov_b64 vcc, s[48:49]''')
    setup_att()
    vl = [(t, hf) for t in range(1, 6) for hf in range(2)]
    late = vl[10 - NL:]
    assert 2 * (6 - touchpos) >= NL and NL <= 4 and hintpos == 7 and WE and NE >= NL and (not lk or LW[2] == WE)
    for t, hf in kl[N0:]: kvload(36, 6, K0, t, hf)
    a('s_waitcnt lgkmcnt(0)')
    tags()
    hop('a')
    def paced(x):
        for t in range(4, 6): kvload(36, 6, K0, t, 0); kvload(36, 6, K0, t, 1)
        stamp(2)
        a(f's_cmp_eq_u32 s51, 0\ns_cbranch_scc0 L_a_v0{x}')
        for i in range(4): a(f'v_mov_b32 v{K0+i}, {hex(f2u(-1e30))}')
        a(f's_branch L_a_v1{x}\nL_a_v0{x}:')
        kvload(40, 7, V0, 0, 0); kvload(40, 7, V0, 0, 1)
        a(f'L_a_v1{x}:')
        for t in range(1, 6):
            if t == touchpos:
                a('buffer_load_dword v6, v104, s[44:47], s55 offen sc1')
            for hf in range(2):
                if (t, hf) not in late: kvload(40, 7, V0, t, hf)
    if lk:
        if diag: a('s_add_u32 s82, s56, 1')
        a(f's_cmp_ge_u32 s56, {lk}\ns_cbranch_scc1 L_a_pl')
        def pl():
            keep = list(win); win[:] = LW
            a('L_a_pl:'); paced('l'); a('s_branch L_a_pd')
            win[:] = keep
        rare.append(pl)
    paced('')
    a('L_a_pd:')
    def count(off): a(f's_mov_b64 exec, 1\nds_inc_u32 v0, v2 offset:{off}\ns_mov_b64 exec, -1')
    def lateload(k):
        i = k - (4 - NL)
        if i < 0: return
        if adapt: a(f's_cmp_gt_u32 s63, {i}\ns_cbranch_scc1 L_a_l{i}')
        kvload(40, 7, V0, *late[i], late=True)
        if i == NL - 1: vdone('a')
        if adapt: a(f'L_a_l{i}:')
    def vdone(sfx):
        stamp(3); count(L_C)
        if hintpos == 7 and hintk:
            a(f'''s_cmp_eq_u32 s31, 0
                  s_cbranch_scc0 L_a_nh{sfx}
                  v_mov_b32 v114, s3
                  s_mov_b64 exec, 1
                  buffer_store_dword v114, v0, s[44:47], s59 offen
                  s_mov_b64 exec, -1
                  L_a_nh{sfx}:''')
    if not NL: vdone('a')
    a('s_mov_b32 s62, 0\ns_mov_b32 s63, 0')
    stamp(8)
    if paged: a('s_branch L_a_q0\n.p2align 12\nL_a_q0:')
    align('Q')
    setprio(2)
    a(f'''L_a_q:
          ds_read_b128 v[104:107], v1 offset:{L_Q}
          ds_read_b128 v[108:111], v1 offset:{L_Q+16}
          ds_read_b128 v[112:115], v1 offset:{L_Q+512}
          ds_read_b128 v[116:119], v1 offset:{L_Q+528}
          s_waitcnt lgkmcnt(0)
          v_bitop3_b32 v120, v104, v108, s3 bitop3:0x7e
          v_bitop3_b32 v121, v112, v116, s3 bitop3:0x7e
          v_or_b32 v121, v120, v121
          v_cmp_ne_u32_sdwa vcc, v121, 0 src0_sel:WORD_0 src1_sel:DWORD''')
    for i in range(8): a(f'v_perm_b32 v{120+i}, v{105+2*i}, v{104+2*i}, s61')
    a('s_cbranch_vccnz L_a_qr\nL_a_qok:')
    def qrare():
        a('L_a_qr:')
        if adapt:
            for i in range(NL):
                a(f's_cmp_eq_u32 s63, {i}\ns_cbranch_scc0 L_a_qr{i}')
                keep = win[2]; win[2] = WR or keep
                kvload(40, 7, V0, *late[i], late=True)
                win[2] = keep
                if i == NL - 1: vdone('b')
                a(f's_mov_b32 s63, {i+1}\ns_branch L_a_q\nL_a_qr{i}:')
        a(f'''s_sleep 1
              s_add_u32 s62, s62, {STEP}
              s_cbranch_scc0 L_a_q
              s_branch L_a_qok''')
    rare.append(qrare)
    stamp(4)
    def qk(t, hf):
        k = K0 + 8 * t; tmp = 104 + 4 * (t & 3)
        if hf == 0: a(f'v_mfma_f32_16x16x32_bf16 v[{tmp}:{tmp+3}], v[{k}:{k+3}], v[120:123], 0')
        else: a(f'v_mfma_f32_16x16x32_bf16 v[{k}:{k+3}], v[{k+4}:{k+7}], v[124:127], v[{tmp}:{tmp+3}]')
    def step(t, i):
        if t < 0 or t > 5: return
        k = K0 + 8 * t
        if i == 0: a(f'v_mov_b32_dpp v{k+4}, v{k} quad_perm:[0,0,0,0] {DPPF}')
        else: a(f'v_add_f32_dpp v{k+4}, v{k+i}, v{k+4} quad_perm:[{i},{i},{i},{i}] {DPPF}')
    lateload(0)
    if WE: a(f's_waitcnt vmcnt({11 - NL})')
    a('s_cmp_eq_u32 s51, 0\ns_cbranch_scc1 L_a_qk1')
    qk(0, 0); qk(0, 1)
    a('L_a_qk1:')
    fl = ['v_mov_b32 v1, 0', 's_mov_b32 s62, 0', 's_lshl_b32 s48, s57, 3', 's_lshl_b32 s49, s31, 2']
    for t in range(1, 6):
        qk(t, 0); step(t - 3, 0); step(t - 4, 2)
        if t < 3: a(fl.pop(0))
        qk(t, 1); step(t - 3, 1); step(t - 4, 3)
        if t < 3: a(fl.pop(0))
        if t == 3: lateload(1)
    lateload(2)
    step(2, 2); step(3, 0); step(4, 0); step(2, 3); step(3, 1); step(4, 1)
    S = [K0 + 8 * t + 4 for t in range(6)]
    rnd(f'v{S[0]}', f'v{S[0]}')
    if WE: a(f's_waitcnt vmcnt({2 * (6 - touchpos) - 1})')
    a('v_and_b32 v6, 8, v0')
    step(5, 0); step(3, 2); step(4, 2); step(5, 1); step(3, 3); step(4, 3); step(5, 2)
    rnd(f'v{S[1]}', f'v{S[1]}'); rnd(f'v{S[2]}', f'v{S[2]}')
    step(5, 3)
    rnd(f'v{S[3]}', f'v{S[3]}'); rnd(f'v{S[4]}', f'v{S[4]}')
    a(f'v_max3_f32 v112, v{S[0]}, v{S[1]}, v{S[2]}')
    rnd(f'v{S[5]}', f'v{S[5]}')
    a(f'''v_max3_f32 v112, v112, v{S[3]}, v{S[4]}
          s_mov_b32 exec_lo, 0x01010101
          s_mov_b32 exec_hi, 0x01010101
          v_max_f32 v112, v112, v{S[5]}
          ds_max_f32 v6, v112 offset:{L_M}
          s_mov_b64 exec, 1
          ds_inc_u32 v0, v2 offset:{L_C+4}
          s_mov_b64 exec, -1
          v_mov_b32 v117, s48''')
    lateload(3)
    a(f'''L_a_s1:
          ds_read_b32 v113, v1 offset:{L_C+4}
          ds_read_b32 v112, v6 offset:{L_M}
          ds_read_b32 v116, v117 offset:{L_M}
          s_waitcnt lgkmcnt(0)
          v_cmp_ne_u32 vcc, 8, v113
          v_mul_f32 v112, s58, v112''')
    order = [1, 0, 2, 3, 4, 5]
    for t in order: a(f'v_fma_f32 v{S[t]+2}, v{S[t]}, s58, -v112')
    a('s_cbranch_vccnz L_a_s1r\nL_a_s1ok:')
    rare.append(lambda: a(f'L_a_s1r:\ns_add_u32 s62, s62, {STEP}\ns_cbranch_scc0 L_a_s1\ns_branch L_a_s1ok'))
    stamp(5)
    for t in order: a(f'v_exp_f32 v{S[t]}, v{S[t]+2}')
    def abuild(t):
        k = K0 + 8 * t
        a(f'v_cvt_pk_bf16_f32 v{k+5}, v{k+4}, v{k+4}')
        for rho in range(4): a(f'v_and_b32 v{k+rho}, v{k+5}, v{2+rho}')
    def pv(t, hf, first=False):
        k = K0 + 8 * t; v = V0 + 8 * t + 4 * hf; acc = 104 + 4 * hf
        n = 2 * (5 - t) + 1 - hf
        if n < max(W, WH, WE or 0): a(f's_waitcnt vmcnt({n})')
        a(f'v_mfma_f32_16x16x32_bf16 v[{acc}:{acc+3}], v[{k}:{k+3}], v[{v}:{v+3}], ' + ('0' if first else f'v[{acc}:{acc+3}]'))
    abuild(1)
    a(f'v_add_f32 v113, v{S[0]}, v{S[1]}\nv_add_f32 v114, v{S[2]}, v{S[3]}')
    pv(1, 0, True); abuild(2); pv(1, 1, True)
    a('s_cmp_eq_u32 s51, 0\ns_cbranch_scc1 L_a_pv2')
    abuild(0); pv(0, 0); pv(0, 1)
    a('L_a_pv2:')
    def lsum():
        a(f'''v_add_f32 v115, v{S[4]}, v{S[5]}
              v_add_f32 v113, v113, v114
              v_lshl_add_u32 v6, v6, 2, s49
              v_add_f32 v113, v113, v115''')
        allred_rows('v_add_f32', 113, 114)
        a(f'''s_mov_b64 exec, 0x101
              ds_write_b32 v6, v113 offset:{L_L}
              s_mov_b64 exec, -1''')
    def cst():
        a(f'''s_lshl_b32 s48, s31, 11
              v_lshl_add_u32 v6, v0, 4, s48
              v_bfe_u32 v119, v0, 2, 1
              v_mul_u32_u24 v119, 0x5a, v119
              v_and_b32 v120, 3, v0
              v_cmp_eq_u32 vcc, 1, v120
              v_bitop3_b32 v119, v119, v116, s34 bitop3:0xde
              v_bfe_u32 v118, v0, 2, 2
              v_cndmask_b32 v120, v120, v118, vcc
              v_cndmask_b32_e64 v119, v119, 0, vcc
              v_cndmask_b32_e64 v118, 0, -1, vcc
              v_or_b32 v120, 0x07060500, v120
              s_lshl_b32 s49, s31, 8
              s_add_u32 s49, s49, {L_O}
              v_lshlrev_b32 v121, 2, v0
              v_add_u32 v122, s49, v121
              v_lshlrev_b32 v117, 2, v117
              s_mov_b32 s62, 0''')
    if pvf:
        abuild(3); pv(2, 0); abuild(4); abuild(5); lsum(); cst()
        a('s_and_b32 s48, s31, 5')
        pv(2, 1)
        for t in range(3, 6): pv(t, 0); pv(t, 1)
    else:
        for t in range(2, 6):
            pv(t, 0)
            if t < 5: abuild(t + 1)
            pv(t, 1)
            if t == 2: lsum()
            if t == 3: cst()
    a(f'''ds_write_b128 v6, v[104:107] offset:{L_O}
          ds_write_b128 v6, v[108:111] offset:{L_O+1024}''')
    stamp(6)
    if nw2: a(f's_mov_b64 exec, 1\nds_inc_u32 v0, v2 offset:{L_C+8}\ns_barrier\ns_mov_b64 exec, -1\nL_a_s2:\nds_read_b32 v24, v1 offset:{L_C+8}')
    else: a('s_waitcnt lgkmcnt(0)\ns_barrier')
    if pvf:
        for u in range(4): a(f'ds_read2st64_b32 v[{8+2*u}:{9+2*u}], v122 offset0:{16*u} offset1:{16*u+8}')
        a(f'''s_cbranch_scc1 L_a_nl
              ds_read_b128 v[16:19], v117 offset:{L_L}
              ds_read_b128 v[20:23], v117 offset:{L_L+16}
              s_waitcnt lgkmcnt(0)''')
        pk('add', 16, 16, 18); pk('add', 20, 20, 22); pk('add', 16, 16, 20)
        a('v_add_f32 v16, v16, v17\nv_bfi_b32 v119, v118, v16, v119\nL_a_nl:\ns_waitcnt lgkmcnt(0)')
        if nw2: a('v_cmp_ne_u32 vcc, 8, v24')
    else:
        a(f'''ds_read_b128 v[16:19], v117 offset:{L_L}
              ds_read_b128 v[20:23], v117 offset:{L_L+16}''')
        for u in range(4): a(f'ds_read2st64_b32 v[{8+2*u}:{9+2*u}], v122 offset0:{16*u} offset1:{16*u+8}')
        pad('a', True)
        a('s_waitcnt lgkmcnt(4)')
        pk('add', 16, 16, 18); pk('add', 20, 20, 22); pk('add', 16, 16, 20)
        a('v_add_f32 v16, v16, v17\nv_and_or_b32 v119, v16, v118, v119\ns_waitcnt lgkmcnt(0)')
    pk('add', 8, 8, 10); pk('add', 12, 12, 14); pk('add', 8, 8, 12)
    a('''v_add_f32 v8, v8, v9
         v_perm_b32 v8, v8, v119, v120''')
    if nw2:
        a('s_cbranch_vccnz L_a_s2r\nL_a_s2ok:')
        rare.append(lambda: a(f'L_a_s2r:\ns_add_u32 s62, s62, {STEP}\ns_cbranch_scc1 L_a_s2ok\ns_and_b32 s48, s31, 5\ns_branch L_a_s2'))
    a('''buffer_store_dword v8, v121, s[44:47], s55 offen
         s_barrier''')
    stamp(7)
    setprio(0)
    if wopf2:
        a('s_cmp_lt_u32 s33, 14\ns_cbranch_scc0 L_a_p\ns_barrier\ns_sleep 3\nL_a_x:')
        def wp():
            a(f'''L_a_p:
                  s_lshl_b32 s48, s33, 3
                  s_add_u32 s48, s48, s31
                  s_sub_u32 s48, s48, 112
                  s_mul_i32 s49, s32, {512*896}''')
            for k in range(wopf2):
                if k: a('s_add_u32 s48, s48, 28')
                a(f'''s_cmp_ge_u32 s48, 56
                      s_cselect_b32 s50, 56, 0
                      s_sub_u32 s48, s48, s50
                      s_lshl_b32 s50, s48, 13
                      s_add_u32 s50, s50, s49
                      v_lshl_add_u32 v10, v0, 7, s50
                      global_load_dword v11, v10, s[12:13]''')
            a('s_branch L_a_x')
        rare.append(wp)
    elif bsn < 0:
        a('; the write-through copy is only needed under another placement: it waits for the wo stage / the prefetch (barrier) and, a bounded while, for X4 to be out')
        if bev:
            a(f'''s_barrier
                  s_cmp_lt_u32 s33, 14
                  s_cbranch_scc0 L_a_x
                  s_mov_b32 s62, 0
                  L_a_b:
                  s_sleep {bev}
                  ds_read_b32 v24, v1 offset:{L_C+20}
                  s_add_u32 s62, s62, 0x20000000
                  s_cbranch_scc1 L_a_x
                  s_waitcnt lgkmcnt(0)
                  v_cmp_eq_u32 vcc, 0, v24
                  s_cbranch_vccnz L_a_b
                  L_a_x:''')
        else: a(f's_barrier\ns_sleep {bsl}\nL_a_x:')
    elif bsn: a(f's_cmp_lt_u32 s33, 14\ns_cbranch_scc1 L_a_y\ns_sleep {bsn}\ns_branch L_a_x\nL_a_y:\ns_barrier\ns_sleep {bsl}\nL_a_x:')
    else: a(f's_cmp_lt_u32 s33, 14\ns_cbranch_scc0 L_a_x\ns_barrier\ns_sleep {bsl}\nL_a_x:')
    if not nob: a('buffer_store_dword v8, v121, s[44:47], s54 offen sc1')
    if dirty:
        a(f's_add_u32 s28, s28, s55\ns_addc_u32 s29, s29, 0')
        for k in range(dirty): a(f's_add_u32 s28, s28, 0x100000\ns_addc_u32 s29, s29, 0\nglobal_store_dword v121, v8, s[28:29]')
    fin()
    for r in rare: r()
    rare.clear()

    role[0] = 'wo'
    a('L_T:\nv_and_b32 v0, 63, v0')
    if pf3:
        a(f'''s_cmp_eq_u32 s31, 13
              s_cbranch_scc0 L_T1
              s_mul_i32 s50, s33, 19
              s_lshl_b32 s51, s32, 10
              v_add_u32 v2, s50, v0
              v_min_u32 v2, 447, v2
              v_lshl_add_u32 v2, v2, 13, s51
              s_mov_b64 exec, 0x7ffff
              global_load_dword v127, v2, s[10:11] offset:384
              s_mov_b64 exec, -1
              L_T1:''')
    a('''s_cmp_lt_u32 s33, 14
         s_cbranch_scc1 L_t_go
         s_cmp_eq_u32 s31, 8
         s_cbranch_scc1 L_t_go''')
    def pfcode():
        a('L_pf:')
        if fpf:
            a(f'''s_cmp_lt_u32 s31, 10
                  s_cbranch_scc1 L_end
                  s_mul_i32 s50, s33, 6
                  s_add_u32 s50, s50, s31
                  s_sub_u32 s50, s50, 94
                  s_cmp_lt_u32 s50, 56
                  s_cbranch_scc0 L_end''')
            if fpf:
                a(f'''s_cmp_lt_u32 s32, 4
                      s_cselect_b32 s52, 6, 8
                      s_cselect_b32 s53, 0, 8
                      s_cselect_b32 s56, 0x77777777, -1
                      s_cselect_b32 s58, 21, 28
                      s_mul_i32 s52, s52, s32
                      s_sub_u32 s52, s52, s53
                      s_lshr_b32 s51, s50, 1
                      s_waitcnt lgkmcnt(0)
                      s_bitcmp1_b32 s50, 0
                      s_cbranch_scc1 L_pf_2
                      s_mul_i32 s54, s51, {16*3584}
                      s_lshl_b32 s52, s52, 6
                      s_add_u32 s54, s54, s52
                      v_lshrrev_b32 v4, 2, v0
                      v_mul_u32_u24 v4, 3584, v4
                      v_and_b32 v5, 3, v0
                      v_lshl_add_u32 v4, v5, 7, v4
                      v_add_u32 v4, s54, v4
                      s_branch L_pf_3
                      L_pf_2:
                      s_mul_i32 s52, s52, {32*896}
                      s_lshl_b32 s54, s51, 13
                      s_add_u32 s54, s54, s52
                      v_lshl_add_u32 v4, v0, 7, s54
                      s_mov_b64 s[16:17], s[18:19]
                      s_cmp_lt_u32 s51, s58
                      s_cselect_b32 s56, -1, 0
                      L_pf_3:
                      s_mov_b32 s57, s56''')
            if wopf:
                a(f'''s_lshl_b32 s52, s50, 13
                      s_mul_i32 s51, s32, {512*896}
                      s_add_u32 s52, s52, s51
                      v_lshl_add_u32 v2, v0, 7, s52''')
                ldswait('L_pf_g', L_C, wopf, 4)
                if wolanes < 64: a(f's_mov_b32 exec_hi, {(1 << (wolanes - 32)) - 1}')
                a('global_load_dword v3, v2, s[12:13]')
            a('s_barrier\ns_barrier')
            if fpf: a('s_mov_b64 exec, s[56:57]\ns_cbranch_execz L_end\nglobal_load_dword v6, v4, s[16:17]' + pfnt)
        a('s_endpgm')
    a('''s_branch L_pf
         L_t_go:
         s_waitcnt lgkmcnt(0)''')
    dzero()
    a('L_t_go2:')
    tail_setup()
    a(f'''s_cmp_ge_u32 s33, 7
          s_cselect_b32 s50, 1, 0
          s_cselect_b32 s51, 7, 0
          s_sub_u32 s51, s33, s51
          s_lshl_b32 s52, s32, 1
          s_add_u32 s50, s50, s52
          s_lshl_b32 s52, s50, 8
          s_lshr_b32 s53, s49, 2
          s_lshl_b32 s53, s53, 7
          s_add_u32 s52, s52, s53
          s_and_b32 s53, s49, 1
          s_lshl_b32 s53, s53, 6
          s_add_u32 s52, s52, s53
          s_and_b32 s53, s49, 2
          s_lshl_b32 s53, s53, 1
          s_add_u32 s52, s52, s53
          s_mul_i32 s52, s52, 896
          s_lshl_b32 s53, s51, 7
          s_add_u32 s52, s52, s53
          s_add_u32 s53, s52, {8*896}
          s_mov_b32 s36, s12
          s_mov_b32 s37, s13
          s_mov_b32 s38, {4096*896}
          s_mov_b32 s39, 0x20000
          s_mul_i32 s40, s50, {24*1024}
          s_lshl_b32 s41, s49, 7
          s_add_u32 s40, s40, s41
          s_add_u32 s40, s40, {X3F}
          s_add_u32 s41, s40, 8192
          s_add_u32 s42, s40, 16384
          s_lshr_b32 s54, s50, 2
          s_lshl_b32 s54, s54, 13
          s_lshl_b32 s55, s50, 11
          s_add_u32 s54, s54, s55
          s_lshl_b32 s55, s51, 8
          s_add_u32 s54, s54, s55
          s_add_u32 s54, s54, {X4}
          s_add_u32 s55, s54, {SIDE}
          s_mov_b32 s43, 0
          s_mov_b32 s57, 0x04000c0c
          s_mov_b32 s58, {hex(f2u(0.0625 * LOG2E))}
          s_lshl_b32 s59, s49, 8
          s_add_u32 s59, s59, {L_P}
          v_lshrrev_b32 v12, 3, v0
          v_and_b32 v13, 7, v0
          v_lshlrev_b32 v3, 10, v12
          v_lshl_add_u32 v3, v13, 4, v3
          v_lshrrev_b32 v5, 4, v0
          v_lshl_add_u32 v5, v13, 2, v5
          v_lshl_add_u32 v5, v5, 1, s56
          v_lshl_add_u32 v6, v0, 4, s59
          v_lshlrev_b32 v4, 2, v0''')
    voff4(1, 16 * 896, 896, 12)
    def wold():
        stamp(3)
        for u in range(4):
            a(f'buffer_load_dwordx4 v[{80+4*u}:{83+4*u}], v1, s[36:39], s{52+(u>>1)} offen offset:{(u&1)*2*896}{wont}')
    maskaddr(8, 2, 's56', L_Z + 64, 12)
    a('s_waitcnt lgkmcnt(0)')
    tags()
    lanetag(7, 0); rowtag(98, 99)
    a('''v_and_b32 v10, 3, v0
         v_lshlrev_b32 v10, 3, v10
         v_lshlrev_b32_e64 v10, v10, 12
         v_xor_b32 v10, 0x0c0c0c0c, v10''')
    a(f'''s_cmp_eq_u32 s49, 0
          s_cbranch_scc0 L_wo
          v_lshlrev_b32 v2, 4, v0
          s_lshl_b32 s4, s32, 11
          s_add_u32 s4, s4, {X2F}
          s_mov_b32 m0, {L_Q}
          s_mov_b32 s62, 0
          s_setprio {pprio}
          L_p_loop:
          buffer_load_dwordx4 v2, s[44:47], s4 offen sc1 lds
          buffer_load_dwordx4 v2, s[44:47], s4 offen offset:1024 sc1 lds
          s_sleep {sleep}
          s_cmp_eq_u32 s62, {(1 << fastbits) * STEP}
          s_cselect_b32 s5, {X2F - X2}, 0
          s_sub_u32 s4, s4, s5
          ds_read2st64_b32 v[12:13], v2 offset0:{L_Q // 256} offset1:{L_Q // 256 + 4}
          s_waitcnt vmcnt(32) lgkmcnt(0)
          v_bitop3_b32 v12, v12, v13, s3 bitop3:0x7e
          v_cmp_ne_u32_sdwa vcc, v12, 0 src0_sel:WORD_0 src1_sel:DWORD''')
    spin('L_p_loop', 'L_p_ok')
    a('s_setprio 0')
    stamp(2)
    a('s_cmp_lt_u32 s33, 14\ns_cbranch_scc0 L_fin\nL_wo:')
    hop('w')
    if not wolate:
        ldswait('L_wo_g', L_C, gaten, 2)
        if gsl: a(f's_sleep {gsl}')
        wold()
    else: a('v_mov_b32 v100, 0')
    setprio(3)
    a('s_barrier\ns_barrier')
    if wolate: wold()
    stamp(4)
    x3l = [f'buffer_load_dwordx4 v[{32+4*s}:{35+4*s}], v3, s[44:47], s{40+s} offen sc1' for s in range(3)]
    for l in x3l: a(l)
    if peel:
        a('s_waitcnt vmcnt(0)')
        for i in range(3): a(f'v_cmp_ne_u32_sdwa s[{4+2*i}:{5+2*i}], v{32+4*i}, v7 src0_sel:BYTE_0 src1_sel:DWORD')
        for i in range(3): a(f's_wqm_b64 exec, s[{4+2*i}:{5+2*i}]\n{x3l[i]}')
        a('s_mov_b64 exec, -1')
    else: a('s_waitcnt vmcnt(3)')
    fix4(80, 48); perms64(80, 16)
    stamp(5)
    gather('L_x3', x3l, 32, 4, 7, issued=True, nfast=2 << fastbits, warm=(fX3, 62),
           spec='\n'.join(f'v_perm_b32 v{48+2*s}, v{35+4*s}, v{34+4*s}, s57' for s in range(3)),
           switch='\n'.join(f's_sub_u32 s{40+s}, s{40+s}, {X3F - X3}' for s in range(3)) + '\ns_barrier\ns_mov_b32 s43, 1')
    stamp(6)
    a(f'''v_max3_f32 v54, v48, v50, v52
          v_xor_b32 v32, v32, v7
          v_xor_b32 v36, v36, v7
          v_max_f32_dpp v54, v54, v54 row_ror:8 {DPPF}
          v_mov_b32 v55, v54
          v_xor_b32 v40, v40, v7''')
    pad('w')
    a(f'''v_permlane32_swap_b32 v54, v55
          v_max_f32 v54, v54, v55
          v_mov_b32 v55, v54
          v_permlane16_swap_b32 v54, v55
          v_max_f32 v54, v54, v55''')
    a('v_mul_f32 v54, s58, v54')
    for s in range(3): a(f'v_fma_f32 v{56+2*s}, v{48+2*s}, s58, -v54')
    for s in range(3): a(f'v_exp_f32 v{56+2*s}, v{56+2*s}')
    xs('w_exp')
    a(f'''v_pk_mul_f32 v[44:45], v[32:33], v[56:57] op_sel_hi:[1,0]
          v_pk_mul_f32 v[46:47], v[34:35], v[56:57] op_sel_hi:[1,0]
          v_pk_fma_f32 v[44:45], v[36:37], v[58:59], v[44:45] op_sel_hi:[1,0,1]
          v_pk_fma_f32 v[46:47], v[38:39], v[58:59], v[46:47] op_sel_hi:[1,0,1]
          v_pk_fma_f32 v[44:45], v[40:41], v[60:61], v[44:45] op_sel_hi:[1,0,1]
          v_pk_fma_f32 v[46:47], v[42:43], v[60:61], v[46:47] op_sel_hi:[1,0,1]''')
    rscatter(44)
    a(f's_cmp_eq_u32 s49, 0\nv_add_f32_dpp v44, v44, v44 row_ror:8 {DPPF}')
    rnd('v44', 'v44')
    xs('w_o')
    a('ds_write_b16_d16_hi v5, v44')
    for tau in range(2): a(f'ds_read_b128 v[{64+4*tau}:{67+4*tau}], v{8+tau}')
    def wo_out(x):
        a(f'''s_mov_b64 exec, 0xffff
              ds_write_b128 v6, v[74:77]
              s_mov_b64 exec, 1
              ds_inc_u32 v0, v98 offset:{L_C+16}''')
        if x:
            a('s_mov_b64 exec, -1')
            allred_rows('v_add_f32', 54, 55)
            a('v_rcp_f32 v52, v54')
        xs('w_pre')
        a(f's_cbranch_scc0 L_wo_nb{x}\ns_barrier\nL_wo_nb{x}:')
        xs('w_bar')
    a('s_cbranch_scc1 L_wo_0\ns_cmp_eq_u32 s43, 0')
    mma2(72, 64, 16)
    xs('w_mm')
    wo_out('')
    fin()
    a('L_wo_0:')
    for s in range(3): a(f'v_perm_b32 v{48+s}, v{33+4*s}, v{33+4*s}, v10')
    for s in range(3): a(f'v_or_b32_dpp v{48+s}, v{48+s}, v{48+s} quad_perm:[1,0,3,2] {DPPF}')
    a('s_cmp_eq_u32 s43, 0')
    mma2(72, 64, 16, mid='\n'.join(f'v_or_b32_dpp v{48+s}, v{48+s}, v{48+s} quad_perm:[2,3,0,1] {DPPF}' for s in range(3)))
    xs('w_mm')
    a(f'''v_mul_f32 v54, v56, v48
          v_fmac_f32 v54, v58, v49
          v_fmac_f32 v54, v60, v50
          s_mov_b32 s62, 0
          v_add_f32_dpp v54, v54, v54 row_ror:8 {DPPF}''')
    wo_out('0')
    a(f'L_wo_s:\nds_read_b32 v24, v100 offset:{L_C+16}')
    sumrows(8, L_P, 4, None, f's_waitcnt lgkmcnt({0 if (diag and only is None) else 4})\nv_cmp_ne_u32 vcc, 8, v24')
    rare.append(lambda: a(f'L_wo_sr:\ns_add_u32 s62, s62, {STEP}\ns_cbranch_scc0 L_wo_s\ns_branch L_wo_sok'))
    a('v_mul_f32 v16, v52, v16')
    a(f'''v_and_or_b32 v16, v16, v98, v99
          s_cbranch_vccnz L_wo_sr
          L_wo_sok:
          buffer_store_dword v16, v4, s[44:47], s54 offen sc1
          buffer_store_dword v16, v4, s[44:47], s55 offen sc1''')
    stamp(7)
    if bev: a(f's_waitcnt vmcnt(0)\nds_write_b32 v100, v24 offset:{L_C+20}')
    a('L_fin:')
    fin()
    for r in rare: r()
    rare.clear()

    role[0] = 'F'
    if paged: a('.p2align 12\nL_F2:')
    else: fstart()
    dzero(); stamp(1)
    a('s_load_dword s30, s[28:29], 0')
    ws_srd(); perm_sel()
    a(f'''s_lshl_b32 s52, s31, 8
          s_add_u32 s56, s52, 0x2400
          s_mov_b32 s59, {hex(f2u(448.0))}
          s_mov_b32 s58, 0x3f803f80
          v_mov_b32 v12, 0
          v_lshlrev_b32 v4, 2, v0
          ds_write_b32 v4, v12 offset:{FZ}
          v_add_u32 v6, s56, v6
          v_lshl_add_u32 v5, v5, 1, s52''')
    maskaddr(8, 2, 's56', FZ + 64, 12)
    a('''s_waitcnt vmcnt(8)
         v_dot2_f32_bf16 v102, v96, s58, 0
         v_dot2_f32_bf16 v103, v96, v96, 0''')
    for i in range(1, 4):
        a(f'v_dot2_f32_bf16 v102, v{96+i}, s58, v102')
        a(f'v_dot2_f32_bf16 v103, v{96+i}, v{96+i}, v103')
    for sh in (8, 4, 2, 1):
        a(f'v_add_f32_dpp v102, v102, v102 row_ror:{sh} {DPPF}')
        a(f'v_add_f32_dpp v103, v103, v103 row_ror:{sh} {DPPF}')
    allred_rows('v_add_f32', 102, 104); allred_rows('v_add_f32', 103, 104)
    a('v_lshlrev_b32 v96, 16, v100')
    ln_apply(102, 103, (100, 96), 104)
    a(f'''s_lshl_b32 s52, s32, 11
          s_lshl_b32 s53, s33, 8
          s_add_u32 s52, s52, s53
          s_add_u32 s53, s52, {X2F}
          s_add_u32 s52, s52, {X2}
          s_waitcnt lgkmcnt(0)''')
    tags()
    a('s_waitcnt vmcnt(4)')
    fix4(32, 104); perms64(32, 64)
    a(f'''s_mov_b32 s49, {X1}
          s_add_u32 s50, s31, 0
          s_lshr_b32 s63, s50, 3
          s_lshl_b32 s63, s63, 13
          s_lshl_b32 s50, s50, 10
          s_add_u32 s50, s50, s63
          s_add_u32 s50, s50, s49
          s_add_u32 s51, s31, 7
          s_lshr_b32 s63, s51, 3
          s_lshl_b32 s63, s63, 13
          s_lshl_b32 s51, s51, 10
          s_add_u32 s51, s51, s63
          s_add_u32 s51, s51, s49
          s_waitcnt vmcnt(0)''')
    fix4(48, 104); perms64(48, 80)
    a('''s_add_u32 s8, s31, 14
          s_lshr_b32 s63, s8, 3
          s_lshl_b32 s63, s63, 13
          s_lshl_b32 s8, s8, 10
          s_add_u32 s8, s8, s63
          s_add_u32 s8, s8, s49
          s_add_u32 s9, s31, 21
          s_lshr_b32 s63, s9, 3
          s_lshl_b32 s63, s63, 13
          s_lshl_b32 s9, s9, 10
          s_add_u32 s9, s9, s63
          s_add_u32 s9, s9, s49
          s_add_u32 s10, s31, 28
          s_lshr_b32 s63, s10, 3
          s_lshl_b32 s63, s63, 13
          s_lshl_b32 s10, s10, 10
          s_add_u32 s10, s10, s63
          s_add_u32 s10, s10, s49
          s_add_u32 s11, s31, 35
          s_lshr_b32 s63, s11, 3
          s_lshl_b32 s63, s63, 13
          s_lshl_b32 s11, s11, 10
          s_add_u32 s11, s11, s63
          s_add_u32 s11, s11, s49''')
    stamp(2)
    poll4('L_q_x1', [f'buffer_load_dwordx4 v[{32+4*s}:{35+4*s}], v41, s[44:47], s{50+s} offen sc1' for s in range(2)], 32, 40)
    stamp(3)
    if mxe:
        for s in range(4): a(f'buffer_load_dwordx4 v[{104+4*s}:{107+4*s}], v41, s[44:47], s{8+s} offen sc1')
    rscatter(36); rscatter(32)
    rnd('v36', 'v36'); rnd('v32', 'v32')
    a('v_add_f32 v36, 1.0, v36'); rnd('v36', 'v36')
    a('v_mul_f32 v36, v100, v36'); rnd('v36', 'v36')
    a('v_add_f32 v36, v36, v32'); rnd('v36', 'v36')
    a('ds_write_b16_d16_hi v6, v36')
    for u in range(2):
        for tau in range(2): a(f'ds_read_b128 v[{32+8*u+4*tau}:{35+8*u+4*tau}], v{8+tau} offset:{64*u}')
    mma2(48, 32, 64, left=2); mma2(48, 40, 80, first=False)
    a(f'''v_mov_b32 v24, 1
          s_mov_b32 s62, 0
          s_mov_b64 exec, 0xffff
          s_cmp_eq_u32 s31, 0
          ds_write_b128 v5, v[50:53] offset:{FP}
          s_mov_b64 exec, 1
          ds_add_u32 v0, v24 offset:{FC+4}
          s_mov_b64 exec, -1
          s_cbranch_scc0 L_q_done
          v_mov_b32 v25, 0
          L_q_s:
          ds_read_b32 v24, v25 offset:{FC+4}''')
    sumrows(7, FP, 4, 'v_cmp_ne_u32 vcc, 8, v24')
    rnd('v16', 'v16')
    rare.append(lambda: a(f'L_q_sr:\ns_add_u32 s62, s62, {STEP}\ns_cbranch_scc0 L_q_s\ns_branch L_q_sok'))
    a('''v_or_b32 v16, s3, v16
         s_cbranch_vccnz L_q_sr
         L_q_sok:
         buffer_store_dword v16, v4, s[44:47], s53 offen
         buffer_store_dword v16, v4, s[44:47], s52 offen sc1''')
    a(f'ds_write_b32 v25, v24 offset:{FC+16}')
    if rewarm:
        a(f'''s_cmp_eq_u32 s33, 7
              s_cbranch_scc0 L_q_done
              s_getpc_b64 s[4:5]
              L_pc2:
              s_sub_u32 s4, s4, L_pc2-L_pc
              s_subb_u32 s5, s5, 0
              v_lshlrev_b32 v102, 7, v0
              v_add_u32 v103, 0x2000, v102
              v_min_u32 v103, L_code_end-L_pc-4, v103
              global_load_dword v127, v102, s[4:5] sc1
              global_load_dword v127, v103, s[4:5] sc1''')
    a('L_q_done:')
    stamp(4)
    def ffn_id(skip):
        a(f'''s_cmp_lt_u32 s32, 4
              s_cselect_b32 s50, 6, 8
              s_cselect_b32 s51, 0, 8
              s_cmp_lt_u32 s33, s50
              s_cbranch_scc0 {skip}''')
    def wp3():
        a(f'''s_mul_i32 s14, s33, 7
              s_add_u32 s14, s14, s31
              s_lshl_b32 s14, s14, 13
              s_mul_i32 s15, s32, {512*896}
              s_add_u32 s14, s14, s15
              v_lshl_add_u32 v126, v0, 7, s14
              global_load_dword v127, v126, s[12:13]''')
    if vpf:
        assert tbl == 1
        a(f'''s_cmp_lt_u32 s31, 6
              s_cbranch_scc0 L_f_nv
              s_load_dwordx2 s[6:7], s[0:1], 16
              s_mul_i32 s52, s33, 6
              s_add_u32 s52, s52, s31
              s_lshl_b32 s52, s52, 2
              s_lshr_b32 s53, s52, 3
                      s_and_b32 s52, s52, 7
                      s_lshl_b32 s54, s53, 2
                      s_add_u32 s55, s54, 6
                      s_min_u32 s54, s54, 13
                      s_min_u32 s55, s55, 15
                      s_mul_i32 s15, s53, 43
                      s_cmp_ge_u32 s53, 17
                      s_cselect_b32 s54, 64, s54
                      s_cselect_b32 s55, 63, s55
                      s_mul_i32 s53, s53, 40
                      s_cselect_b32 s15, s53, s15
                      s_lshl_b32 s53, s32, 14
                      s_add_u32 s15, s15, s53
                      s_add_u32 s15, s15, {WINOFF // 2048 + 5}
                      v_lshrrev_b32 v124, 4, v0
                      v_add_u32 v124, s52, v124
                      v_add_u32 v125, s54, v124
                      v_min_u32 v125, s55, v125
                      v_mad_u32_u24 v124, v124, 5, v125
                      v_add_u32 v124, s15, v124
                      v_and_b32 v125, 15, v0
                      v_lshlrev_b32 v125, 7, v125
                      v_lshl_add_u32 v124, v124, 11, v125''')
        ldswait('L_f_qv', FC + 16, 1, 1, 102)
        for k in range(vpf): a(f'global_load_dword v127, v124, s[6:7] offset:{-2048 * (vpf - 1 - k)}{vpffl}')
        a('L_f_nv:')
    if wopf3:
        ldswait('L_f_q3', FC + 16, 1, 1, 102)
        if wopf3 > 1: a(f's_sleep {wopf3}')
        wp3()
    ffn_id('L_fin2')
    a(f'''s_mul_i32 s50, s50, s32
          s_add_u32 s50, s50, s33
          s_sub_u32 s50, s50, s51
          s_mov_b32 s36, s16
          s_mov_b32 s37, s17
          s_mov_b32 s38, {448*3584}
          s_mov_b32 s40, s18
          s_mov_b32 s41, s19
          s_mov_b32 s42, {1792*896}
          s_mul_i32 s52, s31, {64*3584}
          s_lshl_b32 s53, s50, 6
          s_add_u32 s52, s52, s53
          s_mul_i32 s54, s50, {32*896}
          s_lshl_b32 s55, s31, 7
          s_add_u32 s54, s54, s55
          s_add_u32 s55, s54, {4*896}
          v_and_b32 v4, 15, v0
          v_mul_u32_u24 v2, {8*3584}, v3
          v_lshl_add_u32 v2, v4, 2, v2''')
    voff4(1, 8 * 896, 896, 102)
    if not mxe or not hintk: ldswait('L_f_q', FC + 16, 1, 1, 102)
    poll4('L_f_mx', [f'buffer_load_dwordx4 v[{104+4*s}:{107+4*s}], v121, s[44:47], s{8+s} offen sc1' for s in range(4)], 104, 120, 0, mxe)
    for s in range(4): rscatter(104 + 4 * s)
    rnd('v102', 'v104'); rnd('v98', 'v108'); rnd('v100', 'v112'); rnd('v116', 'v116')
    a('v_add_f32 v100, 1.0, v100\ns_lshl_b32 s13, s31, 8\nv_lshl_add_u32 v103, v0, 2, s13')
    rnd('v100', 'v100')
    a(f'''ds_write_b32 v103, v116 offset:{FG}
          ds_write_b16_d16_hi v6, v100
          ds_write_b16_d16_hi v6, v98 offset:128''')
    hop('f')
    if hintk: ldswait('L_f_g', FC + 8, 1, 1, 104)
    stamp(5)
    for i in range(16):
        a(f'buffer_load_dword v{32+i}, v2, s[36:39], s52 offen offset:{3584*(i&1)}{w1nt}')
        if i & 1: a(f's_add_u32 s52, s52, {2*3584 if i != 7 else 26*3584}')
    for u in range(4):
        a(f'buffer_load_dwordx4 v[{48+4*u}:{51+4*u}], v1, s[40:43], s{54+(u>>1)} offen offset:{(u&1)*2*896}{w2nt}')
    maskaddr(10, 2, FH, FZ + 64, 104)
    lanetag(5, 0)
    getside(104)
    a(f'''s_lshr_b32 s12, s50, 2
          s_lshl_b32 s12, s12, 13
          s_lshl_b32 s14, s50, 11
          s_add_u32 s12, s12, s14
          s_add_u32 s12, s12, s13
          s_add_u32 s12, s12, {X5}
          v_and_b32 v7, 1, v3
          v_lshlrev_b32 v7, 13, v7
          v_lshl_add_u32 v7, v4, 4, v7''')
    if x5o:
        a(f'''s_cmp_ge_u32 s31, 3
              s_cselect_b32 s14, 4, 0
              s_xor_b32 s14, s14, s32
              s_lshr_b32 s14, s14, 2
              s_lshl_b32 s14, s14, 13
              s_xor_b32 s14, s14, s48
              v_xor_b32 v7, s14, v7''')
    a(f'''v_and_b32 v8, 1, v0
          v_lshlrev_b32 v8, 7, v8
          v_lshl_add_u32 v8, v3, 4, v8
          v_add_u32 v8, s56, v8
          v_lshlrev_b32 v2, 11, v3
          v_lshl_add_u32 v2, v4, 4, v2
          s_add_u32 s52, s13, {FA}
          v_lshl_add_u32 v9, v0, 3, s52
          s_lshl_b32 s52, s31, 7
          s_add_u32 s52, s52, {FP2}
          v_lshl_add_u32 v4, v0, 3, s52
          s_add_u32 s40, s13, s48
          s_add_u32 s40, s40, {X4}
          s_add_u32 s41, s40, {1 << 14}
          s_add_u32 s42, s40, {2 << 14}
          s_add_u32 s43, s40, {3 << 14}
          s_lshl_b32 s52, s31, 3
          s_add_u32 s52, s52, {FST}
          v_lshrrev_b32 v1, 5, v0
          v_lshl_add_u32 v3, v1, 2, s52
          s_mov_b32 s57, 0xffffff00
          s_mov_b32 s16, 0x10000
          s_mov_b32 s17, 0x10000
          ds_read_b128 v[80:83], v8
          ds_read_b128 v[84:87], v8 offset:64
          v_mov_b32 v12, 0
          v_mov_b32 v13, 1
          v_mov_b32 v120, 1''')
    x4l = [f'buffer_load_dwordx4 v[{104+4*s}:{107+4*s}], v2, s[44:47], s{40+s} offen sc1' for s in range(4)]
    def w1mma(k):
        for tau in range(2):
            d = 88 + 4 * tau; b = 16 + 8 * k + 4 * tau
            a(f'v_mfma_f32_16x16x32_bf16 v[{d}:{d+3}], v[{80+4*k}:{83+4*k}], v[{b}:{b+3}], ' + ('0' if k == 0 else f'v[{d}:{d+3}]'))
    stamp(6)
    a('s_waitcnt vmcnt(4) lgkmcnt(0)')
    for l in x4l: a(l)
    for aa in range(2):
        for tau in range(2):
            for rho in range(4):
                a(f'v_perm_b32 v{16+8*aa+4*tau+rho}, v{32+8*aa+2*rho+1}, v{32+8*aa+2*rho}, s{60+tau}')
    w1mma(0); w1mma(1)
    a(f'''s_mov_b64 exec, 0xffff
          ds_write2_b32 v9, v88, v92 offset0:0 offset1:1
          ds_write2_b32 v9, v89, v93 offset0:32 offset1:33
          s_mov_b64 exec, 1
          ds_add_u32 v0, v120 offset:{FC}
          s_mov_b64 exec, -1
          s_waitcnt vmcnt(4)''')
    fix4(48, 124); perms64(48, 64)
    setprio(2)
    stamp(7)
    def sum_hi(r, d):
        return f'''v_pk_add_f32 v[{d+2}:{d+3}], v[{r+2}:{r+3}], v[{r+6}:{r+7}]
                   v_pk_add_f32 v[{d}:{d+1}], v[{r+10}:{r+11}], v[{r+14}:{r+15}]
                   v_pk_add_f32 v[{d+2}:{d+3}], v[{d+2}:{d+3}], v[{d}:{d+1}]'''
    def sum_lo(r, d):
        for s in range(4): a(f'v_xor_b32 v{r+4*s}, v{r+4*s}, v5')
        pk('add', r, r, r + 4); pk('add', r + 8, r + 8, r + 12); pk('add', d, r, r + 8)
    gather('L_x4', x4l, 104, 4, 5, spec=sum_hi(104, 120), issued=True, warm=(fX4, 63))
    stamp(8)
    sum_lo(104, 120)
    pad('f')
    rscatter(120)
    rnd('v120', 'v120'); a('v_mul_f32 v120, v102, v120'); rnd('v120', 'v120'); a('v_add_f32 v120, v96, v120'); rnd('v121', 'v120')
    xs('x2')
    a(f'''v_mul_f32 v123, v121, v100
          v_mul_f32 v122, v121, v121
          v_cvt_pk_bf16_f32 v124, 0, v123
          v_sub_f32 v124, v123, v124
          v_cvt_pk_bf16_f32 v123, v124, v123
          ds_write_b16_d16_hi v6, v123
          ds_write_b16 v6, v123 offset:128
          ds_read_b128 v[80:83], v8
          ds_read_b128 v[84:87], v8 offset:64
          ds_write_b32 v103, v121 offset:{FX}
          v_permlane32_swap_b32 v121, v122
          v_add_f32 v121, v121, v122''')
    pad('f')
    a(f'''v_add_f32_dpp v121, v121, v121 row_ror:8 {DPPF}
          v_add_f32_dpp v121, v121, v121 row_ror:4 {DPPF}
          v_add_f32_dpp v121, v121, v121 row_ror:2 {DPPF}
          s_waitcnt lgkmcnt({0 if (diag and only is None) else 2})''')
    w1mma(0)
    a(f'''v_add_f32_dpp v121, v121, v121 row_ror:1 {DPPF}
          s_waitcnt lgkmcnt({0 if (diag and only is None) else 1})''')
    w1mma(1)
    a(f'''v_add_f32_dpp v121, v121, v121 row_bcast:15 row_mask:0xa bank_mask:0xf
          s_mov_b64 exec, s[16:17]
          ds_write_b32 v3, v121''')
    if est: a(f'ds_add_u32 v12, v13 offset:{FC+20}')
    a('s_mov_b64 exec, 0xffff')
    pad('f')
    a(f'''v_add_f32 v88, v88, v89
          v_add_f32 v92, v92, v93
          ds_write2_b32 v4, v88, v92 offset0:0 offset1:1''')
    if nw3: a(f's_mov_b64 exec, 1\nds_add_u32 v12, v13 offset:{FC+24}')
    else: a('s_waitcnt lgkmcnt(0)')
    stamp(11); xs('preB3')
    a('s_barrier\ns_mov_b64 exec, -1\ns_mov_b32 s62, 0')
    xs('B3')
    a('s_barrier')
    xs('B4')
    a('L_f_h1:')
    if nw4: a(f'ds_read_b32 v14, v12 offset:{FC+28}')
    for tau in range(2): a(f'ds_read_b128 v[{80+4*tau}:{83+4*tau}], v{10+tau}')
    mma2(32, 80, 64, mid='v_cmp_eq_u32 vcc, 0, v14' if nw4 else None)
    if nw4:
        a('s_cbranch_vccnz L_f_h1r\nL_f_h1ok:')
        rare.append(lambda: a(f'L_f_h1r:\ns_add_u32 s62, s62, {STEP}\ns_cbranch_scc0 L_f_h1\ns_branch L_f_h1ok'))
    xs('mm2')
    pad('f', True)
    if x5o == 2:
        a('''s_mov_b64 exec, 0xffff
             v_and_or_b32 v34, v34, s57, v5
             buffer_store_dwordx4 v[34:37], v7, s[44:47], s12 offen sc1''')
        stamp(9)
        a(f'''s_barrier
              v_xor_b32 v7, {SIDE}, v7
              s_waitcnt vmcnt(0)
              buffer_store_dwordx4 v[34:37], v7, s[44:47], s12 offen sc1
              L_fin2:''')
    else:
        a('''s_mov_b32 exec_hi, 0
             v_and_or_b32 v34, v34, s57, v5
             buffer_store_dwordx4 v[34:37], v7, s[44:47], s12 offen sc1''')
        stamp(9)
        a('s_barrier\nL_fin2:')
    fin()
    for r in rare: r()
    rare.clear()
    if not paged: a(f'''L_F7s:
              s_cmp_ge_u32 s31, 9
              s_cbranch_scc1 L_F9
              v_mov_b32 v2, 0
              v_lshlrev_b32 v3, 2, v0
              ds_write_b32 v3, v2 offset:{FC & ~255}
              s_waitcnt lgkmcnt(0)
              s_barrier
              s_branch L_F7
              L_F9:
              s_endpgm''')
    a(f'''L_F7:
          s_cmp_eq_u32 s31, 7
          s_cbranch_scc0 L_F8
          s_load_dword s30, s[28:29], 0
          v_mov_b32 v4, 1
          s_waitcnt lgkmcnt(0)
          s_mov_b64 exec, 1
          ds_add_u32 v2, v4 offset:{FC+4}
          s_mov_b64 exec, -1''')
    dzero()
    ws_srd()
    ffn_id('L_fin3')
    if hintk:
        a(f'''s_mul_i32 s49, s32, {24*128}
              s_add_u32 s49, s49, {HINT}
              v_lshlrev_b32 v102, 7, v0''')
        if mxe:
            ldswait('L_7_t', FC + 4, 2, 4, 104)
            a('s_mov_b64 exec, 0xffffff\nbuffer_load_dword v103, v102, s[44:47], s49 offen sc1\ns_mov_b64 exec, -1')
    ldswait('L_7_q', FC + 16, 1, 4, 104)
    tags()
    if hintk:
        a(f'''s_mul_i32 s54, s50, s32
              s_add_u32 s54, s54, s33
              s_and_b32 s54, s54, 6
              s_cmp_eq_u32 s54, 6
              s_cselect_b32 s54, {hintk if hk3 is None else hk3}, {hintk}
              s_mov_b64 exec, 0xffffff
              s_mov_b32 s62, 0
              L_f_h:
              s_sleep 2
              buffer_load_dword v103, v102, s[44:47], s49 offen sc1
              s_add_u32 s62, s62, {1 << (32 - fastbits)}
              s_waitcnt vmcnt(0)
              s_cbranch_scc1 L_f_hok
              v_cmp_eq_u32 vcc, s3, v103
              s_bcnt1_i32_b64 s53, vcc
              s_cmp_lt_u32 s53, s54
              s_cbranch_scc1 L_f_h
              L_f_hok:
              s_mov_b64 exec, -1
              v_mov_b32 v103, 1
              ds_write_b32 v2, v103 offset:{FC+8}''')
    a(f'''s_mul_i32 s50, s50, s32
          s_add_u32 s50, s50, s33
          s_sub_u32 s50, s50, s51
          v_mov_b32 v9, v3
          v_lshrrev_b32 v4, 4, v0
          v_lshlrev_b32 v81, 14, v4
          v_bfe_u32 v6, v0, 2, 2
          v_lshl_add_u32 v81, v6, 11, v81
          v_and_b32 v6, 3, v0
          v_lshl_add_u32 v81, v6, 4, v81
          s_bfe_u32 s52, s50, 0x20001
          s_lshl_b32 s52, s52, 2
          s_lshl_b32 s20, 0x000f000f, s52
          s_mov_b32 s21, s20
          s_lshr_b32 s52, s50, 3
          s_lshl_b32 s53, s52, 8
          v_add_u32 v3, s53, v3
          s_lshl_b32 s52, s52, 7
          v_and_b32 v6, 7, v0
          v_lshlrev_b32 v6, 4, v6
          v_and_b32 v7, 8, v0
          v_lshl_add_u32 v7, v4, 1, v7
          v_add3_u32 v101, v6, v7, s52
          s_mov_b32 s36, s24
          s_mov_b32 s37, s25
          s_mov_b32 s38, 896
          s_mov_b32 s39, 0x20000''')
    lanetag(5, 0)
    x5l = [f'buffer_load_dwordx4 v[{36+4*s}:{39+4*s}], v81, s[44:47], s{40+s} offen sc1' for s in range(4)]
    a('v_mov_b32 v48, v5\nv_mov_b32 v49, 0\nv_mov_b32 v50, 0\nv_mov_b32 v51, 0')
    hop('s')
    ldswait('L_7_g', FC, 2, 4, 102)
    getside(102)
    a(f'''s_lshl_b32 s40, s50, 5
          s_add_u32 s40, s40, s48
          s_add_u32 s40, s40, {X5}
          s_add_u32 s41, s40, {4 << 14}
          s_add_u32 s42, s40, {8 << 14}
          s_add_u32 s43, s40, {12 << 14}''')
    a('s_bitcmp1_b32 s50, 0\ns_cbranch_scc1 L_7_o\n' + '\n'.join(x5l[:3] if pt5 else [f'v_mov_b32 v{36+4*k}, 0xff' for k in range(3)]) + f'''
          s_mov_b32 exec_hi, 0
          {x5l[3] if pt5 else 'v_mov_b32 v48, 0xff'}
          {'buffer_load_ushort v125, v101, s[36:39], 0 offen' if opt else ''}
          s_mov_b32 exec_hi, -1
          L_7_o:''')
    ldswait('L_7_a', FC, 7, 1, 102)
    sumrows(7, FA, 9)
    a(f'''v_mov_b32 v17, v16
          v_and_b32 v14, 31, v0
          v_lshlrev_b32 v15, 1, v14
          v_permlane32_swap_b32 v16, v17
          v_lshlrev_b32 v14, 2, v14
          v_add_u32 v14, {FP2}, v14
          v_mov_b32 v1, {FST}
          v_mov_b32 v31, 0
          s_mov_b32 s59, {hex(f2u(448.0))}''')
    align('S')
    setprio(3)
    cw = lambda n: f's_waitcnt lgkmcnt({0 if (diag and only is None) else n})'
    if est:
        a(f'''s_mov_b32 s62, 0
              L_7_s:
              ds_read_b32 v70, v31 offset:{FC+20}
              ds_read_b128 v[56:59], v1
              ds_read_b128 v[60:63], v1 offset:16
              ds_read_b128 v[64:67], v1 offset:32
              ds_read_b64 v[68:69], v1 offset:48
              s_add_u32 s62, s62, {STEP >> 2}
              s_cbranch_scc1 L_7_sok
              {cw(4)}
              v_cmp_ne_u32 vcc, 14, v70
              s_cbranch_vccnz L_7_s
              L_7_sok:
              s_waitcnt lgkmcnt(0)''')
        pk('add', 56, 56, 58); pk('add', 60, 60, 62)
        pk('add', 64, 64, 66); pk('add', 56, 56, 60); pk('add', 64, 64, 68); pk('add', 56, 56, 64)
        a(f'''s_barrier
              ds_read2_b32 v[24:25], v14 offset0:0 offset1:32
              ds_read2_b32 v[26:27], v14 offset0:64 offset1:96
              ds_read2_b32 v[28:29], v14 offset0:128 offset1:160
              ds_read_b32 v30, v14 offset:768''')
        a(f'''v_mul_f32 v60, v56, v56
              v_fma_f32 v61, v56, v56, -v60
              v_fma_f32 v60, v57, s59, -v60
              v_sub_f32 v60, v60, v61
              v_mul_f32 v60, {hex(f2u(1/448/448))}, v60
              v_max_f32 v60, 0, v60''')
        rnd('v60', 'v60')
        a(f'v_add_f32 v60, {hex(f2u(1e-5))}, v60')
        rnd('v60', 'v60')
        a(f'v_sqrt_f32 v60, v60\nv_mul_f32 v62, {hex(f2u(1/448))}, v56')
        rnd('v60', 'v60')
        a('s_waitcnt lgkmcnt(0)\nv_rcp_f32 v60, v60')
        pk('add', 24, 24, 26); pk('add', 28, 28, 30)
        rnd('v62', 'v62')
        pk('add', 24, 24, 28)
        a('''v_fma_f32 v24, -v62, v16, v24
             v_add_f32 v24, v24, v25
             v_fma_f32 v24, v24, v60, v17''')
    else:
        a('s_mov_b32 s62, 0\ns_barrier\nL_7_t:')
        if nw3: a(f'ds_read_b32 v70, v31 offset:{FC+24}')
        a(f'''ds_read_b128 v[56:59], v1
              ds_read_b128 v[60:63], v1 offset:16
              ds_read_b128 v[64:67], v1 offset:32
              ds_read_b64 v[68:69], v1 offset:48
              ds_read2_b32 v[24:25], v14 offset0:0 offset1:32
              ds_read2_b32 v[26:27], v14 offset0:64 offset1:96
              ds_read2_b32 v[28:29], v14 offset0:128 offset1:160
              ds_read_b32 v30, v14 offset:768''')
        a(cw(6))
        if nw3: a('v_cmp_ne_u32 vcc, 7, v70')
        pk('add', 56, 56, 58); pk('add', 60, 60, 62)
        a(cw(4))
        pk('add', 64, 64, 66); pk('add', 56, 56, 60); pk('add', 64, 64, 68); pk('add', 56, 56, 64)
        a(f'''v_mul_f32 v60, v56, v56
              v_fma_f32 v61, v56, v56, -v60
              v_fma_f32 v60, v57, s59, -v60
              v_sub_f32 v60, v60, v61
              v_mul_f32 v60, {hex(f2u(1/448/448))}, v60
              v_max_f32 v60, 0, v60''')
        rnd('v60', 'v60')
        a(f'v_add_f32 v60, {hex(f2u(1e-5))}, v60')
        rnd('v60', 'v60')
        a(f'v_sqrt_f32 v60, v60\nv_mul_f32 v62, {hex(f2u(1/448))}, v56')
        rnd('v60', 'v60')
        a('s_waitcnt lgkmcnt(0)\nv_rcp_f32 v60, v60')
        pk('add', 24, 24, 26); pk('add', 28, 28, 30)
        rnd('v62', 'v62')
        pk('add', 24, 24, 28)
        a('''v_fma_f32 v24, -v62, v16, v24
             v_add_f32 v24, v24, v25
             v_fma_f32 v24, v24, v60, v17''')
    rnd('v24', 'v24')
    silu(24, 24, 25, 's')
    if nw3:
        a('s_cbranch_vccnz L_7_tr\nL_7_tok:')
        rare.append(lambda: a(f'L_7_tr:\ns_add_u32 s62, s62, {STEP}\ns_cbranch_scc0 L_7_t\ns_branch L_7_tok'))
    a(f'ds_write_b16_d16_hi v15, v24 offset:{FH}')
    a(f'ds_write_b32 v31, v1 offset:{FC+28}' if nw4 else 's_waitcnt lgkmcnt(0)')
    a('''s_barrier
         s_bitcmp1_b32 s50, 0
         s_cbranch_scc1 L_fin3''')
    a(f'''ds_read_b32 v96, v3 offset:{FX}
          ds_read_b32 v100, v3 offset:{FG}
          s_cmp_eq_u32 s50, 0
          s_cbranch_scc0 L_7_e
          s_mov_b64 exec, 1
          v_mov_b32 v6, s30
          buffer_store_dword v6, v2, s[44:47], 0 offen
          s_mov_b64 exec, -1
          L_7_e:''')
    pad('s')
    a('s_barrier\ns_waitcnt lgkmcnt(0)')
    if d5: a(f'; back off one flight time: nothing can have arrived yet, and a read that is too early costs a whole round trip\ns_sleep {d5}')
    gather('L_x5', x5l, 36, 4, 5, issued=True, spec=sum_hi(36, 32))
    stamp(12)
    sum_lo(36, 32)
    pad('s')
    rscatter(32)
    a(f'v_add_f32_dpp v32, v32, v32 row_ror:8 {DPPF}')
    pad('s', True)
    a(f'v_add_f32_dpp v32, v32, v32 row_ror:4 {DPPF}')
    rnd('v32', 'v32'); a('v_mul_f32 v32, v100, v32'); rnd('v32', 'v32'); a('v_add_f32 v32, v96, v32\ns_mov_b64 exec, s[20:21]'); rnd('v32', 'v32')
    a('buffer_store_short_d16_hi v32, v101, s[36:39], 0 offen' + ofl)
    stamp(14)
    if lite: a('s_branch L_dump')
    a('L_fin3:')
    fin()
    for r in rare: r()
    rare.clear()
    a(f'''L_F8:
          s_lshl_b32 s48, s2, 7
          s_add_u32 s48, s48, {PRB}
          s_add_u32 s49, s48, {SIDE}
          s_mov_b32 s52, -1
          s_mov_b32 s53, -1
          s_mov_b32 s54, 0
          s_waitcnt lgkmcnt(0)''')
    if tlb:
        a(f'''s_lshl_b32 s50, s32, 25
              s_add_u32 s50, s50, {WINOFF}
              s_mov_b32 s51, {4096*896-4}
              s_load_dword s56, s[8:9], s50
              s_load_dword s57, s[12:13], 0
              s_load_dword s58, s[12:13], s51
              s_load_dword s59, s[16:17], 0
              s_load_dword s60, s[18:19], 0
              s_load_dword s61, s[24:25], 0''')
    dzero()
    if fside is not None:
        a(f'''s_getreg_b32 s55, hwreg(HW_REG_XCC_ID)
              s_bfe_u32 s55, s55, 0x10002
              s_xor_b32 s55, s55, {fside}
              s_lshl_b32 s55, s55, 13
              v_mov_b32 v3, s55
              ds_write_b32 v2, v3 offset:{FC+12}''')
    else:
        a('s_load_dword s10, s[28:29], s48 glc\ns_load_dword s11, s[28:29], s49 glc\ns_waitcnt lgkmcnt(0)\nL_8_l:')
        for sd in range(2):
            a(f'''s_memtime s[4:5]
                  s_waitcnt lgkmcnt(0)
                  s_load_dword s10, s[28:29], s{48+sd} glc
                  s_waitcnt lgkmcnt(0)
                  s_memtime s[6:7]
                  s_lshr_b32 s8, s33, {sd}
                  s_add_u32 s8, s8, s54
                  s_bitcmp1_b32 s8, 0
                  s_waitcnt lgkmcnt(0)
                  s_cbranch_scc0 L_8_n{sd}
                  s_sleep 3
                  L_8_n{sd}:
                  s_sub_u32 s4, s6, s4
                  s_min_u32 s{52+sd}, s{52+sd}, s4''')
        a(f'''s_cmp_lt_u32 s53, s52
              s_cselect_b32 s55, {SIDE}, 0
              v_mov_b32 v3, s55
              ds_write_b32 v2, v3 offset:{FC+12}''')
        if diag:
            for k in (1, 2, 3, 4): a(f's_cmp_eq_u32 s54, {k-1}\ns_cbranch_scc0 L_8_d{k}\ns_memrealtime s[{64+2*k}:{65+2*k}]\ns_add_u32 s{64+2*(k+4)}, s55, 1\nL_8_d{k}:')
        a(f'''s_add_u32 s54, s54, 1
              s_cmp_lt_u32 s54, {nprb}
              s_cbranch_scc1 L_8_l''')
    if diag:
        a('s_add_u32 s90, s55, 1\ns_getreg_b32 s88, hwreg(HW_REG_XCC_ID)\ns_mov_b32 s86, s52\ns_mov_b32 s84, s53')
        fin()
    else: a('s_endpgm')
    pfcode()
    if probe:
        a('L_probe:\ns_cmp_eq_u32 s68, 0\ns_cbranch_scc1 L_end')
        if len(probe) > 2 and probe[2] is not None: a(f's_cmp_eq_u32 s32, {probe[2]}\ns_cbranch_scc0 L_end')
        if len(probe) > 3 and probe[3] is not None: a(f's_cmp_eq_u32 s31, {probe[3]}\ns_cbranch_scc0 L_end')
        a('''s_setprio 0
             s_sleep 127
             s_sleep 127
             s_sleep 127
             s_sleep 127
             s_sleep 127
             L_probe_l:
             s_memrealtime s[66:67]
             s_waitcnt lgkmcnt(0)
             s_sub_u32 s66, s66, s64
             s_cmp_lt_u32 s66, 3000
             s_cbranch_scc1 L_probe_l
             s_endpgm''')
    if diag or lite:
        a(f'''L_dump:
              s_mov_b64 exec, -1
              s_waitcnt vmcnt(0) lgkmcnt(0)
              s_memrealtime s[94:95]
              s_lshl_b32 s48, s2, 4
              s_add_u32 s48, s48, s31
              s_lshl_b32 s48, s48, 6
              s_add_u32 s48, s48, {STAMP_OFF}
              v_mov_b32 v1, s48
              s_waitcnt lgkmcnt(0)''')
        for i in range(16): a(f'v_mov_b32 v{8+i}, s{64+2*i}')
        a('s_mov_b64 exec, 1')
        for i in range(4): a(f'global_store_dwordx4 v1, v[{8+4*i}:{11+4*i}], s[28:29] offset:{16*i}')
    a('L_end:\ns_endpgm\nL_code_end:')
    head = open('adaLN_cond__sliding_block_cached__dense_activation_silu__decode.s.ref').read().split('; Override launch')[0]
    return head + f'''; @launch grid=(256,1,1) block=(1024,1,1) lds={L_END}
{DOC.rstrip()}
.amdgcn_target "amdgcn-amd-amdhsa--gfx950"
.text
.globl {KN}
{'.p2align 12' if paged else ''}
.p2align 8
.type {KN},@function
''' + annotate(a.text()) + f'''.section .rodata,"a"
.p2align 6
.amdhsa_kernel {KN}
  .amdhsa_next_free_vgpr 128
  .amdhsa_next_free_sgpr 96
  .amdhsa_accum_offset 128
  .amdhsa_group_segment_fixed_size 0
  .amdhsa_kernarg_size 104
  .amdhsa_user_sgpr_count 2
  .amdhsa_user_sgpr_kernarg_segment_ptr 1
  .amdhsa_system_sgpr_workgroup_id_x 1
.end_amdhsa_kernel
'''

if __name__ == '__main__':
    out = sys.argv[1]
    kw = eval('dict(' + (sys.argv[2] if len(sys.argv) > 2 else '') + ')')
    open(out, 'w').write(gen(**kw))
```

```python
import sys, struct
sys.path.insert(0, 'work')
from asmlib import Asm

KN = 'adaLN_cond__sliding_block_cached__dense_activation_silu__decode_kernel'
X2, X2F, HINT, PRB, X1, X4, X5, X3, X3F, WSEND = 0x4000, 0x8000, 0xC000, 0x80000, 0x18000, 0x30000, 0x40000, 0xA0000, 0x100000, 0x160000
SIDE = 0x2000
STAMP_OFF = 0x180000
L_Q, L_M, L_C, L_L, L_Z, L_O, L_PRIV, L_P, L_END = 0x0, 0x800, 0x810, 0x840, 0x900, 0x1000, 0x5000, 0x5800, 0x6100
FM = 0x300
FZ, FC, FP, FP2, FST, FX, FG, FA, FH = 0x0, 0x240, 0x1000, 0x1800, 0x2000, 0x3000, 0x3800, 0x4000, 0x2100
WINOFF = (65536 - 4096) * 512

DOC = """;
"""
def f2u(x): return struct.unpack('<I', struct.pack('<f', x))[0]
LOG2E = 1.4426950408889634
DPPF = 'row_mask:0xf bank_mask:0xf'

CM = {'L_A': 'attention CUs: waves 0..7 start their K loads inside the first fetched lines', 'L_a_u': 'CUs whose modulation task is on the path to q let its loads go first', 'L_Td': 'waves 8..15 of the attention CUs; waves 12..15 clear the first 4 KB of LDS (q slot, max, counters, zero rows)', 'L_mod': 'modulation task: 112 rows x 64 columns of w_mod, raw rows as B operand, silu(c) on a diagonal A operand', 'L_F': 'front CUs: wq loads', 'L_a_c': 'attention: lane constants, then the paced K and V loads', 'L_a_q': 'attention: wait for q in LDS, scores (diagonal blocks of K x q), CU-wide max, exp, P x V, combine the waves, publish', 'L_T': 'tail waves: set-up, q poller (wave 8)', 'L_wo': 'wo block: weights after the V loads, gather the 24 partials of the head, rescale, multiply, publish', 'L_F2': 'front CUs: LayerNorm(x), gather shift / scale, h, q', 'L_q_done': 'FFN block: remaining modulation values, weights, constant products c1 @ w1 and sb @ w1', 'L_x4': 'FFN: gather the 16 head products, residual, (x2 * c1) @ w1 and statistics, then h1 @ w2', 'L_F7': 'wave 7 of the front CUs: weight gate, LayerNorm + SiLU between the products, final reduction', 'L_F8': 'wave 8 of the front CUs: which memory side answers faster', 'L_pf': 'idle waves of CUs without a wo block pull the FFN weights into L2'}
def annotate(t):
    return ''.join((f'; ---- {CM[l[:-1]]}\n' if l[:-1] in CM else '') + l + '\n' for l in t.rstrip('\n').split('\n'))

def gen(W=5, WH=6, WK=3, WKH=4, N0=2, WE=7, NE=6, NL=4, adapt=True, diag=False, lite=False, probe=None, sleep=8, nt=' nt', w1nt='', wont=' nt',
        rewarm=True, gaten=8, hintk=16, hintpos=7, touchpos=2, spinbits=20, fastbits=6, prio=True, pprio=3, nprb=5,
        fside=None, nob=False, fpf=8, tbl=1, only=None, lk=0, LW=(5, 6, 7, 6), WR=None, pf3=True, wolate=False, fdelay=0, wopf=0, wolanes=32, fB3=0, fB3p=0, fB4=(12, 12), fM=True, tlb=False, mxe=False, dirty=0, epe=True, wopf2=0, peel=False, nwo=42, nmid=48, ldef=True, est=False, al={'L_x3': 0, 'L_x4': 2, 'L_x5': 3}, pads='', paged=True, pvf=True, wopf3=0, vpf=0, vpfk=8, vpffl='', hk3=4, nw3=True, nw4=True, nw2=False, pfnt='', gsl=0, w2nt=' nt', x5o=0, d5=9, pt5=True, lsl={}, bo={}, ofl='', opt=True, bev=4, x5w=None, bsl=24, bsn=-1, dbl={}, skz=('L_x3', 'L_x4', 'L_x5'), fX3=0, fX4=0, fA=(0, 0), half=True):
    a = Asm()
    rare = []
    STEP = 1 << (32 - spinbits)
    role = ['all']
    PH = {('att', 6), ('wo', 6), ('F', 8), ('F', 12)}
    def stamp(i):
        if (diag and (only is None or i == 0 or (role[0], i) in only)) or (lite and i in (0, 14)): a(f's_memrealtime s[{64+2*i}:{65+2*i}]')
        if probe and probe[0] == role[0] and probe[1] == i: a('s_memrealtime s[64:65]\ns_mov_b32 s68, 1')
    def xs(name):
        if diag and only and name in only: a('s_memrealtime s[84:85]')
        if diag and only and 'clk' in only and name in ('B3', 'mm2'):
            k = 1 if name == 'B3' else 3
            a(f's_memrealtime s[{64+2*k}:{65+2*k}]\ns_memtime s[{66+2*k}:{67+2*k}]')
            if name == 'B3': a('s_waitcnt lgkmcnt(0)')
    def align(k):
        if k in al:
            a('.p2align 6')
            for _ in range(al[k] + (2 if k != 'S' and not diag else 0)): a('s_nop 0')
    npad = {}
    def pad(k, last=False):
        if k not in pads: return
        i = npad.get(k, 0); npad[k] = i + 1
        a(f'L_pad{k}{i}:\ns_cbranch_execz L_pad{k}' + ('r' if last else str(i + 1)))
    def hop(k):
        if k in pads: a(f's_mov_b64 exec, 0\ns_branch L_pad{k}0\nL_pad{k}r:\ns_mov_b64 exec, -1')
    def fill(n, r):
        if r == 62:
            for _ in range(n): a('v_mfma_f32_16x16x32_bf16 v[72:75], v[16:19], v[16:19], 0')
        elif r == 63:
            for _ in range(n): a('v_mfma_f32_16x16x32_bf16 v[88:91], v[16:19], v[16:19], 0')
        elif fM and r == 9:
            for _ in range((n + 2) // 4): a('v_mfma_f32_16x16x32_bf16 v[116:119], v[16:19], v[16:19], 0')
        else:
            for _ in range(n): a(f'v_mov_b32 v{r}, 0')
    def fin(): a('s_branch L_dump' if diag else 's_branch L_probe' if probe else 's_endpgm')
    def setprio(n):
        if prio: a(f's_setprio {n}')
    def tags():
        a('''s_add_u32 s30, s30, 1
             s_and_b32 s34, s30, 0x7f
             s_xor_b32 s35, s34, 0x5a
             s_lshl_b32 s3, s35, 8
             s_or_b32 s3, s3, s34''')
    def ws_srd():
        a(f'''s_mov_b32 s44, s28
              s_mov_b32 s45, s29
              s_mov_b32 s46, {WSEND}
              s_mov_b32 s47, 0x20000''')
    def lanetag(d, bit):
        a(f'''v_bfe_u32 v{d}, v0, {bit}, 1
              v_mul_u32_u24 v{d}, 0x5a, v{d}
              v_xor_b32 v{d}, s34, v{d}''')
    def rowtag(m, t):
        lanetag(t, 2)
        a(f'''v_and_b32 v{m}, 3, v0
              v_cmp_eq_u32 vcc, 0, v{m}
              v_mov_b32 v{m}, 0xffffff00
              v_cndmask_b32 v{t}, 0, v{t}, vcc
              v_cndmask_b32 v{m}, -1, v{m}, vcc''')
    def spin(loop, done):
        a(f'''s_cbranch_vccz {done}
              s_add_u32 s62, s62, {STEP}
              s_cbranch_scc0 {loop}
              {done}:''')
    def ldswait(lbl, off, n, sl, z=100):
        if not n: return
        a(f'v_mov_b32 v{z}, 0\ns_mov_b32 s62, 0\n{lbl}:')
        if sl: a(f's_sleep {sl}')
        a(f'''ds_read_b32 v{z+1}, v{z} offset:{off}
              s_waitcnt lgkmcnt(0)
              v_cmp_gt_u32 vcc, {n}, v{z+1}''')
        spin(lbl, lbl + 'ok')
    def gather(lbl, loads, raw, masks, vt, spec='', switch=None, nfast=0, issued=False, warm=None):
        n = len(loads)
        a('s_mov_b32 s62, 0')
        if switch: a(f's_mov_b32 s63, {(1 << 32) // nfast}')
        if issued:
            a(f's_branch {lbl}_w')
            if paged and lbl == 'L_x4': a('.p2align 12')
            align(lbl)
        else:
            for i in range(n): a(f's_mov_b64 s[{masks+2*i}:{masks+2*i+1}], -1')
        a(f'{lbl}:')
        if lbl in lsl: a(f's_sleep {lsl[lbl]}')
        for i, l in enumerate(loads):
            if lbl in skz: a(f's_wqm_b64 exec, s[{masks+2*i}:{masks+2*i+1}]\ns_cbranch_scc0 {lbl}_z{i}\n{l}\n{lbl}_z{i}:')
            else: a(f's_wqm_b64 exec, s[{masks+2*i}:{masks+2*i+1}]\n{l}')
        for sl in dbl.get(lbl, ()):
            a(f's_sleep {sl}')
            for i, l in enumerate(loads): a(f's_wqm_b64 exec, s[{masks+2*i}:{masks+2*i+1}]\n{l}')
        a(f'''s_mov_b64 exec, -1
              s_add_u32 s62, s62, {'s63' if switch else STEP}
              s_cbranch_scc1 {lbl}_r''')
        if lbl in bo:
            T, k = bo[lbl]
            a(f's_bcnt1_i32_b64 s26, s[{masks}:{masks+1}]')
            for i in range(1, n): a(f's_bcnt1_i32_b64 s27, s[{masks+2*i}:{masks+2*i+1}]\ns_add_u32 s26, s26, s27')
            a(f's_cmp_gt_u32 s26, {T}\ns_cbranch_scc0 {lbl}_w\ns_sleep {k}')
        if warm: fill(*warm)
        a(f'{lbl}_w:\ns_waitcnt vmcnt(0)')
        for i in range(n): a(f'v_cmp_ne_u32_sdwa s[{masks+2*i}:{masks+2*i+1}], v{raw+4*i}, v{vt} src0_sel:BYTE_0 src1_sel:DWORD')
        a(spec)
        a(f's_or_b64 vcc, s[{masks}:{masks+1}], s[{masks+2}:{masks+3}]')
        for i in range(2, n): a(f's_or_b64 vcc, vcc, s[{masks+2*i}:{masks+2*i+1}]')
        a(f's_cbranch_scc1 {lbl}\n{lbl}_ok:')
        def r():
            a(f'{lbl}_r:')
            if switch:
                a(f's_cmp_eq_u32 s63, {STEP}\ns_cbranch_scc1 {lbl}_x\ns_mov_b32 s63, {STEP}\n{switch}\ns_branch {lbl}_w\n{lbl}_x:')
            a(f's_waitcnt vmcnt(0)\ns_mov_b64 vcc, 0\ns_branch {lbl}_ok')
        rare.append(r)
    def poll4(lbl, loads, raw, t, sl=0, issued=False):
        a(f'''v_mov_b32 v{t+2}, 0
              ds_read_b32 v{t+3}, v{t+2} offset:{FC+12}
              s_and_b32 s4, s34, 3
              s_and_b32 s5, s35, 3
              s_mov_b32 s62, 0
              s_waitcnt lgkmcnt(0)''')
        if issued: a(f's_branch {lbl}_w')
        a(f'{lbl}:\nv_add_u32 v{t+1}, v7, v{t+3}')
        if sl: a(f's_sleep {sl}')
        for l in loads: a(l)
        a(f'ds_read_b32 v{t+3}, v{t+2} offset:{FC+12}\n{lbl}_w:\ns_waitcnt vmcnt(0) lgkmcnt(0)')
        n = 4 * len(loads)
        for k in range(n): a(f'v_xor_b32 v{raw+k}, s{4+(k&1)}, v{raw+k}')
        a(f'v_or_b32 v{t}, v{raw}, v{raw+1}')
        for k in range(2, n, 2): a(f'v_or3_b32 v{t}, v{t}, v{raw+k}, v{raw+k+1}')
        a(f'v_and_b32 v{t}, 3, v{t}\nv_cmp_ne_u32 vcc, 0, v{t}')
        spin(lbl, lbl + '_ok')
    def pk(op, d, x, y): a(f'v_pk_{op}_f32 v[{d}:{d+1}], v[{x}:{x+1}], v[{y}:{y+1}]')
    def rscatter(r):
        a(f'v_permlane32_swap_b32 v{r}, v{r+2}\nv_permlane32_swap_b32 v{r+1}, v{r+3}')
        pk('add', r, r, r + 2)
        a(f'v_permlane16_swap_b32 v{r}, v{r+1}\nv_add_f32 v{r}, v{r}, v{r+1}')
    def rnd(d, s): a(f'v_cvt_pk_bf16_f32 {d}, 0, {s}')
    def allred_rows(op, r, t):
        a(f'''v_mov_b32 v{t}, v{r}
              v_permlane32_swap_b32 v{r}, v{t}
              {op} v{r}, v{r}, v{t}
              v_mov_b32 v{t}, v{r}
              v_permlane16_swap_b32 v{r}, v{t}
              {op} v{r}, v{r}, v{t}''')
    def perm_sel(): a('s_mov_b32 s60, 0x05040100\ns_mov_b32 s61, 0x07060302')
    def perms64(raw, dst):
        for tau in range(4):
            for rho in range(4):
                a(f'v_perm_b32 v{dst+4*tau+rho}, v{raw+2*(2*rho+1)+(tau>>1)}, v{raw+2*(2*rho)+(tau>>1)}, s{60+(tau&1)}')
    def fix4(raw, t):
        for u0 in (0, 2):
            for i in range(2): a(f'v_pk_mov_b32 v[{t+2*i}:{t+2*i+1}], v[{raw+4*(u0+i)+2}:{raw+4*(u0+i)+3}], v[{raw+4*(u0+i)+2}:{raw+4*(u0+i)+3}] op_sel:[0,1]')
            rs = [raw + 4 * u + d for u in (u0, u0 + 1) for d in (0, 1)]
            for i, r in enumerate(rs): a(f'v_mov_b32_dpp v{r+2}, v{r} row_ror:8 row_mask:0xf bank_mask:0x3')
            for i, r in enumerate(rs): a(f'v_mov_b32_dpp v{r}, v{t+i} row_ror:8 row_mask:0xf bank_mask:0xc')
    def voff4(d, gstride, stride, t):
        a(f'''v_lshrrev_b32 v{t}, 4, v0
              v_mul_u32_u24 v{d}, {gstride}, v{t}
              v_bfe_u32 v{t}, v0, 3, 1
              v_mul_u32_u24 v{t}, {stride}, v{t}
              v_add_u32 v{d}, v{d}, v{t}
              v_and_b32 v{t}, 7, v0
              v_lshl_add_u32 v{d}, v{t}, 4, v{d}''')
    def maskaddr(dst, n, base, zero, t):
        a(f'''v_lshrrev_b32 v{t}, 4, v0
              v_lshlrev_b32 v{t}, 4, v{t}
              v_add_u32 v{t}, {base}, v{t}
              v_and_b32 v{t+1}, {n-1}, v0
              v_mov_b32 v{t+2}, {zero}''')
        for tau in range(n):
            a(f'v_cmp_eq_u32 vcc, {tau}, v{t+1}')
            a(f'v_cndmask_b32 v{dst+tau}, v{t+2}, v{t}, vcc')
    def silu(d, x, t, p=None):
        a(f'''v_mul_f32 v{t}, {hex(f2u(-LOG2E))}, v{x}
              v_exp_f32 v{t}, v{t}''')
        if p: pad(p)
        a(f'''v_add_f32 v{t}, 1.0, v{t}
              v_rcp_f32 v{t}, v{t}
              v_mul_f32 v{t}, v{x}, v{t}''')
        rnd(f'v{d}', f'v{t}')
    def silu_fine(d, x, t):
        L = struct.unpack('<f', struct.pack('<f', -LOG2E))[0]
        a(f'''s_mov_b32 s58, {hex(f2u(L))}
              v_mul_f32 v{t}, s58, v{x}
              v_fma_f32 v{t+1}, v{x}, s58, -v{t}
              v_fmac_f32 v{t+1}, {hex(f2u(-LOG2E - L))}, v{x}
              v_min_f32 v{t}, 0x42fc0000, v{t}
              v_exp_f32 v{t}, v{t}
              v_mul_f32 v{t+1}, {hex(f2u(0.6931471805599453))}, v{t+1}
              v_fmac_f32 v{t}, v{t}, v{t+1}
              v_add_f32 v{t}, 1.0, v{t}
              v_rcp_f32 v{t+1}, v{t}
              v_mul_f32 v{t+2}, v{x}, v{t+1}
              v_fma_f32 v{t}, -v{t+2}, v{t}, v{x}
              v_fmac_f32 v{t+2}, v{t}, v{t+1}''')
        rnd(f'v{d}', f'v{t+2}')
    def ln_apply(s1, s2, x, t):
        a(f'''v_mul_f32 v{t}, v{s1}, v{s1}
              v_fma_f32 v{t+1}, v{s1}, v{s1}, -v{t}
              v_fma_f32 v{t}, v{s2}, s59, -v{t}
              v_sub_f32 v{t}, v{t}, v{t+1}
              v_mul_f32 v{t}, {hex(f2u(1/448/448))}, v{t}
              v_max_f32 v{t}, 0, v{t}''')
        rnd(f'v{t}', f'v{t}')
        a(f'v_add_f32 v{t}, {hex(f2u(1e-5))}, v{t}')
        rnd(f'v{t}', f'v{t}')
        a(f'v_sqrt_f32 v{t}, v{t}\nv_mul_f32 v{t+1}, {hex(f2u(1/448))}, v{s1}')
        rnd(f'v{t}', f'v{t}'); rnd(f'v{t+1}', f'v{t+1}')
        a(f'v_rcp_f32 v{t+2}, v{t}\nv_sub_f32 v{t+1}, v{x[1]}, v{t+1}')
        rnd(f'v{t+1}', f'v{t+1}')
        a(f'''v_mul_f32 v{t+3}, v{t+1}, v{t+2}
              v_fma_f32 v{t}, -v{t+3}, v{t}, v{t+1}
              v_fmac_f32 v{t+3}, v{t}, v{t+2}''')
        rnd(f'v{x[0]}', f'v{t+3}')
    def mma(n, acc, A, B, left=0, first=True, wait=True):
        for i in range(n):
            if wait: a(f's_waitcnt lgkmcnt({0 if (diag and only is None) else n-1-i+left})')
            a(f'v_mfma_f32_16x16x32_bf16 v[{acc}:{acc+3}], v[{A+4*i}:{A+4*i+3}], v[{B+4*i}:{B+4*i+3}], ' + ('0' if i == 0 and first else f'v[{acc}:{acc+3}]'))
    def mma2(acc, A, B, left=0, first=True, wait=True, mid=None):
        for par in range(2):
            if wait: a(f's_waitcnt lgkmcnt({0 if (diag and only is None) else 1-par+left})')
            for hi in range(2):
                d = acc + 4 * hi; b = B + 4 * (2 * hi + par)
                a(f'v_mfma_f32_16x16x32_bf16 v[{d}:{d+3}], v[{A+4*par}:{A+4*par+3}], v[{b}:{b+3}], ' + ('0' if par == 0 and first else f'v[{d}:{d+3}]'))
                if mid and par == 0 and hi == 0: a(mid)
    def sumrows(n, ldsoff, va, first=None, shadow=None):
        o = ldsoff // 256
        for u in range(n // 2): a(f'ds_read2st64_b32 v[{16+2*u}:{17+2*u}], v{va} offset0:{o+2*u} offset1:{o+2*u+1}')
        if n & 1: a(f'ds_read_b32 v22, v{va} offset:{ldsoff+256*(n-1)}\nv_mov_b32 v23, 0')
        if shadow: a(shadow)
        a('s_waitcnt lgkmcnt(0)')
        if first: a(first)
        pk('add', 16, 16, 18); pk('add', 20, 20, 22); pk('add', 16, 16, 20)
        a('v_add_f32 v16, v16, v17')

    def getside(t):
        a(f'''v_mov_b32 v{t}, 0
              ds_read_b32 v{t}, v{t} offset:{FC+12}
              s_waitcnt lgkmcnt(0)
              v_readfirstlane_b32 s48, v{t}''')
    def dzero():
        if diag:
            for i in range(1, 16): a(f's_mov_b32 s{64+2*i}, 0')
    K0, V0 = 8, 56
    a(f'{KN}:')
    if probe: a('s_mov_b32 s68, 0')
    stamp(0)
    a(f'''s_load_dwordx16 s[4:19], s[0:1], 0
          s_load_dwordx8 s[20:27], s[0:1], 64
          s_load_dwordx2 s[28:29], s[0:1], 96
          v_readfirstlane_b32 s31, v0
          s_and_b32 s32, s2, 7
          s_lshr_b32 s33, s2, 3
          s_lshr_b32 s31, s31, 6
          s_sub_u32 s33, s33, 8
          s_cbranch_scc0 L_A''')
    a(f'''s_getpc_b64 s[48:49]
          L_pc:
          v_lshlrev_b32 v2, 7, v0
          v_min_u32 v2, L_code_end-L_pc-4, v2
          global_load_dword v127, v2, s[48:49]
          s_branch L_F
          L_A:
          s_cmp_ge_u32 s31, 8
          s_cbranch_scc1 L_Td
          s_cmp_ge_u32 s33, 17
          s_cbranch_scc1 L_a_u
          L_att:''')
    role[0] = 'att'
    if tbl < 2:
        ta, tb, tc, td = ((5, 16, 17, 42), (4, 13, 15, 43))[tbl]; bias = 0
        a(f'''s_mul_i32 s50, s33, {ta}
              s_add_u32 s51, s50, 6
              s_min_u32 s50, s50, {tb}
              s_min_u32 s51, s51, {tc}
              s_mul_i32 s49, s33, {td}
              L_att2:
              s_add_u32 s50, s50, s31''')
    else:
        bias = 14 * nwo - 1
        a(f'''s_sub_u32 s50, s33, 14
              s_cselect_b32 s51, {nwo - 40}, {nmid - 40}
              s_cselect_b32 s49, {nwo}, {nmid}
              s_mul_i32 s49, s49, s50
              L_att2:
              s_add_u32 s50, s31, 1''')
    a(f'''s_min_u32 s48, s50, s51
          s_add_u32 s48, s48, s49
          s_mul_i32 s49, s31, 5
          s_add_u32 s48, s48, s49
          s_lshl_b32 s49, s32, 14
          s_add_u32 s48, s48, s49
          s_addk_i32 s48, {WINOFF // 2048 + 2 + bias}
          s_lshl_b32 s48, s48, 11
          v_and_b32 v2, 12, v0
          v_and_b32 v3, 48, v0
          v_and_b32 v4, 3, v0
          v_lshlrev_b32 v6, 7, v2
          v_lshl_add_u32 v6, v3, 2, v6
          v_lshl_add_u32 v6, v4, 4, v6
          s_waitcnt lgkmcnt(0)
          s_add_u32 s36, s6, s48
          s_addc_u32 s37, s7, 0
          s_cmp_le_u32 s50, s51
          s_cbranch_scc0 L_a_k1''')
    cnt = [0]
    win = [W, WH, WE, NE]
    def kvload(srd, va, base, t, hf, late=False):
        W, WH, WE, NE = win[:4]
        wk, wkh = win[4:] if len(win) > 4 else (WK, WKH)
        w = WH if late else wk if (wk and srd == 36) else W
        if wkh and srd == 36: WH = wkh
        if WE and srd == 40 and 2 * (5 - t) + 1 - hf < NE: a(f's_waitcnt vmcnt({WE-1})')
        elif cnt[0] >= 2 + N0:
            if WH != w: a(f's_waitcnt vmcnt({WH-1})\ns_cbranch_vccnz L_w{cnt[0]}_\ns_waitcnt vmcnt({w-1})\nL_w{cnt[0]}_:')
            else: a(f's_waitcnt vmcnt({w-1})')
        cnt[0] += 1
        r = base + 8 * t + 4 * hf
        b = srd + 2 * (t // 4)
        a(f'global_load_dwordx4 v[{r}:{r+3}], v{va}, s[{b}:{b+1}] offset:{((t & 3) - 2) * 2048 + hf * 256}{nt}')
    kvload(36, 6, K0, 0, 0); kvload(36, 6, K0, 0, 1)
    a('L_a_k1:')
    kl = [(t, hf) for t in (1, 2, 3) for hf in range(2)]
    for t, hf in kl[:N0]: kvload(36, 6, K0, t, hf)
    a('s_branch L_a_c')
    a('''L_a_u:
         s_cmp_ge_u32 s33, 24
         s_cbranch_scc1 L_end
         s_barrier''')
    if tbl == 2:
        rest = 1024 - 14 * nwo - 3 * nmid; lo = rest // 7; ex = rest - 7 * lo
        assert 40 <= lo and lo + (ex > 0) <= 48
        a(f'''s_sub_u32 s50, s33, 17
              s_mul_i32 s49, s50, {lo}
              s_min_u32 s50, s50, {ex}
              s_cselect_b32 s51, {lo - 39}, {lo - 40}
              s_add_u32 s49, s49, s50
              s_add_u32 s49, s49, {3 * nmid}
              s_branch L_att2''')
    elif tbl: a('s_mov_b32 s50, 64\ns_mov_b32 s51, 63\ns_mul_i32 s49, s33, 40\ns_branch L_att2')
    else: a('s_branch L_att')
    a(f'''L_Td:
          s_cmp_ge_u32 s33, 24
          s_cbranch_scc1 L_end
          s_sub_u32 s50, s33, {14 if tbl == 2 else 0}
          s_cmp_ge_u32 s50, 3
          s_cselect_b32 s50, 9, 0
          s_cmp_eq_u32 s31, s50
          s_cbranch_scc1 L_mod''')
    a(f'''s_cmp_ge_u32 s31, 12
          s_cbranch_scc0 L_T0
          v_mov_b32 v8, {hex(f2u(-3e38))}
          v_cmp_eq_u32 vcc, {768 + L_M // 16}, v0
          v_lshlrev_b32 v2, 4, v0
          v_mov_b32 v9, 0
          v_cndmask_b32 v8, 0, v8, vcc
          v_mov_b32 v11, 0
          v_subrev_u32 v2, {768 * 16}, v2
          v_mov_b32 v10, v8
          ds_write_b128 v2, v[8:11]
          s_waitcnt lgkmcnt(0)''')
    if lk:
        a('''s_lshl_b32 s50, s33, 4
             s_add_u32 s50, s50, s31
             s_cmp_eq_u32 s50, 12
             s_cbranch_scc0 L_T0
             v_mov_b32 v8, 1
             s_mov_b64 exec, 1
             global_atomic_add v9, v8, s[26:27] sc1
             s_mov_b64 exec, -1''')
    a(f'''L_T0:
          s_barrier
          s_branch L_T
          L_mod:''')
    role[0] = 'mod'
    def tail_setup():
        a('s_load_dword s30, s[28:29], 0\ns_sub_u32 s49, s31, 8')
        ws_srd(); perm_sel()
        a(f's_lshl_b32 s56, s49, 8\ns_add_u32 s56, s56, {L_PRIV}')
    a('v_and_b32 v0, 63, v0')
    setprio(3)
    a(f'''s_cmp_ge_u32 s33, 17
          s_cselect_b32 s50, -17, {7 if tbl == 2 else 4}
          s_add_u32 s50, s50, s33
          s_lshl_b32 s50, s50, 3
          s_add_u32 s50, s50, s32
          s_and_b32 s51, s50, 3
          s_lshr_b32 s52, s50, 2
          s_mov_b32 s38, {448*5376}
          s_mov_b32 s39, 0x20000
          s_mov_b32 s42, 896
          s_mov_b32 s43, 0x20000
          s_mul_i32 s54, s51, {112*5376}
          s_lshl_b32 s55, s52, 7
          s_add_u32 s54, s54, s55
          s_mul_i32 s53, s51, 224
          v_lshlrev_b32 v2, 2, v0
          v_lshrrev_b32 v1, 3, v0
          v_mul_u32_u24 v3, {14*5376}, v1
          v_and_b32 v4, 7, v0
          v_lshl_add_u32 v3, v4, 4, v3
          s_waitcnt lgkmcnt(0)
          s_mov_b32 s36, s22
          s_mov_b32 s37, s23
          s_mov_b32 s40, s20
          s_mov_b32 s41, s21
          buffer_load_dword v8, v2, s[40:43], s53 offen''')
    for m in range(14):
        a(f'buffer_load_dwordx4 v[{72+4*m}:{75+4*m}], v3, s[36:39], s54 offen{nt}')
        if m < 13: a('s_add_u32 s54, s54, 5376')
    def fstart():
        a(f'''L_F:
              s_add_u32 s33, s33, 8
              v_and_b32 v0, 63, v0
              s_cmp_ge_u32 s31, 7
              s_cbranch_scc1 L_F7s
              s_lshl_b32 s48, s31, 19
              s_lshl_b32 s49, s32, 10
              s_add_u32 s48, s48, s49
              s_lshl_b32 s49, s33, 7
              s_add_u32 s48, s48, s49
              v_lshrrev_b32 v3, 4, v0
              v_lshlrev_b32 v2, 16, v3
              v_and_b32 v4, 8, v0
              v_lshl_add_u32 v2, v4, 10, v2
              v_and_b32 v5, 7, v0
              v_lshl_add_u32 v2, v5, 4, v2
              v_lshl_add_u32 v5, v5, 4, v4
              v_lshl_add_u32 v6, v3, 1, v5
              s_lshl_b32 s50, s31, 7
              v_add_u32 v101, s50, v6
              v_lshlrev_b32 v7, 4, v0
              s_mov_b32 s38, {448*8192}
              s_mov_b32 s39, 0x20000
              s_mov_b32 s42, 896
              s_mov_b32 s43, 0x20000
              s_waitcnt lgkmcnt(0)
              s_mov_b32 s36, s10
              s_mov_b32 s37, s11
              s_mov_b32 s40, s4
              s_mov_b32 s41, s5
              buffer_load_dwordx4 v[96:99], v7, s[40:43], 0 offen
              buffer_load_ushort v100, v101, s[40:43], 0 offen''')
        for u in range(2):
            for t in range(4):
                a(f'buffer_load_dwordx4 v[{32+16*u+4*t}:{35+16*u+4*t}], v2, s[36:39], s48 offen{nt}')
                if not (u == 1 and t == 3): a(f's_add_u32 s48, s48, {2*8192 if t < 3 else 26*8192}')
            if u == 0: a('s_barrier')
    a('s_barrier')
    if paged:
        a('s_branch L_mod2')
        fstart()
        a(f'''s_branch L_F2
              L_F7s:
              s_cmp_ge_u32 s31, 9
              s_cbranch_scc1 L_F9
              v_mov_b32 v2, 0
              v_lshlrev_b32 v3, 2, v0
              ds_write_b32 v3, v2 offset:{FC & ~255}
              s_waitcnt lgkmcnt(0)
              s_barrier
              s_branch L_F7
              L_F9:
              s_endpgm
              L_mod2:''')
    dzero(); stamp(1)
    tail_setup()
    a(f'''v_mul_u32_u24 v3, 37, v0
          v_lshrrev_b32 v3, 8, v3
          v_add_u32 v3, v3, v0
          v_lshl_add_u32 v3, v3, 2, s56
          v_lshl_add_u32 v1, v1, 5, s56
          v_and_b32 v9, 1, v0
          v_lshlrev_b32 v9, 4, v9
          v_mov_b32 v10, 0xffff
          v_lshlrev_b32 v9, v9, v10
          v_bfe_u32 v10, v0, 1, 2''')
    for rho in range(4):
        a(f'v_cmp_eq_u32 vcc, {rho}, v10')
        a(f'v_cndmask_b32 v{4+rho}, 0, v9, vcc')
    a('''s_mov_b32 s52, 0x01000100
         s_mov_b32 s53, 0x03020302
         s_waitcnt vmcnt(14)
         v_lshlrev_b32 v9, 16, v8
         v_and_b32 v10, 0xffff0000, v8''')
    silu_fine(9, 9, 12); silu_fine(10, 10, 12)
    a(f'''v_perm_b32 v9, v10, v9, s61
          s_mov_b32 exec_hi, 0xffffff
          ds_write_b32 v3, v9
          s_mov_b32 exec_hi, -1
          ds_read_b128 v[8:11], v1
          ds_read_b96 v[12:14], v1 offset:16
          s_lshr_b32 s51, s50, 5
          s_lshl_b32 s51, s51, 13
          s_lshl_b32 s50, s50, 8
          s_add_u32 s50, s50, s51
          s_add_u32 s50, s50, {X1}
          s_add_u32 s51, s50, {SIDE}
          v_lshrrev_b32 v2, 4, v0
          v_and_b32 v3, 7, v0
          v_lshlrev_b32 v3, 4, v3
          v_lshl_add_u32 v2, v2, 7, v3
          s_waitcnt lgkmcnt(0)''')
    tags()
    for m in range(14):
        a(f'v_perm_b32 v15, v{8+(m>>1)}, v{8+(m>>1)}, s{52+(m&1)}')
        for rho in range(4): a(f'v_and_b32 v{16+4*m+rho}, v15, v{4+rho}')
    a('v_and_b32_e64 v4, s34, 3\nv_and_b32_e64 v5, s35, 3')
    for m in range(14):
        a(f's_waitcnt vmcnt({13-m})')
        a(f'v_mfma_f32_16x16x32_bf16 v[8:11], v[{16+4*m}:{19+4*m}], v[{72+4*m}:{75+4*m}], ' + ('0' if m == 0 else 'v[8:11]'))
    a('''v_pk_mov_b32 v[12:13], v[8:9], v[8:9] op_sel:[0,1]
         v_pk_mov_b32 v[14:15], v[10:11], v[10:11] op_sel:[0,1]''')
    for i in range(4): a(f'v_permlane32_swap_b32 v{8+i}, v{12+i}')
    for i in range(4): a(f'v_add_f32_dpp v{8+i}, v{12+i}, v{8+i} row_ror:8 {DPPF}')
    a('s_mov_b64 exec, 0xff00ff')
    for i in range(4): a(f'v_add_u32 v{8+i}, 2, v{8+i}')
    for i in range(4): a(f'v_and_or_b32 v{8+i}, v{8+i}, -4, v{4+(i&1)}')
    a('buffer_store_dwordx4 v[8:11], v2, s[44:47], s50 offen sc1\nbuffer_store_dwordx4 v[8:11], v2, s[44:47], s51 offen sc1\ns_mov_b64 exec, -1')
    stamp(2)
    setprio(0)
    a('s_cmp_lt_u32 s33, 14\ns_cbranch_scc1 L_t_go2')
    fin()
    role[0] = 'att'
    a('L_a_c:')
    def setup_att():
        dzero(); stamp(1)
        if lk: a('s_load_dword s56, s[26:27], 0')
        a(f'''s_load_dword s30, s[28:29], 0
              s_cmp_le_u32 s50, s51
              s_cselect_b32 s51, 1, 0
              s_add_u32 s38, s36, 8192
              s_addc_u32 s39, s37, 0
              s_add_u32 s40, s8, s48
              s_addc_u32 s41, s9, 0
              s_add_u32 s42, s40, 8192
              s_addc_u32 s43, s41, 0
              s_cmp_ge_u32 s33, 17
              s_cbranch_scc1 L_a_nb2
              s_barrier
              L_a_nb2:
              v_and_b32 v0, 63, v0
              v_and_b32 v5, 15, v0
              v_lshlrev_b32 v7, 5, v3
              v_lshl_add_u32 v7, v5, 4, v7
              v_bfe_u32 v2, v0, 3, 1
              v_lshlrev_b32 v1, 10, v2
              v_lshl_add_u32 v1, v3, 3, v1
              v_lshl_add_u32 v1, v4, 5, v1
              v_and_b32 v104, 1, v0
              v_lshlrev_b32 v104, 4, v104
              v_mov_b32 v105, 0xffff
              v_lshlrev_b32 v104, v104, v105
              v_bfe_u32 v105, v0, 1, 2''')
        for rho in range(4):
            a(f'v_cmp_eq_u32 vcc, {rho}, v105')
            a(f'v_cndmask_b32 v{2+rho}, 0, v104, vcc')
        ws_srd(); perm_sel()
        a(f'''s_mov_b32 s58, {hex(f2u(0.0625 * LOG2E))}
              s_bfe_u32 s57, s31, 0x10001
              s_lshl_b32 s49, s32, 1
              s_add_u32 s54, s57, s49
              s_mul_i32 s54, s54, 24
              s_add_u32 s54, s54, s33
              s_lshl_b32 s54, s54, 10
              s_lshr_b32 s49, s31, 2
              s_lshl_b32 s49, s49, 9
              s_add_u32 s54, s54, s49
              s_and_b32 s49, s31, 1
              s_lshl_b32 s49, s49, 8
              s_add_u32 s54, s54, s49
              s_add_u32 s55, s54, {X3F}
              s_add_u32 s54, s54, {X3}
              s_mul_i32 s59, s32, 24
              s_add_u32 s59, s59, s33
              s_lshl_b32 s59, s59, 7
              s_add_u32 s59, s59, {HINT}
              v_lshlrev_b32 v104, 2, v0
              s_mov_b32 s48, s51
              s_mov_b32 s49, 0
              s_mov_b64 vcc, s[48:49]''')
    setup_att()
    vl = [(t, hf) for t in range(1, 6) for hf in range(2)]
    late = vl[10 - NL:]
    assert 2 * (6 - touchpos) >= NL and NL <= 4 and hintpos == 7 and WE and NE >= NL and (not lk or LW[2] == WE)
    for t, hf in kl[N0:]: kvload(36, 6, K0, t, hf)
    a('s_waitcnt lgkmcnt(0)')
    tags()
    hop('a')
    def paced(x):
        for t in range(4, 6): kvload(36, 6, K0, t, 0); kvload(36, 6, K0, t, 1)
        stamp(2)
        a(f's_cmp_eq_u32 s51, 0\ns_cbranch_scc0 L_a_v0{x}')
        for i in range(4): a(f'v_mov_b32 v{K0+i}, {hex(f2u(-1e30))}')
        a(f's_branch L_a_v1{x}\nL_a_v0{x}:')
        kvload(40, 7, V0, 0, 0); kvload(40, 7, V0, 0, 1)
        a(f'L_a_v1{x}:')
        for t in range(1, 6):
            if t == touchpos:
                a('buffer_load_dword v6, v104, s[44:47], s55 offen sc1')
            for hf in range(2):
                if (t, hf) not in late: kvload(40, 7, V0, t, hf)
    if lk:
        if diag: a('s_add_u32 s82, s56, 1')
        a(f's_cmp_ge_u32 s56, {lk}\ns_cbranch_scc1 L_a_pl')
        def pl():
            keep = list(win); win[:] = LW
            a('L_a_pl:'); paced('l'); a('s_branch L_a_pd')
            win[:] = keep
        rare.append(pl)
    paced('')
    a('L_a_pd:')
    def count(off): a(f's_mov_b64 exec, 1\nds_inc_u32 v0, v2 offset:{off}\ns_mov_b64 exec, -1')
    def lateload(k):
        i = k - (4 - NL)
        if i < 0: return
        if adapt: a(f's_cmp_gt_u32 s63, {i}\ns_cbranch_scc1 L_a_l{i}')
        kvload(40, 7, V0, *late[i], late=True)
        if i == NL - 1: vdone('a')
        if adapt: a(f'L_a_l{i}:')
    def vdone(sfx):
        stamp(3); count(L_C)
        if hintpos == 7 and hintk:
            a(f'''s_cmp_eq_u32 s31, 0
                  s_cbranch_scc0 L_a_nh{sfx}
                  v_mov_b32 v114, s3
                  s_mov_b64 exec, 1
                  buffer_store_dword v114, v0, s[44:47], s59 offen
                  s_mov_b64 exec, -1
                  L_a_nh{sfx}:''')
    if not NL: vdone('a')
    a('s_mov_b32 s62, 0\ns_mov_b32 s63, 0')
    stamp(8)
    if paged: a('s_branch L_a_q0\n.p2align 12\nL_a_q0:')
    align('Q')
    setprio(2)
    a(f'''L_a_q:
          ds_read_b128 v[104:107], v1 offset:{L_Q}
          ds_read_b128 v[108:111], v1 offset:{L_Q+16}
          ds_read_b128 v[112:115], v1 offset:{L_Q+512}
          ds_read_b128 v[116:119], v1 offset:{L_Q+528}
          s_waitcnt lgkmcnt(0)
          v_bitop3_b32 v120, v104, v108, s3 bitop3:0x7e
          v_bitop3_b32 v121, v112, v116, s3 bitop3:0x7e
          v_or_b32 v121, v120, v121
          v_cmp_ne_u32_sdwa vcc, v121, 0 src0_sel:WORD_0 src1_sel:DWORD''')
    for i in range(8): a(f'v_perm_b32 v{120+i}, v{105+2*i}, v{104+2*i}, s61')
    a('s_cbranch_vccnz L_a_qr\nL_a_qok:')
    def qrare():
        a('L_a_qr:')
        if adapt:
            for i in range(NL):
                a(f's_cmp_eq_u32 s63, {i}\ns_cbranch_scc0 L_a_qr{i}')
                keep = win[2]; win[2] = WR or keep
                kvload(40, 7, V0, *late[i], late=True)
                win[2] = keep
                if i == NL - 1: vdone('b')
                a(f's_mov_b32 s63, {i+1}\ns_branch L_a_q\nL_a_qr{i}:')
        a(f'''s_sleep 1
              s_add_u32 s62, s62, {STEP}
              s_cbranch_scc0 L_a_q
              s_branch L_a_qok''')
    rare.append(qrare)
    stamp(4)
    def qk(t, hf):
        k = K0 + 8 * t; tmp = 104 + 4 * (t & 3)
        if hf == 0: a(f'v_mfma_f32_16x16x32_bf16 v[{tmp}:{tmp+3}], v[{k}:{k+3}], v[120:123], 0')
        else: a(f'v_mfma_f32_16x16x32_bf16 v[{k}:{k+3}], v[{k+4}:{k+7}], v[124:127], v[{tmp}:{tmp+3}]')
    def step(t, i):
        if t < 0 or t > 5: return
        k = K0 + 8 * t
        if i == 0: a(f'v_mov_b32_dpp v{k+4}, v{k} quad_perm:[0,0,0,0] {DPPF}')
        else: a(f'v_add_f32_dpp v{k+4}, v{k+i}, v{k+4} quad_perm:[{i},{i},{i},{i}] {DPPF}')
    lateload(0)
    if WE: a(f's_waitcnt vmcnt({11 - NL})')
    a('s_cmp_eq_u32 s51, 0\ns_cbranch_scc1 L_a_qk1')
    qk(0, 0); qk(0, 1)
    a('L_a_qk1:')
    fl = ['v_mov_b32 v1, 0', 's_mov_b32 s62, 0', 's_lshl_b32 s48, s57, 3', 's_lshl_b32 s49, s31, 2']
    for t in range(1, 6):
        qk(t, 0); step(t - 3, 0); step(t - 4, 2)
        if t < 3: a(fl.pop(0))
        qk(t, 1); step(t - 3, 1); step(t - 4, 3)
        if t < 3: a(fl.pop(0))
        if t == 3: lateload(1)
    lateload(2)
    step(2, 2); step(3, 0); step(4, 0); step(2, 3); step(3, 1); step(4, 1)
    S = [K0 + 8 * t + 4 for t in range(6)]
    rnd(f'v{S[0]}', f'v{S[0]}')
    if WE: a(f's_waitcnt vmcnt({2 * (6 - touchpos) - 1})')
    a('v_and_b32 v6, 8, v0')
    step(5, 0); step(3, 2); step(4, 2); step(5, 1); step(3, 3); step(4, 3); step(5, 2)
    rnd(f'v{S[1]}', f'v{S[1]}'); rnd(f'v{S[2]}', f'v{S[2]}')
    step(5, 3)
    rnd(f'v{S[3]}', f'v{S[3]}'); rnd(f'v{S[4]}', f'v{S[4]}')
    a(f'v_max3_f32 v112, v{S[0]}, v{S[1]}, v{S[2]}')
    rnd(f'v{S[5]}', f'v{S[5]}')
    a(f'''v_max3_f32 v112, v112, v{S[3]}, v{S[4]}
          s_mov_b32 exec_lo, 0x01010101
          s_mov_b32 exec_hi, 0x01010101
          v_max_f32 v112, v112, v{S[5]}
          ds_max_f32 v6, v112 offset:{L_M}
          s_mov_b64 exec, 1
          ds_inc_u32 v0, v2 offset:{L_C+4}
          s_mov_b64 exec, -1
          v_mov_b32 v117, s48''')
    lateload(3)
    a(f'''L_a_s1:
          ds_read_b32 v113, v1 offset:{L_C+4}
          ds_read_b32 v112, v6 offset:{L_M}
          ds_read_b32 v116, v117 offset:{L_M}
          s_waitcnt lgkmcnt(0)
          v_cmp_ne_u32 vcc, 8, v113
          v_mul_f32 v112, s58, v112''')
    order = [1, 0, 2, 3, 4, 5]
    for t in order: a(f'v_fma_f32 v{S[t]+2}, v{S[t]}, s58, -v112')
    a('s_cbranch_vccnz L_a_s1r\nL_a_s1ok:')
    rare.append(lambda: a(f'L_a_s1r:\ns_add_u32 s62, s62, {STEP}\ns_cbranch_scc0 L_a_s1\ns_branch L_a_s1ok'))
    stamp(5)
    for t in order: a(f'v_exp_f32 v{S[t]}, v{S[t]+2}')
    def abuild(t):
        k = K0 + 8 * t
        a(f'v_cvt_pk_bf16_f32 v{k+5}, v{k+4}, v{k+4}')
        for rho in range(4): a(f'v_and_b32 v{k+rho}, v{k+5}, v{2+rho}')
    def pv(t, hf, first=False):
        k = K0 + 8 * t; v = V0 + 8 * t + 4 * hf; acc = 104 + 4 * hf
        n = 2 * (5 - t) + 1 - hf
        if n < max(W, WH, WE or 0): a(f's_waitcnt vmcnt({n})')
        a(f'v_mfma_f32_16x16x32_bf16 v[{acc}:{acc+3}], v[{k}:{k+3}], v[{v}:{v+3}], ' + ('0' if first else f'v[{acc}:{acc+3}]'))
    abuild(1)
    a(f'v_add_f32 v113, v{S[0]}, v{S[1]}\nv_add_f32 v114, v{S[2]}, v{S[3]}')
    pv(1, 0, True); abuild(2); pv(1, 1, True)
    a('s_cmp_eq_u32 s51, 0\ns_cbranch_scc1 L_a_pv2')
    abuild(0); pv(0, 0); pv(0, 1)
    a('L_a_pv2:')
    def lsum():
        a(f'''v_add_f32 v115, v{S[4]}, v{S[5]}
              v_add_f32 v113, v113, v114
              v_lshl_add_u32 v6, v6, 2, s49
              v_add_f32 v113, v113, v115''')
        allred_rows('v_add_f32', 113, 114)
        a(f'''s_mov_b64 exec, 0x101
              ds_write_b32 v6, v113 offset:{L_L}
              s_mov_b64 exec, -1''')
    def cst():
        a(f'''s_lshl_b32 s48, s31, 11
              v_lshl_add_u32 v6, v0, 4, s48
              v_bfe_u32 v119, v0, 2, 1
              v_mul_u32_u24 v119, 0x5a, v119
              v_and_b32 v120, 3, v0
              v_cmp_eq_u32 vcc, 1, v120
              v_bitop3_b32 v119, v119, v116, s34 bitop3:0xde
              v_bfe_u32 v118, v0, 2, 2
              v_cndmask_b32 v120, v120, v118, vcc
              v_cndmask_b32_e64 v119, v119, 0, vcc
              v_cndmask_b32_e64 v118, 0, -1, vcc
              v_or_b32 v120, 0x07060500, v120
              s_lshl_b32 s49, s31, 8
              s_add_u32 s49, s49, {L_O}
              v_lshlrev_b32 v121, 2, v0
              v_add_u32 v122, s49, v121
              v_lshlrev_b32 v117, 2, v117
              s_mov_b32 s62, 0''')
    if pvf:
        abuild(3); pv(2, 0); abuild(4); abuild(5); lsum(); cst()
        a('s_and_b32 s48, s31, 5')
        pv(2, 1)
        for t in range(3, 6): pv(t, 0); pv(t, 1)
    else:
        for t in range(2, 6):
            pv(t, 0)
            if t < 5: abuild(t + 1)
            pv(t, 1)
            if t == 2: lsum()
            if t == 3: cst()
    a(f'''ds_write_b128 v6, v[104:107] offset:{L_O}
          ds_write_b128 v6, v[108:111] offset:{L_O+1024}''')
    stamp(6)
    if nw2: a(f's_mov_b64 exec, 1\nds_inc_u32 v0, v2 offset:{L_C+8}\ns_barrier\ns_mov_b64 exec, -1\nL_a_s2:\nds_read_b32 v24, v1 offset:{L_C+8}')
    else: a('s_waitcnt lgkmcnt(0)\ns_barrier')
    if pvf:
        for u in range(4): a(f'ds_read2st64_b32 v[{8+2*u}:{9+2*u}], v122 offset0:{16*u} offset1:{16*u+8}')
        a(f'''s_cbranch_scc1 L_a_nl
              ds_read_b128 v[16:19], v117 offset:{L_L}
              ds_read_b128 v[20:23], v117 offset:{L_L+16}
              s_waitcnt lgkmcnt(0)''')
        pk('add', 16, 16, 18); pk('add', 20, 20, 22); pk('add', 16, 16, 20)
        a('v_add_f32 v16, v16, v17\nv_bfi_b32 v119, v118, v16, v119\nL_a_nl:\ns_waitcnt lgkmcnt(0)')
        if nw2: a('v_cmp_ne_u32 vcc, 8, v24')
    else:
        a(f'''ds_read_b128 v[16:19], v117 offset:{L_L}
              ds_read_b128 v[20:23], v117 offset:{L_L+16}''')
        for u in range(4): a(f'ds_read2st64_b32 v[{8+2*u}:{9+2*u}], v122 offset0:{16*u} offset1:{16*u+8}')
        pad('a', True)
        a('s_waitcnt lgkmcnt(4)')
        pk('add', 16, 16, 18); pk('add', 20, 20, 22); pk('add', 16, 16, 20)
        a('v_add_f32 v16, v16, v17\nv_and_or_b32 v119, v16, v118, v119\ns_waitcnt lgkmcnt(0)')
    pk('add', 8, 8, 10); pk('add', 12, 12, 14); pk('add', 8, 8, 12)
    a('''v_add_f32 v8, v8, v9
         v_perm_b32 v8, v8, v119, v120''')
    if nw2:
        a('s_cbranch_vccnz L_a_s2r\nL_a_s2ok:')
        rare.append(lambda: a(f'L_a_s2r:\ns_add_u32 s62, s62, {STEP}\ns_cbranch_scc1 L_a_s2ok\ns_and_b32 s48, s31, 5\ns_branch L_a_s2'))
    a('''buffer_store_dword v8, v121, s[44:47], s55 offen
         s_barrier''')
    stamp(7)
    setprio(0)
    if wopf2:
        a('s_cmp_lt_u32 s33, 14\ns_cbranch_scc0 L_a_p\ns_barrier\ns_sleep 3\nL_a_x:')
        def wp():
            a(f'''L_a_p:
                  s_lshl_b32 s48, s33, 3
                  s_add_u32 s48, s48, s31
                  s_sub_u32 s48, s48, 112
                  s_mul_i32 s49, s32, {512*896}''')
            for k in range(wopf2):
                if k: a('s_add_u32 s48, s48, 28')
                a(f'''s_cmp_ge_u32 s48, 56
                      s_cselect_b32 s50, 56, 0
                      s_sub_u32 s48, s48, s50
                      s_lshl_b32 s50, s48, 13
                      s_add_u32 s50, s50, s49
                      v_lshl_add_u32 v10, v0, 7, s50
                      global_load_dword v11, v10, s[12:13]''')
            a('s_branch L_a_x')
        rare.append(wp)
    elif bsn < 0:
        a('; the write-through copy is only needed under another placement: it waits for the wo stage / the prefetch (barrier) and, a bounded while, for X4 to be out')
        if bev:
            a(f'''s_barrier
                  s_cmp_lt_u32 s33, 14
                  s_cbranch_scc0 L_a_x
                  s_mov_b32 s62, 0
                  L_a_b:
                  s_sleep {bev}
                  ds_read_b32 v24, v1 offset:{L_C+20}
                  s_add_u32 s62, s62, 0x20000000
                  s_cbranch_scc1 L_a_x
                  s_waitcnt lgkmcnt(0)
                  v_cmp_eq_u32 vcc, 0, v24
                  s_cbranch_vccnz L_a_b
                  L_a_x:''')
        else: a(f's_barrier\ns_sleep {bsl}\nL_a_x:')
    elif bsn: a(f's_cmp_lt_u32 s33, 14\ns_cbranch_scc1 L_a_y\ns_sleep {bsn}\ns_branch L_a_x\nL_a_y:\ns_barrier\ns_sleep {bsl}\nL_a_x:')
    else: a(f's_cmp_lt_u32 s33, 14\ns_cbranch_scc0 L_a_x\ns_barrier\ns_sleep {bsl}\nL_a_x:')
    if not nob: a('buffer_store_dword v8, v121, s[44:47], s54 offen sc1')
    if dirty:
        a(f's_add_u32 s28, s28, s55\ns_addc_u32 s29, s29, 0')
        for k in range(dirty): a(f's_add_u32 s28, s28, 0x100000\ns_addc_u32 s29, s29, 0\nglobal_store_dword v121, v8, s[28:29]')
    fin()
    for r in rare: r()
    rare.clear()

    role[0] = 'wo'
    a('L_T:\nv_and_b32 v0, 63, v0')
    if pf3:
        a(f'''s_cmp_eq_u32 s31, 13
              s_cbranch_scc0 L_T1
              s_mul_i32 s50, s33, 19
              s_lshl_b32 s51, s32, 10
              v_add_u32 v2, s50, v0
              v_min_u32 v2, 447, v2
              v_lshl_add_u32 v2, v2, 13, s51
              s_mov_b64 exec, 0x7ffff
              global_load_dword v127, v2, s[10:11] offset:384
              s_mov_b64 exec, -1
              L_T1:''')
    a('''s_cmp_lt_u32 s33, 14
         s_cbranch_scc1 L_t_go
         s_cmp_eq_u32 s31, 8
         s_cbranch_scc1 L_t_go''')
    def pfcode():
        a('L_pf:')
        if fpf:
            a(f'''s_cmp_lt_u32 s31, 10
                  s_cbranch_scc1 L_end
                  s_mul_i32 s50, s33, 6
                  s_add_u32 s50, s50, s31
                  s_sub_u32 s50, s50, 94
                  s_cmp_lt_u32 s50, 56
                  s_cbranch_scc0 L_end''')
            if fpf:
                a(f'''s_cmp_lt_u32 s32, 4
                      s_cselect_b32 s52, 6, 8
                      s_cselect_b32 s53, 0, 8
                      s_cselect_b32 s56, 0x77777777, -1
                      s_cselect_b32 s58, 21, 28
                      s_mul_i32 s52, s52, s32
                      s_sub_u32 s52, s52, s53
                      s_lshr_b32 s51, s50, 1
                      s_waitcnt lgkmcnt(0)
                      s_bitcmp1_b32 s50, 0
                      s_cbranch_scc1 L_pf_2
                      s_mul_i32 s54, s51, {16*3584}
                      s_lshl_b32 s52, s52, 6
                      s_add_u32 s54, s54, s52
                      v_lshrrev_b32 v4, 2, v0
                      v_mul_u32_u24 v4, 3584, v4
                      v_and_b32 v5, 3, v0
                      v_lshl_add_u32 v4, v5, 7, v4
                      v_add_u32 v4, s54, v4
                      s_branch L_pf_3
                      L_pf_2:
                      s_mul_i32 s52, s52, {32*896}
                      s_lshl_b32 s54, s51, 13
                      s_add_u32 s54, s54, s52
                      v_lshl_add_u32 v4, v0, 7, s54
                      s_mov_b64 s[16:17], s[18:19]
                      s_cmp_lt_u32 s51, s58
                      s_cselect_b32 s56, -1, 0
                      L_pf_3:
                      s_mov_b32 s57, s56''')
            if wopf:
                a(f'''s_lshl_b32 s52, s50, 13
                      s_mul_i32 s51, s32, {512*896}
                      s_add_u32 s52, s52, s51
                      v_lshl_add_u32 v2, v0, 7, s52''')
                ldswait('L_pf_g', L_C, wopf, 4)
                if wolanes < 64: a(f's_mov_b32 exec_hi, {(1 << (wolanes - 32)) - 1}')
                a('global_load_dword v3, v2, s[12:13]')
            a('s_barrier\ns_barrier')
            if fpf: a('s_mov_b64 exec, s[56:57]\ns_cbranch_execz L_end\nglobal_load_dword v6, v4, s[16:17]' + pfnt)
        a('s_endpgm')
    a('''s_branch L_pf
         L_t_go:
         s_waitcnt lgkmcnt(0)''')
    dzero()
    a('L_t_go2:')
    tail_setup()
    a(f'''s_cmp_ge_u32 s33, 7
          s_cselect_b32 s50, 1, 0
          s_cselect_b32 s51, 7, 0
          s_sub_u32 s51, s33, s51
          s_lshl_b32 s52, s32, 1
          s_add_u32 s50, s50, s52
          s_lshl_b32 s52, s50, 8
          s_lshr_b32 s53, s49, 2
          s_lshl_b32 s53, s53, 7
          s_add_u32 s52, s52, s53
          s_and_b32 s53, s49, 1
          s_lshl_b32 s53, s53, 6
          s_add_u32 s52, s52, s53
          s_and_b32 s53, s49, 2
          s_lshl_b32 s53, s53, 1
          s_add_u32 s52, s52, s53
          s_mul_i32 s52, s52, 896
          s_lshl_b32 s53, s51, 7
          s_add_u32 s52, s52, s53
          s_add_u32 s53, s52, {8*896}
          s_mov_b32 s36, s12
          s_mov_b32 s37, s13
          s_mov_b32 s38, {4096*896}
          s_mov_b32 s39, 0x20000
          s_mul_i32 s40, s50, {24*1024}
          s_lshl_b32 s41, s49, 7
          s_add_u32 s40, s40, s41
          s_add_u32 s40, s40, {X3F}
          s_add_u32 s41, s40, 8192
          s_add_u32 s42, s40, 16384
          s_lshr_b32 s54, s50, 2
          s_lshl_b32 s54, s54, 13
          s_lshl_b32 s55, s50, 11
          s_add_u32 s54, s54, s55
          s_lshl_b32 s55, s51, 8
          s_add_u32 s54, s54, s55
          s_add_u32 s54, s54, {X4}
          s_add_u32 s55, s54, {SIDE}
          s_mov_b32 s43, 0
          s_mov_b32 s57, 0x04000c0c
          s_mov_b32 s58, {hex(f2u(0.0625 * LOG2E))}
          s_lshl_b32 s59, s49, 8
          s_add_u32 s59, s59, {L_P}
          v_lshrrev_b32 v12, 3, v0
          v_and_b32 v13, 7, v0
          v_lshlrev_b32 v3, 10, v12
          v_lshl_add_u32 v3, v13, 4, v3
          v_lshrrev_b32 v5, 4, v0
          v_lshl_add_u32 v5, v13, 2, v5
          v_lshl_add_u32 v5, v5, 1, s56
          v_lshl_add_u32 v6, v0, 4, s59
          v_lshlrev_b32 v4, 2, v0''')
    voff4(1, 16 * 896, 896, 12)
    def wold():
        stamp(3)
        for u in range(4):
            a(f'buffer_load_dwordx4 v[{80+4*u}:{83+4*u}], v1, s[36:39], s{52+(u>>1)} offen offset:{(u&1)*2*896}{wont}')
    maskaddr(8, 2, 's56', L_Z + 64, 12)
    a('s_waitcnt lgkmcnt(0)')
    tags()
    lanetag(7, 0); rowtag(98, 99)
    a('''v_and_b32 v10, 3, v0
         v_lshlrev_b32 v10, 3, v10
         v_lshlrev_b32_e64 v10, v10, 12
         v_xor_b32 v10, 0x0c0c0c0c, v10''')
    a(f'''s_cmp_eq_u32 s49, 0
          s_cbranch_scc0 L_wo
          v_lshlrev_b32 v2, 4, v0
          s_lshl_b32 s4, s32, 11
          s_add_u32 s4, s4, {X2F}
          s_mov_b32 m0, {L_Q}
          s_mov_b32 s62, 0
          s_setprio {pprio}
          L_p_loop:
          buffer_load_dwordx4 v2, s[44:47], s4 offen sc1 lds
          buffer_load_dwordx4 v2, s[44:47], s4 offen offset:1024 sc1 lds
          s_sleep {sleep}
          s_cmp_eq_u32 s62, {(1 << fastbits) * STEP}
          s_cselect_b32 s5, {X2F - X2}, 0
          s_sub_u32 s4, s4, s5
          ds_read2st64_b32 v[12:13], v2 offset0:{L_Q // 256} offset1:{L_Q // 256 + 4}
          s_waitcnt vmcnt(32) lgkmcnt(0)
          v_bitop3_b32 v12, v12, v13, s3 bitop3:0x7e
          v_cmp_ne_u32_sdwa vcc, v12, 0 src0_sel:WORD_0 src1_sel:DWORD''')
    spin('L_p_loop', 'L_p_ok')
    a('s_setprio 0')
    stamp(2)
    a('s_cmp_lt_u32 s33, 14\ns_cbranch_scc0 L_fin\nL_wo:')
    hop('w')
    if not wolate:
        ldswait('L_wo_g', L_C, gaten, 2)
        if gsl: a(f's_sleep {gsl}')
        wold()
    else: a('v_mov_b32 v100, 0')
    setprio(3)
    a('s_barrier\ns_barrier')
    if wolate: wold()
    stamp(4)
    x3l = [f'buffer_load_dwordx4 v[{32+4*s}:{35+4*s}], v3, s[44:47], s{40+s} offen sc1' for s in range(3)]
    for l in x3l: a(l)
    if peel:
        a('s_waitcnt vmcnt(0)')
        for i in range(3): a(f'v_cmp_ne_u32_sdwa s[{4+2*i}:{5+2*i}], v{32+4*i}, v7 src0_sel:BYTE_0 src1_sel:DWORD')
        for i in range(3): a(f's_wqm_b64 exec, s[{4+2*i}:{5+2*i}]\n{x3l[i]}')
        a('s_mov_b64 exec, -1')
    else: a('s_waitcnt vmcnt(3)')
    fix4(80, 48); perms64(80, 16)
    stamp(5)
    gather('L_x3', x3l, 32, 4, 7, issued=True, nfast=2 << fastbits, warm=(fX3, 62),
           spec='\n'.join(f'v_perm_b32 v{48+2*s}, v{35+4*s}, v{34+4*s}, s57' for s in range(3)),
           switch='\n'.join(f's_sub_u32 s{40+s}, s{40+s}, {X3F - X3}' for s in range(3)) + '\ns_barrier\ns_mov_b32 s43, 1')
    stamp(6)
    a(f'''v_max3_f32 v54, v48, v50, v52
          v_xor_b32 v32, v32, v7
          v_xor_b32 v36, v36, v7
          v_max_f32_dpp v54, v54, v54 row_ror:8 {DPPF}
          v_mov_b32 v55, v54
          v_xor_b32 v40, v40, v7''')
    pad('w')
    a(f'''v_permlane32_swap_b32 v54, v55
          v_max_f32 v54, v54, v55
          v_mov_b32 v55, v54
          v_permlane16_swap_b32 v54, v55
          v_max_f32 v54, v54, v55''')
    a('v_mul_f32 v54, s58, v54')
    for s in range(3): a(f'v_fma_f32 v{56+2*s}, v{48+2*s}, s58, -v54')
    for s in range(3): a(f'v_exp_f32 v{56+2*s}, v{56+2*s}')
    xs('w_exp')
    a(f'''v_pk_mul_f32 v[44:45], v[32:33], v[56:57] op_sel_hi:[1,0]
          v_pk_mul_f32 v[46:47], v[34:35], v[56:57] op_sel_hi:[1,0]
          v_pk_fma_f32 v[44:45], v[36:37], v[58:59], v[44:45] op_sel_hi:[1,0,1]
          v_pk_fma_f32 v[46:47], v[38:39], v[58:59], v[46:47] op_sel_hi:[1,0,1]
          v_pk_fma_f32 v[44:45], v[40:41], v[60:61], v[44:45] op_sel_hi:[1,0,1]
          v_pk_fma_f32 v[46:47], v[42:43], v[60:61], v[46:47] op_sel_hi:[1,0,1]''')
    rscatter(44)
    a(f's_cmp_eq_u32 s49, 0\nv_add_f32_dpp v44, v44, v44 row_ror:8 {DPPF}')
    rnd('v44', 'v44')
    xs('w_o')
    a('ds_write_b16_d16_hi v5, v44')
    for tau in range(2): a(f'ds_read_b128 v[{64+4*tau}:{67+4*tau}], v{8+tau}')
    def wo_out(x):
        a(f'''s_mov_b64 exec, 0xffff
              ds_write_b128 v6, v[74:77]
              s_mov_b64 exec, 1
              ds_inc_u32 v0, v98 offset:{L_C+16}''')
        if x:
            a('s_mov_b64 exec, -1')
            allred_rows('v_add_f32', 54, 55)
            a('v_rcp_f32 v52, v54')
        xs('w_pre')
        a(f's_cbranch_scc0 L_wo_nb{x}\ns_barrier\nL_wo_nb{x}:')
        xs('w_bar')
    a('s_cbranch_scc1 L_wo_0\ns_cmp_eq_u32 s43, 0')
    mma2(72, 64, 16)
    xs('w_mm')
    wo_out('')
    fin()
    a('L_wo_0:')
    for s in range(3): a(f'v_perm_b32 v{48+s}, v{33+4*s}, v{33+4*s}, v10')
    for s in range(3): a(f'v_or_b32_dpp v{48+s}, v{48+s}, v{48+s} quad_perm:[1,0,3,2] {DPPF}')
    a('s_cmp_eq_u32 s43, 0')
    mma2(72, 64, 16, mid='\n'.join(f'v_or_b32_dpp v{48+s}, v{48+s}, v{48+s} quad_perm:[2,3,0,1] {DPPF}' for s in range(3)))
    xs('w_mm')
    a(f'''v_mul_f32 v54, v56, v48
          v_fmac_f32 v54, v58, v49
          v_fmac_f32 v54, v60, v50
          s_mov_b32 s62, 0
          v_add_f32_dpp v54, v54, v54 row_ror:8 {DPPF}''')
    wo_out('0')
    a(f'L_wo_s:\nds_read_b32 v24, v100 offset:{L_C+16}')
    sumrows(8, L_P, 4, None, f's_waitcnt lgkmcnt({0 if (diag and only is None) else 4})\nv_cmp_ne_u32 vcc, 8, v24')
    rare.append(lambda: a(f'L_wo_sr:\ns_add_u32 s62, s62, {STEP}\ns_cbranch_scc0 L_wo_s\ns_branch L_wo_sok'))
    a('v_mul_f32 v16, v52, v16')
    a(f'''v_and_or_b32 v16, v16, v98, v99
          s_cbranch_vccnz L_wo_sr
          L_wo_sok:
          buffer_store_dword v16, v4, s[44:47], s54 offen sc1
          buffer_store_dword v16, v4, s[44:47], s55 offen sc1''')
    stamp(7)
    if bev: a(f's_waitcnt vmcnt(0)\nds_write_b32 v100, v24 offset:{L_C+20}')
    a('L_fin:')
    fin()
    for r in rare: r()
    rare.clear()

    role[0] = 'F'
    if paged: a('.p2align 12\nL_F2:')
    else: fstart()
    dzero(); stamp(1)
    a('s_load_dword s30, s[28:29], 0')
    ws_srd(); perm_sel()
    a(f'''s_lshl_b32 s52, s31, 8
          s_add_u32 s56, s52, 0x2400
          s_mov_b32 s59, {hex(f2u(448.0))}
          s_mov_b32 s58, 0x3f803f80
          v_mov_b32 v12, 0
          v_lshlrev_b32 v4, 2, v0
          ds_write_b32 v4, v12 offset:{FZ}
          v_add_u32 v6, s56, v6
          v_lshl_add_u32 v5, v5, 1, s52''')
    maskaddr(8, 2, 's56', FZ + 64, 12)
    a('''s_waitcnt vmcnt(8)
         v_dot2_f32_bf16 v102, v96, s58, 0
         v_dot2_f32_bf16 v103, v96, v96, 0''')
    for i in range(1, 4):
        a(f'v_dot2_f32_bf16 v102, v{96+i}, s58, v102')
        a(f'v_dot2_f32_bf16 v103, v{96+i}, v{96+i}, v103')
    for sh in (8, 4, 2, 1):
        a(f'v_add_f32_dpp v102, v102, v102 row_ror:{sh} {DPPF}')
        a(f'v_add_f32_dpp v103, v103, v103 row_ror:{sh} {DPPF}')
    allred_rows('v_add_f32', 102, 104); allred_rows('v_add_f32', 103, 104)
    a('v_lshlrev_b32 v96, 16, v100')
    ln_apply(102, 103, (100, 96), 104)
    a(f'''s_lshl_b32 s52, s32, 11
          s_lshl_b32 s53, s33, 8
          s_add_u32 s52, s52, s53
          s_add_u32 s53, s52, {X2F}
          s_add_u32 s52, s52, {X2}
          s_waitcnt lgkmcnt(0)''')
    tags()
    a('s_waitcnt vmcnt(4)')
    fix4(32, 104); perms64(32, 64)
    a(f'''s_mov_b32 s49, {X1}
          s_add_u32 s50, s31, 0
          s_lshr_b32 s63, s50, 3
          s_lshl_b32 s63, s63, 13
          s_lshl_b32 s50, s50, 10
          s_add_u32 s50, s50, s63
          s_add_u32 s50, s50, s49
          s_add_u32 s51, s31, 7
          s_lshr_b32 s63, s51, 3
          s_lshl_b32 s63, s63, 13
          s_lshl_b32 s51, s51, 10
          s_add_u32 s51, s51, s63
          s_add_u32 s51, s51, s49
          s_waitcnt vmcnt(0)''')
    fix4(48, 104); perms64(48, 80)
    a('''s_add_u32 s8, s31, 14
          s_lshr_b32 s63, s8, 3
          s_lshl_b32 s63, s63, 13
          s_lshl_b32 s8, s8, 10
          s_add_u32 s8, s8, s63
          s_add_u32 s8, s8, s49
          s_add_u32 s9, s31, 21
          s_lshr_b32 s63, s9, 3
          s_lshl_b32 s63, s63, 13
          s_lshl_b32 s9, s9, 10
          s_add_u32 s9, s9, s63
          s_add_u32 s9, s9, s49
          s_add_u32 s10, s31, 28
          s_lshr_b32 s63, s10, 3
          s_lshl_b32 s63, s63, 13
          s_lshl_b32 s10, s10, 10
          s_add_u32 s10, s10, s63
          s_add_u32 s10, s10, s49
          s_add_u32 s11, s31, 35
          s_lshr_b32 s63, s11, 3
          s_lshl_b32 s63, s63, 13
          s_lshl_b32 s11, s11, 10
          s_add_u32 s11, s11, s63
          s_add_u32 s11, s11, s49''')
    stamp(2)
    poll4('L_q_x1', [f'buffer_load_dwordx4 v[{32+4*s}:{35+4*s}], v41, s[44:47], s{50+s} offen sc1' for s in range(2)], 32, 40)
    stamp(3)
    if mxe:
        for s in range(4): a(f'buffer_load_dwordx4 v[{104+4*s}:{107+4*s}], v41, s[44:47], s{8+s} offen sc1')
    rscatter(36); rscatter(32)
    rnd('v36', 'v36'); rnd('v32', 'v32')
    a('v_add_f32 v36, 1.0, v36'); rnd('v36', 'v36')
    a('v_mul_f32 v36, v100, v36'); rnd('v36', 'v36')
    a('v_add_f32 v36, v36, v32'); rnd('v36', 'v36')
    a('ds_write_b16_d16_hi v6, v36')
    for u in range(2):
        for tau in range(2): a(f'ds_read_b128 v[{32+8*u+4*tau}:{35+8*u+4*tau}], v{8+tau} offset:{64*u}')
    mma2(48, 32, 64, left=2); mma2(48, 40, 80, first=False)
    a(f'''v_mov_b32 v24, 1
          s_mov_b32 s62, 0
          s_mov_b64 exec, 0xffff
          s_cmp_eq_u32 s31, 0
          ds_write_b128 v5, v[50:53] offset:{FP}
          s_mov_b64 exec, 1
          ds_add_u32 v0, v24 offset:{FC+4}
          s_mov_b64 exec, -1
          s_cbranch_scc0 L_q_done
          v_mov_b32 v25, 0
          L_q_s:
          ds_read_b32 v24, v25 offset:{FC+4}''')
    sumrows(7, FP, 4, 'v_cmp_ne_u32 vcc, 8, v24')
    rnd('v16', 'v16')
    rare.append(lambda: a(f'L_q_sr:\ns_add_u32 s62, s62, {STEP}\ns_cbranch_scc0 L_q_s\ns_branch L_q_sok'))
    a('''v_or_b32 v16, s3, v16
         s_cbranch_vccnz L_q_sr
         L_q_sok:
         buffer_store_dword v16, v4, s[44:47], s53 offen
         buffer_store_dword v16, v4, s[44:47], s52 offen sc1''')
    a(f'ds_write_b32 v25, v24 offset:{FC+16}')
    if rewarm:
        a(f'''s_cmp_eq_u32 s33, 7
              s_cbranch_scc0 L_q_done
              s_getpc_b64 s[4:5]
              L_pc2:
              s_sub_u32 s4, s4, L_pc2-L_pc
              s_subb_u32 s5, s5, 0
              v_lshlrev_b32 v102, 7, v0
              v_add_u32 v103, 0x2000, v102
              v_min_u32 v103, L_code_end-L_pc-4, v103
              global_load_dword v127, v102, s[4:5] sc1
              global_load_dword v127, v103, s[4:5] sc1''')
    a('L_q_done:')
    stamp(4)
    def ffn_id(skip):
        a(f'''s_cmp_lt_u32 s32, 4
              s_cselect_b32 s50, 6, 8
              s_cselect_b32 s51, 0, 8
              s_cmp_lt_u32 s33, s50
              s_cbranch_scc0 {skip}''')
    def wp3():
        a(f'''s_mul_i32 s14, s33, 7
              s_add_u32 s14, s14, s31
              s_lshl_b32 s14, s14, 13
              s_mul_i32 s15, s32, {512*896}
              s_add_u32 s14, s14, s15
              v_lshl_add_u32 v126, v0, 7, s14
              global_load_dword v127, v126, s[12:13]''')
    if vpf:
        assert tbl == 1
        a(f'''s_cmp_lt_u32 s31, 6
              s_cbranch_scc0 L_f_nv
              s_load_dwordx2 s[6:7], s[0:1], 16
              s_mul_i32 s52, s33, 6
              s_add_u32 s52, s52, s31
              s_lshl_b32 s52, s52, 2
              s_lshr_b32 s53, s52, 3
                      s_and_b32 s52, s52, 7
                      s_lshl_b32 s54, s53, 2
                      s_add_u32 s55, s54, 6
                      s_min_u32 s54, s54, 13
                      s_min_u32 s55, s55, 15
                      s_mul_i32 s15, s53, 43
                      s_cmp_ge_u32 s53, 17
                      s_cselect_b32 s54, 64, s54
                      s_cselect_b32 s55, 63, s55
                      s_mul_i32 s53, s53, 40
                      s_cselect_b32 s15, s53, s15
                      s_lshl_b32 s53, s32, 14
                      s_add_u32 s15, s15, s53
                      s_add_u32 s15, s15, {WINOFF // 2048 + 5}
                      v_lshrrev_b32 v124, 4, v0
                      v_add_u32 v124, s52, v124
                      v_add_u32 v125, s54, v124
                      v_min_u32 v125, s55, v125
                      v_mad_u32_u24 v124, v124, 5, v125
                      v_add_u32 v124, s15, v124
                      v_and_b32 v125, 15, v0
                      v_lshlrev_b32 v125, 7, v125
                      v_lshl_add_u32 v124, v124, 11, v125''')
        ldswait('L_f_qv', FC + 16, 1, 1, 102)
        for k in range(vpf): a(f'global_load_dword v127, v124, s[6:7] offset:{-2048 * (vpf - 1 - k)}{vpffl}')
        a('L_f_nv:')
    if wopf3:
        ldswait('L_f_q3', FC + 16, 1, 1, 102)
        if wopf3 > 1: a(f's_sleep {wopf3}')
        wp3()
    ffn_id('L_fin2')
    a(f'''s_mul_i32 s50, s50, s32
          s_add_u32 s50, s50, s33
          s_sub_u32 s50, s50, s51
          s_mov_b32 s36, s16
          s_mov_b32 s37, s17
          s_mov_b32 s38, {448*3584}
          s_mov_b32 s40, s18
          s_mov_b32 s41, s19
          s_mov_b32 s42, {1792*896}
          s_mul_i32 s52, s31, {64*3584}
          s_lshl_b32 s53, s50, 6
          s_add_u32 s52, s52, s53
          s_mul_i32 s54, s50, {32*896}
          s_lshl_b32 s55, s31, 7
          s_add_u32 s54, s54, s55
          s_add_u32 s55, s54, {4*896}
          v_and_b32 v4, 15, v0
          v_mul_u32_u24 v2, {8*3584}, v3
          v_lshl_add_u32 v2, v4, 2, v2''')
    voff4(1, 8 * 896, 896, 102)
    if not mxe or not hintk: ldswait('L_f_q', FC + 16, 1, 1, 102)
    poll4('L_f_mx', [f'buffer_load_dwordx4 v[{104+4*s}:{107+4*s}], v121, s[44:47], s{8+s} offen sc1' for s in range(4)], 104, 120, 0, mxe)
    for s in range(4): rscatter(104 + 4 * s)
    rnd('v102', 'v104'); rnd('v98', 'v108'); rnd('v100', 'v112'); rnd('v116', 'v116')
    a('v_add_f32 v100, 1.0, v100\ns_lshl_b32 s13, s31, 8\nv_lshl_add_u32 v103, v0, 2, s13')
    rnd('v100', 'v100')
    a(f'''ds_write_b32 v103, v116 offset:{FG}
          ds_write_b16_d16_hi v6, v100
          ds_write_b16_d16_hi v6, v98 offset:128''')
    hop('f')
    if hintk: ldswait('L_f_g', FC + 8, 1, 1, 104)
    stamp(5)
    for i in range(16):
        a(f'buffer_load_dword v{32+i}, v2, s[36:39], s52 offen offset:{3584*(i&1)}{w1nt}')
        if i & 1: a(f's_add_u32 s52, s52, {2*3584 if i != 7 else 26*3584}')
    for u in range(4):
        a(f'buffer_load_dwordx4 v[{48+4*u}:{51+4*u}], v1, s[40:43], s{54+(u>>1)} offen offset:{(u&1)*2*896}{w2nt}')
    maskaddr(10, 2, FH, FZ + 64, 104)
    lanetag(5, 0)
    getside(104)
    a(f'''s_lshr_b32 s12, s50, 2
          s_lshl_b32 s12, s12, 13
          s_lshl_b32 s14, s50, 11
          s_add_u32 s12, s12, s14
          s_add_u32 s12, s12, s13
          s_add_u32 s12, s12, {X5}
          v_and_b32 v7, 1, v3
          v_lshlrev_b32 v7, 13, v7
          v_lshl_add_u32 v7, v4, 4, v7''')
    if x5o == 3: a(f'v_xor_b32 v7, s48, v7\nv_xor_b32 v15, {SIDE}, v7')
    elif x5o:
        a(f'''s_cmp_ge_u32 s31, 3
              s_cselect_b32 s14, 4, 0
              s_xor_b32 s14, s14, s32
              s_lshr_b32 s14, s14, 2
              s_lshl_b32 s14, s14, 13
              s_xor_b32 s14, s14, s48
              v_xor_b32 v7, s14, v7''')
    a(f'''v_and_b32 v8, 1, v0
          v_lshlrev_b32 v8, 7, v8
          v_lshl_add_u32 v8, v3, 4, v8
          v_add_u32 v8, s56, v8
          v_lshlrev_b32 v2, 11, v3
          v_lshl_add_u32 v2, v4, 4, v2
          s_add_u32 s52, s13, {FA}
          v_lshl_add_u32 v9, v0, 3, s52
          s_lshl_b32 s52, s31, 7
          s_add_u32 s52, s52, {FP2}
          v_lshl_add_u32 v4, v0, 3, s52
          s_add_u32 s40, s13, s48
          s_add_u32 s40, s40, {X4}
          s_add_u32 s41, s40, {1 << 14}
          s_add_u32 s42, s40, {2 << 14}
          s_add_u32 s43, s40, {3 << 14}
          s_lshl_b32 s52, s31, 3
          s_add_u32 s52, s52, {FST}
          v_lshrrev_b32 v1, 5, v0
          v_lshl_add_u32 v3, v1, 2, s52
          s_mov_b32 s57, 0xffffff00
          s_mov_b32 s16, 0x10000
          s_mov_b32 s17, 0x10000
          ds_read_b128 v[80:83], v8
          ds_read_b128 v[84:87], v8 offset:64
          v_mov_b32 v12, 0
          v_mov_b32 v13, 1
          v_mov_b32 v120, 1''')
    x4l = [f'buffer_load_dwordx4 v[{104+4*s}:{107+4*s}], v2, s[44:47], s{40+s} offen sc1' for s in range(4)]
    def w1mma(k):
        for tau in range(2):
            d = 88 + 4 * tau; b = 16 + 8 * k + 4 * tau
            a(f'v_mfma_f32_16x16x32_bf16 v[{d}:{d+3}], v[{80+4*k}:{83+4*k}], v[{b}:{b+3}], ' + ('0' if k == 0 else f'v[{d}:{d+3}]'))
    stamp(6)
    a('s_waitcnt vmcnt(4) lgkmcnt(0)')
    for l in x4l: a(l)
    for aa in range(2):
        for tau in range(2):
            for rho in range(4):
                a(f'v_perm_b32 v{16+8*aa+4*tau+rho}, v{32+8*aa+2*rho+1}, v{32+8*aa+2*rho}, s{60+tau}')
    w1mma(0); w1mma(1)
    a(f'''s_mov_b64 exec, 0xffff
          ds_write2_b32 v9, v88, v92 offset0:0 offset1:1
          ds_write2_b32 v9, v89, v93 offset0:32 offset1:33
          s_mov_b64 exec, 1
          ds_add_u32 v0, v120 offset:{FC}
          s_mov_b64 exec, -1
          s_waitcnt vmcnt(4)''')
    fix4(48, 124); perms64(48, 64)
    setprio(2)
    stamp(7)
    def sum_hi(r, d):
        return f'''v_pk_add_f32 v[{d+2}:{d+3}], v[{r+2}:{r+3}], v[{r+6}:{r+7}]
                   v_pk_add_f32 v[{d}:{d+1}], v[{r+10}:{r+11}], v[{r+14}:{r+15}]
                   v_pk_add_f32 v[{d+2}:{d+3}], v[{d+2}:{d+3}], v[{d}:{d+1}]'''
    def sum_lo(r, d):
        for s in range(4): a(f'v_xor_b32 v{r+4*s}, v{r+4*s}, v5')
        pk('add', r, r, r + 4); pk('add', r + 8, r + 8, r + 12); pk('add', d, r, r + 8)
    gather('L_x4', x4l, 104, 4, 5, spec=sum_hi(104, 120), issued=True, warm=(fX4, 63))
    stamp(8)
    sum_lo(104, 120)
    pad('f')
    rscatter(120)
    rnd('v120', 'v120'); a('v_mul_f32 v120, v102, v120'); rnd('v120', 'v120'); a('v_add_f32 v120, v96, v120'); rnd('v121', 'v120')
    xs('x2')
    a(f'''v_mul_f32 v123, v121, v100
          v_mul_f32 v122, v121, v121
          v_cvt_pk_bf16_f32 v124, 0, v123
          v_sub_f32 v124, v123, v124
          v_cvt_pk_bf16_f32 v123, v124, v123
          ds_write_b16_d16_hi v6, v123
          ds_write_b16 v6, v123 offset:128
          ds_read_b128 v[80:83], v8
          ds_read_b128 v[84:87], v8 offset:64
          ds_write_b32 v103, v121 offset:{FX}
          v_permlane32_swap_b32 v121, v122
          v_add_f32 v121, v121, v122''')
    pad('f')
    a(f'''v_add_f32_dpp v121, v121, v121 row_ror:8 {DPPF}
          v_add_f32_dpp v121, v121, v121 row_ror:4 {DPPF}
          v_add_f32_dpp v121, v121, v121 row_ror:2 {DPPF}
          s_waitcnt lgkmcnt({0 if (diag and only is None) else 2})''')
    w1mma(0)
    a(f'''v_add_f32_dpp v121, v121, v121 row_ror:1 {DPPF}
          s_waitcnt lgkmcnt({0 if (diag and only is None) else 1})''')
    w1mma(1)
    a(f'''v_add_f32_dpp v121, v121, v121 row_bcast:15 row_mask:0xa bank_mask:0xf
          s_mov_b64 exec, s[16:17]
          ds_write_b32 v3, v121''')
    if est: a(f'ds_add_u32 v12, v13 offset:{FC+20}')
    a('s_mov_b64 exec, 0xffff')
    pad('f')
    a(f'''v_add_f32 v88, v88, v89
          v_add_f32 v92, v92, v93
          ds_write2_b32 v4, v88, v92 offset0:0 offset1:1''')
    if nw3: a(f's_mov_b64 exec, 1\nds_add_u32 v12, v13 offset:{FC+24}')
    else: a('s_waitcnt lgkmcnt(0)')
    stamp(11); xs('preB3')
    a('s_barrier\ns_mov_b64 exec, -1\ns_mov_b32 s62, 0')
    xs('B3')
    a('s_barrier')
    xs('B4')
    a('L_f_h1:')
    if nw4: a(f'ds_read_b32 v14, v12 offset:{FC+28}')
    for tau in range(2): a(f'ds_read_b128 v[{80+4*tau}:{83+4*tau}], v{10+tau}')
    mma2(32, 80, 64, mid='v_cmp_eq_u32 vcc, 0, v14' if nw4 else None)
    if nw4:
        a('s_cbranch_vccnz L_f_h1r\nL_f_h1ok:')
        rare.append(lambda: a(f'L_f_h1r:\ns_add_u32 s62, s62, {STEP}\ns_cbranch_scc0 L_f_h1\ns_branch L_f_h1ok'))
    xs('mm2')
    pad('f', True)
    if x5o == 3:
        a('''s_mov_b64 exec, 0xffff
             v_and_or_b32 v34, v34, s57, v5
             buffer_store_dwordx4 v[34:37], v7, s[44:47], s12 offen sc1
             buffer_store_dwordx4 v[34:37], v15, s[44:47], s12 offen sc1''')
        stamp(9)
        if x5w is not None: a(f's_cmp_le_u32 s31, {x5w}\ns_cbranch_scc0 L_f_nwt')
        a('s_waitcnt vmcnt(1)\nL_f_nwt:\ns_barrier\nL_fin2:')
    elif x5o == 2:
        a('''s_mov_b64 exec, 0xffff
             v_and_or_b32 v34, v34, s57, v5
             buffer_store_dwordx4 v[34:37], v7, s[44:47], s12 offen sc1''')
        stamp(9)
        a(f'''s_barrier
              v_xor_b32 v7, {SIDE}, v7
              s_waitcnt vmcnt(0)
              buffer_store_dwordx4 v[34:37], v7, s[44:47], s12 offen sc1
              L_fin2:''')
    else:
        a('''s_mov_b32 exec_hi, 0
             v_and_or_b32 v34, v34, s57, v5
             buffer_store_dwordx4 v[34:37], v7, s[44:47], s12 offen sc1''')
        stamp(9)
        a('s_barrier\nL_fin2:')
    fin()
    for r in rare: r()
    rare.clear()
    if not paged: a(f'''L_F7s:
              s_cmp_ge_u32 s31, 9
              s_cbranch_scc1 L_F9
              v_mov_b32 v2, 0
              v_lshlrev_b32 v3, 2, v0
              ds_write_b32 v3, v2 offset:{FC & ~255}
              s_waitcnt lgkmcnt(0)
              s_barrier
              s_branch L_F7
              L_F9:
              s_endpgm''')
    a(f'''L_F7:
          s_cmp_eq_u32 s31, 7
          s_cbranch_scc0 L_F8
          s_load_dword s30, s[28:29], 0
          v_mov_b32 v4, 1
          s_waitcnt lgkmcnt(0)
          s_mov_b64 exec, 1
          ds_add_u32 v2, v4 offset:{FC+4}
          s_mov_b64 exec, -1''')
    dzero()
    ws_srd()
    ffn_id('L_fin3')
    if hintk:
        a(f'''s_mul_i32 s49, s32, {24*128}
              s_add_u32 s49, s49, {HINT}
              v_lshlrev_b32 v102, 7, v0''')
        if mxe:
            ldswait('L_7_t', FC + 4, 2, 4, 104)
            a('s_mov_b64 exec, 0xffffff\nbuffer_load_dword v103, v102, s[44:47], s49 offen sc1\ns_mov_b64 exec, -1')
    ldswait('L_7_q', FC + 16, 1, 4, 104)
    tags()
    if hintk:
        a(f'''s_mul_i32 s54, s50, s32
              s_add_u32 s54, s54, s33
              s_and_b32 s54, s54, 6
              s_cmp_eq_u32 s54, 6
              s_cselect_b32 s54, {hintk if hk3 is None else hk3}, {hintk}
              s_mov_b64 exec, 0xffffff
              s_mov_b32 s62, 0
              L_f_h:
              s_sleep 2
              buffer_load_dword v103, v102, s[44:47], s49 offen sc1
              s_add_u32 s62, s62, {1 << (32 - fastbits)}
              s_waitcnt vmcnt(0)
              s_cbranch_scc1 L_f_hok
              v_cmp_eq_u32 vcc, s3, v103
              s_bcnt1_i32_b64 s53, vcc
              s_cmp_lt_u32 s53, s54
              s_cbranch_scc1 L_f_h
              L_f_hok:
              s_mov_b64 exec, -1
              v_mov_b32 v103, 1
              ds_write_b32 v2, v103 offset:{FC+8}''')
    a(f'''s_mul_i32 s50, s50, s32
          s_add_u32 s50, s50, s33
          s_sub_u32 s50, s50, s51
          v_mov_b32 v9, v3
          v_lshrrev_b32 v4, 4, v0
          v_lshlrev_b32 v81, 14, v4
          v_bfe_u32 v6, v0, 2, 2
          v_lshl_add_u32 v81, v6, 11, v81
          v_and_b32 v6, 3, v0
          v_lshl_add_u32 v81, v6, 4, v81
          s_bfe_u32 s52, s50, 0x20001
          s_lshl_b32 s52, s52, 2
          s_lshl_b32 s20, 0x000f000f, s52
          s_mov_b32 s21, s20
          s_lshr_b32 s52, s50, 3
          s_lshl_b32 s53, s52, 8
          v_add_u32 v3, s53, v3
          s_lshl_b32 s52, s52, 7
          v_and_b32 v6, 7, v0
          v_lshlrev_b32 v6, 4, v6
          v_and_b32 v7, 8, v0
          v_lshl_add_u32 v7, v4, 1, v7
          v_add3_u32 v101, v6, v7, s52
          s_mov_b32 s36, s24
          s_mov_b32 s37, s25
          s_mov_b32 s38, 896
          s_mov_b32 s39, 0x20000''')
    lanetag(5, 0)
    x5l = [f'buffer_load_dwordx4 v[{36+4*s}:{39+4*s}], v81, s[44:47], s{40+s} offen sc1' for s in range(4)]
    a('v_mov_b32 v48, v5\nv_mov_b32 v49, 0\nv_mov_b32 v50, 0\nv_mov_b32 v51, 0')
    hop('s')
    ldswait('L_7_g', FC, 2, 4, 102)
    getside(102)
    a(f'''s_lshl_b32 s40, s50, 5
          s_add_u32 s40, s40, s48
          s_add_u32 s40, s40, {X5}
          s_add_u32 s41, s40, {4 << 14}
          s_add_u32 s42, s40, {8 << 14}
          s_add_u32 s43, s40, {12 << 14}''')
    a('s_bitcmp1_b32 s50, 0\ns_cbranch_scc1 L_7_o\n' + '\n'.join(x5l[:3] if pt5 else [f'v_mov_b32 v{36+4*k}, 0xff' for k in range(3)]) + f'''
          s_mov_b32 exec_hi, 0
          {x5l[3] if pt5 else 'v_mov_b32 v48, 0xff'}
          {'buffer_load_ushort v125, v101, s[36:39], 0 offen' if opt else ''}
          s_mov_b32 exec_hi, -1
          L_7_o:''')
    ldswait('L_7_a', FC, 7, 1, 102)
    sumrows(7, FA, 9)
    a(f'''v_mov_b32 v17, v16
          v_and_b32 v14, 31, v0
          v_lshlrev_b32 v15, 1, v14
          v_permlane32_swap_b32 v16, v17
          v_lshlrev_b32 v14, 2, v14
          v_add_u32 v14, {FP2}, v14
          v_mov_b32 v1, {FST}
          v_mov_b32 v31, 0
          s_mov_b32 s59, {hex(f2u(448.0))}''')
    align('S')
    setprio(3)
    cw = lambda n: f's_waitcnt lgkmcnt({0 if (diag and only is None) else n})'
    if est:
        a(f'''s_mov_b32 s62, 0
              L_7_s:
              ds_read_b32 v70, v31 offset:{FC+20}
              ds_read_b128 v[56:59], v1
              ds_read_b128 v[60:63], v1 offset:16
              ds_read_b128 v[64:67], v1 offset:32
              ds_read_b64 v[68:69], v1 offset:48
              s_add_u32 s62, s62, {STEP >> 2}
              s_cbranch_scc1 L_7_sok
              {cw(4)}
              v_cmp_ne_u32 vcc, 14, v70
              s_cbranch_vccnz L_7_s
              L_7_sok:
              s_waitcnt lgkmcnt(0)''')
        pk('add', 56, 56, 58); pk('add', 60, 60, 62)
        pk('add', 64, 64, 66); pk('add', 56, 56, 60); pk('add', 64, 64, 68); pk('add', 56, 56, 64)
        a(f'''s_barrier
              ds_read2_b32 v[24:25], v14 offset0:0 offset1:32
              ds_read2_b32 v[26:27], v14 offset0:64 offset1:96
              ds_read2_b32 v[28:29], v14 offset0:128 offset1:160
              ds_read_b32 v30, v14 offset:768''')
        a(f'''v_mul_f32 v60, v56, v56
              v_fma_f32 v61, v56, v56, -v60
              v_fma_f32 v60, v57, s59, -v60
              v_sub_f32 v60, v60, v61
              v_mul_f32 v60, {hex(f2u(1/448/448))}, v60
              v_max_f32 v60, 0, v60''')
        rnd('v60', 'v60')
        a(f'v_add_f32 v60, {hex(f2u(1e-5))}, v60')
        rnd('v60', 'v60')
        a(f'v_sqrt_f32 v60, v60\nv_mul_f32 v62, {hex(f2u(1/448))}, v56')
        rnd('v60', 'v60')
        a('s_waitcnt lgkmcnt(0)\nv_rcp_f32 v60, v60')
        pk('add', 24, 24, 26); pk('add', 28, 28, 30)
        rnd('v62', 'v62')
        pk('add', 24, 24, 28)
        a('''v_fma_f32 v24, -v62, v16, v24
             v_add_f32 v24, v24, v25
             v_fma_f32 v24, v24, v60, v17''')
    else:
        a('s_mov_b32 s62, 0\ns_barrier\nL_7_t:')
        if nw3: a(f'ds_read_b32 v70, v31 offset:{FC+24}')
        a(f'''ds_read_b128 v[56:59], v1
              ds_read_b128 v[60:63], v1 offset:16
              ds_read_b128 v[64:67], v1 offset:32
              ds_read_b64 v[68:69], v1 offset:48
              ds_read2_b32 v[24:25], v14 offset0:0 offset1:32
              ds_read2_b32 v[26:27], v14 offset0:64 offset1:96
              ds_read2_b32 v[28:29], v14 offset0:128 offset1:160
              ds_read_b32 v30, v14 offset:768''')
        a(cw(6))
        if nw3: a('v_cmp_ne_u32 vcc, 7, v70')
        pk('add', 56, 56, 58); pk('add', 60, 60, 62)
        a(cw(4))
        pk('add', 64, 64, 66); pk('add', 56, 56, 60); pk('add', 64, 64, 68); pk('add', 56, 56, 64)
        a(f'''v_mul_f32 v60, v56, v56
              v_fma_f32 v61, v56, v56, -v60
              v_fma_f32 v60, v57, s59, -v60
              v_sub_f32 v60, v60, v61
              v_mul_f32 v60, {hex(f2u(1/448/448))}, v60
              v_max_f32 v60, 0, v60''')
        rnd('v60', 'v60')
        a(f'v_add_f32 v60, {hex(f2u(1e-5))}, v60')
        rnd('v60', 'v60')
        a(f'v_sqrt_f32 v60, v60\nv_mul_f32 v62, {hex(f2u(1/448))}, v56')
        rnd('v60', 'v60')
        a('s_waitcnt lgkmcnt(0)\nv_rcp_f32 v60, v60')
        pk('add', 24, 24, 26); pk('add', 28, 28, 30)
        rnd('v62', 'v62')
        pk('add', 24, 24, 28)
        a('''v_fma_f32 v24, -v62, v16, v24
             v_add_f32 v24, v24, v25
             v_fma_f32 v24, v24, v60, v17''')
    rnd('v24', 'v24')
    silu(24, 24, 25, 's')
    if nw3:
        a('s_cbranch_vccnz L_7_tr\nL_7_tok:')
        rare.append(lambda: a(f'L_7_tr:\ns_add_u32 s62, s62, {STEP}\ns_cbranch_scc0 L_7_t\ns_branch L_7_tok'))
    a(f'ds_write_b16_d16_hi v15, v24 offset:{FH}')
    a(f'ds_write_b32 v31, v1 offset:{FC+28}' if nw4 else 's_waitcnt lgkmcnt(0)')
    a('''s_barrier
         s_bitcmp1_b32 s50, 0
         s_cbranch_scc1 L_fin3''')
    a(f'''ds_read_b32 v96, v3 offset:{FX}
          ds_read_b32 v100, v3 offset:{FG}
          s_cmp_eq_u32 s50, 0
          s_cbranch_scc0 L_7_e
          s_mov_b64 exec, 1
          v_mov_b32 v6, s30
          buffer_store_dword v6, v2, s[44:47], 0 offen
          s_mov_b64 exec, -1
          L_7_e:''')
    pad('s')
    a('s_barrier\ns_waitcnt lgkmcnt(0)')
    if d5: a(f'; back off one flight time: nothing can have arrived yet, and a read that is too early costs a whole round trip\ns_sleep {d5}')
    gather('L_x5', x5l, 36, 4, 5, issued=True, spec=sum_hi(36, 32))
    stamp(12)
    sum_lo(36, 32)
    pad('s')
    rscatter(32)
    a(f'v_add_f32_dpp v32, v32, v32 row_ror:8 {DPPF}')
    pad('s', True)
    a(f'v_add_f32_dpp v32, v32, v32 row_ror:4 {DPPF}')
    rnd('v32', 'v32'); a('v_mul_f32 v32, v100, v32'); rnd('v32', 'v32'); a('v_add_f32 v32, v96, v32\ns_mov_b64 exec, s[20:21]'); rnd('v32', 'v32')
    a('buffer_store_short_d16_hi v32, v101, s[36:39], 0 offen' + ofl)
    stamp(14)
    if lite: a('s_branch L_dump')
    a('L_fin3:')
    fin()
    for r in rare: r()
    rare.clear()
    a(f'''L_F8:
          s_lshl_b32 s48, s2, 7
          s_add_u32 s48, s48, {PRB}
          s_add_u32 s49, s48, {SIDE}
          s_mov_b32 s52, -1
          s_mov_b32 s53, -1
          s_mov_b32 s54, 0
          s_waitcnt lgkmcnt(0)''')
    if tlb:
        a(f'''s_lshl_b32 s50, s32, 25
              s_add_u32 s50, s50, {WINOFF}
              s_mov_b32 s51, {4096*896-4}
              s_load_dword s56, s[8:9], s50
              s_load_dword s57, s[12:13], 0
              s_load_dword s58, s[12:13], s51
              s_load_dword s59, s[16:17], 0
              s_load_dword s60, s[18:19], 0
              s_load_dword s61, s[24:25], 0''')
    dzero()
    if fside is not None:
        a(f'''s_getreg_b32 s55, hwreg(HW_REG_XCC_ID)
              s_bfe_u32 s55, s55, 0x10002
              s_xor_b32 s55, s55, {fside}
              s_lshl_b32 s55, s55, 13
              v_mov_b32 v3, s55
              ds_write_b32 v2, v3 offset:{FC+12}''')
    else:
        a('s_load_dword s10, s[28:29], s48 glc\ns_load_dword s11, s[28:29], s49 glc\ns_waitcnt lgkmcnt(0)\nL_8_l:')
        for sd in range(2):
            a(f'''s_memtime s[4:5]
                  s_waitcnt lgkmcnt(0)
                  s_load_dword s10, s[28:29], s{48+sd} glc
                  s_waitcnt lgkmcnt(0)
                  s_memtime s[6:7]
                  s_lshr_b32 s8, s33, {sd}
                  s_add_u32 s8, s8, s54
                  s_bitcmp1_b32 s8, 0
                  s_waitcnt lgkmcnt(0)
                  s_cbranch_scc0 L_8_n{sd}
                  s_sleep 3
                  L_8_n{sd}:
                  s_sub_u32 s4, s6, s4
                  s_min_u32 s{52+sd}, s{52+sd}, s4''')
        a(f'''s_cmp_lt_u32 s53, s52
              s_cselect_b32 s55, {SIDE}, 0
              v_mov_b32 v3, s55
              ds_write_b32 v2, v3 offset:{FC+12}''')
        if diag:
            for k in (1, 2, 3, 4): a(f's_cmp_eq_u32 s54, {k-1}\ns_cbranch_scc0 L_8_d{k}\ns_memrealtime s[{64+2*k}:{65+2*k}]\ns_add_u32 s{64+2*(k+4)}, s55, 1\nL_8_d{k}:')
        a(f'''s_add_u32 s54, s54, 1
              s_cmp_lt_u32 s54, {nprb}
              s_cbranch_scc1 L_8_l''')
    if diag:
        a('s_add_u32 s90, s55, 1\ns_getreg_b32 s88, hwreg(HW_REG_XCC_ID)\ns_mov_b32 s86, s52\ns_mov_b32 s84, s53')
        fin()
    else: a('s_endpgm')
    pfcode()
    if probe:
        a('L_probe:\ns_cmp_eq_u32 s68, 0\ns_cbranch_scc1 L_end')
        if len(probe) > 2 and probe[2] is not None: a(f's_cmp_eq_u32 s32, {probe[2]}\ns_cbranch_scc0 L_end')
        if len(probe) > 3 and probe[3] is not None: a(f's_cmp_eq_u32 s31, {probe[3]}\ns_cbranch_scc0 L_end')
        a('''s_setprio 0
             s_sleep 127
             s_sleep 127
             s_sleep 127
             s_sleep 127
             s_sleep 127
             L_probe_l:
             s_memrealtime s[66:67]
             s_waitcnt lgkmcnt(0)
             s_sub_u32 s66, s66, s64
             s_cmp_lt_u32 s66, 3000
             s_cbranch_scc1 L_probe_l
             s_endpgm''')
    if diag or lite:
        a(f'''L_dump:
              s_mov_b64 exec, -1
              s_waitcnt vmcnt(0) lgkmcnt(0)
              s_memrealtime s[94:95]
              s_lshl_b32 s48, s2, 4
              s_add_u32 s48, s48, s31
              s_lshl_b32 s48, s48, 6
              s_add_u32 s48, s48, {STAMP_OFF}
              v_mov_b32 v1, s48
              s_waitcnt lgkmcnt(0)''')
        for i in range(16): a(f'v_mov_b32 v{8+i}, s{64+2*i}')
        a('s_mov_b64 exec, 1')
        for i in range(4): a(f'global_store_dwordx4 v1, v[{8+4*i}:{11+4*i}], s[28:29] offset:{16*i}')
    a('L_end:\ns_endpgm\nL_code_end:')
    head = open('adaLN_cond__sliding_block_cached__dense_activation_silu__decode.s.ref').read().split('; Override launch')[0]
    return head + f'''; @launch grid=(256,1,1) block=(1024,1,1) lds={L_END}
{DOC.rstrip()}
.amdgcn_target "amdgcn-amd-amdhsa--gfx950"
.text
.globl {KN}
{'.p2align 12' if paged else ''}
.p2align 8
.type {KN},@function
''' + annotate(a.text()) + f'''.section .rodata,"a"
.p2align 6
.amdhsa_kernel {KN}
  .amdhsa_next_free_vgpr 128
  .amdhsa_next_free_sgpr 96
  .amdhsa_accum_offset 128
  .amdhsa_group_segment_fixed_size 0
  .amdhsa_kernarg_size 104
  .amdhsa_user_sgpr_count 2
  .amdhsa_user_sgpr_kernarg_segment_ptr 1
  .amdhsa_system_sgpr_workgroup_id_x 1
.end_amdhsa_kernel
'''

if __name__ == '__main__':
    out = sys.argv[1]
    kw = eval('dict(' + (sys.argv[2] if len(sys.argv) > 2 else '') + ')')
    open(out, 'w').write(gen(**kw))
```

```python
import sys, struct
sys.path.insert(0, 'work')
from asmlib import Asm

KN = 'adaLN_cond__sliding_block_cached__dense_activation_silu__decode_kernel'
X2, X2F, HINT, PRB, X1, X4, X5, X3, X3F, WSEND = 0x4000, 0x8000, 0xC000, 0x80000, 0x18000, 0x30000, 0x40000, 0xA0000, 0x100000, 0x160000
SIDE = 0x2000
STAMP_OFF = 0x180000
L_Q, L_M, L_C, L_L, L_Z, L_O, L_PRIV, L_P, L_END = 0x0, 0x800, 0x810, 0x840, 0x900, 0x1000, 0x5000, 0x5800, 0x6100
FM = 0x300
FZ, FC, FP, FP2, FST, FX, FG, FA, FH = 0x0, 0x240, 0x1000, 0x1800, 0x2000, 0x3000, 0x3800, 0x4000, 0x2100
WINOFF = (65536 - 4096) * 512

DOC = """;
"""
def f2u(x): return struct.unpack('<I', struct.pack('<f', x))[0]
LOG2E = 1.4426950408889634
DPPF = 'row_mask:0xf bank_mask:0xf'

CM = {'L_A': 'attention CUs: waves 0..7 start their K loads inside the first fetched lines', 'L_a_u': 'CUs whose modulation task is on the path to q let its loads go first', 'L_Td': 'waves 8..15 of the attention CUs; waves 12..15 clear the first 4 KB of LDS (q slot, max, counters, zero rows)', 'L_mod': 'modulation task: 112 rows x 64 columns of w_mod, raw rows as B operand, silu(c) on a diagonal A operand', 'L_F': 'front CUs: wq loads', 'L_a_c': 'attention: lane constants, then the paced K and V loads', 'L_a_q': 'attention: wait for q in LDS, scores (diagonal blocks of K x q), CU-wide max, exp, P x V, combine the waves, publish', 'L_T': 'tail waves: set-up, q poller (wave 8)', 'L_wo': 'wo block: weights after the V loads, gather the 24 partials of the head, rescale, multiply, publish', 'L_F2': 'front CUs: LayerNorm(x), gather shift / scale, h, q', 'L_q_done': 'FFN block: remaining modulation values, weights, constant products c1 @ w1 and sb @ w1', 'L_x4': 'FFN: gather the 16 head products, residual, (x2 * c1) @ w1 and statistics, then h1 @ w2', 'L_F7': 'wave 7 of the front CUs: weight gate, LayerNorm + SiLU between the products, final reduction', 'L_F8': 'wave 8 of the front CUs: which memory side answers faster', 'L_pf': 'idle waves of CUs without a wo block pull the FFN weights into L2'}
def annotate(t):
    return ''.join((f'; ---- {CM[l[:-1]]}\n' if l[:-1] in CM else '') + l + '\n' for l in t.rstrip('\n').split('\n'))

def gen(W=5, WH=6, WK=3, WKH=4, N0=2, WE=7, NE=6, NL=4, adapt=True, diag=False, lite=False, probe=None, sleep=8, nt=' nt', w1nt='', wont=' nt',
        rewarm=True, gaten=8, hintk=16, hintpos=7, touchpos=2, spinbits=20, fastbits=6, prio=True, pprio=3, nprb=5,
        fside=None, nob=False, fpf=8, tbl=1, only=None, lk=0, LW=(5, 6, 7, 6), WR=None, pf3=True, wolate=False, fdelay=0, wopf=0, wolanes=32, fB3=0, fB3p=0, fB4=(12, 12), fM=True, tlb=False, mxe=False, dirty=0, epe=True, wopf2=0, peel=False, nwo=42, nmid=48, ldef=True, est=False, al={'L_x3': 0, 'L_x4': 2, 'L_x5': 3}, pads='', paged=True, pvf=True, wopf3=0, vpf=0, vpfk=8, vpffl='', hk3=4, nw3=True, nw4=True, nw2=False, pfnt='', gsl=0, w2nt=' nt', x5o=0, d5=9, pt5=True, lsl={}, bo={}, ofl='', opt=True, bev=4, x5w=None, rg=None, tm=0, bsl=24, bsn=-1, dbl={}, skz=('L_x3', 'L_x4', 'L_x5'), fX3=0, fX4=0, fA=(0, 0), half=True):
    a = Asm()
    rare = []
    STEP = 1 << (32 - spinbits)
    role = ['all']
    PH = {('att', 6), ('wo', 6), ('F', 8), ('F', 12)}
    def stamp(i):
        if (diag and (only is None or i == 0 or (role[0], i) in only)) or (lite and i in (0, 14)): a(f's_memrealtime s[{64+2*i}:{65+2*i}]')
        if probe and probe[0] == role[0] and probe[1] == i: a('s_memrealtime s[64:65]\ns_mov_b32 s68, 1')
    def xs(name):
        if diag and only and name in only: a('s_memrealtime s[84:85]')
        if diag and only and 'clk' in only and name in ('B3', 'mm2'):
            k = 1 if name == 'B3' else 3
            a(f's_memrealtime s[{64+2*k}:{65+2*k}]\ns_memtime s[{66+2*k}:{67+2*k}]')
            if name == 'B3': a('s_waitcnt lgkmcnt(0)')
    def align(k):
        if k in al:
            a('.p2align 6')
            for _ in range(al[k] + (2 if k != 'S' and not diag else 0)): a('s_nop 0')
    npad = {}
    def pad(k, last=False):
        if k not in pads: return
        i = npad.get(k, 0); npad[k] = i + 1
        a(f'L_pad{k}{i}:\ns_cbranch_execz L_pad{k}' + ('r' if last else str(i + 1)))
    def hop(k):
        if k in pads: a(f's_mov_b64 exec, 0\ns_branch L_pad{k}0\nL_pad{k}r:\ns_mov_b64 exec, -1')
    def fill(n, r):
        if r == 62:
            for _ in range(n): a('v_mfma_f32_16x16x32_bf16 v[72:75], v[16:19], v[16:19], 0')
        elif r == 63:
            for _ in range(n): a('v_mfma_f32_16x16x32_bf16 v[88:91], v[16:19], v[16:19], 0')
        elif fM and r == 9:
            for _ in range((n + 2) // 4): a('v_mfma_f32_16x16x32_bf16 v[116:119], v[16:19], v[16:19], 0')
        else:
            for _ in range(n): a(f'v_mov_b32 v{r}, 0')
    def fin(): a('s_branch L_dump' if diag else 's_branch L_probe' if probe else 's_endpgm')
    def setprio(n):
        if prio: a(f's_setprio {n}')
    def tags():
        a('''s_add_u32 s30, s30, 1
             s_and_b32 s34, s30, 0x7f
             s_xor_b32 s35, s34, 0x5a
             s_lshl_b32 s3, s35, 8
             s_or_b32 s3, s3, s34''')
    def ws_srd():
        a(f'''s_mov_b32 s44, s28
              s_mov_b32 s45, s29
              s_mov_b32 s46, {WSEND}
              s_mov_b32 s47, 0x20000''')
    def lanetag(d, bit):
        a(f'''v_bfe_u32 v{d}, v0, {bit}, 1
              v_mul_u32_u24 v{d}, 0x5a, v{d}
              v_xor_b32 v{d}, s34, v{d}''')
    def rowtag(m, t):
        lanetag(t, 2)
        a(f'''v_and_b32 v{m}, 3, v0
              v_cmp_eq_u32 vcc, 0, v{m}
              v_mov_b32 v{m}, 0xffffff00
              v_cndmask_b32 v{t}, 0, v{t}, vcc
              v_cndmask_b32 v{m}, -1, v{m}, vcc''')
    def spin(loop, done):
        a(f'''s_cbranch_vccz {done}
              s_add_u32 s62, s62, {STEP}
              s_cbranch_scc0 {loop}
              {done}:''')
    def ldswait(lbl, off, n, sl, z=100):
        if not n: return
        a(f'v_mov_b32 v{z}, 0\ns_mov_b32 s62, 0\n{lbl}:')
        if sl: a(f's_sleep {sl}')
        a(f'''ds_read_b32 v{z+1}, v{z} offset:{off}
              s_waitcnt lgkmcnt(0)
              v_cmp_gt_u32 vcc, {n}, v{z+1}''')
        spin(lbl, lbl + 'ok')
    def gather(lbl, loads, raw, masks, vt, spec='', switch=None, nfast=0, issued=False, warm=None):
        n = len(loads)
        a('s_mov_b32 s62, 0')
        if switch: a(f's_mov_b32 s63, {(1 << 32) // nfast}')
        if issued:
            a(f's_branch {lbl}_w')
            if paged and lbl == 'L_x4': a('.p2align 12')
            align(lbl)
        else:
            for i in range(n): a(f's_mov_b64 s[{masks+2*i}:{masks+2*i+1}], -1')
        a(f'{lbl}:')
        if lbl in lsl: a(f's_sleep {lsl[lbl]}')
        for i, l in enumerate(loads):
            if lbl in skz: a(f's_wqm_b64 exec, s[{masks+2*i}:{masks+2*i+1}]\ns_cbranch_scc0 {lbl}_z{i}\n{l}\n{lbl}_z{i}:')
            else: a(f's_wqm_b64 exec, s[{masks+2*i}:{masks+2*i+1}]\n{l}')
        for sl in dbl.get(lbl, ()):
            a(f's_sleep {sl}')
            for i, l in enumerate(loads): a(f's_wqm_b64 exec, s[{masks+2*i}:{masks+2*i+1}]\n{l}')
        a(f'''s_mov_b64 exec, -1
              s_add_u32 s62, s62, {'s63' if switch else STEP}
              s_cbranch_scc1 {lbl}_r''')
        if lbl in bo:
            T, k = bo[lbl]
            a(f's_bcnt1_i32_b64 s26, s[{masks}:{masks+1}]')
            for i in range(1, n): a(f's_bcnt1_i32_b64 s27, s[{masks+2*i}:{masks+2*i+1}]\ns_add_u32 s26, s26, s27')
            a(f's_cmp_gt_u32 s26, {T}\ns_cbranch_scc0 {lbl}_w\ns_sleep {k}')
        if warm: fill(*warm)
        a(f'{lbl}_w:\ns_waitcnt vmcnt(0)')
        for i in range(n): a(f'v_cmp_ne_u32_sdwa s[{masks+2*i}:{masks+2*i+1}], v{raw+4*i}, v{vt} src0_sel:BYTE_0 src1_sel:DWORD')
        a(spec)
        a(f's_or_b64 vcc, s[{masks}:{masks+1}], s[{masks+2}:{masks+3}]')
        for i in range(2, n): a(f's_or_b64 vcc, vcc, s[{masks+2*i}:{masks+2*i+1}]')
        a(f's_cbranch_scc1 {lbl}\n{lbl}_ok:')
        def r():
            a(f'{lbl}_r:')
            if switch:
                a(f's_cmp_eq_u32 s63, {STEP}\ns_cbranch_scc1 {lbl}_x\ns_mov_b32 s63, {STEP}\n{switch}\ns_branch {lbl}_w\n{lbl}_x:')
            a(f's_waitcnt vmcnt(0)\ns_mov_b64 vcc, 0\ns_branch {lbl}_ok')
        rare.append(r)
    def poll4(lbl, loads, raw, t, sl=0, issued=False):
        a(f'''v_mov_b32 v{t+2}, 0
              ds_read_b32 v{t+3}, v{t+2} offset:{FC+12}
              s_and_b32 s4, s34, 3
              s_and_b32 s5, s35, 3
              s_mov_b32 s62, 0
              s_waitcnt lgkmcnt(0)''')
        if issued: a(f's_branch {lbl}_w')
        a(f'{lbl}:\nv_add_u32 v{t+1}, v7, v{t+3}')
        if sl: a(f's_sleep {sl}')
        for l in loads: a(l)
        a(f'ds_read_b32 v{t+3}, v{t+2} offset:{FC+12}\n{lbl}_w:\ns_waitcnt vmcnt(0) lgkmcnt(0)')
        n = 4 * len(loads)
        for k in range(n): a(f'v_xor_b32 v{raw+k}, s{4+(k&1)}, v{raw+k}')
        a(f'v_or_b32 v{t}, v{raw}, v{raw+1}')
        for k in range(2, n, 2): a(f'v_or3_b32 v{t}, v{t}, v{raw+k}, v{raw+k+1}')
        a(f'v_and_b32 v{t}, 3, v{t}\nv_cmp_ne_u32 vcc, 0, v{t}')
        spin(lbl, lbl + '_ok')
    def pk(op, d, x, y): a(f'v_pk_{op}_f32 v[{d}:{d+1}], v[{x}:{x+1}], v[{y}:{y+1}]')
    def rscatter(r):
        a(f'v_permlane32_swap_b32 v{r}, v{r+2}\nv_permlane32_swap_b32 v{r+1}, v{r+3}')
        pk('add', r, r, r + 2)
        a(f'v_permlane16_swap_b32 v{r}, v{r+1}\nv_add_f32 v{r}, v{r}, v{r+1}')
    def rnd(d, s): a(f'v_cvt_pk_bf16_f32 {d}, 0, {s}')
    def allred_rows(op, r, t):
        a(f'''v_mov_b32 v{t}, v{r}
              v_permlane32_swap_b32 v{r}, v{t}
              {op} v{r}, v{r}, v{t}
              v_mov_b32 v{t}, v{r}
              v_permlane16_swap_b32 v{r}, v{t}
              {op} v{r}, v{r}, v{t}''')
    def perm_sel(): a('s_mov_b32 s60, 0x05040100\ns_mov_b32 s61, 0x07060302')
    def perms64(raw, dst):
        for tau in range(4):
            for rho in range(4):
                a(f'v_perm_b32 v{dst+4*tau+rho}, v{raw+2*(2*rho+1)+(tau>>1)}, v{raw+2*(2*rho)+(tau>>1)}, s{60+(tau&1)}')
    def fix4(raw, t):
        for u0 in (0, 2):
            for i in range(2): a(f'v_pk_mov_b32 v[{t+2*i}:{t+2*i+1}], v[{raw+4*(u0+i)+2}:{raw+4*(u0+i)+3}], v[{raw+4*(u0+i)+2}:{raw+4*(u0+i)+3}] op_sel:[0,1]')
            rs = [raw + 4 * u + d for u in (u0, u0 + 1) for d in (0, 1)]
            for i, r in enumerate(rs): a(f'v_mov_b32_dpp v{r+2}, v{r} row_ror:8 row_mask:0xf bank_mask:0x3')
            for i, r in enumerate(rs): a(f'v_mov_b32_dpp v{r}, v{t+i} row_ror:8 row_mask:0xf bank_mask:0xc')
    def voff4(d, gstride, stride, t):
        a(f'''v_lshrrev_b32 v{t}, 4, v0
              v_mul_u32_u24 v{d}, {gstride}, v{t}
              v_bfe_u32 v{t}, v0, 3, 1
              v_mul_u32_u24 v{t}, {stride}, v{t}
              v_add_u32 v{d}, v{d}, v{t}
              v_and_b32 v{t}, 7, v0
              v_lshl_add_u32 v{d}, v{t}, 4, v{d}''')
    def maskaddr(dst, n, base, zero, t):
        a(f'''v_lshrrev_b32 v{t}, 4, v0
              v_lshlrev_b32 v{t}, 4, v{t}
              v_add_u32 v{t}, {base}, v{t}
              v_and_b32 v{t+1}, {n-1}, v0
              v_mov_b32 v{t+2}, {zero}''')
        for tau in range(n):
            a(f'v_cmp_eq_u32 vcc, {tau}, v{t+1}')
            a(f'v_cndmask_b32 v{dst+tau}, v{t+2}, v{t}, vcc')
    def silu(d, x, t, p=None):
        a(f'''v_mul_f32 v{t}, {hex(f2u(-LOG2E))}, v{x}
              v_exp_f32 v{t}, v{t}''')
        if p: pad(p)
        a(f'''v_add_f32 v{t}, 1.0, v{t}
              v_rcp_f32 v{t}, v{t}
              v_mul_f32 v{t}, v{x}, v{t}''')
        rnd(f'v{d}', f'v{t}')
    def silu_fine(d, x, t):
        L = struct.unpack('<f', struct.pack('<f', -LOG2E))[0]
        a(f'''s_mov_b32 s58, {hex(f2u(L))}
              v_mul_f32 v{t}, s58, v{x}
              v_fma_f32 v{t+1}, v{x}, s58, -v{t}
              v_fmac_f32 v{t+1}, {hex(f2u(-LOG2E - L))}, v{x}
              v_min_f32 v{t}, 0x42fc0000, v{t}
              v_exp_f32 v{t}, v{t}
              v_mul_f32 v{t+1}, {hex(f2u(0.6931471805599453))}, v{t+1}
              v_fmac_f32 v{t}, v{t}, v{t+1}
              v_add_f32 v{t}, 1.0, v{t}
              v_rcp_f32 v{t+1}, v{t}
              v_mul_f32 v{t+2}, v{x}, v{t+1}
              v_fma_f32 v{t}, -v{t+2}, v{t}, v{x}
              v_fmac_f32 v{t+2}, v{t}, v{t+1}''')
        rnd(f'v{d}', f'v{t+2}')
    def ln_apply(s1, s2, x, t):
        a(f'''v_mul_f32 v{t}, v{s1}, v{s1}
              v_fma_f32 v{t+1}, v{s1}, v{s1}, -v{t}
              v_fma_f32 v{t}, v{s2}, s59, -v{t}
              v_sub_f32 v{t}, v{t}, v{t+1}
              v_mul_f32 v{t}, {hex(f2u(1/448/448))}, v{t}
              v_max_f32 v{t}, 0, v{t}''')
        rnd(f'v{t}', f'v{t}')
        a(f'v_add_f32 v{t}, {hex(f2u(1e-5))}, v{t}')
        rnd(f'v{t}', f'v{t}')
        a(f'v_sqrt_f32 v{t}, v{t}\nv_mul_f32 v{t+1}, {hex(f2u(1/448))}, v{s1}')
        rnd(f'v{t}', f'v{t}'); rnd(f'v{t+1}', f'v{t+1}')
        a(f'v_rcp_f32 v{t+2}, v{t}\nv_sub_f32 v{t+1}, v{x[1]}, v{t+1}')
        rnd(f'v{t+1}', f'v{t+1}')
        a(f'''v_mul_f32 v{t+3}, v{t+1}, v{t+2}
              v_fma_f32 v{t}, -v{t+3}, v{t}, v{t+1}
              v_fmac_f32 v{t+3}, v{t}, v{t+2}''')
        rnd(f'v{x[0]}', f'v{t+3}')
    def mma(n, acc, A, B, left=0, first=True, wait=True):
        for i in range(n):
            if wait: a(f's_waitcnt lgkmcnt({0 if (diag and only is None) else n-1-i+left})')
            a(f'v_mfma_f32_16x16x32_bf16 v[{acc}:{acc+3}], v[{A+4*i}:{A+4*i+3}], v[{B+4*i}:{B+4*i+3}], ' + ('0' if i == 0 and first else f'v[{acc}:{acc+3}]'))
    def mma2(acc, A, B, left=0, first=True, wait=True, mid=None):
        for par in range(2):
            if wait: a(f's_waitcnt lgkmcnt({0 if (diag and only is None) else 1-par+left})')
            for hi in range(2):
                d = acc + 4 * hi; b = B + 4 * (2 * hi + par)
                a(f'v_mfma_f32_16x16x32_bf16 v[{d}:{d+3}], v[{A+4*par}:{A+4*par+3}], v[{b}:{b+3}], ' + ('0' if par == 0 and first else f'v[{d}:{d+3}]'))
                if mid and par == 0 and hi == 0: a(mid)
    def sumrows(n, ldsoff, va, first=None, shadow=None):
        o = ldsoff // 256
        for u in range(n // 2): a(f'ds_read2st64_b32 v[{16+2*u}:{17+2*u}], v{va} offset0:{o+2*u} offset1:{o+2*u+1}')
        if n & 1: a(f'ds_read_b32 v22, v{va} offset:{ldsoff+256*(n-1)}\nv_mov_b32 v23, 0')
        if shadow: a(shadow)
        a('s_waitcnt lgkmcnt(0)')
        if first: a(first)
        pk('add', 16, 16, 18); pk('add', 20, 20, 22); pk('add', 16, 16, 20)
        a('v_add_f32 v16, v16, v17')

    def getside(t):
        a(f'''v_mov_b32 v{t}, 0
              ds_read_b32 v{t}, v{t} offset:{FC+12}
              s_waitcnt lgkmcnt(0)
              v_readfirstlane_b32 s48, v{t}''')
    def dzero():
        if diag:
            for i in range(1, 16): a(f's_mov_b32 s{64+2*i}, 0')
    K0, V0, RT = 8, 56, 96
    a(f'{KN}:')
    if probe: a('s_mov_b32 s68, 0')
    stamp(0)
    a(f'''s_load_dwordx16 s[4:19], s[0:1], 0
          s_load_dwordx8 s[20:27], s[0:1], 64
          s_load_dwordx2 s[28:29], s[0:1], 96
          v_readfirstlane_b32 s31, v0
          s_and_b32 s32, s2, 7
          s_lshr_b32 s33, s2, 3
          s_lshr_b32 s31, s31, 6
          s_sub_u32 s33, s33, 8
          s_cbranch_scc0 L_A''')
    a(f'''s_getpc_b64 s[48:49]
          L_pc:
          v_lshlrev_b32 v2, 7, v0
          v_min_u32 v2, L_code_end-L_pc-4, v2
          global_load_dword v127, v2, s[48:49]
          s_branch L_F
          L_A:
          s_cmp_ge_u32 s31, 8
          s_cbranch_scc1 L_Td
          s_cmp_ge_u32 s33, 17
          s_cbranch_scc1 L_a_u
          L_att:''')
    role[0] = 'att'
    if tbl < 2:
        ta, tb, tc, td = ((5, 16, 17, 42), (4, 13, 15, 43))[tbl]; bias = 0
        a(f'''s_mul_i32 s50, s33, {ta}
              s_add_u32 s51, s50, 6
              s_min_u32 s50, s50, {tb}
              s_min_u32 s51, s51, {tc}
              s_mul_i32 s49, s33, {td}
              L_att2:
              s_add_u32 s50, s50, s31''')
    else:
        bias = 14 * nwo - 1
        a(f'''s_sub_u32 s50, s33, 14
              s_cselect_b32 s51, {nwo - 40}, {nmid - 40}
              s_cselect_b32 s49, {nwo}, {nmid}
              s_mul_i32 s49, s49, s50
              L_att2:
              s_add_u32 s50, s31, 1''')
    if tm == 0:
        a('''s_min_u32 s48, s50, s51
             s_add_u32 s48, s48, s49
             s_mul_i32 s49, s31, 5
             s_add_u32 s48, s48, s49''')
    else:
        assert tbl == 1 and rg is not None
        a('s_add_u32 s48, s50, s49')
    if rg is None:
        a(f'''s_lshl_b32 s49, s32, 14
              s_add_u32 s48, s48, s49
              s_addk_i32 s48, {WINOFF // 2048 + 2 + bias}
              s_lshl_b32 s48, s48, 11''')
    else:
        a(f'''s_mul_i32 s49, s32, {rg}
              s_add_u32 s48, s48, s49''')
        if bias: a(f's_addk_i32 s48, {bias}')
        if tm == 0: a(f's_lshl_b32 s{RT}, s48, 11\ns_add_u32 s{RT+1}, s{RT}, 2048')
        elif tm == 1: a(f's_lshl_b32 s{RT+1}, s48, 11\ns_add_u32 s{RT}, s{RT+1}, {40*2048}')
        else: a(f's_lshl_b32 s{RT}, s48, 11\ns_add_u32 s{RT}, s{RT}, {40*2048}\ns_add_u32 s48, s48, s31\ns_lshl_b32 s{RT+1}, s48, 11')
        a(f'''              s_and_b32 s{RT}, s{RT}, 0x1fffff
              s_and_b32 s{RT+1}, s{RT+1}, 0x1fffff
              s_lshl_b32 s48, s32, 25
              s_add_u32 s48, s48, {WINOFF}
              s_mov_b32 s38, 0x200000
              s_mov_b32 s39, 0x20000''')
        assert N0 <= 2
    a(f'''          v_and_b32 v2, 12, v0
          v_and_b32 v3, 48, v0
          v_and_b32 v4, 3, v0
          v_lshlrev_b32 v6, 7, v2
          v_lshl_add_u32 v6, v3, 2, v6
          v_lshl_add_u32 v6, v4, 4, v6
          s_waitcnt lgkmcnt(0)
          s_add_u32 s36, s6, s48
          s_addc_u32 s37, s7, 0
          s_cmp_le_u32 s50, s51
          s_cbranch_scc0 L_a_k1''')
    cnt = [0]
    win = [W, WH, WE, NE]
    def kvload(srd, va, base, t, hf, late=False):
        W, WH, WE, NE = win[:4]
        wk, wkh = win[4:] if len(win) > 4 else (WK, WKH)
        w = WH if late else wk if (wk and srd == 36) else W
        if wkh and srd == 36: WH = wkh
        if WE and srd == 40 and 2 * (5 - t) + 1 - hf < NE: a(f's_waitcnt vmcnt({WE-1})')
        elif cnt[0] >= 2 + N0:
            if WH != w: a(f's_waitcnt vmcnt({WH-1})\ns_cbranch_vccnz L_w{cnt[0]}_\ns_waitcnt vmcnt({w-1})\nL_w{cnt[0]}_:')
            else: a(f's_waitcnt vmcnt({w-1})')
        cnt[0] += 1
        r = base + 8 * t + 4 * hf
        b = srd + 2 * (t // 4)
        if rg is not None: a(f'buffer_load_dwordx4 v[{r}:{r+3}], v{va}, s[{srd}:{srd+3}], s{RT+t} offen offset:{hf * 256}{nt}')
        else: a(f'global_load_dwordx4 v[{r}:{r+3}], v{va}, s[{b}:{b+1}] offset:{((t & 3) - 2) * 2048 + hf * 256}{nt}')
    kvload(36, 6, K0, 0, 0); kvload(36, 6, K0, 0, 1)
    a('L_a_k1:')
    kl = [(t, hf) for t in (1, 2, 3) for hf in range(2)]
    for t, hf in kl[:N0]: kvload(36, 6, K0, t, hf)
    a('s_branch L_a_c')
    a('''L_a_u:
         s_cmp_ge_u32 s33, 24
         s_cbranch_scc1 L_end
         s_barrier''')
    if tbl == 2:
        rest = 1024 - 14 * nwo - 3 * nmid; lo = rest // 7; ex = rest - 7 * lo
        assert 40 <= lo and lo + (ex > 0) <= 48
        a(f'''s_sub_u32 s50, s33, 17
              s_mul_i32 s49, s50, {lo}
              s_min_u32 s50, s50, {ex}
              s_cselect_b32 s51, {lo - 39}, {lo - 40}
              s_add_u32 s49, s49, s50
              s_add_u32 s49, s49, {3 * nmid}
              s_branch L_att2''')
    elif tbl: a('s_mov_b32 s50, 64\ns_mov_b32 s51, 63\ns_mul_i32 s49, s33, 40\ns_branch L_att2')
    else: a('s_branch L_att')
    a(f'''L_Td:
          s_cmp_ge_u32 s33, 24
          s_cbranch_scc1 L_end
          s_sub_u32 s50, s33, {14 if tbl == 2 else 0}
          s_cmp_ge_u32 s50, 3
          s_cselect_b32 s50, 9, 0
          s_cmp_eq_u32 s31, s50
          s_cbranch_scc1 L_mod''')
    a(f'''s_cmp_ge_u32 s31, 12
          s_cbranch_scc0 L_T0
          v_mov_b32 v8, {hex(f2u(-3e38))}
          v_cmp_eq_u32 vcc, {768 + L_M // 16}, v0
          v_lshlrev_b32 v2, 4, v0
          v_mov_b32 v9, 0
          v_cndmask_b32 v8, 0, v8, vcc
          v_mov_b32 v11, 0
          v_subrev_u32 v2, {768 * 16}, v2
          v_mov_b32 v10, v8
          ds_write_b128 v2, v[8:11]
          s_waitcnt lgkmcnt(0)''')
    if lk:
        a('''s_lshl_b32 s50, s33, 4
             s_add_u32 s50, s50, s31
             s_cmp_eq_u32 s50, 12
             s_cbranch_scc0 L_T0
             v_mov_b32 v8, 1
             s_mov_b64 exec, 1
             global_atomic_add v9, v8, s[26:27] sc1
             s_mov_b64 exec, -1''')
    a(f'''L_T0:
          s_barrier
          s_branch L_T
          L_mod:''')
    role[0] = 'mod'
    def tail_setup():
        a('s_load_dword s30, s[28:29], 0\ns_sub_u32 s49, s31, 8')
        ws_srd(); perm_sel()
        a(f's_lshl_b32 s56, s49, 8\ns_add_u32 s56, s56, {L_PRIV}')
    a('v_and_b32 v0, 63, v0')
    setprio(3)
    a(f'''s_cmp_ge_u32 s33, 17
          s_cselect_b32 s50, -17, {7 if tbl == 2 else 4}
          s_add_u32 s50, s50, s33
          s_lshl_b32 s50, s50, 3
          s_add_u32 s50, s50, s32
          s_and_b32 s51, s50, 3
          s_lshr_b32 s52, s50, 2
          s_mov_b32 s38, {448*5376}
          s_mov_b32 s39, 0x20000
          s_mov_b32 s42, 896
          s_mov_b32 s43, 0x20000
          s_mul_i32 s54, s51, {112*5376}
          s_lshl_b32 s55, s52, 7
          s_add_u32 s54, s54, s55
          s_mul_i32 s53, s51, 224
          v_lshlrev_b32 v2, 2, v0
          v_lshrrev_b32 v1, 3, v0
          v_mul_u32_u24 v3, {14*5376}, v1
          v_and_b32 v4, 7, v0
          v_lshl_add_u32 v3, v4, 4, v3
          s_waitcnt lgkmcnt(0)
          s_mov_b32 s36, s22
          s_mov_b32 s37, s23
          s_mov_b32 s40, s20
          s_mov_b32 s41, s21
          buffer_load_dword v8, v2, s[40:43], s53 offen''')
    for m in range(14):
        a(f'buffer_load_dwordx4 v[{72+4*m}:{75+4*m}], v3, s[36:39], s54 offen{nt}')
        if m < 13: a('s_add_u32 s54, s54, 5376')
    def fstart():
        a(f'''L_F:
              s_add_u32 s33, s33, 8
              v_and_b32 v0, 63, v0
              s_cmp_ge_u32 s31, 7
              s_cbranch_scc1 L_F7s
              s_lshl_b32 s48, s31, 19
              s_lshl_b32 s49, s32, 10
              s_add_u32 s48, s48, s49
              s_lshl_b32 s49, s33, 7
              s_add_u32 s48, s48, s49
              v_lshrrev_b32 v3, 4, v0
              v_lshlrev_b32 v2, 16, v3
              v_and_b32 v4, 8, v0
              v_lshl_add_u32 v2, v4, 10, v2
              v_and_b32 v5, 7, v0
              v_lshl_add_u32 v2, v5, 4, v2
              v_lshl_add_u32 v5, v5, 4, v4
              v_lshl_add_u32 v6, v3, 1, v5
              s_lshl_b32 s50, s31, 7
              v_add_u32 v101, s50, v6
              v_lshlrev_b32 v7, 4, v0
              s_mov_b32 s38, {448*8192}
              s_mov_b32 s39, 0x20000
              s_mov_b32 s42, 896
              s_mov_b32 s43, 0x20000
              s_waitcnt lgkmcnt(0)
              s_mov_b32 s36, s10
              s_mov_b32 s37, s11
              s_mov_b32 s40, s4
              s_mov_b32 s41, s5
              buffer_load_dwordx4 v[96:99], v7, s[40:43], 0 offen
              buffer_load_ushort v100, v101, s[40:43], 0 offen''')
        for u in range(2):
            for t in range(4):
                a(f'buffer_load_dwordx4 v[{32+16*u+4*t}:{35+16*u+4*t}], v2, s[36:39], s48 offen{nt}')
                if not (u == 1 and t == 3): a(f's_add_u32 s48, s48, {2*8192 if t < 3 else 26*8192}')
            if u == 0: a('s_barrier')
    a('s_barrier')
    if paged:
        a('s_branch L_mod2')
        fstart()
        a(f'''s_branch L_F2
              L_F7s:
              s_cmp_ge_u32 s31, 9
              s_cbranch_scc1 L_F9
              v_mov_b32 v2, 0
              v_lshlrev_b32 v3, 2, v0
              ds_write_b32 v3, v2 offset:{FC & ~255}
              s_waitcnt lgkmcnt(0)
              s_barrier
              s_branch L_F7
              L_F9:
              s_endpgm
              L_mod2:''')
    dzero(); stamp(1)
    tail_setup()
    a(f'''v_mul_u32_u24 v3, 37, v0
          v_lshrrev_b32 v3, 8, v3
          v_add_u32 v3, v3, v0
          v_lshl_add_u32 v3, v3, 2, s56
          v_lshl_add_u32 v1, v1, 5, s56
          v_and_b32 v9, 1, v0
          v_lshlrev_b32 v9, 4, v9
          v_mov_b32 v10, 0xffff
          v_lshlrev_b32 v9, v9, v10
          v_bfe_u32 v10, v0, 1, 2''')
    for rho in range(4):
        a(f'v_cmp_eq_u32 vcc, {rho}, v10')
        a(f'v_cndmask_b32 v{4+rho}, 0, v9, vcc')
    a('''s_mov_b32 s52, 0x01000100
         s_mov_b32 s53, 0x03020302
         s_waitcnt vmcnt(14)
         v_lshlrev_b32 v9, 16, v8
         v_and_b32 v10, 0xffff0000, v8''')
    silu_fine(9, 9, 12); silu_fine(10, 10, 12)
    a(f'''v_perm_b32 v9, v10, v9, s61
          s_mov_b32 exec_hi, 0xffffff
          ds_write_b32 v3, v9
          s_mov_b32 exec_hi, -1
          ds_read_b128 v[8:11], v1
          ds_read_b96 v[12:14], v1 offset:16
          s_lshr_b32 s51, s50, 5
          s_lshl_b32 s51, s51, 13
          s_lshl_b32 s50, s50, 8
          s_add_u32 s50, s50, s51
          s_add_u32 s50, s50, {X1}
          s_add_u32 s51, s50, {SIDE}
          v_lshrrev_b32 v2, 4, v0
          v_and_b32 v3, 7, v0
          v_lshlrev_b32 v3, 4, v3
          v_lshl_add_u32 v2, v2, 7, v3
          s_waitcnt lgkmcnt(0)''')
    tags()
    for m in range(14):
        a(f'v_perm_b32 v15, v{8+(m>>1)}, v{8+(m>>1)}, s{52+(m&1)}')
        for rho in range(4): a(f'v_and_b32 v{16+4*m+rho}, v15, v{4+rho}')
    a('v_and_b32_e64 v4, s34, 3\nv_and_b32_e64 v5, s35, 3')
    for m in range(14):
        a(f's_waitcnt vmcnt({13-m})')
        a(f'v_mfma_f32_16x16x32_bf16 v[8:11], v[{16+4*m}:{19+4*m}], v[{72+4*m}:{75+4*m}], ' + ('0' if m == 0 else 'v[8:11]'))
    a('''v_pk_mov_b32 v[12:13], v[8:9], v[8:9] op_sel:[0,1]
         v_pk_mov_b32 v[14:15], v[10:11], v[10:11] op_sel:[0,1]''')
    for i in range(4): a(f'v_permlane32_swap_b32 v{8+i}, v{12+i}')
    for i in range(4): a(f'v_add_f32_dpp v{8+i}, v{12+i}, v{8+i} row_ror:8 {DPPF}')
    a('s_mov_b64 exec, 0xff00ff')
    for i in range(4): a(f'v_add_u32 v{8+i}, 2, v{8+i}')
    for i in range(4): a(f'v_and_or_b32 v{8+i}, v{8+i}, -4, v{4+(i&1)}')
    a('buffer_store_dwordx4 v[8:11], v2, s[44:47], s50 offen sc1\nbuffer_store_dwordx4 v[8:11], v2, s[44:47], s51 offen sc1\ns_mov_b64 exec, -1')
    stamp(2)
    setprio(0)
    a('s_cmp_lt_u32 s33, 14\ns_cbranch_scc1 L_t_go2')
    fin()
    role[0] = 'att'
    a('L_a_c:')
    def setup_att():
        dzero(); stamp(1)
        if lk: a('s_load_dword s56, s[26:27], 0')
        a(f'''s_load_dword s30, s[28:29], 0
              s_cmp_le_u32 s50, s51
              s_cselect_b32 s51, 1, 0
              s_add_u32 s40, s8, s48
              s_addc_u32 s41, s9, 0''')
        if rg is None:
            a('''s_add_u32 s38, s36, 8192
                 s_addc_u32 s39, s37, 0
                 s_add_u32 s42, s40, 8192
                 s_addc_u32 s43, s41, 0''')
        else:
            a('s_mov_b32 s42, 0x200000\ns_mov_b32 s43, 0x20000')
            for t in range(2, 6):
                if tm == 2 and t == 5: a(f's_sub_u32 s{RT+5}, s{RT}, {8*2048}')
                else: a(f's_add_u32 s{RT+t}, s{RT+t-1}, {2048 * ((1, 8, (1, 15)[t & 1])[tm])}')
                a(f's_and_b32 s{RT+t}, s{RT+t}, 0x1fffff')
        a(f'''              s_cmp_ge_u32 s33, 17
              s_cbranch_scc1 L_a_nb2
              s_barrier
              L_a_nb2:
              v_and_b32 v0, 63, v0
              v_and_b32 v5, 15, v0
              v_lshlrev_b32 v7, 5, v3
              v_lshl_add_u32 v7, v5, 4, v7
              v_bfe_u32 v2, v0, 3, 1
              v_lshlrev_b32 v1, 10, v2
              v_lshl_add_u32 v1, v3, 3, v1
              v_lshl_add_u32 v1, v4, 5, v1
              v_and_b32 v104, 1, v0
              v_lshlrev_b32 v104, 4, v104
              v_mov_b32 v105, 0xffff
              v_lshlrev_b32 v104, v104, v105
              v_bfe_u32 v105, v0, 1, 2''')
        for rho in range(4):
            a(f'v_cmp_eq_u32 vcc, {rho}, v105')
            a(f'v_cndmask_b32 v{2+rho}, 0, v104, vcc')
        ws_srd(); perm_sel()
        a(f'''s_mov_b32 s58, {hex(f2u(0.0625 * LOG2E))}
              s_bfe_u32 s57, s31, 0x10001
              s_lshl_b32 s49, s32, 1
              s_add_u32 s54, s57, s49
              s_mul_i32 s54, s54, 24
              s_add_u32 s54, s54, s33
              s_lshl_b32 s54, s54, 10
              s_lshr_b32 s49, s31, 2
              s_lshl_b32 s49, s49, 9
              s_add_u32 s54, s54, s49
              s_and_b32 s49, s31, 1
              s_lshl_b32 s49, s49, 8
              s_add_u32 s54, s54, s49
              s_add_u32 s55, s54, {X3F}
              s_add_u32 s54, s54, {X3}
              s_mul_i32 s59, s32, 24
              s_add_u32 s59, s59, s33
              s_lshl_b32 s59, s59, 7
              s_add_u32 s59, s59, {HINT}
              v_lshlrev_b32 v104, 2, v0
              s_mov_b32 s48, s51
              s_mov_b32 s49, 0
              s_mov_b64 vcc, s[48:49]''')
    setup_att()
    vl = [(t, hf) for t in range(1, 6) for hf in range(2)]
    late = vl[10 - NL:]
    assert 2 * (6 - touchpos) >= NL and NL <= 4 and hintpos == 7 and WE and NE >= NL and (not lk or LW[2] == WE)
    for t, hf in kl[N0:]: kvload(36, 6, K0, t, hf)
    a('s_waitcnt lgkmcnt(0)')
    tags()
    hop('a')
    def paced(x):
        for t in range(4, 6): kvload(36, 6, K0, t, 0); kvload(36, 6, K0, t, 1)
        stamp(2)
        a(f's_cmp_eq_u32 s51, 0\ns_cbranch_scc0 L_a_v0{x}')
        for i in range(4): a(f'v_mov_b32 v{K0+i}, {hex(f2u(-1e30))}')
        a(f's_branch L_a_v1{x}\nL_a_v0{x}:')
        kvload(40, 7, V0, 0, 0); kvload(40, 7, V0, 0, 1)
        a(f'L_a_v1{x}:')
        for t in range(1, 6):
            if t == touchpos:
                a('buffer_load_dword v6, v104, s[44:47], s55 offen sc1')
            for hf in range(2):
                if (t, hf) not in late: kvload(40, 7, V0, t, hf)
    if lk:
        if diag: a('s_add_u32 s82, s56, 1')
        a(f's_cmp_ge_u32 s56, {lk}\ns_cbranch_scc1 L_a_pl')
        def pl():
            keep = list(win); win[:] = LW
            a('L_a_pl:'); paced('l'); a('s_branch L_a_pd')
            win[:] = keep
        rare.append(pl)
    paced('')
    a('L_a_pd:')
    def count(off): a(f's_mov_b64 exec, 1\nds_inc_u32 v0, v2 offset:{off}\ns_mov_b64 exec, -1')
    def lateload(k):
        i = k - (4 - NL)
        if i < 0: return
        if adapt: a(f's_cmp_gt_u32 s63, {i}\ns_cbranch_scc1 L_a_l{i}')
        kvload(40, 7, V0, *late[i], late=True)
        if i == NL - 1: vdone('a')
        if adapt: a(f'L_a_l{i}:')
    def vdone(sfx):
        stamp(3); count(L_C)
        if hintpos == 7 and hintk:
            a(f'''s_cmp_eq_u32 s31, 0
                  s_cbranch_scc0 L_a_nh{sfx}
                  v_mov_b32 v114, s3
                  s_mov_b64 exec, 1
                  buffer_store_dword v114, v0, s[44:47], s59 offen
                  s_mov_b64 exec, -1
                  L_a_nh{sfx}:''')
    if not NL: vdone('a')
    a('s_mov_b32 s62, 0\ns_mov_b32 s63, 0')
    stamp(8)
    if paged: a('s_branch L_a_q0\n.p2align 12\nL_a_q0:')
    align('Q')
    setprio(2)
    a(f'''L_a_q:
          ds_read_b128 v[104:107], v1 offset:{L_Q}
          ds_read_b128 v[108:111], v1 offset:{L_Q+16}
          ds_read_b128 v[112:115], v1 offset:{L_Q+512}
          ds_read_b128 v[116:119], v1 offset:{L_Q+528}
          s_waitcnt lgkmcnt(0)
          v_bitop3_b32 v120, v104, v108, s3 bitop3:0x7e
          v_bitop3_b32 v121, v112, v116, s3 bitop3:0x7e
          v_or_b32 v121, v120, v121
          v_cmp_ne_u32_sdwa vcc, v121, 0 src0_sel:WORD_0 src1_sel:DWORD''')
    for i in range(8): a(f'v_perm_b32 v{120+i}, v{105+2*i}, v{104+2*i}, s61')
    a('s_cbranch_vccnz L_a_qr\nL_a_qok:')
    def qrare():
        a('L_a_qr:')
        if adapt:
            for i in range(NL):
                a(f's_cmp_eq_u32 s63, {i}\ns_cbranch_scc0 L_a_qr{i}')
                keep = win[2]; win[2] = WR or keep
                kvload(40, 7, V0, *late[i], late=True)
                win[2] = keep
                if i == NL - 1: vdone('b')
                a(f's_mov_b32 s63, {i+1}\ns_branch L_a_q\nL_a_qr{i}:')
        a(f'''s_sleep 1
              s_add_u32 s62, s62, {STEP}
              s_cbranch_scc0 L_a_q
              s_branch L_a_qok''')
    rare.append(qrare)
    stamp(4)
    def qk(t, hf):
        k = K0 + 8 * t; tmp = 104 + 4 * (t & 3)
        if hf == 0: a(f'v_mfma_f32_16x16x32_bf16 v[{tmp}:{tmp+3}], v[{k}:{k+3}], v[120:123], 0')
        else: a(f'v_mfma_f32_16x16x32_bf16 v[{k}:{k+3}], v[{k+4}:{k+7}], v[124:127], v[{tmp}:{tmp+3}]')
    def step(t, i):
        if t < 0 or t > 5: return
        k = K0 + 8 * t
        if i == 0: a(f'v_mov_b32_dpp v{k+4}, v{k} quad_perm:[0,0,0,0] {DPPF}')
        else: a(f'v_add_f32_dpp v{k+4}, v{k+i}, v{k+4} quad_perm:[{i},{i},{i},{i}] {DPPF}')
    lateload(0)
    if WE: a(f's_waitcnt vmcnt({11 - NL})')
    a('s_cmp_eq_u32 s51, 0\ns_cbranch_scc1 L_a_qk1')
    qk(0, 0); qk(0, 1)
    a('L_a_qk1:')
    fl = ['v_mov_b32 v1, 0', 's_mov_b32 s62, 0', 's_lshl_b32 s48, s57, 3', 's_lshl_b32 s49, s31, 2']
    for t in range(1, 6):
        qk(t, 0); step(t - 3, 0); step(t - 4, 2)
        if t < 3: a(fl.pop(0))
        qk(t, 1); step(t - 3, 1); step(t - 4, 3)
        if t < 3: a(fl.pop(0))
        if t == 3: lateload(1)
    lateload(2)
    step(2, 2); step(3, 0); step(4, 0); step(2, 3); step(3, 1); step(4, 1)
    S = [K0 + 8 * t + 4 for t in range(6)]
    rnd(f'v{S[0]}', f'v{S[0]}')
    if WE: a(f's_waitcnt vmcnt({2 * (6 - touchpos) - 1})')
    a('v_and_b32 v6, 8, v0')
    step(5, 0); step(3, 2); step(4, 2); step(5, 1); step(3, 3); step(4, 3); step(5, 2)
    rnd(f'v{S[1]}', f'v{S[1]}'); rnd(f'v{S[2]}', f'v{S[2]}')
    step(5, 3)
    rnd(f'v{S[3]}', f'v{S[3]}'); rnd(f'v{S[4]}', f'v{S[4]}')
    a(f'v_max3_f32 v112, v{S[0]}, v{S[1]}, v{S[2]}')
    rnd(f'v{S[5]}', f'v{S[5]}')
    a(f'''v_max3_f32 v112, v112, v{S[3]}, v{S[4]}
          s_mov_b32 exec_lo, 0x01010101
          s_mov_b32 exec_hi, 0x01010101
          v_max_f32 v112, v112, v{S[5]}
          ds_max_f32 v6, v112 offset:{L_M}
          s_mov_b64 exec, 1
          ds_inc_u32 v0, v2 offset:{L_C+4}
          s_mov_b64 exec, -1
          v_mov_b32 v117, s48''')
    lateload(3)
    a(f'''L_a_s1:
          ds_read_b32 v113, v1 offset:{L_C+4}
          ds_read_b32 v112, v6 offset:{L_M}
          ds_read_b32 v116, v117 offset:{L_M}
          s_waitcnt lgkmcnt(0)
          v_cmp_ne_u32 vcc, 8, v113
          v_mul_f32 v112, s58, v112''')
    order = [1, 0, 2, 3, 4, 5]
    for t in order: a(f'v_fma_f32 v{S[t]+2}, v{S[t]}, s58, -v112')
    a('s_cbranch_vccnz L_a_s1r\nL_a_s1ok:')
    rare.append(lambda: a(f'L_a_s1r:\ns_add_u32 s62, s62, {STEP}\ns_cbranch_scc0 L_a_s1\ns_branch L_a_s1ok'))
    stamp(5)
    for t in order: a(f'v_exp_f32 v{S[t]}, v{S[t]+2}')
    def abuild(t):
        k = K0 + 8 * t
        a(f'v_cvt_pk_bf16_f32 v{k+5}, v{k+4}, v{k+4}')
        for rho in range(4): a(f'v_and_b32 v{k+rho}, v{k+5}, v{2+rho}')
    def pv(t, hf, first=False):
        k = K0 + 8 * t; v = V0 + 8 * t + 4 * hf; acc = 104 + 4 * hf
        n = 2 * (5 - t) + 1 - hf
        if n < max(W, WH, WE or 0): a(f's_waitcnt vmcnt({n})')
        a(f'v_mfma_f32_16x16x32_bf16 v[{acc}:{acc+3}], v[{k}:{k+3}], v[{v}:{v+3}], ' + ('0' if first else f'v[{acc}:{acc+3}]'))
    abuild(1)
    a(f'v_add_f32 v113, v{S[0]}, v{S[1]}\nv_add_f32 v114, v{S[2]}, v{S[3]}')
    pv(1, 0, True); abuild(2); pv(1, 1, True)
    a('s_cmp_eq_u32 s51, 0\ns_cbranch_scc1 L_a_pv2')
    abuild(0); pv(0, 0); pv(0, 1)
    a('L_a_pv2:')
    def lsum():
        a(f'''v_add_f32 v115, v{S[4]}, v{S[5]}
              v_add_f32 v113, v113, v114
              v_lshl_add_u32 v6, v6, 2, s49
              v_add_f32 v113, v113, v115''')
        allred_rows('v_add_f32', 113, 114)
        a(f'''s_mov_b64 exec, 0x101
              ds_write_b32 v6, v113 offset:{L_L}
              s_mov_b64 exec, -1''')
    def cst():
        a(f'''s_lshl_b32 s48, s31, 11
              v_lshl_add_u32 v6, v0, 4, s48
              v_bfe_u32 v119, v0, 2, 1
              v_mul_u32_u24 v119, 0x5a, v119
              v_and_b32 v120, 3, v0
              v_cmp_eq_u32 vcc, 1, v120
              v_bitop3_b32 v119, v119, v116, s34 bitop3:0xde
              v_bfe_u32 v118, v0, 2, 2
              v_cndmask_b32 v120, v120, v118, vcc
              v_cndmask_b32_e64 v119, v119, 0, vcc
              v_cndmask_b32_e64 v118, 0, -1, vcc
              v_or_b32 v120, 0x07060500, v120
              s_lshl_b32 s49, s31, 8
              s_add_u32 s49, s49, {L_O}
              v_lshlrev_b32 v121, 2, v0
              v_add_u32 v122, s49, v121
              v_lshlrev_b32 v117, 2, v117
              s_mov_b32 s62, 0''')
    if pvf:
        abuild(3); pv(2, 0); abuild(4); abuild(5); lsum(); cst()
        a('s_and_b32 s48, s31, 5')
        pv(2, 1)
        for t in range(3, 6): pv(t, 0); pv(t, 1)
    else:
        for t in range(2, 6):
            pv(t, 0)
            if t < 5: abuild(t + 1)
            pv(t, 1)
            if t == 2: lsum()
            if t == 3: cst()
    a(f'''ds_write_b128 v6, v[104:107] offset:{L_O}
          ds_write_b128 v6, v[108:111] offset:{L_O+1024}''')
    stamp(6)
    if nw2: a(f's_mov_b64 exec, 1\nds_inc_u32 v0, v2 offset:{L_C+8}\ns_barrier\ns_mov_b64 exec, -1\nL_a_s2:\nds_read_b32 v24, v1 offset:{L_C+8}')
    else: a('s_waitcnt lgkmcnt(0)\ns_barrier')
    if pvf:
        for u in range(4): a(f'ds_read2st64_b32 v[{8+2*u}:{9+2*u}], v122 offset0:{16*u} offset1:{16*u+8}')
        a(f'''s_cbranch_scc1 L_a_nl
              ds_read_b128 v[16:19], v117 offset:{L_L}
              ds_read_b128 v[20:23], v117 offset:{L_L+16}
              s_waitcnt lgkmcnt(0)''')
        pk('add', 16, 16, 18); pk('add', 20, 20, 22); pk('add', 16, 16, 20)
        a('v_add_f32 v16, v16, v17\nv_bfi_b32 v119, v118, v16, v119\nL_a_nl:\ns_waitcnt lgkmcnt(0)')
        if nw2: a('v_cmp_ne_u32 vcc, 8, v24')
    else:
        a(f'''ds_read_b128 v[16:19], v117 offset:{L_L}
              ds_read_b128 v[20:23], v117 offset:{L_L+16}''')
        for u in range(4): a(f'ds_read2st64_b32 v[{8+2*u}:{9+2*u}], v122 offset0:{16*u} offset1:{16*u+8}')
        pad('a', True)
        a('s_waitcnt lgkmcnt(4)')
        pk('add', 16, 16, 18); pk('add', 20, 20, 22); pk('add', 16, 16, 20)
        a('v_add_f32 v16, v16, v17\nv_and_or_b32 v119, v16, v118, v119\ns_waitcnt lgkmcnt(0)')
    pk('add', 8, 8, 10); pk('add', 12, 12, 14); pk('add', 8, 8, 12)
    a('''v_add_f32 v8, v8, v9
         v_perm_b32 v8, v8, v119, v120''')
    if nw2:
        a('s_cbranch_vccnz L_a_s2r\nL_a_s2ok:')
        rare.append(lambda: a(f'L_a_s2r:\ns_add_u32 s62, s62, {STEP}\ns_cbranch_scc1 L_a_s2ok\ns_and_b32 s48, s31, 5\ns_branch L_a_s2'))
    a('''buffer_store_dword v8, v121, s[44:47], s55 offen
         s_barrier''')
    stamp(7)
    setprio(0)
    if wopf2:
        a('s_cmp_lt_u32 s33, 14\ns_cbranch_scc0 L_a_p\ns_barrier\ns_sleep 3\nL_a_x:')
        def wp():
            a(f'''L_a_p:
                  s_lshl_b32 s48, s33, 3
                  s_add_u32 s48, s48, s31
                  s_sub_u32 s48, s48, 112
                  s_mul_i32 s49, s32, {512*896}''')
            for k in range(wopf2):
                if k: a('s_add_u32 s48, s48, 28')
                a(f'''s_cmp_ge_u32 s48, 56
                      s_cselect_b32 s50, 56, 0
                      s_sub_u32 s48, s48, s50
                      s_lshl_b32 s50, s48, 13
                      s_add_u32 s50, s50, s49
                      v_lshl_add_u32 v10, v0, 7, s50
                      global_load_dword v11, v10, s[12:13]''')
            a('s_branch L_a_x')
        rare.append(wp)
    elif bsn < 0:
        a('; the write-through copy is only needed under another placement: it waits for the wo stage / the prefetch (barrier) and, a bounded while, for X4 to be out')
        if bev:
            a(f'''s_barrier
                  s_cmp_lt_u32 s33, 14
                  s_cbranch_scc0 L_a_x
                  s_mov_b32 s62, 0
                  L_a_b:
                  s_sleep {bev}
                  ds_read_b32 v24, v1 offset:{L_C+20}
                  s_add_u32 s62, s62, 0x20000000
                  s_cbranch_scc1 L_a_x
                  s_waitcnt lgkmcnt(0)
                  v_cmp_eq_u32 vcc, 0, v24
                  s_cbranch_vccnz L_a_b
                  L_a_x:''')
        else: a(f's_barrier\ns_sleep {bsl}\nL_a_x:')
    elif bsn: a(f's_cmp_lt_u32 s33, 14\ns_cbranch_scc1 L_a_y\ns_sleep {bsn}\ns_branch L_a_x\nL_a_y:\ns_barrier\ns_sleep {bsl}\nL_a_x:')
    else: a(f's_cmp_lt_u32 s33, 14\ns_cbranch_scc0 L_a_x\ns_barrier\ns_sleep {bsl}\nL_a_x:')
    if not nob: a('buffer_store_dword v8, v121, s[44:47], s54 offen sc1')
    if dirty:
        a(f's_add_u32 s28, s28, s55\ns_addc_u32 s29, s29, 0')
        for k in range(dirty): a(f's_add_u32 s28, s28, 0x100000\ns_addc_u32 s29, s29, 0\nglobal_store_dword v121, v8, s[28:29]')
    fin()
    for r in rare: r()
    rare.clear()

    role[0] = 'wo'
    a('L_T:\nv_and_b32 v0, 63, v0')
    if pf3:
        a(f'''s_cmp_eq_u32 s31, 13
              s_cbranch_scc0 L_T1
              s_mul_i32 s50, s33, 19
              s_lshl_b32 s51, s32, 10
              v_add_u32 v2, s50, v0
              v_min_u32 v2, 447, v2
              v_lshl_add_u32 v2, v2, 13, s51
              s_mov_b64 exec, 0x7ffff
              global_load_dword v127, v2, s[10:11] offset:384
              s_mov_b64 exec, -1
              L_T1:''')
    a('''s_cmp_lt_u32 s33, 14
         s_cbranch_scc1 L_t_go
         s_cmp_eq_u32 s31, 8
         s_cbranch_scc1 L_t_go''')
    def pfcode():
        a('L_pf:')
        if fpf:
            a(f'''s_cmp_lt_u32 s31, 10
                  s_cbranch_scc1 L_end
                  s_mul_i32 s50, s33, 6
                  s_add_u32 s50, s50, s31
                  s_sub_u32 s50, s50, 94
                  s_cmp_lt_u32 s50, 56
                  s_cbranch_scc0 L_end''')
            if fpf:
                a(f'''s_cmp_lt_u32 s32, 4
                      s_cselect_b32 s52, 6, 8
                      s_cselect_b32 s53, 0, 8
                      s_cselect_b32 s56, 0x77777777, -1
                      s_cselect_b32 s58, 21, 28
                      s_mul_i32 s52, s52, s32
                      s_sub_u32 s52, s52, s53
                      s_lshr_b32 s51, s50, 1
                      s_waitcnt lgkmcnt(0)
                      s_bitcmp1_b32 s50, 0
                      s_cbranch_scc1 L_pf_2
                      s_mul_i32 s54, s51, {16*3584}
                      s_lshl_b32 s52, s52, 6
                      s_add_u32 s54, s54, s52
                      v_lshrrev_b32 v4, 2, v0
                      v_mul_u32_u24 v4, 3584, v4
                      v_and_b32 v5, 3, v0
                      v_lshl_add_u32 v4, v5, 7, v4
                      v_add_u32 v4, s54, v4
                      s_branch L_pf_3
                      L_pf_2:
                      s_mul_i32 s52, s52, {32*896}
                      s_lshl_b32 s54, s51, 13
                      s_add_u32 s54, s54, s52
                      v_lshl_add_u32 v4, v0, 7, s54
                      s_mov_b64 s[16:17], s[18:19]
                      s_cmp_lt_u32 s51, s58
                      s_cselect_b32 s56, -1, 0
                      L_pf_3:
                      s_mov_b32 s57, s56''')
            if wopf:
                a(f'''s_lshl_b32 s52, s50, 13
                      s_mul_i32 s51, s32, {512*896}
                      s_add_u32 s52, s52, s51
                      v_lshl_add_u32 v2, v0, 7, s52''')
                ldswait('L_pf_g', L_C, wopf, 4)
                if wolanes < 64: a(f's_mov_b32 exec_hi, {(1 << (wolanes - 32)) - 1}')
                a('global_load_dword v3, v2, s[12:13]')
            a('s_barrier\ns_barrier')
            if fpf: a('s_mov_b64 exec, s[56:57]\ns_cbranch_execz L_end\nglobal_load_dword v6, v4, s[16:17]' + pfnt)
        a('s_endpgm')
    a('''s_branch L_pf
         L_t_go:
         s_waitcnt lgkmcnt(0)''')
    dzero()
    a('L_t_go2:')
    tail_setup()
    a(f'''s_cmp_ge_u32 s33, 7
          s_cselect_b32 s50, 1, 0
          s_cselect_b32 s51, 7, 0
          s_sub_u32 s51, s33, s51
          s_lshl_b32 s52, s32, 1
          s_add_u32 s50, s50, s52
          s_lshl_b32 s52, s50, 8
          s_lshr_b32 s53, s49, 2
          s_lshl_b32 s53, s53, 7
          s_add_u32 s52, s52, s53
          s_and_b32 s53, s49, 1
          s_lshl_b32 s53, s53, 6
          s_add_u32 s52, s52, s53
          s_and_b32 s53, s49, 2
          s_lshl_b32 s53, s53, 1
          s_add_u32 s52, s52, s53
          s_mul_i32 s52, s52, 896
          s_lshl_b32 s53, s51, 7
          s_add_u32 s52, s52, s53
          s_add_u32 s53, s52, {8*896}
          s_mov_b32 s36, s12
          s_mov_b32 s37, s13
          s_mov_b32 s38, {4096*896}
          s_mov_b32 s39, 0x20000
          s_mul_i32 s40, s50, {24*1024}
          s_lshl_b32 s41, s49, 7
          s_add_u32 s40, s40, s41
          s_add_u32 s40, s40, {X3F}
          s_add_u32 s41, s40, 8192
          s_add_u32 s42, s40, 16384
          s_lshr_b32 s54, s50, 2
          s_lshl_b32 s54, s54, 13
          s_lshl_b32 s55, s50, 11
          s_add_u32 s54, s54, s55
          s_lshl_b32 s55, s51, 8
          s_add_u32 s54, s54, s55
          s_add_u32 s54, s54, {X4}
          s_add_u32 s55, s54, {SIDE}
          s_mov_b32 s43, 0
          s_mov_b32 s57, 0x04000c0c
          s_mov_b32 s58, {hex(f2u(0.0625 * LOG2E))}
          s_lshl_b32 s59, s49, 8
          s_add_u32 s59, s59, {L_P}
          v_lshrrev_b32 v12, 3, v0
          v_and_b32 v13, 7, v0
          v_lshlrev_b32 v3, 10, v12
          v_lshl_add_u32 v3, v13, 4, v3
          v_lshrrev_b32 v5, 4, v0
          v_lshl_add_u32 v5, v13, 2, v5
          v_lshl_add_u32 v5, v5, 1, s56
          v_lshl_add_u32 v6, v0, 4, s59
          v_lshlrev_b32 v4, 2, v0''')
    voff4(1, 16 * 896, 896, 12)
    def wold():
        stamp(3)
        for u in range(4):
            a(f'buffer_load_dwordx4 v[{80+4*u}:{83+4*u}], v1, s[36:39], s{52+(u>>1)} offen offset:{(u&1)*2*896}{wont}')
    maskaddr(8, 2, 's56', L_Z + 64, 12)
    a('s_waitcnt lgkmcnt(0)')
    tags()
    lanetag(7, 0); rowtag(98, 99)
    a('''v_and_b32 v10, 3, v0
         v_lshlrev_b32 v10, 3, v10
         v_lshlrev_b32_e64 v10, v10, 12
         v_xor_b32 v10, 0x0c0c0c0c, v10''')
    a(f'''s_cmp_eq_u32 s49, 0
          s_cbranch_scc0 L_wo
          v_lshlrev_b32 v2, 4, v0
          s_lshl_b32 s4, s32, 11
          s_add_u32 s4, s4, {X2F}
          s_mov_b32 m0, {L_Q}
          s_mov_b32 s62, 0
          s_setprio {pprio}
          L_p_loop:
          buffer_load_dwordx4 v2, s[44:47], s4 offen sc1 lds
          buffer_load_dwordx4 v2, s[44:47], s4 offen offset:1024 sc1 lds
          s_sleep {sleep}
          s_cmp_eq_u32 s62, {(1 << fastbits) * STEP}
          s_cselect_b32 s5, {X2F - X2}, 0
          s_sub_u32 s4, s4, s5
          ds_read2st64_b32 v[12:13], v2 offset0:{L_Q // 256} offset1:{L_Q // 256 + 4}
          s_waitcnt vmcnt(32) lgkmcnt(0)
          v_bitop3_b32 v12, v12, v13, s3 bitop3:0x7e
          v_cmp_ne_u32_sdwa vcc, v12, 0 src0_sel:WORD_0 src1_sel:DWORD''')
    spin('L_p_loop', 'L_p_ok')
    a('s_setprio 0')
    stamp(2)
    a('s_cmp_lt_u32 s33, 14\ns_cbranch_scc0 L_fin\nL_wo:')
    hop('w')
    if not wolate:
        ldswait('L_wo_g', L_C, gaten, 2)
        if gsl: a(f's_sleep {gsl}')
        wold()
    else: a('v_mov_b32 v100, 0')
    setprio(3)
    a('s_barrier\ns_barrier')
    if wolate: wold()
    stamp(4)
    x3l = [f'buffer_load_dwordx4 v[{32+4*s}:{35+4*s}], v3, s[44:47], s{40+s} offen sc1' for s in range(3)]
    for l in x3l: a(l)
    if peel:
        a('s_waitcnt vmcnt(0)')
        for i in range(3): a(f'v_cmp_ne_u32_sdwa s[{4+2*i}:{5+2*i}], v{32+4*i}, v7 src0_sel:BYTE_0 src1_sel:DWORD')
        for i in range(3): a(f's_wqm_b64 exec, s[{4+2*i}:{5+2*i}]\n{x3l[i]}')
        a('s_mov_b64 exec, -1')
    else: a('s_waitcnt vmcnt(3)')
    fix4(80, 48); perms64(80, 16)
    stamp(5)
    gather('L_x3', x3l, 32, 4, 7, issued=True, nfast=2 << fastbits, warm=(fX3, 62),
           spec='\n'.join(f'v_perm_b32 v{48+2*s}, v{35+4*s}, v{34+4*s}, s57' for s in range(3)),
           switch='\n'.join(f's_sub_u32 s{40+s}, s{40+s}, {X3F - X3}' for s in range(3)) + '\ns_barrier\ns_mov_b32 s43, 1')
    stamp(6)
    a(f'''v_max3_f32 v54, v48, v50, v52
          v_xor_b32 v32, v32, v7
          v_xor_b32 v36, v36, v7
          v_max_f32_dpp v54, v54, v54 row_ror:8 {DPPF}
          v_mov_b32 v55, v54
          v_xor_b32 v40, v40, v7''')
    pad('w')
    a(f'''v_permlane32_swap_b32 v54, v55
          v_max_f32 v54, v54, v55
          v_mov_b32 v55, v54
          v_permlane16_swap_b32 v54, v55
          v_max_f32 v54, v54, v55''')
    a('v_mul_f32 v54, s58, v54')
    for s in range(3): a(f'v_fma_f32 v{56+2*s}, v{48+2*s}, s58, -v54')
    for s in range(3): a(f'v_exp_f32 v{56+2*s}, v{56+2*s}')
    xs('w_exp')
    a(f'''v_pk_mul_f32 v[44:45], v[32:33], v[56:57] op_sel_hi:[1,0]
          v_pk_mul_f32 v[46:47], v[34:35], v[56:57] op_sel_hi:[1,0]
          v_pk_fma_f32 v[44:45], v[36:37], v[58:59], v[44:45] op_sel_hi:[1,0,1]
          v_pk_fma_f32 v[46:47], v[38:39], v[58:59], v[46:47] op_sel_hi:[1,0,1]
          v_pk_fma_f32 v[44:45], v[40:41], v[60:61], v[44:45] op_sel_hi:[1,0,1]
          v_pk_fma_f32 v[46:47], v[42:43], v[60:61], v[46:47] op_sel_hi:[1,0,1]''')
    rscatter(44)
    a(f's_cmp_eq_u32 s49, 0\nv_add_f32_dpp v44, v44, v44 row_ror:8 {DPPF}')
    rnd('v44', 'v44')
    xs('w_o')
    a('ds_write_b16_d16_hi v5, v44')
    for tau in range(2): a(f'ds_read_b128 v[{64+4*tau}:{67+4*tau}], v{8+tau}')
    def wo_out(x):
        a(f'''s_mov_b64 exec, 0xffff
              ds_write_b128 v6, v[74:77]
              s_mov_b64 exec, 1
              ds_inc_u32 v0, v98 offset:{L_C+16}''')
        if x:
            a('s_mov_b64 exec, -1')
            allred_rows('v_add_f32', 54, 55)
            a('v_rcp_f32 v52, v54')
        xs('w_pre')
        a(f's_cbranch_scc0 L_wo_nb{x}\ns_barrier\nL_wo_nb{x}:')
        xs('w_bar')
    a('s_cbranch_scc1 L_wo_0\ns_cmp_eq_u32 s43, 0')
    mma2(72, 64, 16)
    xs('w_mm')
    wo_out('')
    fin()
    a('L_wo_0:')
    for s in range(3): a(f'v_perm_b32 v{48+s}, v{33+4*s}, v{33+4*s}, v10')
    for s in range(3): a(f'v_or_b32_dpp v{48+s}, v{48+s}, v{48+s} quad_perm:[1,0,3,2] {DPPF}')
    a('s_cmp_eq_u32 s43, 0')
    mma2(72, 64, 16, mid='\n'.join(f'v_or_b32_dpp v{48+s}, v{48+s}, v{48+s} quad_perm:[2,3,0,1] {DPPF}' for s in range(3)))
    xs('w_mm')
    a(f'''v_mul_f32 v54, v56, v48
          v_fmac_f32 v54, v58, v49
          v_fmac_f32 v54, v60, v50
          s_mov_b32 s62, 0
          v_add_f32_dpp v54, v54, v54 row_ror:8 {DPPF}''')
    wo_out('0')
    a(f'L_wo_s:\nds_read_b32 v24, v100 offset:{L_C+16}')
    sumrows(8, L_P, 4, None, f's_waitcnt lgkmcnt({0 if (diag and only is None) else 4})\nv_cmp_ne_u32 vcc, 8, v24')
    rare.append(lambda: a(f'L_wo_sr:\ns_add_u32 s62, s62, {STEP}\ns_cbranch_scc0 L_wo_s\ns_branch L_wo_sok'))
    a('v_mul_f32 v16, v52, v16')
    a(f'''v_and_or_b32 v16, v16, v98, v99
          s_cbranch_vccnz L_wo_sr
          L_wo_sok:
          buffer_store_dword v16, v4, s[44:47], s54 offen sc1
          buffer_store_dword v16, v4, s[44:47], s55 offen sc1''')
    stamp(7)
    if bev: a(f's_waitcnt vmcnt(0)\nds_write_b32 v100, v24 offset:{L_C+20}')
    a('L_fin:')
    fin()
    for r in rare: r()
    rare.clear()

    role[0] = 'F'
    if paged: a('.p2align 12\nL_F2:')
    else: fstart()
    dzero(); stamp(1)
    a('s_load_dword s30, s[28:29], 0')
    ws_srd(); perm_sel()
    a(f'''s_lshl_b32 s52, s31, 8
          s_add_u32 s56, s52, 0x2400
          s_mov_b32 s59, {hex(f2u(448.0))}
          s_mov_b32 s58, 0x3f803f80
          v_mov_b32 v12, 0
          v_lshlrev_b32 v4, 2, v0
          ds_write_b32 v4, v12 offset:{FZ}
          v_add_u32 v6, s56, v6
          v_lshl_add_u32 v5, v5, 1, s52''')
    maskaddr(8, 2, 's56', FZ + 64, 12)
    a('''s_waitcnt vmcnt(8)
         v_dot2_f32_bf16 v102, v96, s58, 0
         v_dot2_f32_bf16 v103, v96, v96, 0''')
    for i in range(1, 4):
        a(f'v_dot2_f32_bf16 v102, v{96+i}, s58, v102')
        a(f'v_dot2_f32_bf16 v103, v{96+i}, v{96+i}, v103')
    for sh in (8, 4, 2, 1):
        a(f'v_add_f32_dpp v102, v102, v102 row_ror:{sh} {DPPF}')
        a(f'v_add_f32_dpp v103, v103, v103 row_ror:{sh} {DPPF}')
    allred_rows('v_add_f32', 102, 104); allred_rows('v_add_f32', 103, 104)
    a('v_lshlrev_b32 v96, 16, v100')
    ln_apply(102, 103, (100, 96), 104)
    a(f'''s_lshl_b32 s52, s32, 11
          s_lshl_b32 s53, s33, 8
          s_add_u32 s52, s52, s53
          s_add_u32 s53, s52, {X2F}
          s_add_u32 s52, s52, {X2}
          s_waitcnt lgkmcnt(0)''')
    tags()
    a('s_waitcnt vmcnt(4)')
    fix4(32, 104); perms64(32, 64)
    a(f'''s_mov_b32 s49, {X1}
          s_add_u32 s50, s31, 0
          s_lshr_b32 s63, s50, 3
          s_lshl_b32 s63, s63, 13
          s_lshl_b32 s50, s50, 10
          s_add_u32 s50, s50, s63
          s_add_u32 s50, s50, s49
          s_add_u32 s51, s31, 7
          s_lshr_b32 s63, s51, 3
          s_lshl_b32 s63, s63, 13
          s_lshl_b32 s51, s51, 10
          s_add_u32 s51, s51, s63
          s_add_u32 s51, s51, s49
          s_waitcnt vmcnt(0)''')
    fix4(48, 104); perms64(48, 80)
    a('''s_add_u32 s8, s31, 14
          s_lshr_b32 s63, s8, 3
          s_lshl_b32 s63, s63, 13
          s_lshl_b32 s8, s8, 10
          s_add_u32 s8, s8, s63
          s_add_u32 s8, s8, s49
          s_add_u32 s9, s31, 21
          s_lshr_b32 s63, s9, 3
          s_lshl_b32 s63, s63, 13
          s_lshl_b32 s9, s9, 10
          s_add_u32 s9, s9, s63
          s_add_u32 s9, s9, s49
          s_add_u32 s10, s31, 28
          s_lshr_b32 s63, s10, 3
          s_lshl_b32 s63, s63, 13
          s_lshl_b32 s10, s10, 10
          s_add_u32 s10, s10, s63
          s_add_u32 s10, s10, s49
          s_add_u32 s11, s31, 35
          s_lshr_b32 s63, s11, 3
          s_lshl_b32 s63, s63, 13
          s_lshl_b32 s11, s11, 10
          s_add_u32 s11, s11, s63
          s_add_u32 s11, s11, s49''')
    stamp(2)
    poll4('L_q_x1', [f'buffer_load_dwordx4 v[{32+4*s}:{35+4*s}], v41, s[44:47], s{50+s} offen sc1' for s in range(2)], 32, 40)
    stamp(3)
    if mxe:
        for s in range(4): a(f'buffer_load_dwordx4 v[{104+4*s}:{107+4*s}], v41, s[44:47], s{8+s} offen sc1')
    rscatter(36); rscatter(32)
    rnd('v36', 'v36'); rnd('v32', 'v32')
    a('v_add_f32 v36, 1.0, v36'); rnd('v36', 'v36')
    a('v_mul_f32 v36, v100, v36'); rnd('v36', 'v36')
    a('v_add_f32 v36, v36, v32'); rnd('v36', 'v36')
    a('ds_write_b16_d16_hi v6, v36')
    for u in range(2):
        for tau in range(2): a(f'ds_read_b128 v[{32+8*u+4*tau}:{35+8*u+4*tau}], v{8+tau} offset:{64*u}')
    mma2(48, 32, 64, left=2); mma2(48, 40, 80, first=False)
    a(f'''v_mov_b32 v24, 1
          s_mov_b32 s62, 0
          s_mov_b64 exec, 0xffff
          s_cmp_eq_u32 s31, 0
          ds_write_b128 v5, v[50:53] offset:{FP}
          s_mov_b64 exec, 1
          ds_add_u32 v0, v24 offset:{FC+4}
          s_mov_b64 exec, -1
          s_cbranch_scc0 L_q_done
          v_mov_b32 v25, 0
          L_q_s:
          ds_read_b32 v24, v25 offset:{FC+4}''')
    sumrows(7, FP, 4, 'v_cmp_ne_u32 vcc, 8, v24')
    rnd('v16', 'v16')
    rare.append(lambda: a(f'L_q_sr:\ns_add_u32 s62, s62, {STEP}\ns_cbranch_scc0 L_q_s\ns_branch L_q_sok'))
    a('''v_or_b32 v16, s3, v16
         s_cbranch_vccnz L_q_sr
         L_q_sok:
         buffer_store_dword v16, v4, s[44:47], s53 offen
         buffer_store_dword v16, v4, s[44:47], s52 offen sc1''')
    a(f'ds_write_b32 v25, v24 offset:{FC+16}')
    if rewarm:
        a(f'''s_cmp_eq_u32 s33, 7
              s_cbranch_scc0 L_q_done
              s_getpc_b64 s[4:5]
              L_pc2:
              s_sub_u32 s4, s4, L_pc2-L_pc
              s_subb_u32 s5, s5, 0
              v_lshlrev_b32 v102, 7, v0
              v_add_u32 v103, 0x2000, v102
              v_min_u32 v103, L_code_end-L_pc-4, v103
              global_load_dword v127, v102, s[4:5] sc1
              global_load_dword v127, v103, s[4:5] sc1''')
    a('L_q_done:')
    stamp(4)
    def ffn_id(skip):
        a(f'''s_cmp_lt_u32 s32, 4
              s_cselect_b32 s50, 6, 8
              s_cselect_b32 s51, 0, 8
              s_cmp_lt_u32 s33, s50
              s_cbranch_scc0 {skip}''')
    def wp3():
        a(f'''s_mul_i32 s14, s33, 7
              s_add_u32 s14, s14, s31
              s_lshl_b32 s14, s14, 13
              s_mul_i32 s15, s32, {512*896}
              s_add_u32 s14, s14, s15
              v_lshl_add_u32 v126, v0, 7, s14
              global_load_dword v127, v126, s[12:13]''')
    if vpf:
        assert tbl == 1
        a(f'''s_cmp_lt_u32 s31, 6
              s_cbranch_scc0 L_f_nv
              s_load_dwordx2 s[6:7], s[0:1], 16
              s_mul_i32 s52, s33, 6
              s_add_u32 s52, s52, s31
              s_lshl_b32 s52, s52, 2
              s_lshr_b32 s53, s52, 3
                      s_and_b32 s52, s52, 7
                      s_lshl_b32 s54, s53, 2
                      s_add_u32 s55, s54, 6
                      s_min_u32 s54, s54, 13
                      s_min_u32 s55, s55, 15
                      s_mul_i32 s15, s53, 43
                      s_cmp_ge_u32 s53, 17
                      s_cselect_b32 s54, 64, s54
                      s_cselect_b32 s55, 63, s55
                      s_mul_i32 s53, s53, 40
                      s_cselect_b32 s15, s53, s15
                      s_lshl_b32 s53, s32, 14
                      s_add_u32 s15, s15, s53
                      s_add_u32 s15, s15, {WINOFF // 2048 + 5}
                      v_lshrrev_b32 v124, 4, v0
                      v_add_u32 v124, s52, v124
                      v_add_u32 v125, s54, v124
                      v_min_u32 v125, s55, v125
                      v_mad_u32_u24 v124, v124, 5, v125
                      v_add_u32 v124, s15, v124
                      v_and_b32 v125, 15, v0
                      v_lshlrev_b32 v125, 7, v125
                      v_lshl_add_u32 v124, v124, 11, v125''')
        ldswait('L_f_qv', FC + 16, 1, 1, 102)
        for k in range(vpf): a(f'global_load_dword v127, v124, s[6:7] offset:{-2048 * (vpf - 1 - k)}{vpffl}')
        a('L_f_nv:')
    if wopf3:
        ldswait('L_f_q3', FC + 16, 1, 1, 102)
        if wopf3 > 1: a(f's_sleep {wopf3}')
        wp3()
    ffn_id('L_fin2')
    a(f'''s_mul_i32 s50, s50, s32
          s_add_u32 s50, s50, s33
          s_sub_u32 s50, s50, s51
          s_mov_b32 s36, s16
          s_mov_b32 s37, s17
          s_mov_b32 s38, {448*3584}
          s_mov_b32 s40, s18
          s_mov_b32 s41, s19
          s_mov_b32 s42, {1792*896}
          s_mul_i32 s52, s31, {64*3584}
          s_lshl_b32 s53, s50, 6
          s_add_u32 s52, s52, s53
          s_mul_i32 s54, s50, {32*896}
          s_lshl_b32 s55, s31, 7
          s_add_u32 s54, s54, s55
          s_add_u32 s55, s54, {4*896}
          v_and_b32 v4, 15, v0
          v_mul_u32_u24 v2, {8*3584}, v3
          v_lshl_add_u32 v2, v4, 2, v2''')
    voff4(1, 8 * 896, 896, 102)
    if not mxe or not hintk: ldswait('L_f_q', FC + 16, 1, 1, 102)
    poll4('L_f_mx', [f'buffer_load_dwordx4 v[{104+4*s}:{107+4*s}], v121, s[44:47], s{8+s} offen sc1' for s in range(4)], 104, 120, 0, mxe)
    for s in range(4): rscatter(104 + 4 * s)
    rnd('v102', 'v104'); rnd('v98', 'v108'); rnd('v100', 'v112'); rnd('v116', 'v116')
    a('v_add_f32 v100, 1.0, v100\ns_lshl_b32 s13, s31, 8\nv_lshl_add_u32 v103, v0, 2, s13')
    rnd('v100', 'v100')
    a(f'''ds_write_b32 v103, v116 offset:{FG}
          ds_write_b16_d16_hi v6, v100
          ds_write_b16_d16_hi v6, v98 offset:128''')
    hop('f')
    if hintk: ldswait('L_f_g', FC + 8, 1, 1, 104)
    stamp(5)
    for i in range(16):
        a(f'buffer_load_dword v{32+i}, v2, s[36:39], s52 offen offset:{3584*(i&1)}{w1nt}')
        if i & 1: a(f's_add_u32 s52, s52, {2*3584 if i != 7 else 26*3584}')
    for u in range(4):
        a(f'buffer_load_dwordx4 v[{48+4*u}:{51+4*u}], v1, s[40:43], s{54+(u>>1)} offen offset:{(u&1)*2*896}{w2nt}')
    maskaddr(10, 2, FH, FZ + 64, 104)
    lanetag(5, 0)
    getside(104)
    a(f'''s_lshr_b32 s12, s50, 2
          s_lshl_b32 s12, s12, 13
          s_lshl_b32 s14, s50, 11
          s_add_u32 s12, s12, s14
          s_add_u32 s12, s12, s13
          s_add_u32 s12, s12, {X5}
          v_and_b32 v7, 1, v3
          v_lshlrev_b32 v7, 13, v7
          v_lshl_add_u32 v7, v4, 4, v7''')
    if x5o == 3: a(f'v_xor_b32 v7, s48, v7\nv_xor_b32 v15, {SIDE}, v7')
    elif x5o:
        a(f'''s_cmp_ge_u32 s31, 3
              s_cselect_b32 s14, 4, 0
              s_xor_b32 s14, s14, s32
              s_lshr_b32 s14, s14, 2
              s_lshl_b32 s14, s14, 13
              s_xor_b32 s14, s14, s48
              v_xor_b32 v7, s14, v7''')
    a(f'''v_and_b32 v8, 1, v0
          v_lshlrev_b32 v8, 7, v8
          v_lshl_add_u32 v8, v3, 4, v8
          v_add_u32 v8, s56, v8
          v_lshlrev_b32 v2, 11, v3
          v_lshl_add_u32 v2, v4, 4, v2
          s_add_u32 s52, s13, {FA}
          v_lshl_add_u32 v9, v0, 3, s52
          s_lshl_b32 s52, s31, 7
          s_add_u32 s52, s52, {FP2}
          v_lshl_add_u32 v4, v0, 3, s52
          s_add_u32 s40, s13, s48
          s_add_u32 s40, s40, {X4}
          s_add_u32 s41, s40, {1 << 14}
          s_add_u32 s42, s40, {2 << 14}
          s_add_u32 s43, s40, {3 << 14}
          s_lshl_b32 s52, s31, 3
          s_add_u32 s52, s52, {FST}
          v_lshrrev_b32 v1, 5, v0
          v_lshl_add_u32 v3, v1, 2, s52
          s_mov_b32 s57, 0xffffff00
          s_mov_b32 s16, 0x10000
          s_mov_b32 s17, 0x10000
          ds_read_b128 v[80:83], v8
          ds_read_b128 v[84:87], v8 offset:64
          v_mov_b32 v12, 0
          v_mov_b32 v13, 1
          v_mov_b32 v120, 1''')
    x4l = [f'buffer_load_dwordx4 v[{104+4*s}:{107+4*s}], v2, s[44:47], s{40+s} offen sc1' for s in range(4)]
    def w1mma(k):
        for tau in range(2):
            d = 88 + 4 * tau; b = 16 + 8 * k + 4 * tau
            a(f'v_mfma_f32_16x16x32_bf16 v[{d}:{d+3}], v[{80+4*k}:{83+4*k}], v[{b}:{b+3}], ' + ('0' if k == 0 else f'v[{d}:{d+3}]'))
    stamp(6)
    a('s_waitcnt vmcnt(4) lgkmcnt(0)')
    for l in x4l: a(l)
    for aa in range(2):
        for tau in range(2):
            for rho in range(4):
                a(f'v_perm_b32 v{16+8*aa+4*tau+rho}, v{32+8*aa+2*rho+1}, v{32+8*aa+2*rho}, s{60+tau}')
    w1mma(0); w1mma(1)
    a(f'''s_mov_b64 exec, 0xffff
          ds_write2_b32 v9, v88, v92 offset0:0 offset1:1
          ds_write2_b32 v9, v89, v93 offset0:32 offset1:33
          s_mov_b64 exec, 1
          ds_add_u32 v0, v120 offset:{FC}
          s_mov_b64 exec, -1
          s_waitcnt vmcnt(4)''')
    fix4(48, 124); perms64(48, 64)
    setprio(2)
    stamp(7)
    def sum_hi(r, d):
        return f'''v_pk_add_f32 v[{d+2}:{d+3}], v[{r+2}:{r+3}], v[{r+6}:{r+7}]
                   v_pk_add_f32 v[{d}:{d+1}], v[{r+10}:{r+11}], v[{r+14}:{r+15}]
                   v_pk_add_f32 v[{d+2}:{d+3}], v[{d+2}:{d+3}], v[{d}:{d+1}]'''
    def sum_lo(r, d):
        for s in range(4): a(f'v_xor_b32 v{r+4*s}, v{r+4*s}, v5')
        pk('add', r, r, r + 4); pk('add', r + 8, r + 8, r + 12); pk('add', d, r, r + 8)
    gather('L_x4', x4l, 104, 4, 5, spec=sum_hi(104, 120), issued=True, warm=(fX4, 63))
    stamp(8)
    sum_lo(104, 120)
    pad('f')
    rscatter(120)
    rnd('v120', 'v120'); a('v_mul_f32 v120, v102, v120'); rnd('v120', 'v120'); a('v_add_f32 v120, v96, v120'); rnd('v121', 'v120')
    xs('x2')
    a(f'''v_mul_f32 v123, v121, v100
          v_mul_f32 v122, v121, v121
          v_cvt_pk_bf16_f32 v124, 0, v123
          v_sub_f32 v124, v123, v124
          v_cvt_pk_bf16_f32 v123, v124, v123
          ds_write_b16_d16_hi v6, v123
          ds_write_b16 v6, v123 offset:128
          ds_read_b128 v[80:83], v8
          ds_read_b128 v[84:87], v8 offset:64
          ds_write_b32 v103, v121 offset:{FX}
          v_permlane32_swap_b32 v121, v122
          v_add_f32 v121, v121, v122''')
    pad('f')
    a(f'''v_add_f32_dpp v121, v121, v121 row_ror:8 {DPPF}
          v_add_f32_dpp v121, v121, v121 row_ror:4 {DPPF}
          v_add_f32_dpp v121, v121, v121 row_ror:2 {DPPF}
          s_waitcnt lgkmcnt({0 if (diag and only is None) else 2})''')
    w1mma(0)
    a(f'''v_add_f32_dpp v121, v121, v121 row_ror:1 {DPPF}
          s_waitcnt lgkmcnt({0 if (diag and only is None) else 1})''')
    w1mma(1)
    a(f'''v_add_f32_dpp v121, v121, v121 row_bcast:15 row_mask:0xa bank_mask:0xf
          s_mov_b64 exec, s[16:17]
          ds_write_b32 v3, v121''')
    if est: a(f'ds_add_u32 v12, v13 offset:{FC+20}')
    a('s_mov_b64 exec, 0xffff')
    pad('f')
    a(f'''v_add_f32 v88, v88, v89
          v_add_f32 v92, v92, v93
          ds_write2_b32 v4, v88, v92 offset0:0 offset1:1''')
    if nw3: a(f's_mov_b64 exec, 1\nds_add_u32 v12, v13 offset:{FC+24}')
    else: a('s_waitcnt lgkmcnt(0)')
    stamp(11); xs('preB3')
    a('s_barrier\ns_mov_b64 exec, -1\ns_mov_b32 s62, 0')
    xs('B3')
    a('s_barrier')
    xs('B4')
    a('L_f_h1:')
    if nw4: a(f'ds_read_b32 v14, v12 offset:{FC+28}')
    for tau in range(2): a(f'ds_read_b128 v[{80+4*tau}:{83+4*tau}], v{10+tau}')
    mma2(32, 80, 64, mid='v_cmp_eq_u32 vcc, 0, v14' if nw4 else None)
    if nw4:
        a('s_cbranch_vccnz L_f_h1r\nL_f_h1ok:')
        rare.append(lambda: a(f'L_f_h1r:\ns_add_u32 s62, s62, {STEP}\ns_cbranch_scc0 L_f_h1\ns_branch L_f_h1ok'))
    xs('mm2')
    pad('f', True)
    if x5o == 3:
        a('''s_mov_b64 exec, 0xffff
             v_and_or_b32 v34, v34, s57, v5
             buffer_store_dwordx4 v[34:37], v7, s[44:47], s12 offen sc1
             buffer_store_dwordx4 v[34:37], v15, s[44:47], s12 offen sc1''')
        stamp(9)
        if x5w is not None: a(f's_cmp_le_u32 s31, {x5w}\ns_cbranch_scc0 L_f_nwt')
        a('s_waitcnt vmcnt(1)\nL_f_nwt:\ns_barrier\nL_fin2:')
    elif x5o == 2:
        a('''s_mov_b64 exec, 0xffff
             v_and_or_b32 v34, v34, s57, v5
             buffer_store_dwordx4 v[34:37], v7, s[44:47], s12 offen sc1''')
        stamp(9)
        a(f'''s_barrier
              v_xor_b32 v7, {SIDE}, v7
              s_waitcnt vmcnt(0)
              buffer_store_dwordx4 v[34:37], v7, s[44:47], s12 offen sc1
              L_fin2:''')
    else:
        a('''s_mov_b32 exec_hi, 0
             v_and_or_b32 v34, v34, s57, v5
             buffer_store_dwordx4 v[34:37], v7, s[44:47], s12 offen sc1''')
        stamp(9)
        a('s_barrier\nL_fin2:')
    fin()
    for r in rare: r()
    rare.clear()
    if not paged: a(f'''L_F7s:
              s_cmp_ge_u32 s31, 9
              s_cbranch_scc1 L_F9
              v_mov_b32 v2, 0
              v_lshlrev_b32 v3, 2, v0
              ds_write_b32 v3, v2 offset:{FC & ~255}
              s_waitcnt lgkmcnt(0)
              s_barrier
              s_branch L_F7
              L_F9:
              s_endpgm''')
    a(f'''L_F7:
          s_cmp_eq_u32 s31, 7
          s_cbranch_scc0 L_F8
          s_load_dword s30, s[28:29], 0
          v_mov_b32 v4, 1
          s_waitcnt lgkmcnt(0)
          s_mov_b64 exec, 1
          ds_add_u32 v2, v4 offset:{FC+4}
          s_mov_b64 exec, -1''')
    dzero()
    ws_srd()
    ffn_id('L_fin3')
    if hintk:
        a(f'''s_mul_i32 s49, s32, {24*128}
              s_add_u32 s49, s49, {HINT}
              v_lshlrev_b32 v102, 7, v0''')
        if mxe:
            ldswait('L_7_t', FC + 4, 2, 4, 104)
            a('s_mov_b64 exec, 0xffffff\nbuffer_load_dword v103, v102, s[44:47], s49 offen sc1\ns_mov_b64 exec, -1')
    ldswait('L_7_q', FC + 16, 1, 4, 104)
    tags()
    if hintk:
        a(f'''s_mul_i32 s54, s50, s32
              s_add_u32 s54, s54, s33
              s_and_b32 s54, s54, 6
              s_cmp_eq_u32 s54, 6
              s_cselect_b32 s54, {hintk if hk3 is None else hk3}, {hintk}
              s_mov_b64 exec, 0xffffff
              s_mov_b32 s62, 0
              L_f_h:
              s_sleep 2
              buffer_load_dword v103, v102, s[44:47], s49 offen sc1
              s_add_u32 s62, s62, {1 << (32 - fastbits)}
              s_waitcnt vmcnt(0)
              s_cbranch_scc1 L_f_hok
              v_cmp_eq_u32 vcc, s3, v103
              s_bcnt1_i32_b64 s53, vcc
              s_cmp_lt_u32 s53, s54
              s_cbranch_scc1 L_f_h
              L_f_hok:
              s_mov_b64 exec, -1
              v_mov_b32 v103, 1
              ds_write_b32 v2, v103 offset:{FC+8}''')
    a(f'''s_mul_i32 s50, s50, s32
          s_add_u32 s50, s50, s33
          s_sub_u32 s50, s50, s51
          v_mov_b32 v9, v3
          v_lshrrev_b32 v4, 4, v0
          v_lshlrev_b32 v81, 14, v4
          v_bfe_u32 v6, v0, 2, 2
          v_lshl_add_u32 v81, v6, 11, v81
          v_and_b32 v6, 3, v0
          v_lshl_add_u32 v81, v6, 4, v81
          s_bfe_u32 s52, s50, 0x20001
          s_lshl_b32 s52, s52, 2
          s_lshl_b32 s20, 0x000f000f, s52
          s_mov_b32 s21, s20
          s_lshr_b32 s52, s50, 3
          s_lshl_b32 s53, s52, 8
          v_add_u32 v3, s53, v3
          s_lshl_b32 s52, s52, 7
          v_and_b32 v6, 7, v0
          v_lshlrev_b32 v6, 4, v6
          v_and_b32 v7, 8, v0
          v_lshl_add_u32 v7, v4, 1, v7
          v_add3_u32 v101, v6, v7, s52
          s_mov_b32 s36, s24
          s_mov_b32 s37, s25
          s_mov_b32 s38, 896
          s_mov_b32 s39, 0x20000''')
    lanetag(5, 0)
    x5l = [f'buffer_load_dwordx4 v[{36+4*s}:{39+4*s}], v81, s[44:47], s{40+s} offen sc1' for s in range(4)]
    a('v_mov_b32 v48, v5\nv_mov_b32 v49, 0\nv_mov_b32 v50, 0\nv_mov_b32 v51, 0')
    hop('s')
    ldswait('L_7_g', FC, 2, 4, 102)
    getside(102)
    a(f'''s_lshl_b32 s40, s50, 5
          s_add_u32 s40, s40, s48
          s_add_u32 s40, s40, {X5}
          s_add_u32 s41, s40, {4 << 14}
          s_add_u32 s42, s40, {8 << 14}
          s_add_u32 s43, s40, {12 << 14}''')
    a('s_bitcmp1_b32 s50, 0\ns_cbranch_scc1 L_7_o\n' + '\n'.join(x5l[:3] if pt5 else [f'v_mov_b32 v{36+4*k}, 0xff' for k in range(3)]) + f'''
          s_mov_b32 exec_hi, 0
          {x5l[3] if pt5 else 'v_mov_b32 v48, 0xff'}
          {'buffer_load_ushort v125, v101, s[36:39], 0 offen' if opt else ''}
          s_mov_b32 exec_hi, -1
          L_7_o:''')
    ldswait('L_7_a', FC, 7, 1, 102)
    sumrows(7, FA, 9)
    a(f'''v_mov_b32 v17, v16
          v_and_b32 v14, 31, v0
          v_lshlrev_b32 v15, 1, v14
          v_permlane32_swap_b32 v16, v17
          v_lshlrev_b32 v14, 2, v14
          v_add_u32 v14, {FP2}, v14
          v_mov_b32 v1, {FST}
          v_mov_b32 v31, 0
          s_mov_b32 s59, {hex(f2u(448.0))}''')
    align('S')
    setprio(3)
    cw = lambda n: f's_waitcnt lgkmcnt({0 if (diag and only is None) else n})'
    if est:
        a(f'''s_mov_b32 s62, 0
              L_7_s:
              ds_read_b32 v70, v31 offset:{FC+20}
              ds_read_b128 v[56:59], v1
              ds_read_b128 v[60:63], v1 offset:16
              ds_read_b128 v[64:67], v1 offset:32
              ds_read_b64 v[68:69], v1 offset:48
              s_add_u32 s62, s62, {STEP >> 2}
              s_cbranch_scc1 L_7_sok
              {cw(4)}
              v_cmp_ne_u32 vcc, 14, v70
              s_cbranch_vccnz L_7_s
              L_7_sok:
              s_waitcnt lgkmcnt(0)''')
        pk('add', 56, 56, 58); pk('add', 60, 60, 62)
        pk('add', 64, 64, 66); pk('add', 56, 56, 60); pk('add', 64, 64, 68); pk('add', 56, 56, 64)
        a(f'''s_barrier
              ds_read2_b32 v[24:25], v14 offset0:0 offset1:32
              ds_read2_b32 v[26:27], v14 offset0:64 offset1:96
              ds_read2_b32 v[28:29], v14 offset0:128 offset1:160
              ds_read_b32 v30, v14 offset:768''')
        a(f'''v_mul_f32 v60, v56, v56
              v_fma_f32 v61, v56, v56, -v60
              v_fma_f32 v60, v57, s59, -v60
              v_sub_f32 v60, v60, v61
              v_mul_f32 v60, {hex(f2u(1/448/448))}, v60
              v_max_f32 v60, 0, v60''')
        rnd('v60', 'v60')
        a(f'v_add_f32 v60, {hex(f2u(1e-5))}, v60')
        rnd('v60', 'v60')
        a(f'v_sqrt_f32 v60, v60\nv_mul_f32 v62, {hex(f2u(1/448))}, v56')
        rnd('v60', 'v60')
        a('s_waitcnt lgkmcnt(0)\nv_rcp_f32 v60, v60')
        pk('add', 24, 24, 26); pk('add', 28, 28, 30)
        rnd('v62', 'v62')
        pk('add', 24, 24, 28)
        a('''v_fma_f32 v24, -v62, v16, v24
             v_add_f32 v24, v24, v25
             v_fma_f32 v24, v24, v60, v17''')
    else:
        a('s_mov_b32 s62, 0\ns_barrier\nL_7_t:')
        if nw3: a(f'ds_read_b32 v70, v31 offset:{FC+24}')
        a(f'''ds_read_b128 v[56:59], v1
              ds_read_b128 v[60:63], v1 offset:16
              ds_read_b128 v[64:67], v1 offset:32
              ds_read_b64 v[68:69], v1 offset:48
              ds_read2_b32 v[24:25], v14 offset0:0 offset1:32
              ds_read2_b32 v[26:27], v14 offset0:64 offset1:96
              ds_read2_b32 v[28:29], v14 offset0:128 offset1:160
              ds_read_b32 v30, v14 offset:768''')
        a(cw(6))
        if nw3: a('v_cmp_ne_u32 vcc, 7, v70')
        pk('add', 56, 56, 58); pk('add', 60, 60, 62)
        a(cw(4))
        pk('add', 64, 64, 66); pk('add', 56, 56, 60); pk('add', 64, 64, 68); pk('add', 56, 56, 64)
        a(f'''v_mul_f32 v60, v56, v56
              v_fma_f32 v61, v56, v56, -v60
              v_fma_f32 v60, v57, s59, -v60
              v_sub_f32 v60, v60, v61
              v_mul_f32 v60, {hex(f2u(1/448/448))}, v60
              v_max_f32 v60, 0, v60''')
        rnd('v60', 'v60')
        a(f'v_add_f32 v60, {hex(f2u(1e-5))}, v60')
        rnd('v60', 'v60')
        a(f'v_sqrt_f32 v60, v60\nv_mul_f32 v62, {hex(f2u(1/448))}, v56')
        rnd('v60', 'v60')
        a('s_waitcnt lgkmcnt(0)\nv_rcp_f32 v60, v60')
        pk('add', 24, 24, 26); pk('add', 28, 28, 30)
        rnd('v62', 'v62')
        pk('add', 24, 24, 28)
        a('''v_fma_f32 v24, -v62, v16, v24
             v_add_f32 v24, v24, v25
             v_fma_f32 v24, v24, v60, v17''')
    rnd('v24', 'v24')
    silu(24, 24, 25, 's')
    if nw3:
        a('s_cbranch_vccnz L_7_tr\nL_7_tok:')
        rare.append(lambda: a(f'L_7_tr:\ns_add_u32 s62, s62, {STEP}\ns_cbranch_scc0 L_7_t\ns_branch L_7_tok'))
    a(f'ds_write_b16_d16_hi v15, v24 offset:{FH}')
    a(f'ds_write_b32 v31, v1 offset:{FC+28}' if nw4 else 's_waitcnt lgkmcnt(0)')
    a('''s_barrier
         s_bitcmp1_b32 s50, 0
         s_cbranch_scc1 L_fin3''')
    a(f'''ds_read_b32 v96, v3 offset:{FX}
          ds_read_b32 v100, v3 offset:{FG}
          s_cmp_eq_u32 s50, 0
          s_cbranch_scc0 L_7_e
          s_mov_b64 exec, 1
          v_mov_b32 v6, s30
          buffer_store_dword v6, v2, s[44:47], 0 offen
          s_mov_b64 exec, -1
          L_7_e:''')
    pad('s')
    a('s_barrier\ns_waitcnt lgkmcnt(0)')
    if d5: a(f'; back off one flight time: nothing can have arrived yet, and a read that is too early costs a whole round trip\ns_sleep {d5}')
    gather('L_x5', x5l, 36, 4, 5, issued=True, spec=sum_hi(36, 32))
    stamp(12)
    sum_lo(36, 32)
    pad('s')
    rscatter(32)
    a(f'v_add_f32_dpp v32, v32, v32 row_ror:8 {DPPF}')
    pad('s', True)
    a(f'v_add_f32_dpp v32, v32, v32 row_ror:4 {DPPF}')
    rnd('v32', 'v32'); a('v_mul_f32 v32, v100, v32'); rnd('v32', 'v32'); a('v_add_f32 v32, v96, v32\ns_mov_b64 exec, s[20:21]'); rnd('v32', 'v32')
    a('buffer_store_short_d16_hi v32, v101, s[36:39], 0 offen' + ofl)
    stamp(14)
    if lite: a('s_branch L_dump')
    a('L_fin3:')
    fin()
    for r in rare: r()
    rare.clear()
    a(f'''L_F8:
          s_lshl_b32 s48, s2, 7
          s_add_u32 s48, s48, {PRB}
          s_add_u32 s49, s48, {SIDE}
          s_mov_b32 s52, -1
          s_mov_b32 s53, -1
          s_mov_b32 s54, 0
          s_waitcnt lgkmcnt(0)''')
    if tlb:
        a(f'''s_lshl_b32 s50, s32, 25
              s_add_u32 s50, s50, {WINOFF}
              s_mov_b32 s51, {4096*896-4}
              s_load_dword s56, s[8:9], s50
              s_load_dword s57, s[12:13], 0
              s_load_dword s58, s[12:13], s51
              s_load_dword s59, s[16:17], 0
              s_load_dword s60, s[18:19], 0
              s_load_dword s61, s[24:25], 0''')
    dzero()
    if fside is not None:
        a(f'''s_getreg_b32 s55, hwreg(HW_REG_XCC_ID)
              s_bfe_u32 s55, s55, 0x10002
              s_xor_b32 s55, s55, {fside}
              s_lshl_b32 s55, s55, 13
              v_mov_b32 v3, s55
              ds_write_b32 v2, v3 offset:{FC+12}''')
    else:
        a('s_load_dword s10, s[28:29], s48 glc\ns_load_dword s11, s[28:29], s49 glc\ns_waitcnt lgkmcnt(0)\nL_8_l:')
        for sd in range(2):
            a(f'''s_memtime s[4:5]
                  s_waitcnt lgkmcnt(0)
                  s_load_dword s10, s[28:29], s{48+sd} glc
                  s_waitcnt lgkmcnt(0)
                  s_memtime s[6:7]
                  s_lshr_b32 s8, s33, {sd}
                  s_add_u32 s8, s8, s54
                  s_bitcmp1_b32 s8, 0
                  s_waitcnt lgkmcnt(0)
                  s_cbranch_scc0 L_8_n{sd}
                  s_sleep 3
                  L_8_n{sd}:
                  s_sub_u32 s4, s6, s4
                  s_min_u32 s{52+sd}, s{52+sd}, s4''')
        a(f'''s_cmp_lt_u32 s53, s52
              s_cselect_b32 s55, {SIDE}, 0
              v_mov_b32 v3, s55
              ds_write_b32 v2, v3 offset:{FC+12}''')
        if diag:
            for k in (1, 2, 3, 4): a(f's_cmp_eq_u32 s54, {k-1}\ns_cbranch_scc0 L_8_d{k}\ns_memrealtime s[{64+2*k}:{65+2*k}]\ns_add_u32 s{64+2*(k+4)}, s55, 1\nL_8_d{k}:')
        a(f'''s_add_u32 s54, s54, 1
              s_cmp_lt_u32 s54, {nprb}
              s_cbranch_scc1 L_8_l''')
    if diag:
        a('s_add_u32 s90, s55, 1\ns_getreg_b32 s88, hwreg(HW_REG_XCC_ID)\ns_mov_b32 s86, s52\ns_mov_b32 s84, s53')
        fin()
    else: a('s_endpgm')
    pfcode()
    if probe:
        a('L_probe:\ns_cmp_eq_u32 s68, 0\ns_cbranch_scc1 L_end')
        if len(probe) > 2 and probe[2] is not None: a(f's_cmp_eq_u32 s32, {probe[2]}\ns_cbranch_scc0 L_end')
        if len(probe) > 3 and probe[3] is not None: a(f's_cmp_eq_u32 s31, {probe[3]}\ns_cbranch_scc0 L_end')
        a('''s_setprio 0
             s_sleep 127
             s_sleep 127
             s_sleep 127
             s_sleep 127
             s_sleep 127
             L_probe_l:
             s_memrealtime s[66:67]
             s_waitcnt lgkmcnt(0)
             s_sub_u32 s66, s66, s64
             s_cmp_lt_u32 s66, 3000
             s_cbranch_scc1 L_probe_l
             s_endpgm''')
    if diag or lite:
        a(f'''L_dump:
              s_mov_b64 exec, -1
              s_waitcnt vmcnt(0) lgkmcnt(0)
              s_memrealtime s[94:95]
              s_lshl_b32 s48, s2, 4
              s_add_u32 s48, s48, s31
              s_lshl_b32 s48, s48, 6
              s_add_u32 s48, s48, {STAMP_OFF}
              v_mov_b32 v1, s48
              s_waitcnt lgkmcnt(0)''')
        for i in range(16): a(f'v_mov_b32 v{8+i}, s{64+2*i}')
        a('s_mov_b64 exec, 1')
        for i in range(4): a(f'global_store_dwordx4 v1, v[{8+4*i}:{11+4*i}], s[28:29] offset:{16*i}')
    a('L_end:\ns_endpgm\nL_code_end:')
    head = open('adaLN_cond__sliding_block_cached__dense_activation_silu__decode.s.ref').read().split('; Override launch')[0]
    return head + f'''; @launch grid=(256,1,1) block=(1024,1,1) lds={L_END}
{DOC.rstrip()}
.amdgcn_target "amdgcn-amd-amdhsa--gfx950"
.text
.globl {KN}
{'.p2align 12' if paged else ''}
.p2align 8
.type {KN},@function
''' + annotate(a.text()) + f'''.section .rodata,"a"
.p2align 6
.amdhsa_kernel {KN}
  .amdhsa_next_free_vgpr 128
  .amdhsa_next_free_sgpr {96 if rg is None else 102}
  .amdhsa_accum_offset 128
  .amdhsa_group_segment_fixed_size 0
  .amdhsa_kernarg_size 104
  .amdhsa_user_sgpr_count 2
  .amdhsa_user_sgpr_kernarg_segment_ptr 1
  .amdhsa_system_sgpr_workgroup_id_x 1
.end_amdhsa_kernel
'''

if __name__ == '__main__':
    out = sys.argv[1]
    kw = eval('dict(' + (sys.argv[2] if len(sys.argv) > 2 else '') + ')')
    open(out, 'w').write(gen(**kw))
```

```python
import sys, struct
sys.path.insert(0, 'work')
from asmlib import Asm

KN = 'adaLN_cond__sliding_block_cached__dense_activation_silu__decode_kernel'
X2, X2F, HINT, PRB, X1, X4, X5, X3, X3F, WSEND = 0x4000, 0x8000, 0xC000, 0x80000, 0x18000, 0x30000, 0x40000, 0xA0000, 0x100000, 0x160000
SIDE = 0x2000
STAMP_OFF = 0x180000
L_Q, L_M, L_C, L_L, L_Z, L_O, L_PRIV, L_P, L_END = 0x0, 0x800, 0x810, 0x840, 0x900, 0x1000, 0x5000, 0x5800, 0x6100
FM = 0x300
FZ, FC, FP, FP2, FST, FX, FG, FA, FH = 0x0, 0x240, 0x1000, 0x1800, 0x2000, 0x3000, 0x3800, 0x4000, 0x2100
WINOFF = (65536 - 4096) * 512

DOC = """;
"""
def f2u(x): return struct.unpack('<I', struct.pack('<f', x))[0]
LOG2E = 1.4426950408889634
DPPF = 'row_mask:0xf bank_mask:0xf'

CM = {'L_A': 'attention CUs: waves 0..7 start their K loads inside the first fetched lines', 'L_a_u': 'CUs whose modulation task is on the path to q let its loads go first', 'L_Td': 'waves 8..15 of the attention CUs; waves 12..15 clear the first 4 KB of LDS (q slot, max, counters, zero rows)', 'L_mod': 'modulation task: 112 rows x 64 columns of w_mod, raw rows as B operand, silu(c) on a diagonal A operand', 'L_F': 'front CUs: wq loads', 'L_a_c': 'attention: lane constants, then the paced K and V loads', 'L_a_q': 'attention: wait for q in LDS, scores (diagonal blocks of K x q), CU-wide max, exp, P x V, combine the waves, publish', 'L_T': 'tail waves: set-up, q poller (wave 8)', 'L_wo': 'wo block: weights after the V loads, gather the 24 partials of the head, rescale, multiply, publish', 'L_F2': 'front CUs: LayerNorm(x), gather shift / scale, h, q', 'L_q_done': 'FFN block: remaining modulation values, weights, constant products c1 @ w1 and sb @ w1', 'L_x4': 'FFN: gather the 16 head products, residual, (x2 * c1) @ w1 and statistics, then h1 @ w2', 'L_F7': 'wave 7 of the front CUs: weight gate, LayerNorm + SiLU between the products, final reduction', 'L_F8': 'wave 8 of the front CUs: which memory side answers faster', 'L_pf': 'idle waves of CUs without a wo block pull the FFN weights into L2'}
def annotate(t):
    return ''.join((f'; ---- {CM[l[:-1]]}\n' if l[:-1] in CM else '') + l + '\n' for l in t.rstrip('\n').split('\n'))

def gen(W=5, WH=6, WK=3, WKH=4, N0=2, WE=7, NE=6, NL=4, adapt=True, diag=False, lite=False, probe=None, sleep=8, nt=' nt', w1nt='', wont=' nt',
        rewarm=True, gaten=8, hintk=16, hintpos=7, touchpos=2, spinbits=20, fastbits=6, prio=True, pprio=3, nprb=5,
        fside=None, nob=False, fpf=8, tbl=1, only=None, lk=0, LW=(5, 6, 7, 6), WR=None, pf3=True, wolate=False, fdelay=0, wopf=0, wolanes=32, fB3=0, fB3p=0, fB4=(12, 12), fM=True, tlb=False, mxe=False, dirty=0, epe=True, wopf2=0, peel=False, nwo=42, nmid=48, ldef=True, est=False, al={'L_x3': 0, 'L_x4': 2, 'L_x5': 3}, pads='', paged=True, pvf=True, wopf3=0, vpf=0, vpfk=8, vpffl='', hk3=4, nw3=True, nw4=True, nw2=False, pfnt='', gsl=0, w2nt=' nt', x5o=0, d5=9, pt5=True, lsl={}, bo={}, ofl='', opt=True, bev=4, x5w=None, rg=None, tm=0, ord2=True, bsl=24, bsn=-1, dbl={}, skz=('L_x3', 'L_x4', 'L_x5'), fX3=0, fX4=0, fA=(0, 0), half=True):
    a = Asm()
    rare = []
    STEP = 1 << (32 - spinbits)
    role = ['all']
    PH = {('att', 6), ('wo', 6), ('F', 8), ('F', 12)}
    def stamp(i):
        if (diag and (only is None or i == 0 or (role[0], i) in only)) or (lite and i in (0, 14)): a(f's_memrealtime s[{64+2*i}:{65+2*i}]')
        if probe and probe[0] == role[0] and probe[1] == i: a('s_memrealtime s[64:65]\ns_mov_b32 s68, 1')
    def xs(name):
        if diag and only and name in only: a('s_memrealtime s[84:85]')
        if diag and only and 'clk' in only and name in ('B3', 'mm2'):
            k = 1 if name == 'B3' else 3
            a(f's_memrealtime s[{64+2*k}:{65+2*k}]\ns_memtime s[{66+2*k}:{67+2*k}]')
            if name == 'B3': a('s_waitcnt lgkmcnt(0)')
    def align(k):
        if k in al:
            a('.p2align 6')
            for _ in range(al[k] + (2 if k != 'S' and not diag else 0)): a('s_nop 0')
    npad = {}
    def pad(k, last=False):
        if k not in pads: return
        i = npad.get(k, 0); npad[k] = i + 1
        a(f'L_pad{k}{i}:\ns_cbranch_execz L_pad{k}' + ('r' if last else str(i + 1)))
    def hop(k):
        if k in pads: a(f's_mov_b64 exec, 0\ns_branch L_pad{k}0\nL_pad{k}r:\ns_mov_b64 exec, -1')
    def fill(n, r):
        if r == 62:
            for _ in range(n): a('v_mfma_f32_16x16x32_bf16 v[72:75], v[16:19], v[16:19], 0')
        elif r == 63:
            for _ in range(n): a('v_mfma_f32_16x16x32_bf16 v[88:91], v[16:19], v[16:19], 0')
        elif fM and r == 9:
            for _ in range((n + 2) // 4): a('v_mfma_f32_16x16x32_bf16 v[116:119], v[16:19], v[16:19], 0')
        else:
            for _ in range(n): a(f'v_mov_b32 v{r}, 0')
    def fin(): a('s_branch L_dump' if diag else 's_branch L_probe' if probe else 's_endpgm')
    def setprio(n):
        if prio: a(f's_setprio {n}')
    def tags():
        a('''s_add_u32 s30, s30, 1
             s_and_b32 s34, s30, 0x7f
             s_xor_b32 s35, s34, 0x5a
             s_lshl_b32 s3, s35, 8
             s_or_b32 s3, s3, s34''')
    def ws_srd():
        a(f'''s_mov_b32 s44, s28
              s_mov_b32 s45, s29
              s_mov_b32 s46, {WSEND}
              s_mov_b32 s47, 0x20000''')
    def lanetag(d, bit):
        a(f'''v_bfe_u32 v{d}, v0, {bit}, 1
              v_mul_u32_u24 v{d}, 0x5a, v{d}
              v_xor_b32 v{d}, s34, v{d}''')
    def rowtag(m, t):
        lanetag(t, 2)
        a(f'''v_and_b32 v{m}, 3, v0
              v_cmp_eq_u32 vcc, 0, v{m}
              v_mov_b32 v{m}, 0xffffff00
              v_cndmask_b32 v{t}, 0, v{t}, vcc
              v_cndmask_b32 v{m}, -1, v{m}, vcc''')
    def spin(loop, done):
        a(f'''s_cbranch_vccz {done}
              s_add_u32 s62, s62, {STEP}
              s_cbranch_scc0 {loop}
              {done}:''')
    def ldswait(lbl, off, n, sl, z=100):
        if not n: return
        a(f'v_mov_b32 v{z}, 0\ns_mov_b32 s62, 0\n{lbl}:')
        if sl: a(f's_sleep {sl}')
        a(f'''ds_read_b32 v{z+1}, v{z} offset:{off}
              s_waitcnt lgkmcnt(0)
              v_cmp_gt_u32 vcc, {n}, v{z+1}''')
        spin(lbl, lbl + 'ok')
    def gather(lbl, loads, raw, masks, vt, spec='', switch=None, nfast=0, issued=False, warm=None):
        n = len(loads)
        a('s_mov_b32 s62, 0')
        if switch: a(f's_mov_b32 s63, {(1 << 32) // nfast}')
        if issued:
            a(f's_branch {lbl}_w')
            if paged and lbl == 'L_x4': a('.p2align 12')
            align(lbl)
        else:
            for i in range(n): a(f's_mov_b64 s[{masks+2*i}:{masks+2*i+1}], -1')
        a(f'{lbl}:')
        if lbl in lsl: a(f's_sleep {lsl[lbl]}')
        for i, l in enumerate(loads):
            if lbl in skz: a(f's_wqm_b64 exec, s[{masks+2*i}:{masks+2*i+1}]\ns_cbranch_scc0 {lbl}_z{i}\n{l}\n{lbl}_z{i}:')
            else: a(f's_wqm_b64 exec, s[{masks+2*i}:{masks+2*i+1}]\n{l}')
        for sl in dbl.get(lbl, ()):
            a(f's_sleep {sl}')
            for i, l in enumerate(loads): a(f's_wqm_b64 exec, s[{masks+2*i}:{masks+2*i+1}]\n{l}')
        a(f'''s_mov_b64 exec, -1
              s_add_u32 s62, s62, {'s63' if switch else STEP}
              s_cbranch_scc1 {lbl}_r''')
        if lbl in bo:
            T, k = bo[lbl]
            a(f's_bcnt1_i32_b64 s26, s[{masks}:{masks+1}]')
            for i in range(1, n): a(f's_bcnt1_i32_b64 s27, s[{masks+2*i}:{masks+2*i+1}]\ns_add_u32 s26, s26, s27')
            a(f's_cmp_gt_u32 s26, {T}\ns_cbranch_scc0 {lbl}_w\ns_sleep {k}')
        if warm: fill(*warm)
        a(f'{lbl}_w:\ns_waitcnt vmcnt(0)')
        for i in range(n): a(f'v_cmp_ne_u32_sdwa s[{masks+2*i}:{masks+2*i+1}], v{raw+4*i}, v{vt} src0_sel:BYTE_0 src1_sel:DWORD')
        a(spec)
        a(f's_or_b64 vcc, s[{masks}:{masks+1}], s[{masks+2}:{masks+3}]')
        for i in range(2, n): a(f's_or_b64 vcc, vcc, s[{masks+2*i}:{masks+2*i+1}]')
        a(f's_cbranch_scc1 {lbl}\n{lbl}_ok:')
        def r():
            a(f'{lbl}_r:')
            if switch:
                a(f's_cmp_eq_u32 s63, {STEP}\ns_cbranch_scc1 {lbl}_x\ns_mov_b32 s63, {STEP}\n{switch}\ns_branch {lbl}_w\n{lbl}_x:')
            a(f's_waitcnt vmcnt(0)\ns_mov_b64 vcc, 0\ns_branch {lbl}_ok')
        rare.append(r)
    def poll4(lbl, loads, raw, t, sl=0, issued=False):
        a(f'''v_mov_b32 v{t+2}, 0
              ds_read_b32 v{t+3}, v{t+2} offset:{FC+12}
              s_and_b32 s4, s34, 3
              s_and_b32 s5, s35, 3
              s_mov_b32 s62, 0
              s_waitcnt lgkmcnt(0)''')
        if issued: a(f's_branch {lbl}_w')
        a(f'{lbl}:\nv_add_u32 v{t+1}, v7, v{t+3}')
        if sl: a(f's_sleep {sl}')
        for l in loads: a(l)
        a(f'ds_read_b32 v{t+3}, v{t+2} offset:{FC+12}\n{lbl}_w:\ns_waitcnt vmcnt(0) lgkmcnt(0)')
        n = 4 * len(loads)
        for k in range(n): a(f'v_xor_b32 v{raw+k}, s{4+(k&1)}, v{raw+k}')
        a(f'v_or_b32 v{t}, v{raw}, v{raw+1}')
        for k in range(2, n, 2): a(f'v_or3_b32 v{t}, v{t}, v{raw+k}, v{raw+k+1}')
        a(f'v_and_b32 v{t}, 3, v{t}\nv_cmp_ne_u32 vcc, 0, v{t}')
        spin(lbl, lbl + '_ok')
    def pk(op, d, x, y): a(f'v_pk_{op}_f32 v[{d}:{d+1}], v[{x}:{x+1}], v[{y}:{y+1}]')
    def rscatter(r):
        a(f'v_permlane32_swap_b32 v{r}, v{r+2}\nv_permlane32_swap_b32 v{r+1}, v{r+3}')
        pk('add', r, r, r + 2)
        a(f'v_permlane16_swap_b32 v{r}, v{r+1}\nv_add_f32 v{r}, v{r}, v{r+1}')
    def rnd(d, s): a(f'v_cvt_pk_bf16_f32 {d}, 0, {s}')
    def allred_rows(op, r, t):
        a(f'''v_mov_b32 v{t}, v{r}
              v_permlane32_swap_b32 v{r}, v{t}
              {op} v{r}, v{r}, v{t}
              v_mov_b32 v{t}, v{r}
              v_permlane16_swap_b32 v{r}, v{t}
              {op} v{r}, v{r}, v{t}''')
    def perm_sel(): a('s_mov_b32 s60, 0x05040100\ns_mov_b32 s61, 0x07060302')
    def perms64(raw, dst):
        for tau in range(4):
            for rho in range(4):
                a(f'v_perm_b32 v{dst+4*tau+rho}, v{raw+2*(2*rho+1)+(tau>>1)}, v{raw+2*(2*rho)+(tau>>1)}, s{60+(tau&1)}')
    def fix4(raw, t):
        for u0 in (0, 2):
            for i in range(2): a(f'v_pk_mov_b32 v[{t+2*i}:{t+2*i+1}], v[{raw+4*(u0+i)+2}:{raw+4*(u0+i)+3}], v[{raw+4*(u0+i)+2}:{raw+4*(u0+i)+3}] op_sel:[0,1]')
            rs = [raw + 4 * u + d for u in (u0, u0 + 1) for d in (0, 1)]
            for i, r in enumerate(rs): a(f'v_mov_b32_dpp v{r+2}, v{r} row_ror:8 row_mask:0xf bank_mask:0x3')
            for i, r in enumerate(rs): a(f'v_mov_b32_dpp v{r}, v{t+i} row_ror:8 row_mask:0xf bank_mask:0xc')
    def voff4(d, gstride, stride, t):
        a(f'''v_lshrrev_b32 v{t}, 4, v0
              v_mul_u32_u24 v{d}, {gstride}, v{t}
              v_bfe_u32 v{t}, v0, 3, 1
              v_mul_u32_u24 v{t}, {stride}, v{t}
              v_add_u32 v{d}, v{d}, v{t}
              v_and_b32 v{t}, 7, v0
              v_lshl_add_u32 v{d}, v{t}, 4, v{d}''')
    def maskaddr(dst, n, base, zero, t):
        a(f'''v_lshrrev_b32 v{t}, 4, v0
              v_lshlrev_b32 v{t}, 4, v{t}
              v_add_u32 v{t}, {base}, v{t}
              v_and_b32 v{t+1}, {n-1}, v0
              v_mov_b32 v{t+2}, {zero}''')
        for tau in range(n):
            a(f'v_cmp_eq_u32 vcc, {tau}, v{t+1}')
            a(f'v_cndmask_b32 v{dst+tau}, v{t+2}, v{t}, vcc')
    def silu(d, x, t, p=None):
        a(f'''v_mul_f32 v{t}, {hex(f2u(-LOG2E))}, v{x}
              v_exp_f32 v{t}, v{t}''')
        if p: pad(p)
        a(f'''v_add_f32 v{t}, 1.0, v{t}
              v_rcp_f32 v{t}, v{t}
              v_mul_f32 v{t}, v{x}, v{t}''')
        rnd(f'v{d}', f'v{t}')
    def silu_fine(d, x, t):
        L = struct.unpack('<f', struct.pack('<f', -LOG2E))[0]
        a(f'''s_mov_b32 s58, {hex(f2u(L))}
              v_mul_f32 v{t}, s58, v{x}
              v_fma_f32 v{t+1}, v{x}, s58, -v{t}
              v_fmac_f32 v{t+1}, {hex(f2u(-LOG2E - L))}, v{x}
              v_min_f32 v{t}, 0x42fc0000, v{t}
              v_exp_f32 v{t}, v{t}
              v_mul_f32 v{t+1}, {hex(f2u(0.6931471805599453))}, v{t+1}
              v_fmac_f32 v{t}, v{t}, v{t+1}
              v_add_f32 v{t}, 1.0, v{t}
              v_rcp_f32 v{t+1}, v{t}
              v_mul_f32 v{t+2}, v{x}, v{t+1}
              v_fma_f32 v{t}, -v{t+2}, v{t}, v{x}
              v_fmac_f32 v{t+2}, v{t}, v{t+1}''')
        rnd(f'v{d}', f'v{t+2}')
    def ln_apply(s1, s2, x, t):
        a(f'''v_mul_f32 v{t}, v{s1}, v{s1}
              v_fma_f32 v{t+1}, v{s1}, v{s1}, -v{t}
              v_fma_f32 v{t}, v{s2}, s59, -v{t}
              v_sub_f32 v{t}, v{t}, v{t+1}
              v_mul_f32 v{t}, {hex(f2u(1/448/448))}, v{t}
              v_max_f32 v{t}, 0, v{t}''')
        rnd(f'v{t}', f'v{t}')
        a(f'v_add_f32 v{t}, {hex(f2u(1e-5))}, v{t}')
        rnd(f'v{t}', f'v{t}')
        a(f'v_sqrt_f32 v{t}, v{t}\nv_mul_f32 v{t+1}, {hex(f2u(1/448))}, v{s1}')
        rnd(f'v{t}', f'v{t}'); rnd(f'v{t+1}', f'v{t+1}')
        a(f'v_rcp_f32 v{t+2}, v{t}\nv_sub_f32 v{t+1}, v{x[1]}, v{t+1}')
        rnd(f'v{t+1}', f'v{t+1}')
        a(f'''v_mul_f32 v{t+3}, v{t+1}, v{t+2}
              v_fma_f32 v{t}, -v{t+3}, v{t}, v{t+1}
              v_fmac_f32 v{t+3}, v{t}, v{t+2}''')
        rnd(f'v{x[0]}', f'v{t+3}')
    def mma(n, acc, A, B, left=0, first=True, wait=True):
        for i in range(n):
            if wait: a(f's_waitcnt lgkmcnt({0 if (diag and only is None) else n-1-i+left})')
            a(f'v_mfma_f32_16x16x32_bf16 v[{acc}:{acc+3}], v[{A+4*i}:{A+4*i+3}], v[{B+4*i}:{B+4*i+3}], ' + ('0' if i == 0 and first else f'v[{acc}:{acc+3}]'))
    def mma2(acc, A, B, left=0, first=True, wait=True, mid=None):
        for par in range(2):
            if wait: a(f's_waitcnt lgkmcnt({0 if (diag and only is None) else 1-par+left})')
            for hi in range(2):
                d = acc + 4 * hi; b = B + 4 * (2 * hi + par)
                a(f'v_mfma_f32_16x16x32_bf16 v[{d}:{d+3}], v[{A+4*par}:{A+4*par+3}], v[{b}:{b+3}], ' + ('0' if par == 0 and first else f'v[{d}:{d+3}]'))
                if mid and par == 0 and hi == 0: a(mid)
    def sumrows(n, ldsoff, va, first=None, shadow=None):
        o = ldsoff // 256
        for u in range(n // 2): a(f'ds_read2st64_b32 v[{16+2*u}:{17+2*u}], v{va} offset0:{o+2*u} offset1:{o+2*u+1}')
        if n & 1: a(f'ds_read_b32 v22, v{va} offset:{ldsoff+256*(n-1)}\nv_mov_b32 v23, 0')
        if shadow: a(shadow)
        a('s_waitcnt lgkmcnt(0)')
        if first: a(first)
        pk('add', 16, 16, 18); pk('add', 20, 20, 22); pk('add', 16, 16, 20)
        a('v_add_f32 v16, v16, v17')

    def getside(t):
        a(f'''v_mov_b32 v{t}, 0
              ds_read_b32 v{t}, v{t} offset:{FC+12}
              s_waitcnt lgkmcnt(0)
              v_readfirstlane_b32 s48, v{t}''')
    def dzero():
        if diag:
            for i in range(1, 16): a(f's_mov_b32 s{64+2*i}, 0')
    K0, V0, RT = 8, 56, 96
    a(f'{KN}:')
    if probe: a('s_mov_b32 s68, 0')
    stamp(0)
    a(f'''s_load_dwordx16 s[4:19], s[0:1], 0
          s_load_dwordx8 s[20:27], s[0:1], 64
          s_load_dwordx2 s[28:29], s[0:1], 96
          v_readfirstlane_b32 s31, v0
          s_and_b32 s32, s2, 7
          s_lshr_b32 s33, s2, 3
          s_lshr_b32 s31, s31, 6
          s_sub_u32 s33, s33, 8
          s_cbranch_scc0 L_A''')
    a(f'''s_getpc_b64 s[48:49]
          L_pc:
          v_lshlrev_b32 v2, 7, v0
          v_min_u32 v2, L_code_end-L_pc-4, v2
          global_load_dword v127, v2, s[48:49]
          s_branch L_F
          L_A:
          s_cmp_ge_u32 s31, 8
          s_cbranch_scc1 L_Td
          s_cmp_ge_u32 s33, 17
          s_cbranch_scc1 L_a_u
          L_att:''')
    role[0] = 'att'
    if tbl < 2:
        ta, tb, tc, td = ((5, 16, 17, 42), (4, 13, 15, 43))[tbl]; bias = 0
        a(f'''s_mul_i32 s50, s33, {ta}
              s_add_u32 s51, s50, 6
              s_min_u32 s50, s50, {tb}
              s_min_u32 s51, s51, {tc}
              s_mul_i32 s49, s33, {td}
              L_att2:
              s_add_u32 s50, s50, s31''')
    else:
        bias = 14 * nwo - 1
        a(f'''s_sub_u32 s50, s33, 14
              s_cselect_b32 s51, {nwo - 40}, {nmid - 40}
              s_cselect_b32 s49, {nwo}, {nmid}
              s_mul_i32 s49, s49, s50
              L_att2:
              s_add_u32 s50, s31, 1''')
    if tm == 0:
        a('''s_min_u32 s48, s50, s51
             s_add_u32 s48, s48, s49
             s_mul_i32 s49, s31, 5
             s_add_u32 s48, s48, s49''')
    else:
        assert tbl == 1 and rg is not None
        a('s_add_u32 s48, s50, s49')
    if rg is None:
        a(f'''s_lshl_b32 s49, s32, 14
              s_add_u32 s48, s48, s49
              s_addk_i32 s48, {WINOFF // 2048 + 2 + bias}
              s_lshl_b32 s48, s48, 11''')
    else:
        a(f'''s_mul_i32 s49, s32, {rg}
              s_add_u32 s48, s48, s49''')
        if bias: a(f's_addk_i32 s48, {bias}')
        if tm == 0: a(f's_lshl_b32 s{RT}, s48, 11\ns_add_u32 s{RT+1}, s{RT}, 2048')
        elif tm == 1: a(f's_lshl_b32 s{RT+1}, s48, 11\ns_add_u32 s{RT}, s{RT+1}, {40*2048}')
        else: a(f's_lshl_b32 s{RT}, s48, 11\ns_add_u32 s{RT}, s{RT}, {40*2048}\ns_add_u32 s48, s48, s31\ns_lshl_b32 s{RT+1}, s48, 11')
        a(f'''              s_and_b32 s{RT}, s{RT}, 0x1fffff
              s_and_b32 s{RT+1}, s{RT+1}, 0x1fffff
              s_lshl_b32 s48, s32, 25
              s_add_u32 s48, s48, {WINOFF}
              s_mov_b32 s38, 0x200000
              s_mov_b32 s39, 0x20000''')
        assert N0 <= 2
    a(f'''          v_and_b32 v2, 12, v0
          v_and_b32 v3, 48, v0
          v_and_b32 v4, 3, v0
          v_lshlrev_b32 v6, 7, v2
          v_lshl_add_u32 v6, v3, 2, v6
          v_lshl_add_u32 v6, v4, 4, v6
          s_waitcnt lgkmcnt(0)
          s_add_u32 s36, s6, s48
          s_addc_u32 s37, s7, 0
          s_cmp_le_u32 s50, s51
          s_cbranch_scc0 L_a_k1''')
    cnt = [0]
    win = [W, WH, WE, NE]
    def kvload(srd, va, base, t, hf, late=False):
        W, WH, WE, NE = win[:4]
        wk, wkh = win[4:] if len(win) > 4 else (WK, WKH)
        w = WH if late else wk if (wk and srd == 36) else W
        if wkh and srd == 36: WH = wkh
        if WE and srd == 40 and 2 * (5 - t) + 1 - hf < NE: a(f's_waitcnt vmcnt({WE-1})')
        elif cnt[0] >= 2 + N0:
            if WH != w: a(f's_waitcnt vmcnt({WH-1})\ns_cbranch_vccnz L_w{cnt[0]}_\ns_waitcnt vmcnt({w-1})\nL_w{cnt[0]}_:')
            else: a(f's_waitcnt vmcnt({w-1})')
        cnt[0] += 1
        r = base + 8 * t + 4 * hf
        b = srd + 2 * (t // 4)
        if rg is not None: a(f'buffer_load_dwordx4 v[{r}:{r+3}], v{va}, s[{srd}:{srd+3}], s{RT+t} offen offset:{hf * 256}{nt}')
        else: a(f'global_load_dwordx4 v[{r}:{r+3}], v{va}, s[{b}:{b+1}] offset:{((t & 3) - 2) * 2048 + hf * 256}{nt}')
    kvload(36, 6, K0, 0, 0); kvload(36, 6, K0, 0, 1)
    a('L_a_k1:')
    kl = [(t, hf) for t in (1, 2, 3) for hf in range(2)]
    for t, hf in kl[:N0]: kvload(36, 6, K0, t, hf)
    a('s_branch L_a_c')
    a('''L_a_u:
         s_cmp_ge_u32 s33, 24
         s_cbranch_scc1 L_end
         s_barrier''')
    if tbl == 2:
        rest = 1024 - 14 * nwo - 3 * nmid; lo = rest // 7; ex = rest - 7 * lo
        assert 40 <= lo and lo + (ex > 0) <= 48
        a(f'''s_sub_u32 s50, s33, 17
              s_mul_i32 s49, s50, {lo}
              s_min_u32 s50, s50, {ex}
              s_cselect_b32 s51, {lo - 39}, {lo - 40}
              s_add_u32 s49, s49, s50
              s_add_u32 s49, s49, {3 * nmid}
              s_branch L_att2''')
    elif tbl: a('s_mov_b32 s50, 64\ns_mov_b32 s51, 63\ns_mul_i32 s49, s33, 40\ns_branch L_att2')
    else: a('s_branch L_att')
    a(f'''L_Td:
          s_cmp_ge_u32 s33, 24
          s_cbranch_scc1 L_end
          s_sub_u32 s50, s33, {14 if tbl == 2 else 0}
          s_cmp_ge_u32 s50, 3
          s_cselect_b32 s50, 9, 0
          s_cmp_eq_u32 s31, s50
          s_cbranch_scc1 L_mod''')
    a(f'''s_cmp_ge_u32 s31, 12
          s_cbranch_scc0 L_T0
          v_mov_b32 v8, {hex(f2u(-3e38))}
          v_cmp_eq_u32 vcc, {768 + L_M // 16}, v0
          v_lshlrev_b32 v2, 4, v0
          v_mov_b32 v9, 0
          v_cndmask_b32 v8, 0, v8, vcc
          v_mov_b32 v11, 0
          v_subrev_u32 v2, {768 * 16}, v2
          v_mov_b32 v10, v8
          ds_write_b128 v2, v[8:11]
          s_waitcnt lgkmcnt(0)''')
    if lk:
        a('''s_lshl_b32 s50, s33, 4
             s_add_u32 s50, s50, s31
             s_cmp_eq_u32 s50, 12
             s_cbranch_scc0 L_T0
             v_mov_b32 v8, 1
             s_mov_b64 exec, 1
             global_atomic_add v9, v8, s[26:27] sc1
             s_mov_b64 exec, -1''')
    a(f'''L_T0:
          s_barrier
          s_branch L_T
          L_mod:''')
    role[0] = 'mod'
    def tail_setup():
        a('s_load_dword s30, s[28:29], 0\ns_sub_u32 s49, s31, 8')
        ws_srd(); perm_sel()
        a(f's_lshl_b32 s56, s49, 8\ns_add_u32 s56, s56, {L_PRIV}')
    a('v_and_b32 v0, 63, v0')
    setprio(3)
    a(f'''s_cmp_ge_u32 s33, 17
          s_cselect_b32 s50, -17, {7 if tbl == 2 else 4}
          s_add_u32 s50, s50, s33
          s_lshl_b32 s50, s50, 3
          s_add_u32 s50, s50, s32
          s_and_b32 s51, s50, 3
          s_lshr_b32 s52, s50, 2
          s_mov_b32 s38, {448*5376}
          s_mov_b32 s39, 0x20000
          s_movk_i32 s42, 896
          s_mov_b32 s43, 0x20000
          s_mul_i32 s54, s51, {112*5376}
          s_lshl_b32 s55, s52, 7
          s_add_u32 s54, s54, s55
          s_mul_i32 s53, s51, 224
          v_lshlrev_b32 v2, 2, v0
          v_lshrrev_b32 v1, 3, v0
          v_mul_u32_u24 v3, {14*5376}, v1
          v_and_b32 v4, 7, v0
          v_lshl_add_u32 v3, v4, 4, v3
          s_waitcnt lgkmcnt(0)
          s_mov_b64 s[36:37], s[22:23]
          s_mov_b64 s[40:41], s[20:21]
          buffer_load_dword v8, v2, s[40:43], s53 offen''')
    for m in range(14):
        a(f'buffer_load_dwordx4 v[{72+4*m}:{75+4*m}], v3, s[36:39], s54 offen{nt}')
        if m < 13: a('s_addk_i32 s54, 5376')
    def fstart():
        a(f'''L_F:
              s_add_u32 s33, s33, 8
              v_and_b32 v0, 63, v0
              s_cmp_ge_u32 s31, 7
              s_cbranch_scc1 L_F7s
              s_lshl_b32 s48, s31, 19
              s_lshl_b32 s49, s32, 10
              s_add_u32 s48, s48, s49
              s_lshl_b32 s49, s33, 7
              s_add_u32 s48, s48, s49
              v_lshrrev_b32 v3, 4, v0
              v_lshlrev_b32 v2, 16, v3
              v_and_b32 v4, 8, v0
              v_lshl_add_u32 v2, v4, 10, v2
              v_and_b32 v5, 7, v0
              v_lshl_add_u32 v2, v5, 4, v2
              v_lshl_add_u32 v5, v5, 4, v4
              v_lshl_add_u32 v6, v3, 1, v5
              s_lshl_b32 s50, s31, 7
              v_add_u32 v101, s50, v6
              v_lshlrev_b32 v7, 4, v0
              s_mov_b32 s38, {448*8192}
              s_mov_b32 s39, 0x20000
              s_movk_i32 s42, 896
              s_mov_b32 s43, 0x20000
              s_waitcnt lgkmcnt(0)
              s_mov_b64 s[36:37], s[10:11]
              s_mov_b64 s[40:41], s[4:5]
              buffer_load_dwordx4 v[96:99], v7, s[40:43], 0 offen
              buffer_load_ushort v100, v101, s[40:43], 0 offen''')
        for u in range(2):
            for t in range(4):
                a(f'buffer_load_dwordx4 v[{32+16*u+4*t}:{35+16*u+4*t}], v2, s[36:39], s48 offen{nt}')
                if not (u == 1 and t == 3): a(f's_addk_i32 s48, {2*8192}' if t < 3 else f's_add_u32 s48, s48, {26*8192}')
            if u == 0: a('s_barrier')
    a('s_barrier')
    if paged:
        a('s_branch L_mod2')
        fstart()
        a(f'''s_branch L_F2
              L_F7s:
              s_cmp_ge_u32 s31, 9
              s_cbranch_scc1 L_F9
              v_mov_b32 v2, 0
              v_lshlrev_b32 v3, 2, v0
              ds_write_b32 v3, v2 offset:{FC & ~255}
              s_waitcnt lgkmcnt(0)
              s_barrier
              s_branch L_F7
              L_F9:
              s_endpgm''')
    def modrest():
        keep = role[0]; role[0] = 'mod'
        if paged: a('L_mod2:')
        dzero(); stamp(1)
        tail_setup()
        a(f'''v_mul_u32_u24 v3, 37, v0
              v_lshrrev_b32 v3, 8, v3
              v_add_u32 v3, v3, v0
              v_lshl_add_u32 v3, v3, 2, s56
              v_lshl_add_u32 v1, v1, 5, s56
              v_and_b32 v9, 1, v0
              v_lshlrev_b32 v9, 4, v9
              v_mov_b32 v10, 0xffff
              v_lshlrev_b32 v9, v9, v10
              v_bfe_u32 v10, v0, 1, 2''')
        for rho in range(4):
            a(f'v_cmp_eq_u32 vcc, {rho}, v10')
            a(f'v_cndmask_b32 v{4+rho}, 0, v9, vcc')
        a('''s_mov_b32 s52, 0x01000100
             s_mov_b32 s53, 0x03020302
             s_waitcnt vmcnt(14)
             v_lshlrev_b32 v9, 16, v8
             v_and_b32 v10, 0xffff0000, v8''')
        silu_fine(9, 9, 12); silu_fine(10, 10, 12)
        a(f'''v_perm_b32 v9, v10, v9, s61
              s_mov_b32 exec_hi, 0xffffff
              ds_write_b32 v3, v9
              s_mov_b32 exec_hi, -1
              ds_read_b128 v[8:11], v1
              ds_read_b96 v[12:14], v1 offset:16
              s_lshr_b32 s51, s50, 5
              s_lshl_b32 s51, s51, 13
              s_lshl_b32 s50, s50, 8
              s_add_u32 s50, s50, s51
              s_add_u32 s50, s50, {X1}
              s_add_u32 s51, s50, {SIDE}
              v_lshrrev_b32 v2, 4, v0
              v_and_b32 v3, 7, v0
              v_lshlrev_b32 v3, 4, v3
              v_lshl_add_u32 v2, v2, 7, v3
              s_waitcnt lgkmcnt(0)''')
        tags()
        for m in range(14):
            a(f'v_perm_b32 v15, v{8+(m>>1)}, v{8+(m>>1)}, s{52+(m&1)}')
            for rho in range(4): a(f'v_and_b32 v{16+4*m+rho}, v15, v{4+rho}')
        a('v_and_b32_e64 v4, s34, 3\nv_and_b32_e64 v5, s35, 3')
        for m in range(14):
            a(f's_waitcnt vmcnt({13-m})')
            a(f'v_mfma_f32_16x16x32_bf16 v[8:11], v[{16+4*m}:{19+4*m}], v[{72+4*m}:{75+4*m}], ' + ('0' if m == 0 else 'v[8:11]'))
        a('''v_pk_mov_b32 v[12:13], v[8:9], v[8:9] op_sel:[0,1]
             v_pk_mov_b32 v[14:15], v[10:11], v[10:11] op_sel:[0,1]''')
        for i in range(4): a(f'v_permlane32_swap_b32 v{8+i}, v{12+i}')
        for i in range(4): a(f'v_add_f32_dpp v{8+i}, v{12+i}, v{8+i} row_ror:8 {DPPF}')
        a('s_mov_b64 exec, 0xff00ff')
        for i in range(4): a(f'v_add_u32 v{8+i}, 2, v{8+i}')
        for i in range(4): a(f'v_and_or_b32 v{8+i}, v{8+i}, -4, v{4+(i&1)}')
        a('buffer_store_dwordx4 v[8:11], v2, s[44:47], s50 offen sc1\nbuffer_store_dwordx4 v[8:11], v2, s[44:47], s51 offen sc1\ns_mov_b64 exec, -1')
        stamp(2)
        setprio(0)
        a('s_cmp_lt_u32 s33, 14\ns_cbranch_scc1 L_t_go2')
        fin()
        role[0] = keep
    if not (paged and ord2): modrest()
    role[0] = 'att'
    a('L_a_c:')
    def setup_att():
        dzero(); stamp(1)
        if lk: a('s_load_dword s56, s[26:27], 0')
        a(f'''s_load_dword s30, s[28:29], 0
              s_cmp_le_u32 s50, s51
              s_cselect_b32 s51, 1, 0
              s_add_u32 s40, s8, s48
              s_addc_u32 s41, s9, 0''')
        if rg is None:
            a('''s_add_u32 s38, s36, 8192
                 s_addc_u32 s39, s37, 0
                 s_add_u32 s42, s40, 8192
                 s_addc_u32 s43, s41, 0''')
        else:
            a('s_mov_b32 s42, 0x200000\ns_mov_b32 s43, 0x20000')
            for t in range(2, 6):
                if tm == 2 and t == 5: a(f's_sub_u32 s{RT+5}, s{RT}, {8*2048}')
                else: a(f's_add_u32 s{RT+t}, s{RT+t-1}, {2048 * ((1, 8, (1, 15)[t & 1])[tm])}')
                a(f's_and_b32 s{RT+t}, s{RT+t}, 0x1fffff')
        a(f'''              s_cmp_ge_u32 s33, 17
              s_cbranch_scc1 L_a_nb2
              s_barrier
              L_a_nb2:
              v_and_b32 v0, 63, v0
              v_and_b32 v5, 15, v0
              v_lshlrev_b32 v7, 5, v3
              v_lshl_add_u32 v7, v5, 4, v7
              v_bfe_u32 v2, v0, 3, 1
              v_lshlrev_b32 v1, 10, v2
              v_lshl_add_u32 v1, v3, 3, v1
              v_lshl_add_u32 v1, v4, 5, v1
              v_and_b32 v104, 1, v0
              v_lshlrev_b32 v104, 4, v104
              v_mov_b32 v105, 0xffff
              v_lshlrev_b32 v104, v104, v105
              v_bfe_u32 v105, v0, 1, 2''')
        for rho in range(4):
            a(f'v_cmp_eq_u32 vcc, {rho}, v105')
            a(f'v_cndmask_b32 v{2+rho}, 0, v104, vcc')
        ws_srd(); perm_sel()
        a(f'''s_mov_b32 s58, {hex(f2u(0.0625 * LOG2E))}
              s_bfe_u32 s57, s31, 0x10001
              s_lshl_b32 s49, s32, 1
              s_add_u32 s54, s57, s49
              s_mul_i32 s54, s54, 24
              s_add_u32 s54, s54, s33
              s_lshl_b32 s54, s54, 10
              s_lshr_b32 s49, s31, 2
              s_lshl_b32 s49, s49, 9
              s_add_u32 s54, s54, s49
              s_and_b32 s49, s31, 1
              s_lshl_b32 s49, s49, 8
              s_add_u32 s54, s54, s49
              s_add_u32 s55, s54, {X3F}
              s_add_u32 s54, s54, {X3}
              s_mul_i32 s59, s32, 24
              s_add_u32 s59, s59, s33
              s_lshl_b32 s59, s59, 7
              s_add_u32 s59, s59, {HINT}
              v_lshlrev_b32 v104, 2, v0
              s_mov_b32 s48, s51
              s_mov_b32 s49, 0
              s_mov_b64 vcc, s[48:49]''')
    setup_att()
    vl = [(t, hf) for t in range(1, 6) for hf in range(2)]
    late = vl[10 - NL:]
    assert 2 * (6 - touchpos) >= NL and NL <= 4 and hintpos == 7 and WE and NE >= NL and (not lk or LW[2] == WE)
    for t, hf in kl[N0:]: kvload(36, 6, K0, t, hf)
    a('s_waitcnt lgkmcnt(0)')
    tags()
    hop('a')
    def paced(x):
        for t in range(4, 6): kvload(36, 6, K0, t, 0); kvload(36, 6, K0, t, 1)
        stamp(2)
        a(f's_cmp_eq_u32 s51, 0\ns_cbranch_scc0 L_a_v0{x}')
        for i in range(4): a(f'v_mov_b32 v{K0+i}, {hex(f2u(-1e30))}')
        a(f's_branch L_a_v1{x}\nL_a_v0{x}:')
        kvload(40, 7, V0, 0, 0); kvload(40, 7, V0, 0, 1)
        a(f'L_a_v1{x}:')
        for t in range(1, 6):
            if t == touchpos:
                a('buffer_load_dword v6, v104, s[44:47], s55 offen sc1')
            for hf in range(2):
                if (t, hf) not in late: kvload(40, 7, V0, t, hf)
    if lk:
        if diag: a('s_add_u32 s82, s56, 1')
        a(f's_cmp_ge_u32 s56, {lk}\ns_cbranch_scc1 L_a_pl')
        def pl():
            keep = list(win); win[:] = LW
            a('L_a_pl:'); paced('l'); a('s_branch L_a_pd')
            win[:] = keep
        rare.append(pl)
    paced('')
    a('L_a_pd:')
    def count(off): a(f's_mov_b64 exec, 1\nds_inc_u32 v0, v2 offset:{off}\ns_mov_b64 exec, -1')
    def lateload(k):
        i = k - (4 - NL)
        if i < 0: return
        if adapt: a(f's_cmp_gt_u32 s63, {i}\ns_cbranch_scc1 L_a_l{i}')
        kvload(40, 7, V0, *late[i], late=True)
        if i == NL - 1: vdone('a')
        if adapt: a(f'L_a_l{i}:')
    def vdone(sfx):
        stamp(3); count(L_C)
        if hintpos == 7 and hintk:
            a(f'''s_cmp_eq_u32 s31, 0
                  s_cbranch_scc0 L_a_nh{sfx}
                  v_mov_b32 v114, s3
                  s_mov_b64 exec, 1
                  buffer_store_dword v114, v0, s[44:47], s59 offen
                  s_mov_b64 exec, -1
                  L_a_nh{sfx}:''')
    if not NL: vdone('a')
    a('s_mov_b32 s62, 0\ns_mov_b32 s63, 0')
    stamp(8)
    if paged:
        a('s_branch L_a_q0')
        if ord2: modrest()
        a('.p2align 12\nL_a_q0:')
    align('Q')
    setprio(2)
    a(f'''L_a_q:
          ds_read_b128 v[104:107], v1 offset:{L_Q}
          ds_read_b128 v[108:111], v1 offset:{L_Q+16}
          ds_read_b128 v[112:115], v1 offset:{L_Q+512}
          ds_read_b128 v[116:119], v1 offset:{L_Q+528}
          s_waitcnt lgkmcnt(0)
          v_bitop3_b32 v120, v104, v108, s3 bitop3:0x7e
          v_bitop3_b32 v121, v112, v116, s3 bitop3:0x7e
          v_or_b32 v121, v120, v121
          v_cmp_ne_u32_sdwa vcc, v121, 0 src0_sel:WORD_0 src1_sel:DWORD''')
    for i in range(8): a(f'v_perm_b32 v{120+i}, v{105+2*i}, v{104+2*i}, s61')
    a('s_cbranch_vccnz L_a_qr\nL_a_qok:')
    def qrare():
        a('L_a_qr:')
        if adapt:
            for i in range(NL):
                a(f's_cmp_eq_u32 s63, {i}\ns_cbranch_scc0 L_a_qr{i}')
                keep = win[2]; win[2] = WR or keep
                kvload(40, 7, V0, *late[i], late=True)
                win[2] = keep
                if i == NL - 1: vdone('b')
                a(f's_mov_b32 s63, {i+1}\ns_branch L_a_q\nL_a_qr{i}:')
        a(f'''s_sleep 1
              s_add_u32 s62, s62, {STEP}
              s_cbranch_scc0 L_a_q
              s_branch L_a_qok''')
    rare.append(qrare)
    stamp(4)
    def qk(t, hf):
        k = K0 + 8 * t; tmp = 104 + 4 * (t & 3)
        if hf == 0: a(f'v_mfma_f32_16x16x32_bf16 v[{tmp}:{tmp+3}], v[{k}:{k+3}], v[120:123], 0')
        else: a(f'v_mfma_f32_16x16x32_bf16 v[{k}:{k+3}], v[{k+4}:{k+7}], v[124:127], v[{tmp}:{tmp+3}]')
    def step(t, i):
        if t < 0 or t > 5: return
        k = K0 + 8 * t
        if i == 0: a(f'v_mov_b32_dpp v{k+4}, v{k} quad_perm:[0,0,0,0] {DPPF}')
        else: a(f'v_add_f32_dpp v{k+4}, v{k+i}, v{k+4} quad_perm:[{i},{i},{i},{i}] {DPPF}')
    lateload(0)
    if WE: a(f's_waitcnt vmcnt({11 - NL})')
    a('s_cmp_eq_u32 s51, 0\ns_cbranch_scc1 L_a_qk1')
    qk(0, 0); qk(0, 1)
    a('L_a_qk1:')
    fl = ['v_mov_b32 v1, 0', 's_mov_b32 s62, 0', 's_lshl_b32 s48, s57, 3', 's_lshl_b32 s49, s31, 2']
    for t in range(1, 6):
        qk(t, 0); step(t - 3, 0); step(t - 4, 2)
        if t < 3: a(fl.pop(0))
        qk(t, 1); step(t - 3, 1); step(t - 4, 3)
        if t < 3: a(fl.pop(0))
        if t == 3: lateload(1)
    lateload(2)
    step(2, 2); step(3, 0); step(4, 0); step(2, 3); step(3, 1); step(4, 1)
    S = [K0 + 8 * t + 4 for t in range(6)]
    rnd(f'v{S[0]}', f'v{S[0]}')
    if WE: a(f's_waitcnt vmcnt({2 * (6 - touchpos) - 1})')
    a('v_and_b32 v6, 8, v0')
    step(5, 0); step(3, 2); step(4, 2); step(5, 1); step(3, 3); step(4, 3); step(5, 2)
    rnd(f'v{S[1]}', f'v{S[1]}'); rnd(f'v{S[2]}', f'v{S[2]}')
    step(5, 3)
    rnd(f'v{S[3]}', f'v{S[3]}'); rnd(f'v{S[4]}', f'v{S[4]}')
    a(f'v_max3_f32 v112, v{S[0]}, v{S[1]}, v{S[2]}')
    rnd(f'v{S[5]}', f'v{S[5]}')
    a(f'''v_max3_f32 v112, v112, v{S[3]}, v{S[4]}
          s_mov_b32 exec_lo, 0x01010101
          s_mov_b32 exec_hi, 0x01010101
          v_max_f32 v112, v112, v{S[5]}
          ds_max_f32 v6, v112 offset:{L_M}
          s_mov_b64 exec, 1
          ds_inc_u32 v0, v2 offset:{L_C+4}
          s_mov_b64 exec, -1
          v_mov_b32 v117, s48''')
    lateload(3)
    a(f'''L_a_s1:
          ds_read_b32 v113, v1 offset:{L_C+4}
          ds_read_b32 v112, v6 offset:{L_M}
          ds_read_b32 v116, v117 offset:{L_M}
          s_waitcnt lgkmcnt(0)
          v_cmp_ne_u32 vcc, 8, v113
          v_mul_f32 v112, s58, v112''')
    order = [1, 0, 2, 3, 4, 5]
    for t in order: a(f'v_fma_f32 v{S[t]+2}, v{S[t]}, s58, -v112')
    a('s_cbranch_vccnz L_a_s1r\nL_a_s1ok:')
    rare.append(lambda: a(f'L_a_s1r:\ns_add_u32 s62, s62, {STEP}\ns_cbranch_scc0 L_a_s1\ns_branch L_a_s1ok'))
    stamp(5)
    for t in order: a(f'v_exp_f32 v{S[t]}, v{S[t]+2}')
    def abuild(t):
        k = K0 + 8 * t
        a(f'v_cvt_pk_bf16_f32 v{k+5}, v{k+4}, v{k+4}')
        for rho in range(4): a(f'v_and_b32 v{k+rho}, v{k+5}, v{2+rho}')
    def pv(t, hf, first=False):
        k = K0 + 8 * t; v = V0 + 8 * t + 4 * hf; acc = 104 + 4 * hf
        n = 2 * (5 - t) + 1 - hf
        if n < max(W, WH, WE or 0): a(f's_waitcnt vmcnt({n})')
        a(f'v_mfma_f32_16x16x32_bf16 v[{acc}:{acc+3}], v[{k}:{k+3}], v[{v}:{v+3}], ' + ('0' if first else f'v[{acc}:{acc+3}]'))
    abuild(1)
    a(f'v_add_f32 v113, v{S[0]}, v{S[1]}\nv_add_f32 v114, v{S[2]}, v{S[3]}')
    pv(1, 0, True); abuild(2); pv(1, 1, True)
    a('s_cmp_eq_u32 s51, 0\ns_cbranch_scc1 L_a_pv2')
    abuild(0); pv(0, 0); pv(0, 1)
    a('L_a_pv2:')
    def lsum():
        a(f'''v_add_f32 v115, v{S[4]}, v{S[5]}
              v_add_f32 v113, v113, v114
              v_lshl_add_u32 v6, v6, 2, s49
              v_add_f32 v113, v113, v115''')
        allred_rows('v_add_f32', 113, 114)
        a(f'''s_mov_b64 exec, 0x101
              ds_write_b32 v6, v113 offset:{L_L}
              s_mov_b64 exec, -1''')
    def cst():
        a(f'''s_lshl_b32 s48, s31, 11
              v_lshl_add_u32 v6, v0, 4, s48
              v_bfe_u32 v119, v0, 2, 1
              v_mul_u32_u24 v119, 0x5a, v119
              v_and_b32 v120, 3, v0
              v_cmp_eq_u32 vcc, 1, v120
              v_bitop3_b32 v119, v119, v116, s34 bitop3:0xde
              v_bfe_u32 v118, v0, 2, 2
              v_cndmask_b32 v120, v120, v118, vcc
              v_cndmask_b32_e64 v119, v119, 0, vcc
              v_cndmask_b32_e64 v118, 0, -1, vcc
              v_or_b32 v120, 0x07060500, v120
              s_lshl_b32 s49, s31, 8
              s_add_u32 s49, s49, {L_O}
              v_lshlrev_b32 v121, 2, v0
              v_add_u32 v122, s49, v121
              v_lshlrev_b32 v117, 2, v117
              s_mov_b32 s62, 0''')
    if pvf:
        abuild(3); pv(2, 0); abuild(4); abuild(5); lsum(); cst()
        a('s_and_b32 s48, s31, 5')
        pv(2, 1)
        for t in range(3, 6): pv(t, 0); pv(t, 1)
    else:
        for t in range(2, 6):
            pv(t, 0)
            if t < 5: abuild(t + 1)
            pv(t, 1)
            if t == 2: lsum()
            if t == 3: cst()
    a(f'''ds_write_b128 v6, v[104:107] offset:{L_O}
          ds_write_b128 v6, v[108:111] offset:{L_O+1024}''')
    stamp(6)
    if nw2: a(f's_mov_b64 exec, 1\nds_inc_u32 v0, v2 offset:{L_C+8}\ns_barrier\ns_mov_b64 exec, -1\nL_a_s2:\nds_read_b32 v24, v1 offset:{L_C+8}')
    else: a('s_waitcnt lgkmcnt(0)\ns_barrier')
    if pvf:
        for u in range(4): a(f'ds_read2st64_b32 v[{8+2*u}:{9+2*u}], v122 offset0:{16*u} offset1:{16*u+8}')
        a(f'''s_cbranch_scc1 L_a_nl
              ds_read_b128 v[16:19], v117 offset:{L_L}
              ds_read_b128 v[20:23], v117 offset:{L_L+16}
              s_waitcnt lgkmcnt(0)''')
        pk('add', 16, 16, 18); pk('add', 20, 20, 22); pk('add', 16, 16, 20)
        a('v_add_f32 v16, v16, v17\nv_bfi_b32 v119, v118, v16, v119\nL_a_nl:\ns_waitcnt lgkmcnt(0)')
        if nw2: a('v_cmp_ne_u32 vcc, 8, v24')
    else:
        a(f'''ds_read_b128 v[16:19], v117 offset:{L_L}
              ds_read_b128 v[20:23], v117 offset:{L_L+16}''')
        for u in range(4): a(f'ds_read2st64_b32 v[{8+2*u}:{9+2*u}], v122 offset0:{16*u} offset1:{16*u+8}')
        pad('a', True)
        a('s_waitcnt lgkmcnt(4)')
        pk('add', 16, 16, 18); pk('add', 20, 20, 22); pk('add', 16, 16, 20)
        a('v_add_f32 v16, v16, v17\nv_and_or_b32 v119, v16, v118, v119\ns_waitcnt lgkmcnt(0)')
    pk('add', 8, 8, 10); pk('add', 12, 12, 14); pk('add', 8, 8, 12)
    a('''v_add_f32 v8, v8, v9
         v_perm_b32 v8, v8, v119, v120''')
    if nw2:
        a('s_cbranch_vccnz L_a_s2r\nL_a_s2ok:')
        rare.append(lambda: a(f'L_a_s2r:\ns_add_u32 s62, s62, {STEP}\ns_cbranch_scc1 L_a_s2ok\ns_and_b32 s48, s31, 5\ns_branch L_a_s2'))
    a('''buffer_store_dword v8, v121, s[44:47], s55 offen
         s_barrier''')
    stamp(7)
    setprio(0)
    if wopf2:
        a('s_cmp_lt_u32 s33, 14\ns_cbranch_scc0 L_a_p\ns_barrier\ns_sleep 3\nL_a_x:')
        def wp():
            a(f'''L_a_p:
                  s_lshl_b32 s48, s33, 3
                  s_add_u32 s48, s48, s31
                  s_sub_u32 s48, s48, 112
                  s_mul_i32 s49, s32, {512*896}''')
            for k in range(wopf2):
                if k: a('s_add_u32 s48, s48, 28')
                a(f'''s_cmp_ge_u32 s48, 56
                      s_cselect_b32 s50, 56, 0
                      s_sub_u32 s48, s48, s50
                      s_lshl_b32 s50, s48, 13
                      s_add_u32 s50, s50, s49
                      v_lshl_add_u32 v10, v0, 7, s50
                      global_load_dword v11, v10, s[12:13]''')
            a('s_branch L_a_x')
        rare.append(wp)
    elif bsn < 0:
        a('; the write-through copy is only needed under another placement: it waits for the wo stage / the prefetch (barrier) and, a bounded while, for X4 to be out')
        if bev:
            a(f'''s_barrier
                  s_cmp_lt_u32 s33, 14
                  s_cbranch_scc0 L_a_x
                  s_mov_b32 s62, 0
                  L_a_b:
                  s_sleep {bev}
                  ds_read_b32 v24, v1 offset:{L_C+20}
                  s_add_u32 s62, s62, 0x20000000
                  s_cbranch_scc1 L_a_x
                  s_waitcnt lgkmcnt(0)
                  v_cmp_eq_u32 vcc, 0, v24
                  s_cbranch_vccnz L_a_b
                  L_a_x:''')
        else: a(f's_barrier\ns_sleep {bsl}\nL_a_x:')
    elif bsn: a(f's_cmp_lt_u32 s33, 14\ns_cbranch_scc1 L_a_y\ns_sleep {bsn}\ns_branch L_a_x\nL_a_y:\ns_barrier\ns_sleep {bsl}\nL_a_x:')
    else: a(f's_cmp_lt_u32 s33, 14\ns_cbranch_scc0 L_a_x\ns_barrier\ns_sleep {bsl}\nL_a_x:')
    if not nob: a('buffer_store_dword v8, v121, s[44:47], s54 offen sc1')
    if dirty:
        a(f's_add_u32 s28, s28, s55\ns_addc_u32 s29, s29, 0')
        for k in range(dirty): a(f's_add_u32 s28, s28, 0x100000\ns_addc_u32 s29, s29, 0\nglobal_store_dword v121, v8, s[28:29]')
    fin()
    for r in rare: r()
    rare.clear()

    role[0] = 'wo'
    a('L_T:\nv_and_b32 v0, 63, v0')
    if pf3:
        a(f'''s_cmp_eq_u32 s31, 13
              s_cbranch_scc0 L_T1
              s_mul_i32 s50, s33, 19
              s_lshl_b32 s51, s32, 10
              v_add_u32 v2, s50, v0
              v_min_u32 v2, 447, v2
              v_lshl_add_u32 v2, v2, 13, s51
              s_mov_b64 exec, 0x7ffff
              global_load_dword v127, v2, s[10:11] offset:384
              s_mov_b64 exec, -1
              L_T1:''')
    a('''s_cmp_lt_u32 s33, 14
         s_cbranch_scc1 L_t_go
         s_cmp_eq_u32 s31, 8
         s_cbranch_scc1 L_t_go''')
    def pfcode():
        a('L_pf:')
        if fpf:
            a(f'''s_cmp_lt_u32 s31, 10
                  s_cbranch_scc1 L_end
                  s_mul_i32 s50, s33, 6
                  s_add_u32 s50, s50, s31
                  s_sub_u32 s50, s50, 94
                  s_cmp_lt_u32 s50, 56
                  s_cbranch_scc0 L_end''')
            if fpf:
                a(f'''s_cmp_lt_u32 s32, 4
                      s_cselect_b32 s52, 6, 8
                      s_cselect_b32 s53, 0, 8
                      s_cselect_b32 s56, 0x77777777, -1
                      s_cselect_b32 s58, 21, 28
                      s_mul_i32 s52, s52, s32
                      s_sub_u32 s52, s52, s53
                      s_lshr_b32 s51, s50, 1
                      s_waitcnt lgkmcnt(0)
                      s_bitcmp1_b32 s50, 0
                      s_cbranch_scc1 L_pf_2
                      s_mul_i32 s54, s51, {16*3584}
                      s_lshl_b32 s52, s52, 6
                      s_add_u32 s54, s54, s52
                      v_lshrrev_b32 v4, 2, v0
                      v_mul_u32_u24 v4, 3584, v4
                      v_and_b32 v5, 3, v0
                      v_lshl_add_u32 v4, v5, 7, v4
                      v_add_u32 v4, s54, v4
                      s_branch L_pf_3
                      L_pf_2:
                      s_mul_i32 s52, s52, {32*896}
                      s_lshl_b32 s54, s51, 13
                      s_add_u32 s54, s54, s52
                      v_lshl_add_u32 v4, v0, 7, s54
                      s_mov_b64 s[16:17], s[18:19]
                      s_cmp_lt_u32 s51, s58
                      s_cselect_b32 s56, -1, 0
                      L_pf_3:
                      s_mov_b32 s57, s56''')
            if wopf:
                a(f'''s_lshl_b32 s52, s50, 13
                      s_mul_i32 s51, s32, {512*896}
                      s_add_u32 s52, s52, s51
                      v_lshl_add_u32 v2, v0, 7, s52''')
                ldswait('L_pf_g', L_C, wopf, 4)
                if wolanes < 64: a(f's_mov_b32 exec_hi, {(1 << (wolanes - 32)) - 1}')
                a('global_load_dword v3, v2, s[12:13]')
            a('s_barrier\ns_barrier')
            if fpf: a('s_mov_b64 exec, s[56:57]\ns_cbranch_execz L_end\nglobal_load_dword v6, v4, s[16:17]' + pfnt)
        a('s_endpgm')
    a('''s_branch L_pf
         L_t_go:
         s_waitcnt lgkmcnt(0)''')
    dzero()
    a('L_t_go2:')
    tail_setup()
    a(f'''s_cmp_ge_u32 s33, 7
          s_cselect_b32 s50, 1, 0
          s_cselect_b32 s51, 7, 0
          s_sub_u32 s51, s33, s51
          s_lshl_b32 s52, s32, 1
          s_add_u32 s50, s50, s52
          s_lshl_b32 s52, s50, 8
          s_lshr_b32 s53, s49, 2
          s_lshl_b32 s53, s53, 7
          s_add_u32 s52, s52, s53
          s_and_b32 s53, s49, 1
          s_lshl_b32 s53, s53, 6
          s_add_u32 s52, s52, s53
          s_and_b32 s53, s49, 2
          s_lshl_b32 s53, s53, 1
          s_add_u32 s52, s52, s53
          s_mul_i32 s52, s52, 896
          s_lshl_b32 s53, s51, 7
          s_add_u32 s52, s52, s53
          s_add_u32 s53, s52, {8*896}
          s_mov_b32 s36, s12
          s_mov_b32 s37, s13
          s_mov_b32 s38, {4096*896}
          s_mov_b32 s39, 0x20000
          s_mul_i32 s40, s50, {24*1024}
          s_lshl_b32 s41, s49, 7
          s_add_u32 s40, s40, s41
          s_add_u32 s40, s40, {X3F}
          s_add_u32 s41, s40, 8192
          s_add_u32 s42, s40, 16384
          s_lshr_b32 s54, s50, 2
          s_lshl_b32 s54, s54, 13
          s_lshl_b32 s55, s50, 11
          s_add_u32 s54, s54, s55
          s_lshl_b32 s55, s51, 8
          s_add_u32 s54, s54, s55
          s_add_u32 s54, s54, {X4}
          s_add_u32 s55, s54, {SIDE}
          s_mov_b32 s43, 0
          s_mov_b32 s57, 0x04000c0c
          s_mov_b32 s58, {hex(f2u(0.0625 * LOG2E))}
          s_lshl_b32 s59, s49, 8
          s_add_u32 s59, s59, {L_P}
          v_lshrrev_b32 v12, 3, v0
          v_and_b32 v13, 7, v0
          v_lshlrev_b32 v3, 10, v12
          v_lshl_add_u32 v3, v13, 4, v3
          v_lshrrev_b32 v5, 4, v0
          v_lshl_add_u32 v5, v13, 2, v5
          v_lshl_add_u32 v5, v5, 1, s56
          v_lshl_add_u32 v6, v0, 4, s59
          v_lshlrev_b32 v4, 2, v0''')
    voff4(1, 16 * 896, 896, 12)
    def wold():
        stamp(3)
        for u in range(4):
            a(f'buffer_load_dwordx4 v[{80+4*u}:{83+4*u}], v1, s[36:39], s{52+(u>>1)} offen offset:{(u&1)*2*896}{wont}')
    maskaddr(8, 2, 's56', L_Z + 64, 12)
    a('s_waitcnt lgkmcnt(0)')
    tags()
    lanetag(7, 0); rowtag(98, 99)
    a('''v_and_b32 v10, 3, v0
         v_lshlrev_b32 v10, 3, v10
         v_lshlrev_b32_e64 v10, v10, 12
         v_xor_b32 v10, 0x0c0c0c0c, v10''')
    a(f'''s_cmp_eq_u32 s49, 0
          s_cbranch_scc0 L_wo
          v_lshlrev_b32 v2, 4, v0
          s_lshl_b32 s4, s32, 11
          s_add_u32 s4, s4, {X2F}
          s_mov_b32 m0, {L_Q}
          s_mov_b32 s62, 0
          s_setprio {pprio}
          L_p_loop:
          buffer_load_dwordx4 v2, s[44:47], s4 offen sc1 lds
          buffer_load_dwordx4 v2, s[44:47], s4 offen offset:1024 sc1 lds
          s_sleep {sleep}
          s_cmp_eq_u32 s62, {(1 << fastbits) * STEP}
          s_cselect_b32 s5, {X2F - X2}, 0
          s_sub_u32 s4, s4, s5
          ds_read2st64_b32 v[12:13], v2 offset0:{L_Q // 256} offset1:{L_Q // 256 + 4}
          s_waitcnt vmcnt(32) lgkmcnt(0)
          v_bitop3_b32 v12, v12, v13, s3 bitop3:0x7e
          v_cmp_ne_u32_sdwa vcc, v12, 0 src0_sel:WORD_0 src1_sel:DWORD''')
    spin('L_p_loop', 'L_p_ok')
    a('s_setprio 0')
    stamp(2)
    a('s_cmp_lt_u32 s33, 14\ns_cbranch_scc0 L_fin\nL_wo:')
    hop('w')
    if not wolate:
        ldswait('L_wo_g', L_C, gaten, 2)
        if gsl: a(f's_sleep {gsl}')
        wold()
    else: a('v_mov_b32 v100, 0')
    setprio(3)
    a('s_barrier\ns_barrier')
    if wolate: wold()
    stamp(4)
    x3l = [f'buffer_load_dwordx4 v[{32+4*s}:{35+4*s}], v3, s[44:47], s{40+s} offen sc1' for s in range(3)]
    for l in x3l: a(l)
    if peel:
        a('s_waitcnt vmcnt(0)')
        for i in range(3): a(f'v_cmp_ne_u32_sdwa s[{4+2*i}:{5+2*i}], v{32+4*i}, v7 src0_sel:BYTE_0 src1_sel:DWORD')
        for i in range(3): a(f's_wqm_b64 exec, s[{4+2*i}:{5+2*i}]\n{x3l[i]}')
        a('s_mov_b64 exec, -1')
    else: a('s_waitcnt vmcnt(3)')
    fix4(80, 48); perms64(80, 16)
    stamp(5)
    gather('L_x3', x3l, 32, 4, 7, issued=True, nfast=2 << fastbits, warm=(fX3, 62),
           spec='\n'.join(f'v_perm_b32 v{48+2*s}, v{35+4*s}, v{34+4*s}, s57' for s in range(3)),
           switch='\n'.join(f's_sub_u32 s{40+s}, s{40+s}, {X3F - X3}' for s in range(3)) + '\ns_barrier\ns_mov_b32 s43, 1')
    stamp(6)
    a(f'''v_max3_f32 v54, v48, v50, v52
          v_xor_b32 v32, v32, v7
          v_xor_b32 v36, v36, v7
          v_max_f32_dpp v54, v54, v54 row_ror:8 {DPPF}
          v_mov_b32 v55, v54
          v_xor_b32 v40, v40, v7''')
    pad('w')
    a(f'''v_permlane32_swap_b32 v54, v55
          v_max_f32 v54, v54, v55
          v_mov_b32 v55, v54
          v_permlane16_swap_b32 v54, v55
          v_max_f32 v54, v54, v55''')
    a('v_mul_f32 v54, s58, v54')
    for s in range(3): a(f'v_fma_f32 v{56+2*s}, v{48+2*s}, s58, -v54')
    for s in range(3): a(f'v_exp_f32 v{56+2*s}, v{56+2*s}')
    xs('w_exp')
    a(f'''v_pk_mul_f32 v[44:45], v[32:33], v[56:57] op_sel_hi:[1,0]
          v_pk_mul_f32 v[46:47], v[34:35], v[56:57] op_sel_hi:[1,0]
          v_pk_fma_f32 v[44:45], v[36:37], v[58:59], v[44:45] op_sel_hi:[1,0,1]
          v_pk_fma_f32 v[46:47], v[38:39], v[58:59], v[46:47] op_sel_hi:[1,0,1]
          v_pk_fma_f32 v[44:45], v[40:41], v[60:61], v[44:45] op_sel_hi:[1,0,1]
          v_pk_fma_f32 v[46:47], v[42:43], v[60:61], v[46:47] op_sel_hi:[1,0,1]''')
    rscatter(44)
    a(f's_cmp_eq_u32 s49, 0\nv_add_f32_dpp v44, v44, v44 row_ror:8 {DPPF}')
    rnd('v44', 'v44')
    xs('w_o')
    a('ds_write_b16_d16_hi v5, v44')
    for tau in range(2): a(f'ds_read_b128 v[{64+4*tau}:{67+4*tau}], v{8+tau}')
    def wo_out(x):
        a(f'''s_mov_b64 exec, 0xffff
              ds_write_b128 v6, v[74:77]
              s_mov_b64 exec, 1
              ds_inc_u32 v0, v98 offset:{L_C+16}''')
        if x:
            a('s_mov_b64 exec, -1')
            allred_rows('v_add_f32', 54, 55)
            a('v_rcp_f32 v52, v54')
        xs('w_pre')
        a(f's_cbranch_scc0 L_wo_nb{x}\ns_barrier\nL_wo_nb{x}:')
        xs('w_bar')
    a('s_cbranch_scc1 L_wo_0\ns_cmp_eq_u32 s43, 0')
    mma2(72, 64, 16)
    xs('w_mm')
    wo_out('')
    fin()
    a('L_wo_0:')
    for s in range(3): a(f'v_perm_b32 v{48+s}, v{33+4*s}, v{33+4*s}, v10')
    for s in range(3): a(f'v_or_b32_dpp v{48+s}, v{48+s}, v{48+s} quad_perm:[1,0,3,2] {DPPF}')
    a('s_cmp_eq_u32 s43, 0')
    mma2(72, 64, 16, mid='\n'.join(f'v_or_b32_dpp v{48+s}, v{48+s}, v{48+s} quad_perm:[2,3,0,1] {DPPF}' for s in range(3)))
    xs('w_mm')
    a(f'''v_mul_f32 v54, v56, v48
          v_fmac_f32 v54, v58, v49
          v_fmac_f32 v54, v60, v50
          s_mov_b32 s62, 0
          v_add_f32_dpp v54, v54, v54 row_ror:8 {DPPF}''')
    wo_out('0')
    a(f'L_wo_s:\nds_read_b32 v24, v100 offset:{L_C+16}')
    sumrows(8, L_P, 4, None, f's_waitcnt lgkmcnt({0 if (diag and only is None) else 4})\nv_cmp_ne_u32 vcc, 8, v24')
    rare.append(lambda: a(f'L_wo_sr:\ns_add_u32 s62, s62, {STEP}\ns_cbranch_scc0 L_wo_s\ns_branch L_wo_sok'))
    a('v_mul_f32 v16, v52, v16')
    a(f'''v_and_or_b32 v16, v16, v98, v99
          s_cbranch_vccnz L_wo_sr
          L_wo_sok:
          buffer_store_dword v16, v4, s[44:47], s54 offen sc1
          buffer_store_dword v16, v4, s[44:47], s55 offen sc1''')
    stamp(7)
    if bev: a(f's_waitcnt vmcnt(0)\nds_write_b32 v100, v24 offset:{L_C+20}')
    a('L_fin:')
    fin()
    for r in rare: r()
    rare.clear()

    role[0] = 'F'
    if paged: a('.p2align 12\nL_F2:')
    else: fstart()
    dzero(); stamp(1)
    a('s_load_dword s30, s[28:29], 0')
    ws_srd(); perm_sel()
    a(f'''s_lshl_b32 s52, s31, 8
          s_add_u32 s56, s52, 0x2400
          s_mov_b32 s59, {hex(f2u(448.0))}
          s_mov_b32 s58, 0x3f803f80
          v_mov_b32 v12, 0
          v_lshlrev_b32 v4, 2, v0
          ds_write_b32 v4, v12 offset:{FZ}
          v_add_u32 v6, s56, v6
          v_lshl_add_u32 v5, v5, 1, s52''')
    maskaddr(8, 2, 's56', FZ + 64, 12)
    a('''s_waitcnt vmcnt(8)
         v_dot2_f32_bf16 v102, v96, s58, 0
         v_dot2_f32_bf16 v103, v96, v96, 0''')
    for i in range(1, 4):
        a(f'v_dot2_f32_bf16 v102, v{96+i}, s58, v102')
        a(f'v_dot2_f32_bf16 v103, v{96+i}, v{96+i}, v103')
    for sh in (8, 4, 2, 1):
        a(f'v_add_f32_dpp v102, v102, v102 row_ror:{sh} {DPPF}')
        a(f'v_add_f32_dpp v103, v103, v103 row_ror:{sh} {DPPF}')
    allred_rows('v_add_f32', 102, 104); allred_rows('v_add_f32', 103, 104)
    a('v_lshlrev_b32 v96, 16, v100')
    ln_apply(102, 103, (100, 96), 104)
    a(f'''s_lshl_b32 s52, s32, 11
          s_lshl_b32 s53, s33, 8
          s_add_u32 s52, s52, s53
          s_add_u32 s53, s52, {X2F}
          s_add_u32 s52, s52, {X2}
          s_waitcnt lgkmcnt(0)''')
    tags()
    a('s_waitcnt vmcnt(4)')
    fix4(32, 104); perms64(32, 64)
    a(f'''s_mov_b32 s49, {X1}
          s_add_u32 s50, s31, 0
          s_lshr_b32 s63, s50, 3
          s_lshl_b32 s63, s63, 13
          s_lshl_b32 s50, s50, 10
          s_add_u32 s50, s50, s63
          s_add_u32 s50, s50, s49
          s_add_u32 s51, s31, 7
          s_lshr_b32 s63, s51, 3
          s_lshl_b32 s63, s63, 13
          s_lshl_b32 s51, s51, 10
          s_add_u32 s51, s51, s63
          s_add_u32 s51, s51, s49
          s_waitcnt vmcnt(0)''')
    fix4(48, 104); perms64(48, 80)
    a('''s_add_u32 s8, s31, 14
          s_lshr_b32 s63, s8, 3
          s_lshl_b32 s63, s63, 13
          s_lshl_b32 s8, s8, 10
          s_add_u32 s8, s8, s63
          s_add_u32 s8, s8, s49
          s_add_u32 s9, s31, 21
          s_lshr_b32 s63, s9, 3
          s_lshl_b32 s63, s63, 13
          s_lshl_b32 s9, s9, 10
          s_add_u32 s9, s9, s63
          s_add_u32 s9, s9, s49
          s_add_u32 s10, s31, 28
          s_lshr_b32 s63, s10, 3
          s_lshl_b32 s63, s63, 13
          s_lshl_b32 s10, s10, 10
          s_add_u32 s10, s10, s63
          s_add_u32 s10, s10, s49
          s_add_u32 s11, s31, 35
          s_lshr_b32 s63, s11, 3
          s_lshl_b32 s63, s63, 13
          s_lshl_b32 s11, s11, 10
          s_add_u32 s11, s11, s63
          s_add_u32 s11, s11, s49''')
    stamp(2)
    poll4('L_q_x1', [f'buffer_load_dwordx4 v[{32+4*s}:{35+4*s}], v41, s[44:47], s{50+s} offen sc1' for s in range(2)], 32, 40)
    stamp(3)
    if mxe:
        for s in range(4): a(f'buffer_load_dwordx4 v[{104+4*s}:{107+4*s}], v41, s[44:47], s{8+s} offen sc1')
    rscatter(36); rscatter(32)
    rnd('v36', 'v36'); rnd('v32', 'v32')
    a('v_add_f32 v36, 1.0, v36'); rnd('v36', 'v36')
    a('v_mul_f32 v36, v100, v36'); rnd('v36', 'v36')
    a('v_add_f32 v36, v36, v32'); rnd('v36', 'v36')
    a('ds_write_b16_d16_hi v6, v36')
    for u in range(2):
        for tau in range(2): a(f'ds_read_b128 v[{32+8*u+4*tau}:{35+8*u+4*tau}], v{8+tau} offset:{64*u}')
    mma2(48, 32, 64, left=2); mma2(48, 40, 80, first=False)
    a(f'''v_mov_b32 v24, 1
          s_mov_b32 s62, 0
          s_mov_b64 exec, 0xffff
          s_cmp_eq_u32 s31, 0
          ds_write_b128 v5, v[50:53] offset:{FP}
          s_mov_b64 exec, 1
          ds_add_u32 v0, v24 offset:{FC+4}
          s_mov_b64 exec, -1
          s_cbranch_scc0 L_q_done
          v_mov_b32 v25, 0
          L_q_s:
          ds_read_b32 v24, v25 offset:{FC+4}''')
    sumrows(7, FP, 4, 'v_cmp_ne_u32 vcc, 8, v24')
    rnd('v16', 'v16')
    rare.append(lambda: a(f'L_q_sr:\ns_add_u32 s62, s62, {STEP}\ns_cbranch_scc0 L_q_s\ns_branch L_q_sok'))
    a('''v_or_b32 v16, s3, v16
         s_cbranch_vccnz L_q_sr
         L_q_sok:
         buffer_store_dword v16, v4, s[44:47], s53 offen
         buffer_store_dword v16, v4, s[44:47], s52 offen sc1''')
    a(f'ds_write_b32 v25, v24 offset:{FC+16}')
    if rewarm:
        a(f'''s_cmp_eq_u32 s33, 7
              s_cbranch_scc0 L_q_done
              s_getpc_b64 s[4:5]
              L_pc2:
              s_sub_u32 s4, s4, L_pc2-L_pc
              s_subb_u32 s5, s5, 0
              v_lshlrev_b32 v102, 7, v0
              v_add_u32 v103, 0x2000, v102
              v_min_u32 v103, L_code_end-L_pc-4, v103
              global_load_dword v127, v102, s[4:5] sc1
              global_load_dword v127, v103, s[4:5] sc1''')
    a('L_q_done:')
    stamp(4)
    def ffn_id(skip):
        a(f'''s_cmp_lt_u32 s32, 4
              s_cselect_b32 s50, 6, 8
              s_cselect_b32 s51, 0, 8
              s_cmp_lt_u32 s33, s50
              s_cbranch_scc0 {skip}''')
    def wp3():
        a(f'''s_mul_i32 s14, s33, 7
              s_add_u32 s14, s14, s31
              s_lshl_b32 s14, s14, 13
              s_mul_i32 s15, s32, {512*896}
              s_add_u32 s14, s14, s15
              v_lshl_add_u32 v126, v0, 7, s14
              global_load_dword v127, v126, s[12:13]''')
    if vpf:
        assert tbl == 1
        a(f'''s_cmp_lt_u32 s31, 6
              s_cbranch_scc0 L_f_nv
              s_load_dwordx2 s[6:7], s[0:1], 16
              s_mul_i32 s52, s33, 6
              s_add_u32 s52, s52, s31
              s_lshl_b32 s52, s52, 2
              s_lshr_b32 s53, s52, 3
                      s_and_b32 s52, s52, 7
                      s_lshl_b32 s54, s53, 2
                      s_add_u32 s55, s54, 6
                      s_min_u32 s54, s54, 13
                      s_min_u32 s55, s55, 15
                      s_mul_i32 s15, s53, 43
                      s_cmp_ge_u32 s53, 17
                      s_cselect_b32 s54, 64, s54
                      s_cselect_b32 s55, 63, s55
                      s_mul_i32 s53, s53, 40
                      s_cselect_b32 s15, s53, s15
                      s_lshl_b32 s53, s32, 14
                      s_add_u32 s15, s15, s53
                      s_add_u32 s15, s15, {WINOFF // 2048 + 5}
                      v_lshrrev_b32 v124, 4, v0
                      v_add_u32 v124, s52, v124
                      v_add_u32 v125, s54, v124
                      v_min_u32 v125, s55, v125
                      v_mad_u32_u24 v124, v124, 5, v125
                      v_add_u32 v124, s15, v124
                      v_and_b32 v125, 15, v0
                      v_lshlrev_b32 v125, 7, v125
                      v_lshl_add_u32 v124, v124, 11, v125''')
        ldswait('L_f_qv', FC + 16, 1, 1, 102)
        for k in range(vpf): a(f'global_load_dword v127, v124, s[6:7] offset:{-2048 * (vpf - 1 - k)}{vpffl}')
        a('L_f_nv:')
    if wopf3:
        ldswait('L_f_q3', FC + 16, 1, 1, 102)
        if wopf3 > 1: a(f's_sleep {wopf3}')
        wp3()
    ffn_id('L_fin2')
    a(f'''s_mul_i32 s50, s50, s32
          s_add_u32 s50, s50, s33
          s_sub_u32 s50, s50, s51
          s_mov_b32 s36, s16
          s_mov_b32 s37, s17
          s_mov_b32 s38, {448*3584}
          s_mov_b32 s40, s18
          s_mov_b32 s41, s19
          s_mov_b32 s42, {1792*896}
          s_mul_i32 s52, s31, {64*3584}
          s_lshl_b32 s53, s50, 6
          s_add_u32 s52, s52, s53
          s_mul_i32 s54, s50, {32*896}
          s_lshl_b32 s55, s31, 7
          s_add_u32 s54, s54, s55
          s_add_u32 s55, s54, {4*896}
          v_and_b32 v4, 15, v0
          v_mul_u32_u24 v2, {8*3584}, v3
          v_lshl_add_u32 v2, v4, 2, v2''')
    voff4(1, 8 * 896, 896, 102)
    if not mxe or not hintk: ldswait('L_f_q', FC + 16, 1, 1, 102)
    poll4('L_f_mx', [f'buffer_load_dwordx4 v[{104+4*s}:{107+4*s}], v121, s[44:47], s{8+s} offen sc1' for s in range(4)], 104, 120, 0, mxe)
    for s in range(4): rscatter(104 + 4 * s)
    rnd('v102', 'v104'); rnd('v98', 'v108'); rnd('v100', 'v112'); rnd('v116', 'v116')
    a('v_add_f32 v100, 1.0, v100\ns_lshl_b32 s13, s31, 8\nv_lshl_add_u32 v103, v0, 2, s13')
    rnd('v100', 'v100')
    a(f'''ds_write_b32 v103, v116 offset:{FG}
          ds_write_b16_d16_hi v6, v100
          ds_write_b16_d16_hi v6, v98 offset:128''')
    hop('f')
    if hintk: ldswait('L_f_g', FC + 8, 1, 1, 104)
    stamp(5)
    for i in range(16):
        a(f'buffer_load_dword v{32+i}, v2, s[36:39], s52 offen offset:{3584*(i&1)}{w1nt}')
        if i & 1: a(f's_add_u32 s52, s52, {2*3584 if i != 7 else 26*3584}')
    for u in range(4):
        a(f'buffer_load_dwordx4 v[{48+4*u}:{51+4*u}], v1, s[40:43], s{54+(u>>1)} offen offset:{(u&1)*2*896}{w2nt}')
    maskaddr(10, 2, FH, FZ + 64, 104)
    lanetag(5, 0)
    getside(104)
    a(f'''s_lshr_b32 s12, s50, 2
          s_lshl_b32 s12, s12, 13
          s_lshl_b32 s14, s50, 11
          s_add_u32 s12, s12, s14
          s_add_u32 s12, s12, s13
          s_add_u32 s12, s12, {X5}
          v_and_b32 v7, 1, v3
          v_lshlrev_b32 v7, 13, v7
          v_lshl_add_u32 v7, v4, 4, v7''')
    if x5o == 3: a(f'v_xor_b32 v7, s48, v7\nv_xor_b32 v15, {SIDE}, v7')
    elif x5o:
        a(f'''s_cmp_ge_u32 s31, 3
              s_cselect_b32 s14, 4, 0
              s_xor_b32 s14, s14, s32
              s_lshr_b32 s14, s14, 2
              s_lshl_b32 s14, s14, 13
              s_xor_b32 s14, s14, s48
              v_xor_b32 v7, s14, v7''')
    a(f'''v_and_b32 v8, 1, v0
          v_lshlrev_b32 v8, 7, v8
          v_lshl_add_u32 v8, v3, 4, v8
          v_add_u32 v8, s56, v8
          v_lshlrev_b32 v2, 11, v3
          v_lshl_add_u32 v2, v4, 4, v2
          s_add_u32 s52, s13, {FA}
          v_lshl_add_u32 v9, v0, 3, s52
          s_lshl_b32 s52, s31, 7
          s_add_u32 s52, s52, {FP2}
          v_lshl_add_u32 v4, v0, 3, s52
          s_add_u32 s40, s13, s48
          s_add_u32 s40, s40, {X4}
          s_add_u32 s41, s40, {1 << 14}
          s_add_u32 s42, s40, {2 << 14}
          s_add_u32 s43, s40, {3 << 14}
          s_lshl_b32 s52, s31, 3
          s_add_u32 s52, s52, {FST}
          v_lshrrev_b32 v1, 5, v0
          v_lshl_add_u32 v3, v1, 2, s52
          s_mov_b32 s57, 0xffffff00
          s_mov_b32 s16, 0x10000
          s_mov_b32 s17, 0x10000
          ds_read_b128 v[80:83], v8
          ds_read_b128 v[84:87], v8 offset:64
          v_mov_b32 v12, 0
          v_mov_b32 v13, 1
          v_mov_b32 v120, 1''')
    x4l = [f'buffer_load_dwordx4 v[{104+4*s}:{107+4*s}], v2, s[44:47], s{40+s} offen sc1' for s in range(4)]
    def w1mma(k):
        for tau in range(2):
            d = 88 + 4 * tau; b = 16 + 8 * k + 4 * tau
            a(f'v_mfma_f32_16x16x32_bf16 v[{d}:{d+3}], v[{80+4*k}:{83+4*k}], v[{b}:{b+3}], ' + ('0' if k == 0 else f'v[{d}:{d+3}]'))
    stamp(6)
    a('s_waitcnt vmcnt(4) lgkmcnt(0)')
    for l in x4l: a(l)
    for aa in range(2):
        for tau in range(2):
            for rho in range(4):
                a(f'v_perm_b32 v{16+8*aa+4*tau+rho}, v{32+8*aa+2*rho+1}, v{32+8*aa+2*rho}, s{60+tau}')
    w1mma(0); w1mma(1)
    a(f'''s_mov_b64 exec, 0xffff
          ds_write2_b32 v9, v88, v92 offset0:0 offset1:1
          ds_write2_b32 v9, v89, v93 offset0:32 offset1:33
          s_mov_b64 exec, 1
          ds_add_u32 v0, v120 offset:{FC}
          s_mov_b64 exec, -1
          s_waitcnt vmcnt(4)''')
    fix4(48, 124); perms64(48, 64)
    setprio(2)
    stamp(7)
    def sum_hi(r, d):
        return f'''v_pk_add_f32 v[{d+2}:{d+3}], v[{r+2}:{r+3}], v[{r+6}:{r+7}]
                   v_pk_add_f32 v[{d}:{d+1}], v[{r+10}:{r+11}], v[{r+14}:{r+15}]
                   v_pk_add_f32 v[{d+2}:{d+3}], v[{d+2}:{d+3}], v[{d}:{d+1}]'''
    def sum_lo(r, d):
        for s in range(4): a(f'v_xor_b32 v{r+4*s}, v{r+4*s}, v5')
        pk('add', r, r, r + 4); pk('add', r + 8, r + 8, r + 12); pk('add', d, r, r + 8)
    gather('L_x4', x4l, 104, 4, 5, spec=sum_hi(104, 120), issued=True, warm=(fX4, 63))
    stamp(8)
    sum_lo(104, 120)
    pad('f')
    rscatter(120)
    rnd('v120', 'v120'); a('v_mul_f32 v120, v102, v120'); rnd('v120', 'v120'); a('v_add_f32 v120, v96, v120'); rnd('v121', 'v120')
    xs('x2')
    a(f'''v_mul_f32 v123, v121, v100
          v_mul_f32 v122, v121, v121
          v_cvt_pk_bf16_f32 v124, 0, v123
          v_sub_f32 v124, v123, v124
          v_cvt_pk_bf16_f32 v123, v124, v123
          ds_write_b16_d16_hi v6, v123
          ds_write_b16 v6, v123 offset:128
          ds_read_b128 v[80:83], v8
          ds_read_b128 v[84:87], v8 offset:64
          ds_write_b32 v103, v121 offset:{FX}
          v_permlane32_swap_b32 v121, v122
          v_add_f32 v121, v121, v122''')
    pad('f')
    a(f'''v_add_f32_dpp v121, v121, v121 row_ror:8 {DPPF}
          v_add_f32_dpp v121, v121, v121 row_ror:4 {DPPF}
          v_add_f32_dpp v121, v121, v121 row_ror:2 {DPPF}
          s_waitcnt lgkmcnt({0 if (diag and only is None) else 2})''')
    w1mma(0)
    a(f'''v_add_f32_dpp v121, v121, v121 row_ror:1 {DPPF}
          s_waitcnt lgkmcnt({0 if (diag and only is None) else 1})''')
    w1mma(1)
    a(f'''v_add_f32_dpp v121, v121, v121 row_bcast:15 row_mask:0xa bank_mask:0xf
          s_mov_b64 exec, s[16:17]
          ds_write_b32 v3, v121''')
    if est: a(f'ds_add_u32 v12, v13 offset:{FC+20}')
    a('s_mov_b64 exec, 0xffff')
    pad('f')
    a(f'''v_add_f32 v88, v88, v89
          v_add_f32 v92, v92, v93
          ds_write2_b32 v4, v88, v92 offset0:0 offset1:1''')
    if nw3: a(f's_mov_b64 exec, 1\nds_add_u32 v12, v13 offset:{FC+24}')
    else: a('s_waitcnt lgkmcnt(0)')
    stamp(11); xs('preB3')
    a('s_barrier\ns_mov_b64 exec, -1\ns_mov_b32 s62, 0')
    xs('B3')
    a('s_barrier')
    xs('B4')
    a('L_f_h1:')
    if nw4: a(f'ds_read_b32 v14, v12 offset:{FC+28}')
    for tau in range(2): a(f'ds_read_b128 v[{80+4*tau}:{83+4*tau}], v{10+tau}')
    mma2(32, 80, 64, mid='v_cmp_eq_u32 vcc, 0, v14' if nw4 else None)
    if nw4:
        a('s_cbranch_vccnz L_f_h1r\nL_f_h1ok:')
        rare.append(lambda: a(f'L_f_h1r:\ns_add_u32 s62, s62, {STEP}\ns_cbranch_scc0 L_f_h1\ns_branch L_f_h1ok'))
    xs('mm2')
    pad('f', True)
    if x5o == 3:
        a('''s_mov_b64 exec, 0xffff
             v_and_or_b32 v34, v34, s57, v5
             buffer_store_dwordx4 v[34:37], v7, s[44:47], s12 offen sc1
             buffer_store_dwordx4 v[34:37], v15, s[44:47], s12 offen sc1''')
        stamp(9)
        if x5w is not None: a(f's_cmp_le_u32 s31, {x5w}\ns_cbranch_scc0 L_f_nwt')
        a('s_waitcnt vmcnt(1)\nL_f_nwt:\ns_barrier\nL_fin2:')
    elif x5o == 2:
        a('''s_mov_b64 exec, 0xffff
             v_and_or_b32 v34, v34, s57, v5
             buffer_store_dwordx4 v[34:37], v7, s[44:47], s12 offen sc1''')
        stamp(9)
        a(f'''s_barrier
              v_xor_b32 v7, {SIDE}, v7
              s_waitcnt vmcnt(0)
              buffer_store_dwordx4 v[34:37], v7, s[44:47], s12 offen sc1
              L_fin2:''')
    else:
        a('''s_mov_b32 exec_hi, 0
             v_and_or_b32 v34, v34, s57, v5
             buffer_store_dwordx4 v[34:37], v7, s[44:47], s12 offen sc1''')
        stamp(9)
        a('s_barrier\nL_fin2:')
    fin()
    for r in rare: r()
    rare.clear()
    if not paged: a(f'''L_F7s:
              s_cmp_ge_u32 s31, 9
              s_cbranch_scc1 L_F9
              v_mov_b32 v2, 0
              v_lshlrev_b32 v3, 2, v0
              ds_write_b32 v3, v2 offset:{FC & ~255}
              s_waitcnt lgkmcnt(0)
              s_barrier
              s_branch L_F7
              L_F9:
              s_endpgm''')
    a(f'''L_F7:
          s_cmp_eq_u32 s31, 7
          s_cbranch_scc0 L_F8
          s_load_dword s30, s[28:29], 0
          v_mov_b32 v4, 1
          s_waitcnt lgkmcnt(0)
          s_mov_b64 exec, 1
          ds_add_u32 v2, v4 offset:{FC+4}
          s_mov_b64 exec, -1''')
    dzero()
    ws_srd()
    ffn_id('L_fin3')
    if hintk:
        a(f'''s_mul_i32 s49, s32, {24*128}
              s_add_u32 s49, s49, {HINT}
              v_lshlrev_b32 v102, 7, v0''')
        if mxe:
            ldswait('L_7_t', FC + 4, 2, 4, 104)
            a('s_mov_b64 exec, 0xffffff\nbuffer_load_dword v103, v102, s[44:47], s49 offen sc1\ns_mov_b64 exec, -1')
    ldswait('L_7_q', FC + 16, 1, 4, 104)
    tags()
    if hintk:
        a(f'''s_mul_i32 s54, s50, s32
              s_add_u32 s54, s54, s33
              s_and_b32 s54, s54, 6
              s_cmp_eq_u32 s54, 6
              s_cselect_b32 s54, {hintk if hk3 is None else hk3}, {hintk}
              s_mov_b64 exec, 0xffffff
              s_mov_b32 s62, 0
              L_f_h:
              s_sleep 2
              buffer_load_dword v103, v102, s[44:47], s49 offen sc1
              s_add_u32 s62, s62, {1 << (32 - fastbits)}
              s_waitcnt vmcnt(0)
              s_cbranch_scc1 L_f_hok
              v_cmp_eq_u32 vcc, s3, v103
              s_bcnt1_i32_b64 s53, vcc
              s_cmp_lt_u32 s53, s54
              s_cbranch_scc1 L_f_h
              L_f_hok:
              s_mov_b64 exec, -1
              v_mov_b32 v103, 1
              ds_write_b32 v2, v103 offset:{FC+8}''')
    a(f'''s_mul_i32 s50, s50, s32
          s_add_u32 s50, s50, s33
          s_sub_u32 s50, s50, s51
          v_mov_b32 v9, v3
          v_lshrrev_b32 v4, 4, v0
          v_lshlrev_b32 v81, 14, v4
          v_bfe_u32 v6, v0, 2, 2
          v_lshl_add_u32 v81, v6, 11, v81
          v_and_b32 v6, 3, v0
          v_lshl_add_u32 v81, v6, 4, v81
          s_bfe_u32 s52, s50, 0x20001
          s_lshl_b32 s52, s52, 2
          s_lshl_b32 s20, 0x000f000f, s52
          s_mov_b32 s21, s20
          s_lshr_b32 s52, s50, 3
          s_lshl_b32 s53, s52, 8
          v_add_u32 v3, s53, v3
          s_lshl_b32 s52, s52, 7
          v_and_b32 v6, 7, v0
          v_lshlrev_b32 v6, 4, v6
          v_and_b32 v7, 8, v0
          v_lshl_add_u32 v7, v4, 1, v7
          v_add3_u32 v101, v6, v7, s52
          s_mov_b32 s36, s24
          s_mov_b32 s37, s25
          s_mov_b32 s38, 896
          s_mov_b32 s39, 0x20000''')
    lanetag(5, 0)
    x5l = [f'buffer_load_dwordx4 v[{36+4*s}:{39+4*s}], v81, s[44:47], s{40+s} offen sc1' for s in range(4)]
    a('v_mov_b32 v48, v5\nv_mov_b32 v49, 0\nv_mov_b32 v50, 0\nv_mov_b32 v51, 0')
    hop('s')
    ldswait('L_7_g', FC, 2, 4, 102)
    getside(102)
    a(f'''s_lshl_b32 s40, s50, 5
          s_add_u32 s40, s40, s48
          s_add_u32 s40, s40, {X5}
          s_add_u32 s41, s40, {4 << 14}
          s_add_u32 s42, s40, {8 << 14}
          s_add_u32 s43, s40, {12 << 14}''')
    a('s_bitcmp1_b32 s50, 0\ns_cbranch_scc1 L_7_o\n' + '\n'.join(x5l[:3] if pt5 else [f'v_mov_b32 v{36+4*k}, 0xff' for k in range(3)]) + f'''
          s_mov_b32 exec_hi, 0
          {x5l[3] if pt5 else 'v_mov_b32 v48, 0xff'}
          {'buffer_load_ushort v125, v101, s[36:39], 0 offen' if opt else ''}
          s_mov_b32 exec_hi, -1
          L_7_o:''')
    ldswait('L_7_a', FC, 7, 1, 102)
    sumrows(7, FA, 9)
    a(f'''v_mov_b32 v17, v16
          v_and_b32 v14, 31, v0
          v_lshlrev_b32 v15, 1, v14
          v_permlane32_swap_b32 v16, v17
          v_lshlrev_b32 v14, 2, v14
          v_add_u32 v14, {FP2}, v14
          v_mov_b32 v1, {FST}
          v_mov_b32 v31, 0
          s_mov_b32 s59, {hex(f2u(448.0))}''')
    align('S')
    setprio(3)
    cw = lambda n: f's_waitcnt lgkmcnt({0 if (diag and only is None) else n})'
    if est:
        a(f'''s_mov_b32 s62, 0
              L_7_s:
              ds_read_b32 v70, v31 offset:{FC+20}
              ds_read_b128 v[56:59], v1
              ds_read_b128 v[60:63], v1 offset:16
              ds_read_b128 v[64:67], v1 offset:32
              ds_read_b64 v[68:69], v1 offset:48
              s_add_u32 s62, s62, {STEP >> 2}
              s_cbranch_scc1 L_7_sok
              {cw(4)}
              v_cmp_ne_u32 vcc, 14, v70
              s_cbranch_vccnz L_7_s
              L_7_sok:
              s_waitcnt lgkmcnt(0)''')
        pk('add', 56, 56, 58); pk('add', 60, 60, 62)
        pk('add', 64, 64, 66); pk('add', 56, 56, 60); pk('add', 64, 64, 68); pk('add', 56, 56, 64)
        a(f'''s_barrier
              ds_read2_b32 v[24:25], v14 offset0:0 offset1:32
              ds_read2_b32 v[26:27], v14 offset0:64 offset1:96
              ds_read2_b32 v[28:29], v14 offset0:128 offset1:160
              ds_read_b32 v30, v14 offset:768''')
        a(f'''v_mul_f32 v60, v56, v56
              v_fma_f32 v61, v56, v56, -v60
              v_fma_f32 v60, v57, s59, -v60
              v_sub_f32 v60, v60, v61
              v_mul_f32 v60, {hex(f2u(1/448/448))}, v60
              v_max_f32 v60, 0, v60''')
        rnd('v60', 'v60')
        a(f'v_add_f32 v60, {hex(f2u(1e-5))}, v60')
        rnd('v60', 'v60')
        a(f'v_sqrt_f32 v60, v60\nv_mul_f32 v62, {hex(f2u(1/448))}, v56')
        rnd('v60', 'v60')
        a('s_waitcnt lgkmcnt(0)\nv_rcp_f32 v60, v60')
        pk('add', 24, 24, 26); pk('add', 28, 28, 30)
        rnd('v62', 'v62')
        pk('add', 24, 24, 28)
        a('''v_fma_f32 v24, -v62, v16, v24
             v_add_f32 v24, v24, v25
             v_fma_f32 v24, v24, v60, v17''')
    else:
        a('s_mov_b32 s62, 0\ns_barrier\nL_7_t:')
        if nw3: a(f'ds_read_b32 v70, v31 offset:{FC+24}')
        a(f'''ds_read_b128 v[56:59], v1
              ds_read_b128 v[60:63], v1 offset:16
              ds_read_b128 v[64:67], v1 offset:32
              ds_read_b64 v[68:69], v1 offset:48
              ds_read2_b32 v[24:25], v14 offset0:0 offset1:32
              ds_read2_b32 v[26:27], v14 offset0:64 offset1:96
              ds_read2_b32 v[28:29], v14 offset0:128 offset1:160
              ds_read_b32 v30, v14 offset:768''')
        a(cw(6))
        if nw3: a('v_cmp_ne_u32 vcc, 7, v70')
        pk('add', 56, 56, 58); pk('add', 60, 60, 62)
        a(cw(4))
        pk('add', 64, 64, 66); pk('add', 56, 56, 60); pk('add', 64, 64, 68); pk('add', 56, 56, 64)
        a(f'''v_mul_f32 v60, v56, v56
              v_fma_f32 v61, v56, v56, -v60
              v_fma_f32 v60, v57, s59, -v60
              v_sub_f32 v60, v60, v61
              v_mul_f32 v60, {hex(f2u(1/448/448))}, v60
              v_max_f32 v60, 0, v60''')
        rnd('v60', 'v60')
        a(f'v_add_f32 v60, {hex(f2u(1e-5))}, v60')
        rnd('v60', 'v60')
        a(f'v_sqrt_f32 v60, v60\nv_mul_f32 v62, {hex(f2u(1/448))}, v56')
        rnd('v60', 'v60')
        a('s_waitcnt lgkmcnt(0)\nv_rcp_f32 v60, v60')
        pk('add', 24, 24, 26); pk('add', 28, 28, 30)
        rnd('v62', 'v62')
        pk('add', 24, 24, 28)
        a('''v_fma_f32 v24, -v62, v16, v24
             v_add_f32 v24, v24, v25
             v_fma_f32 v24, v24, v60, v17''')
    rnd('v24', 'v24')
    silu(24, 24, 25, 's')
    if nw3:
        a('s_cbranch_vccnz L_7_tr\nL_7_tok:')
        rare.append(lambda: a(f'L_7_tr:\ns_add_u32 s62, s62, {STEP}\ns_cbranch_scc0 L_7_t\ns_branch L_7_tok'))
    a(f'ds_write_b16_d16_hi v15, v24 offset:{FH}')
    a(f'ds_write_b32 v31, v1 offset:{FC+28}' if nw4 else 's_waitcnt lgkmcnt(0)')
    a('''s_barrier
         s_bitcmp1_b32 s50, 0
         s_cbranch_scc1 L_fin3''')
    a(f'''ds_read_b32 v96, v3 offset:{FX}
          ds_read_b32 v100, v3 offset:{FG}
          s_cmp_eq_u32 s50, 0
          s_cbranch_scc0 L_7_e
          s_mov_b64 exec, 1
          v_mov_b32 v6, s30
          buffer_store_dword v6, v2, s[44:47], 0 offen
          s_mov_b64 exec, -1
          L_7_e:''')
    pad('s')
    a('s_barrier\ns_waitcnt lgkmcnt(0)')
    if d5: a(f'; back off one flight time: nothing can have arrived yet, and a read that is too early costs a whole round trip\ns_sleep {d5}')
    gather('L_x5', x5l, 36, 4, 5, issued=True, spec=sum_hi(36, 32))
    stamp(12)
    sum_lo(36, 32)
    pad('s')
    rscatter(32)
    a(f'v_add_f32_dpp v32, v32, v32 row_ror:8 {DPPF}')
    pad('s', True)
    a(f'v_add_f32_dpp v32, v32, v32 row_ror:4 {DPPF}')
    rnd('v32', 'v32'); a('v_mul_f32 v32, v100, v32'); rnd('v32', 'v32'); a('v_add_f32 v32, v96, v32\ns_mov_b64 exec, s[20:21]'); rnd('v32', 'v32')
    a('buffer_store_short_d16_hi v32, v101, s[36:39], 0 offen' + ofl)
    stamp(14)
    if lite: a('s_branch L_dump')
    a('L_fin3:')
    fin()
    for r in rare: r()
    rare.clear()
    a(f'''L_F8:
          s_lshl_b32 s48, s2, 7
          s_add_u32 s48, s48, {PRB}
          s_add_u32 s49, s48, {SIDE}
          s_mov_b32 s52, -1
          s_mov_b32 s53, -1
          s_mov_b32 s54, 0
          s_waitcnt lgkmcnt(0)''')
    if tlb:
        a(f'''s_lshl_b32 s50, s32, 25
              s_add_u32 s50, s50, {WINOFF}
              s_mov_b32 s51, {4096*896-4}
              s_load_dword s56, s[8:9], s50
              s_load_dword s57, s[12:13], 0
              s_load_dword s58, s[12:13], s51
              s_load_dword s59, s[16:17], 0
              s_load_dword s60, s[18:19], 0
              s_load_dword s61, s[24:25], 0''')
    dzero()
    if fside is not None:
        a(f'''s_getreg_b32 s55, hwreg(HW_REG_XCC_ID)
              s_bfe_u32 s55, s55, 0x10002
              s_xor_b32 s55, s55, {fside}
              s_lshl_b32 s55, s55, 13
              v_mov_b32 v3, s55
              ds_write_b32 v2, v3 offset:{FC+12}''')
    else:
        a('s_load_dword s10, s[28:29], s48 glc\ns_load_dword s11, s[28:29], s49 glc\ns_waitcnt lgkmcnt(0)\nL_8_l:')
        for sd in range(2):
            a(f'''s_memtime s[4:5]
                  s_waitcnt lgkmcnt(0)
                  s_load_dword s10, s[28:29], s{48+sd} glc
                  s_waitcnt lgkmcnt(0)
                  s_memtime s[6:7]
                  s_lshr_b32 s8, s33, {sd}
                  s_add_u32 s8, s8, s54
                  s_bitcmp1_b32 s8, 0
                  s_waitcnt lgkmcnt(0)
                  s_cbranch_scc0 L_8_n{sd}
                  s_sleep 3
                  L_8_n{sd}:
                  s_sub_u32 s4, s6, s4
                  s_min_u32 s{52+sd}, s{52+sd}, s4''')
        a(f'''s_cmp_lt_u32 s53, s52
              s_cselect_b32 s55, {SIDE}, 0
              v_mov_b32 v3, s55
              ds_write_b32 v2, v3 offset:{FC+12}''')
        if diag:
            for k in (1, 2, 3, 4): a(f's_cmp_eq_u32 s54, {k-1}\ns_cbranch_scc0 L_8_d{k}\ns_memrealtime s[{64+2*k}:{65+2*k}]\ns_add_u32 s{64+2*(k+4)}, s55, 1\nL_8_d{k}:')
        a(f'''s_add_u32 s54, s54, 1
              s_cmp_lt_u32 s54, {nprb}
              s_cbranch_scc1 L_8_l''')
    if diag:
        a('s_add_u32 s90, s55, 1\ns_getreg_b32 s88, hwreg(HW_REG_XCC_ID)\ns_mov_b32 s86, s52\ns_mov_b32 s84, s53')
        fin()
    else: a('s_endpgm')
    pfcode()
    if probe:
        a('L_probe:\ns_cmp_eq_u32 s68, 0\ns_cbranch_scc1 L_end')
        if len(probe) > 2 and probe[2] is not None: a(f's_cmp_eq_u32 s32, {probe[2]}\ns_cbranch_scc0 L_end')
        if len(probe) > 3 and probe[3] is not None: a(f's_cmp_eq_u32 s31, {probe[3]}\ns_cbranch_scc0 L_end')
        a('''s_setprio 0
             s_sleep 127
             s_sleep 127
             s_sleep 127
             s_sleep 127
             s_sleep 127
             L_probe_l:
             s_memrealtime s[66:67]
             s_waitcnt lgkmcnt(0)
             s_sub_u32 s66, s66, s64
             s_cmp_lt_u32 s66, 3000
             s_cbranch_scc1 L_probe_l
             s_endpgm''')
    if diag or lite:
        a(f'''L_dump:
              s_mov_b64 exec, -1
              s_waitcnt vmcnt(0) lgkmcnt(0)
              s_memrealtime s[94:95]
              s_lshl_b32 s48, s2, 4
              s_add_u32 s48, s48, s31
              s_lshl_b32 s48, s48, 6
              s_add_u32 s48, s48, {STAMP_OFF}
              v_mov_b32 v1, s48
              s_waitcnt lgkmcnt(0)''')
        for i in range(16): a(f'v_mov_b32 v{8+i}, s{64+2*i}')
        a('s_mov_b64 exec, 1')
        for i in range(4): a(f'global_store_dwordx4 v1, v[{8+4*i}:{11+4*i}], s[28:29] offset:{16*i}')
    a('L_end:\ns_endpgm\nL_code_end:')
    head = open('adaLN_cond__sliding_block_cached__dense_activation_silu__decode.s.ref').read().split('; Override launch')[0]
    return head + f'''; @launch grid=(256,1,1) block=(1024,1,1) lds={L_END}
{DOC.rstrip()}
.amdgcn_target "amdgcn-amd-amdhsa--gfx950"
.text
.globl {KN}
{'.p2align 12' if paged else ''}
.p2align 8
.type {KN},@function
''' + annotate(a.text()) + f'''.section .rodata,"a"
.p2align 6
.amdhsa_kernel {KN}
  .amdhsa_next_free_vgpr 128
  .amdhsa_next_free_sgpr {96 if rg is None else 102}
  .amdhsa_accum_offset 128
  .amdhsa_group_segment_fixed_size 0
  .amdhsa_kernarg_size 104
  .amdhsa_user_sgpr_count 2
  .amdhsa_user_sgpr_kernarg_segment_ptr 1
  .amdhsa_system_sgpr_workgroup_id_x 1
.end_amdhsa_kernel
'''

if __name__ == '__main__':
    out = sys.argv[1]
    kw = eval('dict(' + (sys.argv[2] if len(sys.argv) > 2 else '') + ')')
    open(out, 'w').write(gen(**kw))
```

```python
import sys, struct
sys.path.insert(0, 'work')
from asmlib import Asm

KN = 'adaLN_cond__sliding_block_cached__dense_activation_silu__decode_kernel'
X2, X2F, HINT, PRB, X1, X4, X5, X3, X3F, WSEND = 0x4000, 0x8000, 0xC000, 0x80000, 0x18000, 0x30000, 0x40000, 0xA0000, 0x100000, 0x160000
SIDE = 0x2000
STAMP_OFF = 0x180000
L_Q, L_M, L_C, L_L, L_Z, L_O, L_PRIV, L_P, L_END = 0x0, 0x800, 0x810, 0x840, 0x900, 0x1000, 0x5000, 0x5800, 0x6100
FM = 0x300
FZ, FC, FP, FP2, FST, FX, FG, FA, FH = 0x0, 0x240, 0x1000, 0x1800, 0x2000, 0x3000, 0x3800, 0x4000, 0x2100
WINOFF = (65536 - 4096) * 512

DOC = """;
"""
def f2u(x): return struct.unpack('<I', struct.pack('<f', x))[0]
LOG2E = 1.4426950408889634
DPPF = 'row_mask:0xf bank_mask:0xf'

CM = {'L_A': 'attention CUs: waves 0..7 start their K loads inside the first fetched lines', 'L_a_u': 'CUs whose modulation task is on the path to q let its loads go first', 'L_Td': 'waves 8..15 of the attention CUs; waves 12..15 clear the first 4 KB of LDS (q slot, max, counters, zero rows)', 'L_mod': 'modulation task: 112 rows x 64 columns of w_mod, raw rows as B operand, silu(c) on a diagonal A operand', 'L_F': 'front CUs: wq loads', 'L_a_c': 'attention: lane constants, then the paced K and V loads', 'L_a_q': 'attention: wait for q in LDS, scores (diagonal blocks of K x q), CU-wide max, exp, P x V, combine the waves, publish', 'L_T': 'tail waves: set-up, q poller (wave 8)', 'L_wo': 'wo block: weights after the V loads, gather the 24 partials of the head, rescale, multiply, publish', 'L_F2': 'front CUs: LayerNorm(x), gather shift / scale, h, q', 'L_q_done': 'FFN block: remaining modulation values, weights, constant products c1 @ w1 and sb @ w1', 'L_x4': 'FFN: gather the 16 head products, residual, (x2 * c1) @ w1 and statistics, then h1 @ w2', 'L_F7': 'wave 7 of the front CUs: weight gate, LayerNorm + SiLU between the products, final reduction', 'L_F8': 'wave 8 of the front CUs: which memory side answers faster', 'L_pf': 'idle waves of CUs without a wo block pull the FFN weights into L2'}
def annotate(t):
    return ''.join((f'; ---- {CM[l[:-1]]}\n' if l[:-1] in CM else '') + l + '\n' for l in t.rstrip('\n').split('\n'))

def reorder(t):
    def cut(t, a, b):
        i = t.index('\n' + a + ':\n') + 1; j = t.index('\n' + b + ':\n') + 1
        return t[:i] + t[j:], t[i:j]
    t, T = cut(t, 'L_T', 'L_wo')
    t, Q = cut(t, 'L_a_qr', 'L_a_s1r')
    return t.replace('L_a_q0:\n', T + '    s_branch L_wo\n' + Q + 'L_a_q0:\n')

def gen(W=5, WH=6, WK=3, WKH=4, N0=2, WE=7, NE=6, NL=4, adapt=True, diag=False, lite=False, probe=None, sleep=8, nt=' nt', w1nt='', wont=' nt',
        rewarm=True, gaten=8, hintk=16, hintpos=7, touchpos=2, spinbits=20, fastbits=6, prio=True, pprio=3, nprb=5,
        fside=None, nob=False, fpf=8, tbl=1, only=None, lk=0, LW=(5, 6, 7, 6), WR=None, pf3=True, wolate=False, fdelay=0, wopf=0, wolanes=32, fB3=0, fB3p=0, fB4=(12, 12), fM=True, tlb=False, mxe=False, dirty=0, epe=True, wopf2=0, peel=False, nwo=42, nmid=48, ldef=True, est=False, al={'L_x3': 0, 'L_x4': 2, 'L_x5': 3}, pads='', paged=True, pvf=True, wopf3=0, vpf=0, vpfk=8, vpffl='', hk3=4, nw3=True, nw4=True, nw2=False, pfnt='', gsl=0, w2nt=' nt', x5o=0, d5=9, pt5=True, lsl={}, bo={}, ofl='', opt=True, bev=4, x5w=None, rg=None, tm=0, ord2=True, ord3=True, bsl=24, bsn=-1, dbl={}, skz=('L_x3', 'L_x4', 'L_x5'), fX3=0, fX4=0, fA=(0, 0), half=True):
    a = Asm()
    rare = []
    STEP = 1 << (32 - spinbits)
    role = ['all']
    PH = {('att', 6), ('wo', 6), ('F', 8), ('F', 12)}
    def stamp(i):
        if (diag and (only is None or i == 0 or (role[0], i) in only)) or (lite and i in (0, 14)): a(f's_memrealtime s[{64+2*i}:{65+2*i}]')
        if probe and probe[0] == role[0] and probe[1] == i: a('s_memrealtime s[64:65]\ns_mov_b32 s68, 1')
    def xs(name):
        if diag and only and name in only: a('s_memrealtime s[84:85]')
        if diag and only and 'clk' in only and name in ('B3', 'mm2'):
            k = 1 if name == 'B3' else 3
            a(f's_memrealtime s[{64+2*k}:{65+2*k}]\ns_memtime s[{66+2*k}:{67+2*k}]')
            if name == 'B3': a('s_waitcnt lgkmcnt(0)')
    def align(k):
        if k in al:
            a('.p2align 6')
            for _ in range(al[k] + (2 if k != 'S' and not diag else 0)): a('s_nop 0')
    npad = {}
    def pad(k, last=False):
        if k not in pads: return
        i = npad.get(k, 0); npad[k] = i + 1
        a(f'L_pad{k}{i}:\ns_cbranch_execz L_pad{k}' + ('r' if last else str(i + 1)))
    def hop(k):
        if k in pads: a(f's_mov_b64 exec, 0\ns_branch L_pad{k}0\nL_pad{k}r:\ns_mov_b64 exec, -1')
    def fill(n, r):
        if r == 62:
            for _ in range(n): a('v_mfma_f32_16x16x32_bf16 v[72:75], v[16:19], v[16:19], 0')
        elif r == 63:
            for _ in range(n): a('v_mfma_f32_16x16x32_bf16 v[88:91], v[16:19], v[16:19], 0')
        elif fM and r == 9:
            for _ in range((n + 2) // 4): a('v_mfma_f32_16x16x32_bf16 v[116:119], v[16:19], v[16:19], 0')
        else:
            for _ in range(n): a(f'v_mov_b32 v{r}, 0')
    def fin(): a('s_branch L_dump' if diag else 's_branch L_probe' if probe else 's_endpgm')
    def setprio(n):
        if prio: a(f's_setprio {n}')
    def tags():
        a('''s_add_u32 s30, s30, 1
             s_and_b32 s34, s30, 0x7f
             s_xor_b32 s35, s34, 0x5a
             s_lshl_b32 s3, s35, 8
             s_or_b32 s3, s3, s34''')
    def ws_srd():
        a(f'''s_mov_b32 s44, s28
              s_mov_b32 s45, s29
              s_mov_b32 s46, {WSEND}
              s_mov_b32 s47, 0x20000''')
    def lanetag(d, bit):
        a(f'''v_bfe_u32 v{d}, v0, {bit}, 1
              v_mul_u32_u24 v{d}, 0x5a, v{d}
              v_xor_b32 v{d}, s34, v{d}''')
    def rowtag(m, t):
        lanetag(t, 2)
        a(f'''v_and_b32 v{m}, 3, v0
              v_cmp_eq_u32 vcc, 0, v{m}
              v_mov_b32 v{m}, 0xffffff00
              v_cndmask_b32 v{t}, 0, v{t}, vcc
              v_cndmask_b32 v{m}, -1, v{m}, vcc''')
    def spin(loop, done):
        a(f'''s_cbranch_vccz {done}
              s_add_u32 s62, s62, {STEP}
              s_cbranch_scc0 {loop}
              {done}:''')
    def ldswait(lbl, off, n, sl, z=100):
        if not n: return
        a(f'v_mov_b32 v{z}, 0\ns_mov_b32 s62, 0\n{lbl}:')
        if sl: a(f's_sleep {sl}')
        a(f'''ds_read_b32 v{z+1}, v{z} offset:{off}
              s_waitcnt lgkmcnt(0)
              v_cmp_gt_u32 vcc, {n}, v{z+1}''')
        spin(lbl, lbl + 'ok')
    def gather(lbl, loads, raw, masks, vt, spec='', switch=None, nfast=0, issued=False, warm=None):
        n = len(loads)
        a('s_mov_b32 s62, 0')
        if switch: a(f's_mov_b32 s63, {(1 << 32) // nfast}')
        if issued:
            a(f's_branch {lbl}_w')
            if paged and lbl == 'L_x4':
                a('.p2align 12')
                if hintk and ord3:
                    a('L_f_gp:'); ldswait('L_f_g', FC + 8, 1, 1, 104); a('s_branch L_f_gb')
            align(lbl)
        else:
            for i in range(n): a(f's_mov_b64 s[{masks+2*i}:{masks+2*i+1}], -1')
        a(f'{lbl}:')
        if lbl in lsl: a(f's_sleep {lsl[lbl]}')
        for i, l in enumerate(loads):
            if lbl in skz: a(f's_wqm_b64 exec, s[{masks+2*i}:{masks+2*i+1}]\ns_cbranch_scc0 {lbl}_z{i}\n{l}\n{lbl}_z{i}:')
            else: a(f's_wqm_b64 exec, s[{masks+2*i}:{masks+2*i+1}]\n{l}')
        for sl in dbl.get(lbl, ()):
            a(f's_sleep {sl}')
            for i, l in enumerate(loads): a(f's_wqm_b64 exec, s[{masks+2*i}:{masks+2*i+1}]\n{l}')
        a(f'''s_mov_b64 exec, -1
              s_add_u32 s62, s62, {'s63' if switch else STEP}
              s_cbranch_scc1 {lbl}_r''')
        if lbl in bo:
            T, k = bo[lbl]
            a(f's_bcnt1_i32_b64 s26, s[{masks}:{masks+1}]')
            for i in range(1, n): a(f's_bcnt1_i32_b64 s27, s[{masks+2*i}:{masks+2*i+1}]\ns_add_u32 s26, s26, s27')
            a(f's_cmp_gt_u32 s26, {T}\ns_cbranch_scc0 {lbl}_w\ns_sleep {k}')
        if warm: fill(*warm)
        a(f'{lbl}_w:\ns_waitcnt vmcnt(0)')
        for i in range(n): a(f'v_cmp_ne_u32_sdwa s[{masks+2*i}:{masks+2*i+1}], v{raw+4*i}, v{vt} src0_sel:BYTE_0 src1_sel:DWORD')
        a(spec)
        a(f's_or_b64 vcc, s[{masks}:{masks+1}], s[{masks+2}:{masks+3}]')
        for i in range(2, n): a(f's_or_b64 vcc, vcc, s[{masks+2*i}:{masks+2*i+1}]')
        a(f's_cbranch_scc1 {lbl}\n{lbl}_ok:')
        def r():
            a(f'{lbl}_r:')
            if switch:
                a(f's_cmp_eq_u32 s63, {STEP}\ns_cbranch_scc1 {lbl}_x\ns_mov_b32 s63, {STEP}\n{switch}\ns_branch {lbl}_w\n{lbl}_x:')
            a(f's_waitcnt vmcnt(0)\ns_mov_b64 vcc, 0\ns_branch {lbl}_ok')
        rare.append(r)
    def poll4(lbl, loads, raw, t, sl=0, issued=False):
        a(f'''v_mov_b32 v{t+2}, 0
              ds_read_b32 v{t+3}, v{t+2} offset:{FC+12}
              s_and_b32 s4, s34, 3
              s_and_b32 s5, s35, 3
              s_mov_b32 s62, 0
              s_waitcnt lgkmcnt(0)''')
        if issued: a(f's_branch {lbl}_w')
        a(f'{lbl}:\nv_add_u32 v{t+1}, v7, v{t+3}')
        if sl: a(f's_sleep {sl}')
        for l in loads: a(l)
        a(f'ds_read_b32 v{t+3}, v{t+2} offset:{FC+12}\n{lbl}_w:\ns_waitcnt vmcnt(0) lgkmcnt(0)')
        n = 4 * len(loads)
        for k in range(n): a(f'v_xor_b32 v{raw+k}, s{4+(k&1)}, v{raw+k}')
        a(f'v_or_b32 v{t}, v{raw}, v{raw+1}')
        for k in range(2, n, 2): a(f'v_or3_b32 v{t}, v{t}, v{raw+k}, v{raw+k+1}')
        a(f'v_and_b32 v{t}, 3, v{t}\nv_cmp_ne_u32 vcc, 0, v{t}')
        spin(lbl, lbl + '_ok')
    def pk(op, d, x, y): a(f'v_pk_{op}_f32 v[{d}:{d+1}], v[{x}:{x+1}], v[{y}:{y+1}]')
    def rscatter(r):
        a(f'v_permlane32_swap_b32 v{r}, v{r+2}\nv_permlane32_swap_b32 v{r+1}, v{r+3}')
        pk('add', r, r, r + 2)
        a(f'v_permlane16_swap_b32 v{r}, v{r+1}\nv_add_f32 v{r}, v{r}, v{r+1}')
    def rnd(d, s): a(f'v_cvt_pk_bf16_f32 {d}, 0, {s}')
    def allred_rows(op, r, t):
        a(f'''v_mov_b32 v{t}, v{r}
              v_permlane32_swap_b32 v{r}, v{t}
              {op} v{r}, v{r}, v{t}
              v_mov_b32 v{t}, v{r}
              v_permlane16_swap_b32 v{r}, v{t}
              {op} v{r}, v{r}, v{t}''')
    def perm_sel(): a('s_mov_b32 s60, 0x05040100\ns_mov_b32 s61, 0x07060302')
    def perms64(raw, dst):
        for tau in range(4):
            for rho in range(4):
                a(f'v_perm_b32 v{dst+4*tau+rho}, v{raw+2*(2*rho+1)+(tau>>1)}, v{raw+2*(2*rho)+(tau>>1)}, s{60+(tau&1)}')
    def fix4(raw, t):
        for u0 in (0, 2):
            for i in range(2): a(f'v_pk_mov_b32 v[{t+2*i}:{t+2*i+1}], v[{raw+4*(u0+i)+2}:{raw+4*(u0+i)+3}], v[{raw+4*(u0+i)+2}:{raw+4*(u0+i)+3}] op_sel:[0,1]')
            rs = [raw + 4 * u + d for u in (u0, u0 + 1) for d in (0, 1)]
            for i, r in enumerate(rs): a(f'v_mov_b32_dpp v{r+2}, v{r} row_ror:8 row_mask:0xf bank_mask:0x3')
            for i, r in enumerate(rs): a(f'v_mov_b32_dpp v{r}, v{t+i} row_ror:8 row_mask:0xf bank_mask:0xc')
    def voff4(d, gstride, stride, t):
        a(f'''v_lshrrev_b32 v{t}, 4, v0
              v_mul_u32_u24 v{d}, {gstride}, v{t}
              v_bfe_u32 v{t}, v0, 3, 1
              v_mul_u32_u24 v{t}, {stride}, v{t}
              v_add_u32 v{d}, v{d}, v{t}
              v_and_b32 v{t}, 7, v0
              v_lshl_add_u32 v{d}, v{t}, 4, v{d}''')
    def maskaddr(dst, n, base, zero, t):
        a(f'''v_lshrrev_b32 v{t}, 4, v0
              v_lshlrev_b32 v{t}, 4, v{t}
              v_add_u32 v{t}, {base}, v{t}
              v_and_b32 v{t+1}, {n-1}, v0
              v_mov_b32 v{t+2}, {zero}''')
        for tau in range(n):
            a(f'v_cmp_eq_u32 vcc, {tau}, v{t+1}')
            a(f'v_cndmask_b32 v{dst+tau}, v{t+2}, v{t}, vcc')
    def silu(d, x, t, p=None):
        a(f'''v_mul_f32 v{t}, {hex(f2u(-LOG2E))}, v{x}
              v_exp_f32 v{t}, v{t}''')
        if p: pad(p)
        a(f'''v_add_f32 v{t}, 1.0, v{t}
              v_rcp_f32 v{t}, v{t}
              v_mul_f32 v{t}, v{x}, v{t}''')
        rnd(f'v{d}', f'v{t}')
    def silu_fine(d, x, t):
        L = struct.unpack('<f', struct.pack('<f', -LOG2E))[0]
        a(f'''s_mov_b32 s58, {hex(f2u(L))}
              v_mul_f32 v{t}, s58, v{x}
              v_fma_f32 v{t+1}, v{x}, s58, -v{t}
              v_fmac_f32 v{t+1}, {hex(f2u(-LOG2E - L))}, v{x}
              v_min_f32 v{t}, 0x42fc0000, v{t}
              v_exp_f32 v{t}, v{t}
              v_mul_f32 v{t+1}, {hex(f2u(0.6931471805599453))}, v{t+1}
              v_fmac_f32 v{t}, v{t}, v{t+1}
              v_add_f32 v{t}, 1.0, v{t}
              v_rcp_f32 v{t+1}, v{t}
              v_mul_f32 v{t+2}, v{x}, v{t+1}
              v_fma_f32 v{t}, -v{t+2}, v{t}, v{x}
              v_fmac_f32 v{t+2}, v{t}, v{t+1}''')
        rnd(f'v{d}', f'v{t+2}')
    def ln_apply(s1, s2, x, t):
        a(f'''v_mul_f32 v{t}, v{s1}, v{s1}
              v_fma_f32 v{t+1}, v{s1}, v{s1}, -v{t}
              v_fma_f32 v{t}, v{s2}, s59, -v{t}
              v_sub_f32 v{t}, v{t}, v{t+1}
              v_mul_f32 v{t}, {hex(f2u(1/448/448))}, v{t}
              v_max_f32 v{t}, 0, v{t}''')
        rnd(f'v{t}', f'v{t}')
        a(f'v_add_f32 v{t}, {hex(f2u(1e-5))}, v{t}')
        rnd(f'v{t}', f'v{t}')
        a(f'v_sqrt_f32 v{t}, v{t}\nv_mul_f32 v{t+1}, {hex(f2u(1/448))}, v{s1}')
        rnd(f'v{t}', f'v{t}'); rnd(f'v{t+1}', f'v{t+1}')
        a(f'v_rcp_f32 v{t+2}, v{t}\nv_sub_f32 v{t+1}, v{x[1]}, v{t+1}')
        rnd(f'v{t+1}', f'v{t+1}')
        a(f'''v_mul_f32 v{t+3}, v{t+1}, v{t+2}
              v_fma_f32 v{t}, -v{t+3}, v{t}, v{t+1}
              v_fmac_f32 v{t+3}, v{t}, v{t+2}''')
        rnd(f'v{x[0]}', f'v{t+3}')
    def mma(n, acc, A, B, left=0, first=True, wait=True):
        for i in range(n):
            if wait: a(f's_waitcnt lgkmcnt({0 if (diag and only is None) else n-1-i+left})')
            a(f'v_mfma_f32_16x16x32_bf16 v[{acc}:{acc+3}], v[{A+4*i}:{A+4*i+3}], v[{B+4*i}:{B+4*i+3}], ' + ('0' if i == 0 and first else f'v[{acc}:{acc+3}]'))
    def mma2(acc, A, B, left=0, first=True, wait=True, mid=None):
        for par in range(2):
            if wait: a(f's_waitcnt lgkmcnt({0 if (diag and only is None) else 1-par+left})')
            for hi in range(2):
                d = acc + 4 * hi; b = B + 4 * (2 * hi + par)
                a(f'v_mfma_f32_16x16x32_bf16 v[{d}:{d+3}], v[{A+4*par}:{A+4*par+3}], v[{b}:{b+3}], ' + ('0' if par == 0 and first else f'v[{d}:{d+3}]'))
                if mid and par == 0 and hi == 0: a(mid)
    def sumrows(n, ldsoff, va, first=None, shadow=None):
        o = ldsoff // 256
        for u in range(n // 2): a(f'ds_read2st64_b32 v[{16+2*u}:{17+2*u}], v{va} offset0:{o+2*u} offset1:{o+2*u+1}')
        if n & 1: a(f'ds_read_b32 v22, v{va} offset:{ldsoff+256*(n-1)}\nv_mov_b32 v23, 0')
        if shadow: a(shadow)
        a('s_waitcnt lgkmcnt(0)')
        if first: a(first)
        pk('add', 16, 16, 18); pk('add', 20, 20, 22); pk('add', 16, 16, 20)
        a('v_add_f32 v16, v16, v17')

    def getside(t):
        a(f'''v_mov_b32 v{t}, 0
              ds_read_b32 v{t}, v{t} offset:{FC+12}
              s_waitcnt lgkmcnt(0)
              v_readfirstlane_b32 s48, v{t}''')
    def dzero():
        if diag:
            for i in range(1, 16): a(f's_mov_b32 s{64+2*i}, 0')
    K0, V0, RT = 8, 56, 96
    a(f'{KN}:')
    if probe: a('s_mov_b32 s68, 0')
    stamp(0)
    a(f'''s_load_dwordx16 s[4:19], s[0:1], 0
          s_load_dwordx8 s[20:27], s[0:1], 64
          s_load_dwordx2 s[28:29], s[0:1], 96
          v_readfirstlane_b32 s31, v0
          s_and_b32 s32, s2, 7
          s_lshr_b32 s33, s2, 3
          s_lshr_b32 s31, s31, 6
          s_sub_u32 s33, s33, 8
          s_cbranch_scc0 L_A''')
    a(f'''s_getpc_b64 s[48:49]
          L_pc:
          v_lshlrev_b32 v2, 7, v0
          v_min_u32 v2, L_code_end-L_pc-4, v2
          global_load_dword v127, v2, s[48:49]
          s_branch L_F
          L_A:
          s_cmp_ge_u32 s31, 8
          s_cbranch_scc1 L_Td
          s_cmp_ge_u32 s33, 17
          s_cbranch_scc1 L_a_u
          L_att:''')
    role[0] = 'att'
    if tbl < 2:
        ta, tb, tc, td = ((5, 16, 17, 42), (4, 13, 15, 43))[tbl]; bias = 0
        a(f'''s_mul_i32 s50, s33, {ta}
              s_add_u32 s51, s50, 6
              s_min_u32 s50, s50, {tb}
              s_min_u32 s51, s51, {tc}
              s_mul_i32 s49, s33, {td}
              L_att2:
              s_add_u32 s50, s50, s31''')
    else:
        bias = 14 * nwo - 1
        a(f'''s_sub_u32 s50, s33, 14
              s_cselect_b32 s51, {nwo - 40}, {nmid - 40}
              s_cselect_b32 s49, {nwo}, {nmid}
              s_mul_i32 s49, s49, s50
              L_att2:
              s_add_u32 s50, s31, 1''')
    if tm == 0:
        a('''s_min_u32 s48, s50, s51
             s_add_u32 s48, s48, s49
             s_mul_i32 s49, s31, 5
             s_add_u32 s48, s48, s49''')
    else:
        assert tbl == 1 and rg is not None
        a('s_add_u32 s48, s50, s49')
    if rg is None:
        a(f'''s_lshl_b32 s49, s32, 14
              s_add_u32 s48, s48, s49
              s_addk_i32 s48, {WINOFF // 2048 + 2 + bias}
              s_lshl_b32 s48, s48, 11''')
    else:
        a(f'''s_mul_i32 s49, s32, {rg}
              s_add_u32 s48, s48, s49''')
        if bias: a(f's_addk_i32 s48, {bias}')
        if tm == 0: a(f's_lshl_b32 s{RT}, s48, 11\ns_add_u32 s{RT+1}, s{RT}, 2048')
        elif tm == 1: a(f's_lshl_b32 s{RT+1}, s48, 11\ns_add_u32 s{RT}, s{RT+1}, {40*2048}')
        else: a(f's_lshl_b32 s{RT}, s48, 11\ns_add_u32 s{RT}, s{RT}, {40*2048}\ns_add_u32 s48, s48, s31\ns_lshl_b32 s{RT+1}, s48, 11')
        a(f'''              s_and_b32 s{RT}, s{RT}, 0x1fffff
              s_and_b32 s{RT+1}, s{RT+1}, 0x1fffff
              s_lshl_b32 s48, s32, 25
              s_add_u32 s48, s48, {WINOFF}
              s_mov_b32 s38, 0x200000
              s_mov_b32 s39, 0x20000''')
        assert N0 <= 2
    a(f'''          v_and_b32 v2, 12, v0
          v_and_b32 v3, 48, v0
          v_and_b32 v4, 3, v0
          v_lshlrev_b32 v6, 7, v2
          v_lshl_add_u32 v6, v3, 2, v6
          v_lshl_add_u32 v6, v4, 4, v6
          s_waitcnt lgkmcnt(0)
          s_add_u32 s36, s6, s48
          s_addc_u32 s37, s7, 0
          s_cmp_le_u32 s50, s51
          s_cbranch_scc0 L_a_k1''')
    cnt = [0]
    win = [W, WH, WE, NE]
    def kvload(srd, va, base, t, hf, late=False):
        W, WH, WE, NE = win[:4]
        wk, wkh = win[4:] if len(win) > 4 else (WK, WKH)
        w = WH if late else wk if (wk and srd == 36) else W
        if wkh and srd == 36: WH = wkh
        if WE and srd == 40 and 2 * (5 - t) + 1 - hf < NE: a(f's_waitcnt vmcnt({WE-1})')
        elif cnt[0] >= 2 + N0:
            if WH != w: a(f's_waitcnt vmcnt({WH-1})\ns_cbranch_vccnz L_w{cnt[0]}_\ns_waitcnt vmcnt({w-1})\nL_w{cnt[0]}_:')
            else: a(f's_waitcnt vmcnt({w-1})')
        cnt[0] += 1
        r = base + 8 * t + 4 * hf
        b = srd + 2 * (t // 4)
        if rg is not None: a(f'buffer_load_dwordx4 v[{r}:{r+3}], v{va}, s[{srd}:{srd+3}], s{RT+t} offen offset:{hf * 256}{nt}')
        else: a(f'global_load_dwordx4 v[{r}:{r+3}], v{va}, s[{b}:{b+1}] offset:{((t & 3) - 2) * 2048 + hf * 256}{nt}')
    kvload(36, 6, K0, 0, 0); kvload(36, 6, K0, 0, 1)
    a('L_a_k1:')
    kl = [(t, hf) for t in (1, 2, 3) for hf in range(2)]
    for t, hf in kl[:N0]: kvload(36, 6, K0, t, hf)
    a('s_branch L_a_c')
    a('''L_a_u:
         s_cmp_ge_u32 s33, 24
         s_cbranch_scc1 L_end
         s_barrier''')
    if tbl == 2:
        rest = 1024 - 14 * nwo - 3 * nmid; lo = rest // 7; ex = rest - 7 * lo
        assert 40 <= lo and lo + (ex > 0) <= 48
        a(f'''s_sub_u32 s50, s33, 17
              s_mul_i32 s49, s50, {lo}
              s_min_u32 s50, s50, {ex}
              s_cselect_b32 s51, {lo - 39}, {lo - 40}
              s_add_u32 s49, s49, s50
              s_add_u32 s49, s49, {3 * nmid}
              s_branch L_att2''')
    elif tbl: a('s_mov_b32 s50, 64\ns_mov_b32 s51, 63\ns_mul_i32 s49, s33, 40\ns_branch L_att2')
    else: a('s_branch L_att')
    a(f'''L_Td:
          s_cmp_ge_u32 s33, 24
          s_cbranch_scc1 L_end
          s_sub_u32 s50, s33, {14 if tbl == 2 else 0}
          s_cmp_ge_u32 s50, 3
          s_cselect_b32 s50, 9, 0
          s_cmp_eq_u32 s31, s50
          s_cbranch_scc1 L_mod''')
    a(f'''s_cmp_ge_u32 s31, 12
          s_cbranch_scc0 L_T0
          v_mov_b32 v8, {hex(f2u(-3e38))}
          v_cmp_eq_u32 vcc, {768 + L_M // 16}, v0
          v_lshlrev_b32 v2, 4, v0
          v_mov_b32 v9, 0
          v_cndmask_b32 v8, 0, v8, vcc
          v_mov_b32 v11, 0
          v_subrev_u32 v2, {768 * 16}, v2
          v_mov_b32 v10, v8
          ds_write_b128 v2, v[8:11]
          s_waitcnt lgkmcnt(0)''')
    if lk:
        a('''s_lshl_b32 s50, s33, 4
             s_add_u32 s50, s50, s31
             s_cmp_eq_u32 s50, 12
             s_cbranch_scc0 L_T0
             v_mov_b32 v8, 1
             s_mov_b64 exec, 1
             global_atomic_add v9, v8, s[26:27] sc1
             s_mov_b64 exec, -1''')
    a(f'''L_T0:
          s_barrier
          s_branch L_T
          L_mod:''')
    role[0] = 'mod'
    def tail_setup():
        a('s_load_dword s30, s[28:29], 0\ns_sub_u32 s49, s31, 8')
        ws_srd(); perm_sel()
        a(f's_lshl_b32 s56, s49, 8\ns_add_u32 s56, s56, {L_PRIV}')
    a('v_and_b32 v0, 63, v0')
    setprio(3)
    a(f'''s_cmp_ge_u32 s33, 17
          s_cselect_b32 s50, -17, {7 if tbl == 2 else 4}
          s_add_u32 s50, s50, s33
          s_lshl_b32 s50, s50, 3
          s_add_u32 s50, s50, s32
          s_and_b32 s51, s50, 3
          s_lshr_b32 s52, s50, 2
          s_mov_b32 s38, {448*5376}
          s_mov_b32 s39, 0x20000
          s_movk_i32 s42, 896
          s_mov_b32 s43, 0x20000
          s_mul_i32 s54, s51, {112*5376}
          s_lshl_b32 s55, s52, 7
          s_add_u32 s54, s54, s55
          s_mul_i32 s53, s51, 224
          v_lshlrev_b32 v2, 2, v0
          v_lshrrev_b32 v1, 3, v0
          v_mul_u32_u24 v3, {14*5376}, v1
          v_and_b32 v4, 7, v0
          v_lshl_add_u32 v3, v4, 4, v3
          s_waitcnt lgkmcnt(0)
          s_mov_b64 s[36:37], s[22:23]
          s_mov_b64 s[40:41], s[20:21]
          buffer_load_dword v8, v2, s[40:43], s53 offen''')
    for m in range(14):
        a(f'buffer_load_dwordx4 v[{72+4*m}:{75+4*m}], v3, s[36:39], s54 offen{nt}')
        if m < 13: a('s_addk_i32 s54, 5376')
    def fstart():
        a(f'''L_F:
              s_add_u32 s33, s33, 8
              v_and_b32 v0, 63, v0
              s_cmp_ge_u32 s31, 7
              s_cbranch_scc1 L_F7s
              s_lshl_b32 s48, s31, 19
              s_lshl_b32 s49, s32, 10
              s_add_u32 s48, s48, s49
              s_lshl_b32 s49, s33, 7
              s_add_u32 s48, s48, s49
              v_lshrrev_b32 v3, 4, v0
              v_lshlrev_b32 v2, 16, v3
              v_and_b32 v4, 8, v0
              v_lshl_add_u32 v2, v4, 10, v2
              v_and_b32 v5, 7, v0
              v_lshl_add_u32 v2, v5, 4, v2
              v_lshl_add_u32 v5, v5, 4, v4
              v_lshl_add_u32 v6, v3, 1, v5
              s_lshl_b32 s50, s31, 7
              v_add_u32 v101, s50, v6
              v_lshlrev_b32 v7, 4, v0
              s_mov_b32 s38, {448*8192}
              s_mov_b32 s39, 0x20000
              s_movk_i32 s42, 896
              s_mov_b32 s43, 0x20000
              s_waitcnt lgkmcnt(0)
              s_mov_b64 s[36:37], s[10:11]
              s_mov_b64 s[40:41], s[4:5]
              buffer_load_dwordx4 v[96:99], v7, s[40:43], 0 offen
              buffer_load_ushort v100, v101, s[40:43], 0 offen''')
        for u in range(2):
            for t in range(4):
                a(f'buffer_load_dwordx4 v[{32+16*u+4*t}:{35+16*u+4*t}], v2, s[36:39], s48 offen{nt}')
                if not (u == 1 and t == 3): a(f's_addk_i32 s48, {2*8192}' if t < 3 else f's_add_u32 s48, s48, {26*8192}')
            if u == 0: a('s_barrier')
    a('s_barrier')
    if paged:
        a('s_branch L_mod2')
        fstart()
        a(f'''s_branch L_F2
              L_F7s:
              s_cmp_ge_u32 s31, 9
              s_cbranch_scc1 L_F9
              v_mov_b32 v2, 0
              v_lshlrev_b32 v3, 2, v0
              ds_write_b32 v3, v2 offset:{FC & ~255}
              s_waitcnt lgkmcnt(0)
              s_barrier
              s_branch L_F7
              L_F9:
              s_endpgm''')
    def modrest():
        keep = role[0]; role[0] = 'mod'
        if paged: a('L_mod2:')
        dzero(); stamp(1)
        tail_setup()
        a(f'''v_mul_u32_u24 v3, 37, v0
              v_lshrrev_b32 v3, 8, v3
              v_add_u32 v3, v3, v0
              v_lshl_add_u32 v3, v3, 2, s56
              v_lshl_add_u32 v1, v1, 5, s56
              v_and_b32 v9, 1, v0
              v_lshlrev_b32 v9, 4, v9
              v_mov_b32 v10, 0xffff
              v_lshlrev_b32 v9, v9, v10
              v_bfe_u32 v10, v0, 1, 2''')
        for rho in range(4):
            a(f'v_cmp_eq_u32 vcc, {rho}, v10')
            a(f'v_cndmask_b32 v{4+rho}, 0, v9, vcc')
        a('''s_mov_b32 s52, 0x01000100
             s_mov_b32 s53, 0x03020302
             s_waitcnt vmcnt(14)
             v_lshlrev_b32 v9, 16, v8
             v_and_b32 v10, 0xffff0000, v8''')
        silu_fine(9, 9, 12); silu_fine(10, 10, 12)
        a(f'''v_perm_b32 v9, v10, v9, s61
              s_mov_b32 exec_hi, 0xffffff
              ds_write_b32 v3, v9
              s_mov_b32 exec_hi, -1
              ds_read_b128 v[8:11], v1
              ds_read_b96 v[12:14], v1 offset:16
              s_lshr_b32 s51, s50, 5
              s_lshl_b32 s51, s51, 13
              s_lshl_b32 s50, s50, 8
              s_add_u32 s50, s50, s51
              s_add_u32 s50, s50, {X1}
              s_add_u32 s51, s50, {SIDE}
              v_lshrrev_b32 v2, 4, v0
              v_and_b32 v3, 7, v0
              v_lshlrev_b32 v3, 4, v3
              v_lshl_add_u32 v2, v2, 7, v3
              s_waitcnt lgkmcnt(0)''')
        tags()
        for m in range(14):
            a(f'v_perm_b32 v15, v{8+(m>>1)}, v{8+(m>>1)}, s{52+(m&1)}')
            for rho in range(4): a(f'v_and_b32 v{16+4*m+rho}, v15, v{4+rho}')
        a('v_and_b32_e64 v4, s34, 3\nv_and_b32_e64 v5, s35, 3')
        for m in range(14):
            a(f's_waitcnt vmcnt({13-m})')
            a(f'v_mfma_f32_16x16x32_bf16 v[8:11], v[{16+4*m}:{19+4*m}], v[{72+4*m}:{75+4*m}], ' + ('0' if m == 0 else 'v[8:11]'))
        a('''v_pk_mov_b32 v[12:13], v[8:9], v[8:9] op_sel:[0,1]
             v_pk_mov_b32 v[14:15], v[10:11], v[10:11] op_sel:[0,1]''')
        for i in range(4): a(f'v_permlane32_swap_b32 v{8+i}, v{12+i}')
        for i in range(4): a(f'v_add_f32_dpp v{8+i}, v{12+i}, v{8+i} row_ror:8 {DPPF}')
        a('s_mov_b64 exec, 0xff00ff')
        for i in range(4): a(f'v_add_u32 v{8+i}, 2, v{8+i}')
        for i in range(4): a(f'v_and_or_b32 v{8+i}, v{8+i}, -4, v{4+(i&1)}')
        a('buffer_store_dwordx4 v[8:11], v2, s[44:47], s50 offen sc1\nbuffer_store_dwordx4 v[8:11], v2, s[44:47], s51 offen sc1\ns_mov_b64 exec, -1')
        stamp(2)
        setprio(0)
        a('s_cmp_lt_u32 s33, 14\ns_cbranch_scc1 L_t_go2')
        fin()
        role[0] = keep
    if not (paged and ord2): modrest()
    role[0] = 'att'
    a('L_a_c:')
    def setup_att():
        dzero(); stamp(1)
        if lk: a('s_load_dword s56, s[26:27], 0')
        a(f'''s_load_dword s30, s[28:29], 0
              s_cmp_le_u32 s50, s51
              s_cselect_b32 s51, 1, 0
              s_add_u32 s40, s8, s48
              s_addc_u32 s41, s9, 0''')
        if rg is None:
            a('''s_add_u32 s38, s36, 8192
                 s_addc_u32 s39, s37, 0
                 s_add_u32 s42, s40, 8192
                 s_addc_u32 s43, s41, 0''')
        else:
            a('s_mov_b32 s42, 0x200000\ns_mov_b32 s43, 0x20000')
            for t in range(2, 6):
                if tm == 2 and t == 5: a(f's_sub_u32 s{RT+5}, s{RT}, {8*2048}')
                else: a(f's_add_u32 s{RT+t}, s{RT+t-1}, {2048 * ((1, 8, (1, 15)[t & 1])[tm])}')
                a(f's_and_b32 s{RT+t}, s{RT+t}, 0x1fffff')
        a(f'''              s_cmp_ge_u32 s33, 17
              s_cbranch_scc1 L_a_nb2
              s_barrier
              L_a_nb2:
              v_and_b32 v0, 63, v0
              v_and_b32 v5, 15, v0
              v_lshlrev_b32 v7, 5, v3
              v_lshl_add_u32 v7, v5, 4, v7
              v_bfe_u32 v2, v0, 3, 1
              v_lshlrev_b32 v1, 10, v2
              v_lshl_add_u32 v1, v3, 3, v1
              v_lshl_add_u32 v1, v4, 5, v1
              v_and_b32 v104, 1, v0
              v_lshlrev_b32 v104, 4, v104
              v_mov_b32 v105, 0xffff
              v_lshlrev_b32 v104, v104, v105
              v_bfe_u32 v105, v0, 1, 2''')
        for rho in range(4):
            a(f'v_cmp_eq_u32 vcc, {rho}, v105')
            a(f'v_cndmask_b32 v{2+rho}, 0, v104, vcc')
        ws_srd(); perm_sel()
        a(f'''s_mov_b32 s58, {hex(f2u(0.0625 * LOG2E))}
              s_bfe_u32 s57, s31, 0x10001
              s_lshl_b32 s49, s32, 1
              s_add_u32 s54, s57, s49
              s_mul_i32 s54, s54, 24
              s_add_u32 s54, s54, s33
              s_lshl_b32 s54, s54, 10
              s_lshr_b32 s49, s31, 2
              s_lshl_b32 s49, s49, 9
              s_add_u32 s54, s54, s49
              s_and_b32 s49, s31, 1
              s_lshl_b32 s49, s49, 8
              s_add_u32 s54, s54, s49
              s_add_u32 s55, s54, {X3F}
              s_add_u32 s54, s54, {X3}
              s_mul_i32 s59, s32, 24
              s_add_u32 s59, s59, s33
              s_lshl_b32 s59, s59, 7
              s_add_u32 s59, s59, {HINT}
              v_lshlrev_b32 v104, 2, v0
              s_mov_b32 s48, s51
              s_mov_b32 s49, 0
              s_mov_b64 vcc, s[48:49]''')
    setup_att()
    vl = [(t, hf) for t in range(1, 6) for hf in range(2)]
    late = vl[10 - NL:]
    assert 2 * (6 - touchpos) >= NL and NL <= 4 and hintpos == 7 and WE and NE >= NL and (not lk or LW[2] == WE)
    for t, hf in kl[N0:]: kvload(36, 6, K0, t, hf)
    a('s_waitcnt lgkmcnt(0)')
    tags()
    hop('a')
    def paced(x):
        for t in range(4, 6): kvload(36, 6, K0, t, 0); kvload(36, 6, K0, t, 1)
        stamp(2)
        a(f's_cmp_eq_u32 s51, 0\ns_cbranch_scc0 L_a_v0{x}')
        for i in range(4): a(f'v_mov_b32 v{K0+i}, {hex(f2u(-1e30))}')
        a(f's_branch L_a_v1{x}\nL_a_v0{x}:')
        kvload(40, 7, V0, 0, 0); kvload(40, 7, V0, 0, 1)
        a(f'L_a_v1{x}:')
        for t in range(1, 6):
            if t == touchpos:
                a('buffer_load_dword v6, v104, s[44:47], s55 offen sc1')
            for hf in range(2):
                if (t, hf) not in late: kvload(40, 7, V0, t, hf)
    if lk:
        if diag: a('s_add_u32 s82, s56, 1')
        a(f's_cmp_ge_u32 s56, {lk}\ns_cbranch_scc1 L_a_pl')
        def pl():
            keep = list(win); win[:] = LW
            a('L_a_pl:'); paced('l'); a('s_branch L_a_pd')
            win[:] = keep
        rare.append(pl)
    paced('')
    a('L_a_pd:')
    def count(off): a(f's_mov_b64 exec, 1\nds_inc_u32 v0, v2 offset:{off}\ns_mov_b64 exec, -1')
    def lateload(k):
        i = k - (4 - NL)
        if i < 0: return
        if adapt: a(f's_cmp_gt_u32 s63, {i}\ns_cbranch_scc1 L_a_l{i}')
        kvload(40, 7, V0, *late[i], late=True)
        if i == NL - 1: vdone('a')
        if adapt: a(f'L_a_l{i}:')
    def vdone(sfx):
        stamp(3); count(L_C)
        if hintpos == 7 and hintk:
            a(f'''s_cmp_eq_u32 s31, 0
                  s_cbranch_scc0 L_a_nh{sfx}
                  v_mov_b32 v114, s3
                  s_mov_b64 exec, 1
                  buffer_store_dword v114, v0, s[44:47], s59 offen
                  s_mov_b64 exec, -1
                  L_a_nh{sfx}:''')
    if not NL: vdone('a')
    a('s_mov_b32 s62, 0\ns_mov_b32 s63, 0')
    stamp(8)
    if paged:
        a('s_branch L_a_q0')
        if ord2: modrest()
        a('.p2align 12\nL_a_q0:')
    align('Q')
    setprio(2)
    a(f'''L_a_q:
          ds_read_b128 v[104:107], v1 offset:{L_Q}
          ds_read_b128 v[108:111], v1 offset:{L_Q+16}
          ds_read_b128 v[112:115], v1 offset:{L_Q+512}
          ds_read_b128 v[116:119], v1 offset:{L_Q+528}
          s_waitcnt lgkmcnt(0)
          v_bitop3_b32 v120, v104, v108, s3 bitop3:0x7e
          v_bitop3_b32 v121, v112, v116, s3 bitop3:0x7e
          v_or_b32 v121, v120, v121
          v_cmp_ne_u32_sdwa vcc, v121, 0 src0_sel:WORD_0 src1_sel:DWORD''')
    for i in range(8): a(f'v_perm_b32 v{120+i}, v{105+2*i}, v{104+2*i}, s61')
    a('s_cbranch_vccnz L_a_qr\nL_a_qok:')
    def qrare():
        a('L_a_qr:')
        if adapt:
            for i in range(NL):
                a(f's_cmp_eq_u32 s63, {i}\ns_cbranch_scc0 L_a_qr{i}')
                keep = win[2]; win[2] = WR or keep
                kvload(40, 7, V0, *late[i], late=True)
                win[2] = keep
                if i == NL - 1: vdone('b')
                a(f's_mov_b32 s63, {i+1}\ns_branch L_a_q\nL_a_qr{i}:')
        a(f'''s_sleep 1
              s_add_u32 s62, s62, {STEP}
              s_cbranch_scc0 L_a_q
              s_branch L_a_qok''')
    rare.append(qrare)
    stamp(4)
    def qk(t, hf):
        k = K0 + 8 * t; tmp = 104 + 4 * (t & 3)
        if hf == 0: a(f'v_mfma_f32_16x16x32_bf16 v[{tmp}:{tmp+3}], v[{k}:{k+3}], v[120:123], 0')
        else: a(f'v_mfma_f32_16x16x32_bf16 v[{k}:{k+3}], v[{k+4}:{k+7}], v[124:127], v[{tmp}:{tmp+3}]')
    def step(t, i):
        if t < 0 or t > 5: return
        k = K0 + 8 * t
        if i == 0: a(f'v_mov_b32_dpp v{k+4}, v{k} quad_perm:[0,0,0,0] {DPPF}')
        else: a(f'v_add_f32_dpp v{k+4}, v{k+i}, v{k+4} quad_perm:[{i},{i},{i},{i}] {DPPF}')
    lateload(0)
    if WE: a(f's_waitcnt vmcnt({11 - NL})')
    a('s_cmp_eq_u32 s51, 0\ns_cbranch_scc1 L_a_qk1')
    qk(0, 0); qk(0, 1)
    a('L_a_qk1:')
    fl = ['v_mov_b32 v1, 0', 's_mov_b32 s62, 0', 's_lshl_b32 s48, s57, 3', 's_lshl_b32 s49, s31, 2']
    for t in range(1, 6):
        qk(t, 0); step(t - 3, 0); step(t - 4, 2)
        if t < 3: a(fl.pop(0))
        qk(t, 1); step(t - 3, 1); step(t - 4, 3)
        if t < 3: a(fl.pop(0))
        if t == 3: lateload(1)
    lateload(2)
    step(2, 2); step(3, 0); step(4, 0); step(2, 3); step(3, 1); step(4, 1)
    S = [K0 + 8 * t + 4 for t in range(6)]
    rnd(f'v{S[0]}', f'v{S[0]}')
    if WE: a(f's_waitcnt vmcnt({2 * (6 - touchpos) - 1})')
    a('v_and_b32 v6, 8, v0')
    step(5, 0); step(3, 2); step(4, 2); step(5, 1); step(3, 3); step(4, 3); step(5, 2)
    rnd(f'v{S[1]}', f'v{S[1]}'); rnd(f'v{S[2]}', f'v{S[2]}')
    step(5, 3)
    rnd(f'v{S[3]}', f'v{S[3]}'); rnd(f'v{S[4]}', f'v{S[4]}')
    a(f'v_max3_f32 v112, v{S[0]}, v{S[1]}, v{S[2]}')
    rnd(f'v{S[5]}', f'v{S[5]}')
    a(f'''v_max3_f32 v112, v112, v{S[3]}, v{S[4]}
          s_mov_b32 exec_lo, 0x01010101
          s_mov_b32 exec_hi, 0x01010101
          v_max_f32 v112, v112, v{S[5]}
          ds_max_f32 v6, v112 offset:{L_M}
          s_mov_b64 exec, 1
          ds_inc_u32 v0, v2 offset:{L_C+4}
          s_mov_b64 exec, -1
          v_mov_b32 v117, s48''')
    lateload(3)
    a(f'''L_a_s1:
          ds_read_b32 v113, v1 offset:{L_C+4}
          ds_read_b32 v112, v6 offset:{L_M}
          ds_read_b32 v116, v117 offset:{L_M}
          s_waitcnt lgkmcnt(0)
          v_cmp_ne_u32 vcc, 8, v113
          v_mul_f32 v112, s58, v112''')
    order = [1, 0, 2, 3, 4, 5]
    for t in order: a(f'v_fma_f32 v{S[t]+2}, v{S[t]}, s58, -v112')
    a('s_cbranch_vccnz L_a_s1r\nL_a_s1ok:')
    rare.append(lambda: a(f'L_a_s1r:\ns_add_u32 s62, s62, {STEP}\ns_cbranch_scc0 L_a_s1\ns_branch L_a_s1ok'))
    stamp(5)
    for t in order: a(f'v_exp_f32 v{S[t]}, v{S[t]+2}')
    def abuild(t):
        k = K0 + 8 * t
        a(f'v_cvt_pk_bf16_f32 v{k+5}, v{k+4}, v{k+4}')
        for rho in range(4): a(f'v_and_b32 v{k+rho}, v{k+5}, v{2+rho}')
    def pv(t, hf, first=False):
        k = K0 + 8 * t; v = V0 + 8 * t + 4 * hf; acc = 104 + 4 * hf
        n = 2 * (5 - t) + 1 - hf
        if n < max(W, WH, WE or 0): a(f's_waitcnt vmcnt({n})')
        a(f'v_mfma_f32_16x16x32_bf16 v[{acc}:{acc+3}], v[{k}:{k+3}], v[{v}:{v+3}], ' + ('0' if first else f'v[{acc}:{acc+3}]'))
    abuild(1)
    a(f'v_add_f32 v113, v{S[0]}, v{S[1]}\nv_add_f32 v114, v{S[2]}, v{S[3]}')
    pv(1, 0, True); abuild(2); pv(1, 1, True)
    a('s_cmp_eq_u32 s51, 0\ns_cbranch_scc1 L_a_pv2')
    abuild(0); pv(0, 0); pv(0, 1)
    a('L_a_pv2:')
    def lsum():
        a(f'''v_add_f32 v115, v{S[4]}, v{S[5]}
              v_add_f32 v113, v113, v114
              v_lshl_add_u32 v6, v6, 2, s49
              v_add_f32 v113, v113, v115''')
        allred_rows('v_add_f32', 113, 114)
        a(f'''s_mov_b64 exec, 0x101
              ds_write_b32 v6, v113 offset:{L_L}
              s_mov_b64 exec, -1''')
    def cst():
        a(f'''s_lshl_b32 s48, s31, 11
              v_lshl_add_u32 v6, v0, 4, s48
              v_bfe_u32 v119, v0, 2, 1
              v_mul_u32_u24 v119, 0x5a, v119
              v_and_b32 v120, 3, v0
              v_cmp_eq_u32 vcc, 1, v120
              v_bitop3_b32 v119, v119, v116, s34 bitop3:0xde
              v_bfe_u32 v118, v0, 2, 2
              v_cndmask_b32 v120, v120, v118, vcc
              v_cndmask_b32_e64 v119, v119, 0, vcc
              v_cndmask_b32_e64 v118, 0, -1, vcc
              v_or_b32 v120, 0x07060500, v120
              s_lshl_b32 s49, s31, 8
              s_add_u32 s49, s49, {L_O}
              v_lshlrev_b32 v121, 2, v0
              v_add_u32 v122, s49, v121
              v_lshlrev_b32 v117, 2, v117
              s_mov_b32 s62, 0''')
    if pvf:
        abuild(3); pv(2, 0); abuild(4); abuild(5); lsum(); cst()
        a('s_and_b32 s48, s31, 5')
        pv(2, 1)
        for t in range(3, 6): pv(t, 0); pv(t, 1)
    else:
        for t in range(2, 6):
            pv(t, 0)
            if t < 5: abuild(t + 1)
            pv(t, 1)
            if t == 2: lsum()
            if t == 3: cst()
    a(f'''ds_write_b128 v6, v[104:107] offset:{L_O}
          ds_write_b128 v6, v[108:111] offset:{L_O+1024}''')
    stamp(6)
    if nw2: a(f's_mov_b64 exec, 1\nds_inc_u32 v0, v2 offset:{L_C+8}\ns_barrier\ns_mov_b64 exec, -1\nL_a_s2:\nds_read_b32 v24, v1 offset:{L_C+8}')
    else: a('s_waitcnt lgkmcnt(0)\ns_barrier')
    if pvf:
        for u in range(4): a(f'ds_read2st64_b32 v[{8+2*u}:{9+2*u}], v122 offset0:{16*u} offset1:{16*u+8}')
        a(f'''s_cbranch_scc1 L_a_nl
              ds_read_b128 v[16:19], v117 offset:{L_L}
              ds_read_b128 v[20:23], v117 offset:{L_L+16}
              s_waitcnt lgkmcnt(0)''')
        pk('add', 16, 16, 18); pk('add', 20, 20, 22); pk('add', 16, 16, 20)
        a('v_add_f32 v16, v16, v17\nv_bfi_b32 v119, v118, v16, v119\nL_a_nl:\ns_waitcnt lgkmcnt(0)')
        if nw2: a('v_cmp_ne_u32 vcc, 8, v24')
    else:
        a(f'''ds_read_b128 v[16:19], v117 offset:{L_L}
              ds_read_b128 v[20:23], v117 offset:{L_L+16}''')
        for u in range(4): a(f'ds_read2st64_b32 v[{8+2*u}:{9+2*u}], v122 offset0:{16*u} offset1:{16*u+8}')
        pad('a', True)
        a('s_waitcnt lgkmcnt(4)')
        pk('add', 16, 16, 18); pk('add', 20, 20, 22); pk('add', 16, 16, 20)
        a('v_add_f32 v16, v16, v17\nv_and_or_b32 v119, v16, v118, v119\ns_waitcnt lgkmcnt(0)')
    pk('add', 8, 8, 10); pk('add', 12, 12, 14); pk('add', 8, 8, 12)
    a('''v_add_f32 v8, v8, v9
         v_perm_b32 v8, v8, v119, v120''')
    if nw2:
        a('s_cbranch_vccnz L_a_s2r\nL_a_s2ok:')
        rare.append(lambda: a(f'L_a_s2r:\ns_add_u32 s62, s62, {STEP}\ns_cbranch_scc1 L_a_s2ok\ns_and_b32 s48, s31, 5\ns_branch L_a_s2'))
    a('''buffer_store_dword v8, v121, s[44:47], s55 offen
         s_barrier''')
    stamp(7)
    setprio(0)
    if wopf2:
        a('s_cmp_lt_u32 s33, 14\ns_cbranch_scc0 L_a_p\ns_barrier\ns_sleep 3\nL_a_x:')
        def wp():
            a(f'''L_a_p:
                  s_lshl_b32 s48, s33, 3
                  s_add_u32 s48, s48, s31
                  s_sub_u32 s48, s48, 112
                  s_mul_i32 s49, s32, {512*896}''')
            for k in range(wopf2):
                if k: a('s_add_u32 s48, s48, 28')
                a(f'''s_cmp_ge_u32 s48, 56
                      s_cselect_b32 s50, 56, 0
                      s_sub_u32 s48, s48, s50
                      s_lshl_b32 s50, s48, 13
                      s_add_u32 s50, s50, s49
                      v_lshl_add_u32 v10, v0, 7, s50
                      global_load_dword v11, v10, s[12:13]''')
            a('s_branch L_a_x')
        rare.append(wp)
    elif bsn < 0:
        a('; the write-through copy is only needed under another placement: it waits for the wo stage / the prefetch (barrier) and, a bounded while, for X4 to be out')
        if bev:
            a(f'''s_barrier
                  s_cmp_lt_u32 s33, 14
                  s_cbranch_scc0 L_a_x
                  s_mov_b32 s62, 0
                  L_a_b:
                  s_sleep {bev}
                  ds_read_b32 v24, v1 offset:{L_C+20}
                  s_add_u32 s62, s62, 0x20000000
                  s_cbranch_scc1 L_a_x
                  s_waitcnt lgkmcnt(0)
                  v_cmp_eq_u32 vcc, 0, v24
                  s_cbranch_vccnz L_a_b
                  L_a_x:''')
        else: a(f's_barrier\ns_sleep {bsl}\nL_a_x:')
    elif bsn: a(f's_cmp_lt_u32 s33, 14\ns_cbranch_scc1 L_a_y\ns_sleep {bsn}\ns_branch L_a_x\nL_a_y:\ns_barrier\ns_sleep {bsl}\nL_a_x:')
    else: a(f's_cmp_lt_u32 s33, 14\ns_cbranch_scc0 L_a_x\ns_barrier\ns_sleep {bsl}\nL_a_x:')
    if not nob: a('buffer_store_dword v8, v121, s[44:47], s54 offen sc1')
    if dirty:
        a(f's_add_u32 s28, s28, s55\ns_addc_u32 s29, s29, 0')
        for k in range(dirty): a(f's_add_u32 s28, s28, 0x100000\ns_addc_u32 s29, s29, 0\nglobal_store_dword v121, v8, s[28:29]')
    fin()
    for r in rare: r()
    rare.clear()

    role[0] = 'wo'
    a('L_T:\nv_and_b32 v0, 63, v0')
    if pf3:
        a(f'''s_cmp_eq_u32 s31, 13
              s_cbranch_scc0 L_T1
              s_mul_i32 s50, s33, 19
              s_lshl_b32 s51, s32, 10
              v_add_u32 v2, s50, v0
              v_min_u32 v2, 447, v2
              v_lshl_add_u32 v2, v2, 13, s51
              s_mov_b64 exec, 0x7ffff
              global_load_dword v127, v2, s[10:11] offset:384
              s_mov_b64 exec, -1
              L_T1:''')
    a('''s_cmp_lt_u32 s33, 14
         s_cbranch_scc1 L_t_go
         s_cmp_eq_u32 s31, 8
         s_cbranch_scc1 L_t_go''')
    def pfcode():
        a('L_pf:')
        if fpf:
            a(f'''s_cmp_lt_u32 s31, 10
                  s_cbranch_scc1 L_end
                  s_mul_i32 s50, s33, 6
                  s_add_u32 s50, s50, s31
                  s_sub_u32 s50, s50, 94
                  s_cmp_lt_u32 s50, 56
                  s_cbranch_scc0 L_end''')
            if fpf:
                a(f'''s_cmp_lt_u32 s32, 4
                      s_cselect_b32 s52, 6, 8
                      s_cselect_b32 s53, 0, 8
                      s_cselect_b32 s56, 0x77777777, -1
                      s_cselect_b32 s58, 21, 28
                      s_mul_i32 s52, s52, s32
                      s_sub_u32 s52, s52, s53
                      s_lshr_b32 s51, s50, 1
                      s_waitcnt lgkmcnt(0)
                      s_bitcmp1_b32 s50, 0
                      s_cbranch_scc1 L_pf_2
                      s_mul_i32 s54, s51, {16*3584}
                      s_lshl_b32 s52, s52, 6
                      s_add_u32 s54, s54, s52
                      v_lshrrev_b32 v4, 2, v0
                      v_mul_u32_u24 v4, 3584, v4
                      v_and_b32 v5, 3, v0
                      v_lshl_add_u32 v4, v5, 7, v4
                      v_add_u32 v4, s54, v4
                      s_branch L_pf_3
                      L_pf_2:
                      s_mul_i32 s52, s52, {32*896}
                      s_lshl_b32 s54, s51, 13
                      s_add_u32 s54, s54, s52
                      v_lshl_add_u32 v4, v0, 7, s54
                      s_mov_b64 s[16:17], s[18:19]
                      s_cmp_lt_u32 s51, s58
                      s_cselect_b32 s56, -1, 0
                      L_pf_3:
                      s_mov_b32 s57, s56''')
            if wopf:
                a(f'''s_lshl_b32 s52, s50, 13
                      s_mul_i32 s51, s32, {512*896}
                      s_add_u32 s52, s52, s51
                      v_lshl_add_u32 v2, v0, 7, s52''')
                ldswait('L_pf_g', L_C, wopf, 4)
                if wolanes < 64: a(f's_mov_b32 exec_hi, {(1 << (wolanes - 32)) - 1}')
                a('global_load_dword v3, v2, s[12:13]')
            a('s_barrier\ns_barrier')
            if fpf: a('s_mov_b64 exec, s[56:57]\ns_cbranch_execz L_end\nglobal_load_dword v6, v4, s[16:17]' + pfnt)
        a('s_endpgm')
    a('''s_branch L_pf
         L_t_go:
         s_waitcnt lgkmcnt(0)''')
    dzero()
    a('L_t_go2:')
    tail_setup()
    a(f'''s_cmp_ge_u32 s33, 7
          s_cselect_b32 s50, 1, 0
          s_cselect_b32 s51, 7, 0
          s_sub_u32 s51, s33, s51
          s_lshl_b32 s52, s32, 1
          s_add_u32 s50, s50, s52
          s_lshl_b32 s52, s50, 8
          s_lshr_b32 s53, s49, 2
          s_lshl_b32 s53, s53, 7
          s_add_u32 s52, s52, s53
          s_and_b32 s53, s49, 1
          s_lshl_b32 s53, s53, 6
          s_add_u32 s52, s52, s53
          s_and_b32 s53, s49, 2
          s_lshl_b32 s53, s53, 1
          s_add_u32 s52, s52, s53
          s_mul_i32 s52, s52, 896
          s_lshl_b32 s53, s51, 7
          s_add_u32 s52, s52, s53
          s_add_u32 s53, s52, {8*896}
          s_mov_b32 s36, s12
          s_mov_b32 s37, s13
          s_mov_b32 s38, {4096*896}
          s_mov_b32 s39, 0x20000
          s_mul_i32 s40, s50, {24*1024}
          s_lshl_b32 s41, s49, 7
          s_add_u32 s40, s40, s41
          s_add_u32 s40, s40, {X3F}
          s_add_u32 s41, s40, 8192
          s_add_u32 s42, s40, 16384
          s_lshr_b32 s54, s50, 2
          s_lshl_b32 s54, s54, 13
          s_lshl_b32 s55, s50, 11
          s_add_u32 s54, s54, s55
          s_lshl_b32 s55, s51, 8
          s_add_u32 s54, s54, s55
          s_add_u32 s54, s54, {X4}
          s_add_u32 s55, s54, {SIDE}
          s_mov_b32 s43, 0
          s_mov_b32 s57, 0x04000c0c
          s_mov_b32 s58, {hex(f2u(0.0625 * LOG2E))}
          s_lshl_b32 s59, s49, 8
          s_add_u32 s59, s59, {L_P}
          v_lshrrev_b32 v12, 3, v0
          v_and_b32 v13, 7, v0
          v_lshlrev_b32 v3, 10, v12
          v_lshl_add_u32 v3, v13, 4, v3
          v_lshrrev_b32 v5, 4, v0
          v_lshl_add_u32 v5, v13, 2, v5
          v_lshl_add_u32 v5, v5, 1, s56
          v_lshl_add_u32 v6, v0, 4, s59
          v_lshlrev_b32 v4, 2, v0''')
    voff4(1, 16 * 896, 896, 12)
    def wold():
        stamp(3)
        for u in range(4):
            a(f'buffer_load_dwordx4 v[{80+4*u}:{83+4*u}], v1, s[36:39], s{52+(u>>1)} offen offset:{(u&1)*2*896}{wont}')
    maskaddr(8, 2, 's56', L_Z + 64, 12)
    a('s_waitcnt lgkmcnt(0)')
    tags()
    lanetag(7, 0); rowtag(98, 99)
    a('''v_and_b32 v10, 3, v0
         v_lshlrev_b32 v10, 3, v10
         v_lshlrev_b32_e64 v10, v10, 12
         v_xor_b32 v10, 0x0c0c0c0c, v10''')
    a(f'''s_cmp_eq_u32 s49, 0
          s_cbranch_scc0 L_wo
          v_lshlrev_b32 v2, 4, v0
          s_lshl_b32 s4, s32, 11
          s_add_u32 s4, s4, {X2F}
          s_mov_b32 m0, {L_Q}
          s_mov_b32 s62, 0
          s_setprio {pprio}
          L_p_loop:
          buffer_load_dwordx4 v2, s[44:47], s4 offen sc1 lds
          buffer_load_dwordx4 v2, s[44:47], s4 offen offset:1024 sc1 lds
          s_sleep {sleep}
          s_cmp_eq_u32 s62, {(1 << fastbits) * STEP}
          s_cselect_b32 s5, {X2F - X2}, 0
          s_sub_u32 s4, s4, s5
          ds_read2st64_b32 v[12:13], v2 offset0:{L_Q // 256} offset1:{L_Q // 256 + 4}
          s_waitcnt vmcnt(32) lgkmcnt(0)
          v_bitop3_b32 v12, v12, v13, s3 bitop3:0x7e
          v_cmp_ne_u32_sdwa vcc, v12, 0 src0_sel:WORD_0 src1_sel:DWORD''')
    spin('L_p_loop', 'L_p_ok')
    a('s_setprio 0')
    stamp(2)
    a('s_cmp_lt_u32 s33, 14\ns_cbranch_scc0 L_fin\nL_wo:')
    hop('w')
    if not wolate:
        ldswait('L_wo_g', L_C, gaten, 2)
        if gsl: a(f's_sleep {gsl}')
        wold()
    else: a('v_mov_b32 v100, 0')
    setprio(3)
    a('s_barrier\ns_barrier')
    if wolate: wold()
    stamp(4)
    x3l = [f'buffer_load_dwordx4 v[{32+4*s}:{35+4*s}], v3, s[44:47], s{40+s} offen sc1' for s in range(3)]
    for l in x3l: a(l)
    if peel:
        a('s_waitcnt vmcnt(0)')
        for i in range(3): a(f'v_cmp_ne_u32_sdwa s[{4+2*i}:{5+2*i}], v{32+4*i}, v7 src0_sel:BYTE_0 src1_sel:DWORD')
        for i in range(3): a(f's_wqm_b64 exec, s[{4+2*i}:{5+2*i}]\n{x3l[i]}')
        a('s_mov_b64 exec, -1')
    else: a('s_waitcnt vmcnt(3)')
    fix4(80, 48); perms64(80, 16)
    stamp(5)
    gather('L_x3', x3l, 32, 4, 7, issued=True, nfast=2 << fastbits, warm=(fX3, 62),
           spec='\n'.join(f'v_perm_b32 v{48+2*s}, v{35+4*s}, v{34+4*s}, s57' for s in range(3)),
           switch='\n'.join(f's_sub_u32 s{40+s}, s{40+s}, {X3F - X3}' for s in range(3)) + '\ns_barrier\ns_mov_b32 s43, 1')
    stamp(6)
    a(f'''v_max3_f32 v54, v48, v50, v52
          v_xor_b32 v32, v32, v7
          v_xor_b32 v36, v36, v7
          v_max_f32_dpp v54, v54, v54 row_ror:8 {DPPF}
          v_mov_b32 v55, v54
          v_xor_b32 v40, v40, v7''')
    pad('w')
    a(f'''v_permlane32_swap_b32 v54, v55
          v_max_f32 v54, v54, v55
          v_mov_b32 v55, v54
          v_permlane16_swap_b32 v54, v55
          v_max_f32 v54, v54, v55''')
    a('v_mul_f32 v54, s58, v54')
    for s in range(3): a(f'v_fma_f32 v{56+2*s}, v{48+2*s}, s58, -v54')
    for s in range(3): a(f'v_exp_f32 v{56+2*s}, v{56+2*s}')
    xs('w_exp')
    a(f'''v_pk_mul_f32 v[44:45], v[32:33], v[56:57] op_sel_hi:[1,0]
          v_pk_mul_f32 v[46:47], v[34:35], v[56:57] op_sel_hi:[1,0]
          v_pk_fma_f32 v[44:45], v[36:37], v[58:59], v[44:45] op_sel_hi:[1,0,1]
          v_pk_fma_f32 v[46:47], v[38:39], v[58:59], v[46:47] op_sel_hi:[1,0,1]
          v_pk_fma_f32 v[44:45], v[40:41], v[60:61], v[44:45] op_sel_hi:[1,0,1]
          v_pk_fma_f32 v[46:47], v[42:43], v[60:61], v[46:47] op_sel_hi:[1,0,1]''')
    rscatter(44)
    a(f's_cmp_eq_u32 s49, 0\nv_add_f32_dpp v44, v44, v44 row_ror:8 {DPPF}')
    rnd('v44', 'v44')
    xs('w_o')
    a('ds_write_b16_d16_hi v5, v44')
    for tau in range(2): a(f'ds_read_b128 v[{64+4*tau}:{67+4*tau}], v{8+tau}')
    def wo_out(x):
        a(f'''s_mov_b64 exec, 0xffff
              ds_write_b128 v6, v[74:77]
              s_mov_b64 exec, 1
              ds_inc_u32 v0, v98 offset:{L_C+16}''')
        if x:
            a('s_mov_b64 exec, -1')
            allred_rows('v_add_f32', 54, 55)
            a('v_rcp_f32 v52, v54')
        xs('w_pre')
        a(f's_cbranch_scc0 L_wo_nb{x}\ns_barrier\nL_wo_nb{x}:')
        xs('w_bar')
    a('s_cbranch_scc1 L_wo_0\ns_cmp_eq_u32 s43, 0')
    mma2(72, 64, 16)
    xs('w_mm')
    wo_out('')
    fin()
    a('L_wo_0:')
    for s in range(3): a(f'v_perm_b32 v{48+s}, v{33+4*s}, v{33+4*s}, v10')
    for s in range(3): a(f'v_or_b32_dpp v{48+s}, v{48+s}, v{48+s} quad_perm:[1,0,3,2] {DPPF}')
    a('s_cmp_eq_u32 s43, 0')
    mma2(72, 64, 16, mid='\n'.join(f'v_or_b32_dpp v{48+s}, v{48+s}, v{48+s} quad_perm:[2,3,0,1] {DPPF}' for s in range(3)))
    xs('w_mm')
    a(f'''v_mul_f32 v54, v56, v48
          v_fmac_f32 v54, v58, v49
          v_fmac_f32 v54, v60, v50
          s_mov_b32 s62, 0
          v_add_f32_dpp v54, v54, v54 row_ror:8 {DPPF}''')
    wo_out('0')
    a(f'L_wo_s:\nds_read_b32 v24, v100 offset:{L_C+16}')
    sumrows(8, L_P, 4, None, f's_waitcnt lgkmcnt({0 if (diag and only is None) else 4})\nv_cmp_ne_u32 vcc, 8, v24')
    rare.append(lambda: a(f'L_wo_sr:\ns_add_u32 s62, s62, {STEP}\ns_cbranch_scc0 L_wo_s\ns_branch L_wo_sok'))
    a('v_mul_f32 v16, v52, v16')
    a(f'''v_and_or_b32 v16, v16, v98, v99
          s_cbranch_vccnz L_wo_sr
          L_wo_sok:
          buffer_store_dword v16, v4, s[44:47], s54 offen sc1
          buffer_store_dword v16, v4, s[44:47], s55 offen sc1''')
    stamp(7)
    if bev: a(f's_waitcnt vmcnt(0)\nds_write_b32 v100, v24 offset:{L_C+20}')
    a('L_fin:')
    fin()
    for r in rare: r()
    rare.clear()

    role[0] = 'F'
    if paged: a('.p2align 12\nL_F2:')
    else: fstart()
    dzero(); stamp(1)
    a('s_load_dword s30, s[28:29], 0')
    ws_srd(); perm_sel()
    a(f'''s_lshl_b32 s52, s31, 8
          s_add_u32 s56, s52, 0x2400
          s_mov_b32 s59, {hex(f2u(448.0))}
          s_mov_b32 s58, 0x3f803f80
          v_mov_b32 v12, 0
          v_lshlrev_b32 v4, 2, v0
          ds_write_b32 v4, v12 offset:{FZ}
          v_add_u32 v6, s56, v6
          v_lshl_add_u32 v5, v5, 1, s52''')
    maskaddr(8, 2, 's56', FZ + 64, 12)
    a('''s_waitcnt vmcnt(8)
         v_dot2_f32_bf16 v102, v96, s58, 0
         v_dot2_f32_bf16 v103, v96, v96, 0''')
    for i in range(1, 4):
        a(f'v_dot2_f32_bf16 v102, v{96+i}, s58, v102')
        a(f'v_dot2_f32_bf16 v103, v{96+i}, v{96+i}, v103')
    for sh in (8, 4, 2, 1):
        a(f'v_add_f32_dpp v102, v102, v102 row_ror:{sh} {DPPF}')
        a(f'v_add_f32_dpp v103, v103, v103 row_ror:{sh} {DPPF}')
    allred_rows('v_add_f32', 102, 104); allred_rows('v_add_f32', 103, 104)
    a('v_lshlrev_b32 v96, 16, v100')
    ln_apply(102, 103, (100, 96), 104)
    a(f'''s_lshl_b32 s52, s32, 11
          s_lshl_b32 s53, s33, 8
          s_add_u32 s52, s52, s53
          s_add_u32 s53, s52, {X2F}
          s_add_u32 s52, s52, {X2}
          s_waitcnt lgkmcnt(0)''')
    tags()
    a('s_waitcnt vmcnt(4)')
    fix4(32, 104); perms64(32, 64)
    a(f'''s_mov_b32 s49, {X1}
          s_add_u32 s50, s31, 0
          s_lshr_b32 s63, s50, 3
          s_lshl_b32 s63, s63, 13
          s_lshl_b32 s50, s50, 10
          s_add_u32 s50, s50, s63
          s_add_u32 s50, s50, s49
          s_add_u32 s51, s31, 7
          s_lshr_b32 s63, s51, 3
          s_lshl_b32 s63, s63, 13
          s_lshl_b32 s51, s51, 10
          s_add_u32 s51, s51, s63
          s_add_u32 s51, s51, s49
          s_waitcnt vmcnt(0)''')
    fix4(48, 104); perms64(48, 80)
    a('''s_add_u32 s8, s31, 14
          s_lshr_b32 s63, s8, 3
          s_lshl_b32 s63, s63, 13
          s_lshl_b32 s8, s8, 10
          s_add_u32 s8, s8, s63
          s_add_u32 s8, s8, s49
          s_add_u32 s9, s31, 21
          s_lshr_b32 s63, s9, 3
          s_lshl_b32 s63, s63, 13
          s_lshl_b32 s9, s9, 10
          s_add_u32 s9, s9, s63
          s_add_u32 s9, s9, s49
          s_add_u32 s10, s31, 28
          s_lshr_b32 s63, s10, 3
          s_lshl_b32 s63, s63, 13
          s_lshl_b32 s10, s10, 10
          s_add_u32 s10, s10, s63
          s_add_u32 s10, s10, s49
          s_add_u32 s11, s31, 35
          s_lshr_b32 s63, s11, 3
          s_lshl_b32 s63, s63, 13
          s_lshl_b32 s11, s11, 10
          s_add_u32 s11, s11, s63
          s_add_u32 s11, s11, s49''')
    stamp(2)
    poll4('L_q_x1', [f'buffer_load_dwordx4 v[{32+4*s}:{35+4*s}], v41, s[44:47], s{50+s} offen sc1' for s in range(2)], 32, 40)
    stamp(3)
    if mxe:
        for s in range(4): a(f'buffer_load_dwordx4 v[{104+4*s}:{107+4*s}], v41, s[44:47], s{8+s} offen sc1')
    rscatter(36); rscatter(32)
    rnd('v36', 'v36'); rnd('v32', 'v32')
    a('v_add_f32 v36, 1.0, v36'); rnd('v36', 'v36')
    a('v_mul_f32 v36, v100, v36'); rnd('v36', 'v36')
    a('v_add_f32 v36, v36, v32'); rnd('v36', 'v36')
    a('ds_write_b16_d16_hi v6, v36')
    for u in range(2):
        for tau in range(2): a(f'ds_read_b128 v[{32+8*u+4*tau}:{35+8*u+4*tau}], v{8+tau} offset:{64*u}')
    mma2(48, 32, 64, left=2); mma2(48, 40, 80, first=False)
    a(f'''v_mov_b32 v24, 1
          s_mov_b32 s62, 0
          s_mov_b64 exec, 0xffff
          s_cmp_eq_u32 s31, 0
          ds_write_b128 v5, v[50:53] offset:{FP}
          s_mov_b64 exec, 1
          ds_add_u32 v0, v24 offset:{FC+4}
          s_mov_b64 exec, -1
          s_cbranch_scc0 L_q_done
          v_mov_b32 v25, 0
          L_q_s:
          ds_read_b32 v24, v25 offset:{FC+4}''')
    sumrows(7, FP, 4, 'v_cmp_ne_u32 vcc, 8, v24')
    rnd('v16', 'v16')
    rare.append(lambda: a(f'L_q_sr:\ns_add_u32 s62, s62, {STEP}\ns_cbranch_scc0 L_q_s\ns_branch L_q_sok'))
    a('''v_or_b32 v16, s3, v16
         s_cbranch_vccnz L_q_sr
         L_q_sok:
         buffer_store_dword v16, v4, s[44:47], s53 offen
         buffer_store_dword v16, v4, s[44:47], s52 offen sc1''')
    a(f'ds_write_b32 v25, v24 offset:{FC+16}')
    if rewarm:
        a(f'''s_cmp_eq_u32 s33, 7
              s_cbranch_scc0 L_q_done
              s_getpc_b64 s[4:5]
              L_pc2:
              s_sub_u32 s4, s4, L_pc2-L_pc
              s_subb_u32 s5, s5, 0
              v_lshlrev_b32 v102, 7, v0
              v_add_u32 v103, 0x2000, v102
              v_min_u32 v103, L_code_end-L_pc-4, v103
              global_load_dword v127, v102, s[4:5] sc1
              global_load_dword v127, v103, s[4:5] sc1''')
    a('L_q_done:')
    stamp(4)
    def ffn_id(skip):
        a(f'''s_cmp_lt_u32 s32, 4
              s_cselect_b32 s50, 6, 8
              s_cselect_b32 s51, 0, 8
              s_cmp_lt_u32 s33, s50
              s_cbranch_scc0 {skip}''')
    def wp3():
        a(f'''s_mul_i32 s14, s33, 7
              s_add_u32 s14, s14, s31
              s_lshl_b32 s14, s14, 13
              s_mul_i32 s15, s32, {512*896}
              s_add_u32 s14, s14, s15
              v_lshl_add_u32 v126, v0, 7, s14
              global_load_dword v127, v126, s[12:13]''')
    if vpf:
        assert tbl == 1
        a(f'''s_cmp_lt_u32 s31, 6
              s_cbranch_scc0 L_f_nv
              s_load_dwordx2 s[6:7], s[0:1], 16
              s_mul_i32 s52, s33, 6
              s_add_u32 s52, s52, s31
              s_lshl_b32 s52, s52, 2
              s_lshr_b32 s53, s52, 3
                      s_and_b32 s52, s52, 7
                      s_lshl_b32 s54, s53, 2
                      s_add_u32 s55, s54, 6
                      s_min_u32 s54, s54, 13
                      s_min_u32 s55, s55, 15
                      s_mul_i32 s15, s53, 43
                      s_cmp_ge_u32 s53, 17
                      s_cselect_b32 s54, 64, s54
                      s_cselect_b32 s55, 63, s55
                      s_mul_i32 s53, s53, 40
                      s_cselect_b32 s15, s53, s15
                      s_lshl_b32 s53, s32, 14
                      s_add_u32 s15, s15, s53
                      s_add_u32 s15, s15, {WINOFF // 2048 + 5}
                      v_lshrrev_b32 v124, 4, v0
                      v_add_u32 v124, s52, v124
                      v_add_u32 v125, s54, v124
                      v_min_u32 v125, s55, v125
                      v_mad_u32_u24 v124, v124, 5, v125
                      v_add_u32 v124, s15, v124
                      v_and_b32 v125, 15, v0
                      v_lshlrev_b32 v125, 7, v125
                      v_lshl_add_u32 v124, v124, 11, v125''')
        ldswait('L_f_qv', FC + 16, 1, 1, 102)
        for k in range(vpf): a(f'global_load_dword v127, v124, s[6:7] offset:{-2048 * (vpf - 1 - k)}{vpffl}')
        a('L_f_nv:')
    if wopf3:
        ldswait('L_f_q3', FC + 16, 1, 1, 102)
        if wopf3 > 1: a(f's_sleep {wopf3}')
        wp3()
    ffn_id('L_fin2')
    a(f'''s_mul_i32 s50, s50, s32
          s_add_u32 s50, s50, s33
          s_sub_u32 s50, s50, s51
          s_mov_b32 s36, s16
          s_mov_b32 s37, s17
          s_mov_b32 s38, {448*3584}
          s_mov_b32 s40, s18
          s_mov_b32 s41, s19
          s_mov_b32 s42, {1792*896}
          s_mul_i32 s52, s31, {64*3584}
          s_lshl_b32 s53, s50, 6
          s_add_u32 s52, s52, s53
          s_mul_i32 s54, s50, {32*896}
          s_lshl_b32 s55, s31, 7
          s_add_u32 s54, s54, s55
          s_add_u32 s55, s54, {4*896}
          v_and_b32 v4, 15, v0
          v_mul_u32_u24 v2, {8*3584}, v3
          v_lshl_add_u32 v2, v4, 2, v2''')
    voff4(1, 8 * 896, 896, 102)
    if not mxe or not hintk: ldswait('L_f_q', FC + 16, 1, 1, 102)
    poll4('L_f_mx', [f'buffer_load_dwordx4 v[{104+4*s}:{107+4*s}], v121, s[44:47], s{8+s} offen sc1' for s in range(4)], 104, 120, 0, mxe)
    for s in range(4): rscatter(104 + 4 * s)
    rnd('v102', 'v104'); rnd('v98', 'v108'); rnd('v100', 'v112'); rnd('v116', 'v116')
    a('v_add_f32 v100, 1.0, v100\ns_lshl_b32 s13, s31, 8\nv_lshl_add_u32 v103, v0, 2, s13')
    rnd('v100', 'v100')
    a(f'''ds_write_b32 v103, v116 offset:{FG}
          ds_write_b16_d16_hi v6, v100
          ds_write_b16_d16_hi v6, v98 offset:128''')
    hop('f')
    if hintk and paged and ord3: a('s_branch L_f_gp\nL_f_gb:')
    elif hintk: ldswait('L_f_g', FC + 8, 1, 1, 104)
    stamp(5)
    for i in range(16):
        a(f'buffer_load_dword v{32+i}, v2, s[36:39], s52 offen offset:{3584*(i&1)}{w1nt}')
        if i & 1: a(f's_add_u32 s52, s52, {2*3584 if i != 7 else 26*3584}')
    for u in range(4):
        a(f'buffer_load_dwordx4 v[{48+4*u}:{51+4*u}], v1, s[40:43], s{54+(u>>1)} offen offset:{(u&1)*2*896}{w2nt}')
    maskaddr(10, 2, FH, FZ + 64, 104)
    lanetag(5, 0)
    getside(104)
    a(f'''s_lshr_b32 s12, s50, 2
          s_lshl_b32 s12, s12, 13
          s_lshl_b32 s14, s50, 11
          s_add_u32 s12, s12, s14
          s_add_u32 s12, s12, s13
          s_add_u32 s12, s12, {X5}
          v_and_b32 v7, 1, v3
          v_lshlrev_b32 v7, 13, v7
          v_lshl_add_u32 v7, v4, 4, v7''')
    if x5o == 3: a(f'v_xor_b32 v7, s48, v7\nv_xor_b32 v15, {SIDE}, v7')
    elif x5o:
        a(f'''s_cmp_ge_u32 s31, 3
              s_cselect_b32 s14, 4, 0
              s_xor_b32 s14, s14, s32
              s_lshr_b32 s14, s14, 2
              s_lshl_b32 s14, s14, 13
              s_xor_b32 s14, s14, s48
              v_xor_b32 v7, s14, v7''')
    a(f'''v_and_b32 v8, 1, v0
          v_lshlrev_b32 v8, 7, v8
          v_lshl_add_u32 v8, v3, 4, v8
          v_add_u32 v8, s56, v8
          v_lshlrev_b32 v2, 11, v3
          v_lshl_add_u32 v2, v4, 4, v2
          s_add_u32 s52, s13, {FA}
          v_lshl_add_u32 v9, v0, 3, s52
          s_lshl_b32 s52, s31, 7
          s_add_u32 s52, s52, {FP2}
          v_lshl_add_u32 v4, v0, 3, s52
          s_add_u32 s40, s13, s48
          s_add_u32 s40, s40, {X4}
          s_add_u32 s41, s40, {1 << 14}
          s_add_u32 s42, s40, {2 << 14}
          s_add_u32 s43, s40, {3 << 14}
          s_lshl_b32 s52, s31, 3
          s_add_u32 s52, s52, {FST}
          v_lshrrev_b32 v1, 5, v0
          v_lshl_add_u32 v3, v1, 2, s52
          s_mov_b32 s57, 0xffffff00
          s_mov_b32 s16, 0x10000
          s_mov_b32 s17, 0x10000
          ds_read_b128 v[80:83], v8
          ds_read_b128 v[84:87], v8 offset:64
          v_mov_b32 v12, 0
          v_mov_b32 v13, 1
          v_mov_b32 v120, 1''')
    x4l = [f'buffer_load_dwordx4 v[{104+4*s}:{107+4*s}], v2, s[44:47], s{40+s} offen sc1' for s in range(4)]
    def w1mma(k):
        for tau in range(2):
            d = 88 + 4 * tau; b = 16 + 8 * k + 4 * tau
            a(f'v_mfma_f32_16x16x32_bf16 v[{d}:{d+3}], v[{80+4*k}:{83+4*k}], v[{b}:{b+3}], ' + ('0' if k == 0 else f'v[{d}:{d+3}]'))
    stamp(6)
    a('s_waitcnt vmcnt(4) lgkmcnt(0)')
    for l in x4l: a(l)
    for aa in range(2):
        for tau in range(2):
            for rho in range(4):
                a(f'v_perm_b32 v{16+8*aa+4*tau+rho}, v{32+8*aa+2*rho+1}, v{32+8*aa+2*rho}, s{60+tau}')
    w1mma(0); w1mma(1)
    a(f'''s_mov_b64 exec, 0xffff
          ds_write2_b32 v9, v88, v92 offset0:0 offset1:1
          ds_write2_b32 v9, v89, v93 offset0:32 offset1:33
          s_mov_b64 exec, 1
          ds_add_u32 v0, v120 offset:{FC}
          s_mov_b64 exec, -1
          s_waitcnt vmcnt(4)''')
    fix4(48, 124); perms64(48, 64)
    setprio(2)
    stamp(7)
    def sum_hi(r, d):
        return f'''v_pk_add_f32 v[{d+2}:{d+3}], v[{r+2}:{r+3}], v[{r+6}:{r+7}]
                   v_pk_add_f32 v[{d}:{d+1}], v[{r+10}:{r+11}], v[{r+14}:{r+15}]
                   v_pk_add_f32 v[{d+2}:{d+3}], v[{d+2}:{d+3}], v[{d}:{d+1}]'''
    def sum_lo(r, d):
        for s in range(4): a(f'v_xor_b32 v{r+4*s}, v{r+4*s}, v5')
        pk('add', r, r, r + 4); pk('add', r + 8, r + 8, r + 12); pk('add', d, r, r + 8)
    gather('L_x4', x4l, 104, 4, 5, spec=sum_hi(104, 120), issued=True, warm=(fX4, 63))
    stamp(8)
    sum_lo(104, 120)
    pad('f')
    rscatter(120)
    rnd('v120', 'v120'); a('v_mul_f32 v120, v102, v120'); rnd('v120', 'v120'); a('v_add_f32 v120, v96, v120'); rnd('v121', 'v120')
    xs('x2')
    a(f'''v_mul_f32 v123, v121, v100
          v_mul_f32 v122, v121, v121
          v_cvt_pk_bf16_f32 v124, 0, v123
          v_sub_f32 v124, v123, v124
          v_cvt_pk_bf16_f32 v123, v124, v123
          ds_write_b16_d16_hi v6, v123
          ds_write_b16 v6, v123 offset:128
          ds_read_b128 v[80:83], v8
          ds_read_b128 v[84:87], v8 offset:64
          ds_write_b32 v103, v121 offset:{FX}
          v_permlane32_swap_b32 v121, v122
          v_add_f32 v121, v121, v122''')
    pad('f')
    a(f'''v_add_f32_dpp v121, v121, v121 row_ror:8 {DPPF}
          v_add_f32_dpp v121, v121, v121 row_ror:4 {DPPF}
          v_add_f32_dpp v121, v121, v121 row_ror:2 {DPPF}
          s_waitcnt lgkmcnt({0 if (diag and only is None) else 2})''')
    w1mma(0)
    a(f'''v_add_f32_dpp v121, v121, v121 row_ror:1 {DPPF}
          s_waitcnt lgkmcnt({0 if (diag and only is None) else 1})''')
    w1mma(1)
    a(f'''v_add_f32_dpp v121, v121, v121 row_bcast:15 row_mask:0xa bank_mask:0xf
          s_mov_b64 exec, s[16:17]
          ds_write_b32 v3, v121''')
    if est: a(f'ds_add_u32 v12, v13 offset:{FC+20}')
    a('s_mov_b64 exec, 0xffff')
    pad('f')
    a(f'''v_add_f32 v88, v88, v89
          v_add_f32 v92, v92, v93
          ds_write2_b32 v4, v88, v92 offset0:0 offset1:1''')
    if nw3: a(f's_mov_b64 exec, 1\nds_add_u32 v12, v13 offset:{FC+24}')
    else: a('s_waitcnt lgkmcnt(0)')
    stamp(11); xs('preB3')
    a('s_barrier\ns_mov_b64 exec, -1\ns_mov_b32 s62, 0')
    xs('B3')
    a('s_barrier')
    xs('B4')
    a('L_f_h1:')
    if nw4: a(f'ds_read_b32 v14, v12 offset:{FC+28}')
    for tau in range(2): a(f'ds_read_b128 v[{80+4*tau}:{83+4*tau}], v{10+tau}')
    mma2(32, 80, 64, mid='v_cmp_eq_u32 vcc, 0, v14' if nw4 else None)
    if nw4:
        a('s_cbranch_vccnz L_f_h1r\nL_f_h1ok:')
        rare.append(lambda: a(f'L_f_h1r:\ns_add_u32 s62, s62, {STEP}\ns_cbranch_scc0 L_f_h1\ns_branch L_f_h1ok'))
    xs('mm2')
    pad('f', True)
    if x5o == 3:
        a('''s_mov_b64 exec, 0xffff
             v_and_or_b32 v34, v34, s57, v5
             buffer_store_dwordx4 v[34:37], v7, s[44:47], s12 offen sc1
             buffer_store_dwordx4 v[34:37], v15, s[44:47], s12 offen sc1''')
        stamp(9)
        if x5w is not None: a(f's_cmp_le_u32 s31, {x5w}\ns_cbranch_scc0 L_f_nwt')
        a('s_waitcnt vmcnt(1)\nL_f_nwt:\ns_barrier\nL_fin2:')
    elif x5o == 2:
        a('''s_mov_b64 exec, 0xffff
             v_and_or_b32 v34, v34, s57, v5
             buffer_store_dwordx4 v[34:37], v7, s[44:47], s12 offen sc1''')
        stamp(9)
        a(f'''s_barrier
              v_xor_b32 v7, {SIDE}, v7
              s_waitcnt vmcnt(0)
              buffer_store_dwordx4 v[34:37], v7, s[44:47], s12 offen sc1
              L_fin2:''')
    else:
        a('''s_mov_b32 exec_hi, 0
             v_and_or_b32 v34, v34, s57, v5
             buffer_store_dwordx4 v[34:37], v7, s[44:47], s12 offen sc1''')
        stamp(9)
        a('s_barrier\nL_fin2:')
    fin()
    for r in rare: r()
    rare.clear()
    if not paged: a(f'''L_F7s:
              s_cmp_ge_u32 s31, 9
              s_cbranch_scc1 L_F9
              v_mov_b32 v2, 0
              v_lshlrev_b32 v3, 2, v0
              ds_write_b32 v3, v2 offset:{FC & ~255}
              s_waitcnt lgkmcnt(0)
              s_barrier
              s_branch L_F7
              L_F9:
              s_endpgm''')
    a(f'''L_F7:
          s_cmp_eq_u32 s31, 7
          s_cbranch_scc0 L_F8
          s_load_dword s30, s[28:29], 0
          v_mov_b32 v4, 1
          s_waitcnt lgkmcnt(0)
          s_mov_b64 exec, 1
          ds_add_u32 v2, v4 offset:{FC+4}
          s_mov_b64 exec, -1''')
    dzero()
    ws_srd()
    ffn_id('L_fin3')
    if hintk:
        a(f'''s_mul_i32 s49, s32, {24*128}
              s_add_u32 s49, s49, {HINT}
              v_lshlrev_b32 v102, 7, v0''')
        if mxe:
            ldswait('L_7_t', FC + 4, 2, 4, 104)
            a('s_mov_b64 exec, 0xffffff\nbuffer_load_dword v103, v102, s[44:47], s49 offen sc1\ns_mov_b64 exec, -1')
    ldswait('L_7_q', FC + 16, 1, 4, 104)
    tags()
    if hintk:
        a(f'''s_mul_i32 s54, s50, s32
              s_add_u32 s54, s54, s33
              s_and_b32 s54, s54, 6
              s_cmp_eq_u32 s54, 6
              s_cselect_b32 s54, {hintk if hk3 is None else hk3}, {hintk}
              s_mov_b64 exec, 0xffffff
              s_mov_b32 s62, 0
              L_f_h:
              s_sleep 2
              buffer_load_dword v103, v102, s[44:47], s49 offen sc1
              s_add_u32 s62, s62, {1 << (32 - fastbits)}
              s_waitcnt vmcnt(0)
              s_cbranch_scc1 L_f_hok
              v_cmp_eq_u32 vcc, s3, v103
              s_bcnt1_i32_b64 s53, vcc
              s_cmp_lt_u32 s53, s54
              s_cbranch_scc1 L_f_h
              L_f_hok:
              s_mov_b64 exec, -1
              v_mov_b32 v103, 1
              ds_write_b32 v2, v103 offset:{FC+8}''')
    a(f'''s_mul_i32 s50, s50, s32
          s_add_u32 s50, s50, s33
          s_sub_u32 s50, s50, s51
          v_mov_b32 v9, v3
          v_lshrrev_b32 v4, 4, v0
          v_lshlrev_b32 v81, 14, v4
          v_bfe_u32 v6, v0, 2, 2
          v_lshl_add_u32 v81, v6, 11, v81
          v_and_b32 v6, 3, v0
          v_lshl_add_u32 v81, v6, 4, v81
          s_bfe_u32 s52, s50, 0x20001
          s_lshl_b32 s52, s52, 2
          s_lshl_b32 s20, 0x000f000f, s52
          s_mov_b32 s21, s20
          s_lshr_b32 s52, s50, 3
          s_lshl_b32 s53, s52, 8
          v_add_u32 v3, s53, v3
          s_lshl_b32 s52, s52, 7
          v_and_b32 v6, 7, v0
          v_lshlrev_b32 v6, 4, v6
          v_and_b32 v7, 8, v0
          v_lshl_add_u32 v7, v4, 1, v7
          v_add3_u32 v101, v6, v7, s52
          s_mov_b32 s36, s24
          s_mov_b32 s37, s25
          s_mov_b32 s38, 896
          s_mov_b32 s39, 0x20000''')
    lanetag(5, 0)
    x5l = [f'buffer_load_dwordx4 v[{36+4*s}:{39+4*s}], v81, s[44:47], s{40+s} offen sc1' for s in range(4)]
    a('v_mov_b32 v48, v5\nv_mov_b32 v49, 0\nv_mov_b32 v50, 0\nv_mov_b32 v51, 0')
    hop('s')
    ldswait('L_7_g', FC, 2, 4, 102)
    getside(102)
    a(f'''s_lshl_b32 s40, s50, 5
          s_add_u32 s40, s40, s48
          s_add_u32 s40, s40, {X5}
          s_add_u32 s41, s40, {4 << 14}
          s_add_u32 s42, s40, {8 << 14}
          s_add_u32 s43, s40, {12 << 14}''')
    a('s_bitcmp1_b32 s50, 0\ns_cbranch_scc1 L_7_o\n' + '\n'.join(x5l[:3] if pt5 else [f'v_mov_b32 v{36+4*k}, 0xff' for k in range(3)]) + f'''
          s_mov_b32 exec_hi, 0
          {x5l[3] if pt5 else 'v_mov_b32 v48, 0xff'}
          {'buffer_load_ushort v125, v101, s[36:39], 0 offen' if opt else ''}
          s_mov_b32 exec_hi, -1
          L_7_o:''')
    ldswait('L_7_a', FC, 7, 1, 102)
    sumrows(7, FA, 9)
    a(f'''v_mov_b32 v17, v16
          v_and_b32 v14, 31, v0
          v_lshlrev_b32 v15, 1, v14
          v_permlane32_swap_b32 v16, v17
          v_lshlrev_b32 v14, 2, v14
          v_add_u32 v14, {FP2}, v14
          v_mov_b32 v1, {FST}
          v_mov_b32 v31, 0
          s_mov_b32 s59, {hex(f2u(448.0))}''')
    align('S')
    setprio(3)
    cw = lambda n: f's_waitcnt lgkmcnt({0 if (diag and only is None) else n})'
    if est:
        a(f'''s_mov_b32 s62, 0
              L_7_s:
              ds_read_b32 v70, v31 offset:{FC+20}
              ds_read_b128 v[56:59], v1
              ds_read_b128 v[60:63], v1 offset:16
              ds_read_b128 v[64:67], v1 offset:32
              ds_read_b64 v[68:69], v1 offset:48
              s_add_u32 s62, s62, {STEP >> 2}
              s_cbranch_scc1 L_7_sok
              {cw(4)}
              v_cmp_ne_u32 vcc, 14, v70
              s_cbranch_vccnz L_7_s
              L_7_sok:
              s_waitcnt lgkmcnt(0)''')
        pk('add', 56, 56, 58); pk('add', 60, 60, 62)
        pk('add', 64, 64, 66); pk('add', 56, 56, 60); pk('add', 64, 64, 68); pk('add', 56, 56, 64)
        a(f'''s_barrier
              ds_read2_b32 v[24:25], v14 offset0:0 offset1:32
              ds_read2_b32 v[26:27], v14 offset0:64 offset1:96
              ds_read2_b32 v[28:29], v14 offset0:128 offset1:160
              ds_read_b32 v30, v14 offset:768''')
        a(f'''v_mul_f32 v60, v56, v56
              v_fma_f32 v61, v56, v56, -v60
              v_fma_f32 v60, v57, s59, -v60
              v_sub_f32 v60, v60, v61
              v_mul_f32 v60, {hex(f2u(1/448/448))}, v60
              v_max_f32 v60, 0, v60''')
        rnd('v60', 'v60')
        a(f'v_add_f32 v60, {hex(f2u(1e-5))}, v60')
        rnd('v60', 'v60')
        a(f'v_sqrt_f32 v60, v60\nv_mul_f32 v62, {hex(f2u(1/448))}, v56')
        rnd('v60', 'v60')
        a('s_waitcnt lgkmcnt(0)\nv_rcp_f32 v60, v60')
        pk('add', 24, 24, 26); pk('add', 28, 28, 30)
        rnd('v62', 'v62')
        pk('add', 24, 24, 28)
        a('''v_fma_f32 v24, -v62, v16, v24
             v_add_f32 v24, v24, v25
             v_fma_f32 v24, v24, v60, v17''')
    else:
        a('s_mov_b32 s62, 0\ns_barrier\nL_7_t:')
        if nw3: a(f'ds_read_b32 v70, v31 offset:{FC+24}')
        a(f'''ds_read_b128 v[56:59], v1
              ds_read_b128 v[60:63], v1 offset:16
              ds_read_b128 v[64:67], v1 offset:32
              ds_read_b64 v[68:69], v1 offset:48
              ds_read2_b32 v[24:25], v14 offset0:0 offset1:32
              ds_read2_b32 v[26:27], v14 offset0:64 offset1:96
              ds_read2_b32 v[28:29], v14 offset0:128 offset1:160
              ds_read_b32 v30, v14 offset:768''')
        a(cw(6))
        if nw3: a('v_cmp_ne_u32 vcc, 7, v70')
        pk('add', 56, 56, 58); pk('add', 60, 60, 62)
        a(cw(4))
        pk('add', 64, 64, 66); pk('add', 56, 56, 60); pk('add', 64, 64, 68); pk('add', 56, 56, 64)
        a(f'''v_mul_f32 v60, v56, v56
              v_fma_f32 v61, v56, v56, -v60
              v_fma_f32 v60, v57, s59, -v60
              v_sub_f32 v60, v60, v61
              v_mul_f32 v60, {hex(f2u(1/448/448))}, v60
              v_max_f32 v60, 0, v60''')
        rnd('v60', 'v60')
        a(f'v_add_f32 v60, {hex(f2u(1e-5))}, v60')
        rnd('v60', 'v60')
        a(f'v_sqrt_f32 v60, v60\nv_mul_f32 v62, {hex(f2u(1/448))}, v56')
        rnd('v60', 'v60')
        a('s_waitcnt lgkmcnt(0)\nv_rcp_f32 v60, v60')
        pk('add', 24, 24, 26); pk('add', 28, 28, 30)
        rnd('v62', 'v62')
        pk('add', 24, 24, 28)
        a('''v_fma_f32 v24, -v62, v16, v24
             v_add_f32 v24, v24, v25
             v_fma_f32 v24, v24, v60, v17''')
    rnd('v24', 'v24')
    silu(24, 24, 25, 's')
    if nw3:
        a('s_cbranch_vccnz L_7_tr\nL_7_tok:')
        rare.append(lambda: a(f'L_7_tr:\ns_add_u32 s62, s62, {STEP}\ns_cbranch_scc0 L_7_t\ns_branch L_7_tok'))
    a(f'ds_write_b16_d16_hi v15, v24 offset:{FH}')
    a(f'ds_write_b32 v31, v1 offset:{FC+28}' if nw4 else 's_waitcnt lgkmcnt(0)')
    a('''s_barrier
         s_bitcmp1_b32 s50, 0
         s_cbranch_scc1 L_fin3''')
    a(f'''ds_read_b32 v96, v3 offset:{FX}
          ds_read_b32 v100, v3 offset:{FG}
          s_cmp_eq_u32 s50, 0
          s_cbranch_scc0 L_7_e
          s_mov_b64 exec, 1
          v_mov_b32 v6, s30
          buffer_store_dword v6, v2, s[44:47], 0 offen
          s_mov_b64 exec, -1
          L_7_e:''')
    pad('s')
    a('s_barrier\ns_waitcnt lgkmcnt(0)')
    if d5: a(f'; back off one flight time: nothing can have arrived yet, and a read that is too early costs a whole round trip\ns_sleep {d5}')
    gather('L_x5', x5l, 36, 4, 5, issued=True, spec=sum_hi(36, 32))
    stamp(12)
    sum_lo(36, 32)
    pad('s')
    rscatter(32)
    a(f'v_add_f32_dpp v32, v32, v32 row_ror:8 {DPPF}')
    pad('s', True)
    a(f'v_add_f32_dpp v32, v32, v32 row_ror:4 {DPPF}')
    rnd('v32', 'v32'); a('v_mul_f32 v32, v100, v32'); rnd('v32', 'v32'); a('v_add_f32 v32, v96, v32\ns_mov_b64 exec, s[20:21]'); rnd('v32', 'v32')
    a('buffer_store_short_d16_hi v32, v101, s[36:39], 0 offen' + ofl)
    stamp(14)
    if lite: a('s_branch L_dump')
    a('L_fin3:')
    fin()
    for r in rare: r()
    rare.clear()
    a(f'''L_F8:
          s_lshl_b32 s48, s2, 7
          s_add_u32 s48, s48, {PRB}
          s_add_u32 s49, s48, {SIDE}
          s_mov_b32 s52, -1
          s_mov_b32 s53, -1
          s_mov_b32 s54, 0
          s_waitcnt lgkmcnt(0)''')
    if tlb:
        a(f'''s_lshl_b32 s50, s32, 25
              s_add_u32 s50, s50, {WINOFF}
              s_mov_b32 s51, {4096*896-4}
              s_load_dword s56, s[8:9], s50
              s_load_dword s57, s[12:13], 0
              s_load_dword s58, s[12:13], s51
              s_load_dword s59, s[16:17], 0
              s_load_dword s60, s[18:19], 0
              s_load_dword s61, s[24:25], 0''')
    dzero()
    if fside is not None:
        a(f'''s_getreg_b32 s55, hwreg(HW_REG_XCC_ID)
              s_bfe_u32 s55, s55, 0x10002
              s_xor_b32 s55, s55, {fside}
              s_lshl_b32 s55, s55, 13
              v_mov_b32 v3, s55
              ds_write_b32 v2, v3 offset:{FC+12}''')
    else:
        a('s_load_dword s10, s[28:29], s48 glc\ns_load_dword s11, s[28:29], s49 glc\ns_waitcnt lgkmcnt(0)\nL_8_l:')
        for sd in range(2):
            a(f'''s_memtime s[4:5]
                  s_waitcnt lgkmcnt(0)
                  s_load_dword s10, s[28:29], s{48+sd} glc
                  s_waitcnt lgkmcnt(0)
                  s_memtime s[6:7]
                  s_lshr_b32 s8, s33, {sd}
                  s_add_u32 s8, s8, s54
                  s_bitcmp1_b32 s8, 0
                  s_waitcnt lgkmcnt(0)
                  s_cbranch_scc0 L_8_n{sd}
                  s_sleep 3
                  L_8_n{sd}:
                  s_sub_u32 s4, s6, s4
                  s_min_u32 s{52+sd}, s{52+sd}, s4''')
        a(f'''s_cmp_lt_u32 s53, s52
              s_cselect_b32 s55, {SIDE}, 0
              v_mov_b32 v3, s55
              ds_write_b32 v2, v3 offset:{FC+12}''')
        if diag:
            for k in (1, 2, 3, 4): a(f's_cmp_eq_u32 s54, {k-1}\ns_cbranch_scc0 L_8_d{k}\ns_memrealtime s[{64+2*k}:{65+2*k}]\ns_add_u32 s{64+2*(k+4)}, s55, 1\nL_8_d{k}:')
        a(f'''s_add_u32 s54, s54, 1
              s_cmp_lt_u32 s54, {nprb}
              s_cbranch_scc1 L_8_l''')
    if diag:
        a('s_add_u32 s90, s55, 1\ns_getreg_b32 s88, hwreg(HW_REG_XCC_ID)\ns_mov_b32 s86, s52\ns_mov_b32 s84, s53')
        fin()
    else: a('s_endpgm')
    pfcode()
    if probe:
        a('L_probe:\ns_cmp_eq_u32 s68, 0\ns_cbranch_scc1 L_end')
        if len(probe) > 2 and probe[2] is not None: a(f's_cmp_eq_u32 s32, {probe[2]}\ns_cbranch_scc0 L_end')
        if len(probe) > 3 and probe[3] is not None: a(f's_cmp_eq_u32 s31, {probe[3]}\ns_cbranch_scc0 L_end')
        a('''s_setprio 0
             s_sleep 127
             s_sleep 127
             s_sleep 127
             s_sleep 127
             s_sleep 127
             L_probe_l:
             s_memrealtime s[66:67]
             s_waitcnt lgkmcnt(0)
             s_sub_u32 s66, s66, s64
             s_cmp_lt_u32 s66, 3000
             s_cbranch_scc1 L_probe_l
             s_endpgm''')
    if diag or lite:
        a(f'''L_dump:
              s_mov_b64 exec, -1
              s_waitcnt vmcnt(0) lgkmcnt(0)
              s_memrealtime s[94:95]
              s_lshl_b32 s48, s2, 4
              s_add_u32 s48, s48, s31
              s_lshl_b32 s48, s48, 6
              s_add_u32 s48, s48, {STAMP_OFF}
              v_mov_b32 v1, s48
              s_waitcnt lgkmcnt(0)''')
        for i in range(16): a(f'v_mov_b32 v{8+i}, s{64+2*i}')
        a('s_mov_b64 exec, 1')
        for i in range(4): a(f'global_store_dwordx4 v1, v[{8+4*i}:{11+4*i}], s[28:29] offset:{16*i}')
    a('L_end:\ns_endpgm\nL_code_end:')
    head = open('adaLN_cond__sliding_block_cached__dense_activation_silu__decode.s.ref').read().split('; Override launch')[0]
    return head + f'''; @launch grid=(256,1,1) block=(1024,1,1) lds={L_END}
{DOC.rstrip()}
.amdgcn_target "amdgcn-amd-amdhsa--gfx950"
.text
.globl {KN}
{'.p2align 12' if paged else ''}
.p2align 8
.type {KN},@function
''' + annotate(reorder(a.text()) if paged and ord3 else a.text()) + f'''.section .rodata,"a"
.p2align 6
.amdhsa_kernel {KN}
  .amdhsa_next_free_vgpr 128
  .amdhsa_next_free_sgpr {96 if rg is None else 102}
  .amdhsa_accum_offset 128
  .amdhsa_group_segment_fixed_size 0
  .amdhsa_kernarg_size 104
  .amdhsa_user_sgpr_count 2
  .amdhsa_user_sgpr_kernarg_segment_ptr 1
  .amdhsa_system_sgpr_workgroup_id_x 1
.end_amdhsa_kernel
'''

if __name__ == '__main__':
    out = sys.argv[1]
    kw = eval('dict(' + (sys.argv[2] if len(sys.argv) > 2 else '') + ')')
    open(out, 'w').write(gen(**kw))
```
